```python
import torch

def _softmax(x, axis=-1):
    return torch.softmax(x, dim=axis)
def _gelu(x):
    return torch.nn.functional.gelu(x, approximate="tanh")
def _silu(x):
    return torch.nn.functional.silu(x)
def _sigmoid(x):
    return torch.sigmoid(x)
def _layernorm(x, axis=-1, eps=1e-5):
    m = x.mean(dim=axis, keepdim=True)
    v = x.var(dim=axis, keepdim=True, unbiased=False)
    return (x - m) / torch.sqrt(v + eps)
def _scatter_add(tgt, idx, src, axis=0):
    return tgt.clone().index_add_(axis, idx, src)
def _segment_sum(src, seg, n):
    out = torch.zeros((n,) + src.shape[1:], dtype=src.dtype)
    return out.index_add_(0, seg, src)
def _pad(x, pw):
    flat = tuple(v for pair in reversed(pw) for v in pair)
    return torch.nn.functional.pad(x, flat)

kernel_name = 'standalone__kv_cache_quant_int4_int2_kv_with_per_channel_or_per_token_scales__decode'

def setup_inputs():

    _w = (lambda a: (lambda t: t.to(torch.bfloat16) if t.is_floating_point() else t)(torch.as_tensor(a)))
    B = 2
    Sq = 1
    Skv = 32768
    Hq = 32
    Hkv = 8
    Dh = 128
    bits = 8
    G = 128
    if G <= 0 or G >= Skv:
        G = max(1, Skv // 2)
    Skv = (Skv // G) * G
    ngk = Skv // G
    qmax = (1 << bits) - 1
    return {
        "q": _w((lambda *s: torch.randn(*s, dtype=torch.bfloat16) * 0.4)(B, Hq, Sq, Dh)),
        "qk": _w(torch.randint(0, qmax + 1, (B, Hkv, Skv, Dh)).to(torch.int32)),
        "qv": _w(torch.randint(0, qmax + 1, (B, Hkv, Skv, Dh)).to(torch.int32)),
        "k_scales": _w(torch.abs((lambda *s: torch.randn(*s, dtype=torch.bfloat16) * 0.4)(B, Hkv, ngk, Dh)) * 0.05 + 0.02),
        "k_zeros": _w((lambda *s: torch.randn(*s, dtype=torch.bfloat16) * 0.4)(B, Hkv, ngk, Dh) + float(qmax) / 2.0),
        "v_scales": _w(torch.abs((lambda *s: torch.randn(*s, dtype=torch.bfloat16) * 0.05)(B, Hkv, Skv, 1)) * 0.05 + 0.02),
        "v_zeros": _w((lambda *s: torch.randn(*s, dtype=torch.bfloat16) * 0.05)(B, Hkv, Skv, 1) + float(qmax) / 2.0),
    }

def reference(q, qk, qv, k_scales, k_zeros, v_scales, v_zeros):
    B, Hq, Sq, Dh = q.shape
    Hkv, Skv = qk.shape[1], qk.shape[2]
    ngk = k_scales.shape[2]
    G = Skv // ngk
    ks = (lambda x, n, axis: torch.repeat_interleave(x, n, dim=axis))(k_scales, G, axis=2)
    kz = (lambda x, n, axis: torch.repeat_interleave(x, n, dim=axis))(k_zeros, G, axis=2)
    k = ((lambda x, dt: x.to(dt))(qk, q.dtype) - kz) * ks
    v = ((lambda x, dt: x.to(dt))(qv, q.dtype) - v_zeros) * v_scales
    rep = Hq // Hkv
    if rep > 1:
        k = (lambda x, n, axis: torch.repeat_interleave(x, n, dim=axis))(k, rep, axis=1)
        v = (lambda x, n, axis: torch.repeat_interleave(x, n, dim=axis))(v, rep, axis=1)
    scale = float(Dh) ** -0.5
    logits = torch.einsum("bhqd,bhkd->bhqk", q, k) * scale
    p = _softmax(logits, axis=-1)
    o = torch.einsum("bhqk,bhkd->bhqd", p, v)
    return o
```

```python
import sys, os
KN = 'standalone__kv_cache_quant_int4_int2_kv_with_per_channel_or_per_token_scales__decode_kernel'
K2 = 'combine_kernel'

HEADCOMMENT = '''; Kernarg layout for this problem (80 bytes, ptrs only, base s[0:1]):
'''

class Alloc:
    def __init__(self, start, limit):
        self.n = start; self.limit = limit; self.names = {}
    def get(self, name, cnt=1, align=1):
        self.n = (self.n + align - 1) // align * align
        r = self.n; self.n += cnt
        assert self.n <= self.limit, (name, self.n)
        self.names[name] = r
        return r

def vr(r, n=1):
    return f'v{r}' if n == 1 else f'v[{r}:{r+n-1}]'
def sr(r, n=1):
    return f's{r}' if n == 1 else f's[{r}:{r+n-1}]'

PSTRIDE = 4096
QROW = 288
WLDS = 1536
CEXP = 0.08838834764831845 * 1.4426950408889634

def f32hex(x):
    import struct
    return '0x%08x' % struct.unpack('<I', struct.pack('<f', x))[0]

def gen(nw=8, P=16, perm='tr', bar=1, pol='nt', fused=0, prof=0, spol=''):
    nwg = 16 * P
    NS = 32768 // (P * nw * 16)
    nthr = nw * 64
    out = []
    a = out.append
    V = Alloc(1, 256); S = Alloc(3, 100)
    sWave = S.get('wave')
    sKA = S.get('ka', 16, 4)
    sKB = S.get('kb', 4, 4)
    srdK = S.get('srdK', 4, 4); srdV = S.get('srdV', 4, 4)
    srdKS = S.get('srdKS', 4, 4); srdKZ = S.get('srdKZ', 4, 4)
    srdVS = S.get('srdVS', 4, 4); srdVZ = S.get('srdVZ', 4, 4)
    srdT = S.get('srdT', 4, 4)
    sHk = S.get('hk'); sJ = S.get('j')
    sOffK = S.get('offK'); sOffS = S.get('offS'); sOffG = S.get('offG')
    sCnt = S.get('cnt'); sT0 = S.get('t0'); sT1 = S.get('t1')
    sAl = S.get('al', 4, 4)
    sMask = S.get('mask')
    sEx = S.get('ex', 2, 2)
    sTime = S.get('time', 4, 2)
    vLane = V.get('lane')
    vKoff = V.get('koff'); vVoff = V.get('voff'); vSoff = V.get('soff'); vKsOff = V.get('ksoff'); vKzOff = V.get('kzoff')
    vLqW = V.get('lqw'); vLzW = V.get('lzw'); vLqR = V.get('lqr'); vLzR = V.get('lzr')
    vM = V.get('m'); vL = V.get('l'); vAl = V.get('alpha')
    vT = V.get('t', 8, 2)
    vQc = V.get('qc', 8, 4)
    vKs = V.get('ks', 4, 4); vKz = V.get('kz'); vVs = V.get('vs', 2, 2); vVz = V.get('vz', 2, 2)
    vQw = V.get('qw', 4, 4)
    vP = V.get('p', 2, 2)
    vS = V.get('s', 4, 4)
    vAz = V.get('az', 4, 4)
    vAcc = V.get('acc', 32, 4)
    vQB = V.get('qb', 16, 4)
    vPK = V.get('pk', 16, 4)
    vKr = V.get('kraw', 32, 4)
    vVr = V.get('vraw', 32, 4)
    nvgpr = V.n

    a(f'{KN}:')
    a(f's_cmp_ge_u32 s2, {nwg}')
    a('s_cbranch_scc1 L_end')
    a(f's_load_dwordx16 {sr(sKA,16)}, s[0:1], 0')
    a(f's_load_dwordx4 {sr(sKB,4)}, s[0:1], 64')
    if prof: a(f's_memrealtime {sr(sTime,2)}')
    a(f'v_lshrrev_b32 {vr(vT)}, 6, v0')
    a(f'v_and_b32 {vr(vLane)}, 63, v0')
    a(f's_lshr_b32 {sr(sHk)}, s2, {P.bit_length()-1}')
    a(f'v_readfirstlane_b32 {sr(sWave)}, {vr(vT)}')
    a(f's_and_b32 {sr(sJ)}, s2, {P-1}')
    n15, g4 = vT + 1, vT + 2
    a(f'v_and_b32 {vr(n15)}, 15, {vr(vLane)}')
    a(f'v_lshrrev_b32 {vr(g4)}, 4, {vr(vLane)}')
    a(f'v_lshlrev_b32 {vr(vKsOff)}, 4, {vr(n15)}')
    a(f'v_lshlrev_b32 {vr(vT+3)}, 9, {vr(n15)}')
    a(f'v_lshl_add_u32 {vr(vKoff)}, {vr(g4)}, 4, {vr(vT+3)}')
    a(f'v_lshl_add_u32 {vr(vVoff)}, {vr(g4)}, 11, {vr(vKsOff)}')
    a(f'v_lshlrev_b32 {vr(vSoff)}, 3, {vr(g4)}')
    a(f'v_lshlrev_b32 {vr(vKzOff)}, 2, {vr(vLane)}')
    a(f's_mul_i32 {sr(sT0)}, {sr(sWave)}, {WLDS}')
    a(f'v_mul_u32_u24 {vr(vT+3)}, {QROW}, {vr(g4)}')
    a(f'v_add3_u32 {vr(vLqW)}, {vr(vT+3)}, {vr(vKsOff)}, {sr(sT0)}')
    a(f'v_add_u32 {vr(vLzW)}, {sr(sT0)}, {vr(vKzOff)}')
    a(f'v_add_u32 {vr(vLzW)}, {4*QROW}, {vr(vLzW)}')
    a(f'v_and_b32 {vr(vT+3)}, 3, {vr(vLane)}')
    a(f'v_mul_u32_u24 {vr(vT+3)}, {QROW}, {vr(vT+3)}')
    a(f'v_add3_u32 {vr(vLqR)}, {vr(vT+3)}, {vr(vSoff)}, {sr(sT0)}')
    a(f'v_add_u32 {vr(vLzR)}, {sr(sT0)}, {vr(vSoff)}')
    a(f'v_add_u32 {vr(vLzR)}, {4*QROW}, {vr(vLzR)}')
    a(f's_mov_b32 {sr(sMask)}, 0xffff0000')
    if perm == 'tr':
        a(f's_mul_i32 {sr(sOffK)}, {sr(sJ)}, {(32768 // P) * 512}'); stride = nw * 16 * 512
    else:
        a(f's_mul_i32 {sr(sOffK)}, {sr(sJ)}, {nw * 16 * 512}'); stride = P * nw * 16 * 512
    a(f's_lshl_b32 {sr(sT0)}, {sr(sWave)}, 13')
    a(f's_add_u32 {sr(sOffK)}, {sr(sOffK)}, {sr(sT0)}')
    a('s_waitcnt lgkmcnt(0)')
    def srd(dst, ptr, off_s, off_shift, nbytes):
        a(f's_lshl_b32 {sr(sT0)}, {sr(off_s)}, {off_shift}')
        a(f's_add_u32 {sr(dst)}, {sr(ptr)}, {sr(sT0)}')
        a(f's_addc_u32 {sr(dst+1)}, {sr(ptr+1)}, 0')
        a(f's_and_b32 {sr(dst+1)}, {sr(dst+1)}, 0xffff')
        a(f's_mov_b32 {sr(dst+2)}, {nbytes}')
        a(f's_mov_b32 {sr(dst+3)}, 0x20000')
    q_, qk_, qv_, ks_, kz_, vs_, vz_, o_ = [sKA + 2 * i for i in range(8)]
    dbg_, ws_ = sKB, sKB + 2
    srd(srdT, q_, sHk, 10, 1024)
    srd(srdK, qk_, sHk, 24, 1 << 24)
    srd(srdV, qv_, sHk, 24, 1 << 24)
    srd(srdKS, ks_, sHk, 16, 1 << 16)
    srd(srdKZ, kz_, sHk, 16, 1 << 16)
    srd(srdVS, vs_, sHk, 16, 1 << 16)
    srd(srdVZ, vz_, sHk, 16, 1 << 16)
    def offs():
        a(f's_lshr_b32 {sr(sOffS)}, {sr(sOffK)}, 8')
        a(f's_and_b32 {sr(sOffG)}, {sr(sOffS)}, 0xffffff00')
    def ld_ks():
        a(f'buffer_load_dwordx4 {vr(vKs,4)}, {vr(vKsOff)}, {sr(srdKS,4)}, {sr(sOffG)} offen {spol}')
        a(f'buffer_load_dword {vr(vKz)}, {vr(vKzOff)}, {sr(srdKZ,4)}, {sr(sOffG)} offen {spol}')
    def ld_K():
        for i in range(8):
            a(f'buffer_load_dwordx4 {vr(vKr+4*i,4)}, {vr(vKoff)}, {sr(srdK,4)}, {sr(sOffK)} offen offset:{i*64} {pol}')
    def ld_vs():
        a(f'buffer_load_dwordx2 {vr(vVs,2)}, {vr(vSoff)}, {sr(srdVS,4)}, {sr(sOffS)} offen {spol}')
        a(f'buffer_load_dwordx2 {vr(vVz,2)}, {vr(vSoff)}, {sr(srdVZ,4)}, {sr(sOffS)} offen {spol}')
    def ld_V():
        for j in range(4):
            for h in range(2):
                a(f'buffer_load_dwordx4 {vr(vVr+4*(2*j+h),4)}, {vr(vVoff)}, {sr(srdV,4)}, {sr(sOffK)} offen offset:{j*512+h*256} {pol}')
    a(f'v_lshl_add_u32 {vr(vT+3)}, {vr(g4)}, 8, {vr(vKsOff)}')
    a(f'buffer_load_dwordx4 {vr(vQw,4)}, {vr(vT+3)}, {sr(srdT,4)}, 0 offen')
    offs()
    ld_ks(); ld_K(); ld_vs(); ld_V()
    a(f'v_mov_b32 {vr(vM)}, 0xff800000')
    a(f'v_mov_b32 {vr(vL)}, 0')
    for i in range(4): a(f'v_mov_b32 {vr(vAz+i)}, 0')
    for i in range(32): a(f'v_mov_b32 {vr(vAcc+i)}, 0')
    a(f's_mov_b32 {sr(sT1)}, {f32hex(CEXP)}')
    a('s_waitcnt vmcnt(20)')
    for i in range(4):
        a(f'v_lshlrev_b32 {vr(vQc+2*i)}, 16, {vr(vQw+i)}')
        a(f'v_and_b32 {vr(vQc+2*i+1)}, {sr(sMask)}, {vr(vQw+i)}')
    for i in range(8):
        a(f'v_mul_f32 {vr(vQc+i)}, {sr(sT1)}, {vr(vQc+i)}')
    a(f's_mov_b32 {sr(sCnt)}, {NS-1}')

    def step(pf, tag):
        a('s_waitcnt vmcnt(18)')
        for i in range(4):
            a(f'v_lshlrev_b32 {vr(vT)}, 16, {vr(vKs+i)}')
            a(f'v_and_b32 {vr(vT+1)}, {sr(sMask)}, {vr(vKs+i)}')
            a(f'v_mul_f32 {vr(vT)}, {vr(vT)}, {vr(vQc+2*i)}')
            a(f'v_mul_f32 {vr(vT+1)}, {vr(vT+1)}, {vr(vQc+2*i+1)}')
            a(f'v_cvt_pk_bf16_f32 {vr(vQw+i)}, {vr(vT)}, {vr(vT+1)}')
        a(f'v_xor_b32 {vr(vT+2)}, 0x80008000, {vr(vKz)}')
        a(f'ds_write_b128 {vr(vLqW)}, {vr(vQw,4)}')
        a(f'ds_write_b32 {vr(vLzW)}, {vr(vT+2)}')
        if pf:
            a(f's_add_u32 {sr(sOffK)}, {sr(sOffK)}, {stride}')
            offs()
            ld_ks()
        for s in range(4):
            a(f'ds_read2_b64 {vr(vQB+4*s,4)}, {vr(vLqR)} offset0:{8*s} offset1:{8*s+4}')
        for s in range(4):
            a(f'ds_read2_b64 {vr(vPK+4*s,4)}, {vr(vLzR)} offset0:{8*s} offset1:{8*s+4}')
        a('s_waitcnt lgkmcnt(0)')
        for s in range(4):
            c = '0' if s == 0 else vr(vS, 4)
            a(f'v_mfma_f32_16x16x32_bf16 {vr(vS,4)}, {vr(vPK+4*s,4)}, {vr(vQB+4*s,4)}, {c}')
        a(f's_waitcnt vmcnt({12 if pf else 10})')
        for i in range(8):
            for c in range(4):
                a(f'v_cvt_f32_i32 {vr(vKr+4*i+c)}, {vr(vKr+4*i+c)}')
            d = vPK + 4 * (i // 2) + 2 * (i % 2)
            a(f'v_cvt_pk_bf16_f32 {vr(d)}, {vr(vKr+4*i)}, {vr(vKr+4*i+1)}')
            a(f'v_cvt_pk_bf16_f32 {vr(d+1)}, {vr(vKr+4*i+2)}, {vr(vKr+4*i+3)}')
        if pf: ld_K()
        else: a('s_nop 1')
        for s in range(4):
            a(f'v_mfma_f32_16x16x32_bf16 {vr(vS,4)}, {vr(vPK+4*s,4)}, {vr(vQB+4*s,4)}, {vr(vS,4)}')
        a(f's_waitcnt vmcnt({18 if pf else 8})')
        f = vT + 4
        a(f'v_lshlrev_b32 {vr(f)}, 16, {vr(vVs)}')
        a(f'v_and_b32 {vr(f+1)}, {sr(sMask)}, {vr(vVs)}')
        a(f'v_lshlrev_b32 {vr(f+2)}, 16, {vr(vVs+1)}')
        a(f'v_and_b32 {vr(f+3)}, {sr(sMask)}, {vr(vVs+1)}')
        a('s_nop 4')
        a(f'v_max3_f32 {vr(vT)}, {vr(vS)}, {vr(vS+1)}, {vr(vS+2)}')
        a(f'v_max_f32 {vr(vT)}, {vr(vT)}, {vr(vS+3)}')
        a(f'v_mov_b32 {vr(vT+1)}, {vr(vT)}')
        a('s_nop 1')
        a(f'v_permlane16_swap_b32 {vr(vT)}, {vr(vT+1)}')
        a('s_nop 1')
        a(f'v_max_f32 {vr(vT)}, {vr(vT)}, {vr(vT+1)}')
        a(f'v_mov_b32 {vr(vT+1)}, {vr(vT)}')
        a('s_nop 1')
        a(f'v_permlane32_swap_b32 {vr(vT)}, {vr(vT+1)}')
        a('s_nop 1')
        a(f'v_max3_f32 {vr(vT)}, {vr(vT)}, {vr(vT+1)}, {vr(vM)}')
        a(f'v_sub_f32 {vr(vAl)}, {vr(vM)}, {vr(vT)}')
        a(f'v_cmp_gt_f32 vcc, {vr(vT)}, {vr(vM)}')
        a(f'v_mov_b32 {vr(vM)}, {vr(vT)}')
        a(f'v_exp_f32 {vr(vAl)}, {vr(vAl)}')
        for r in range(4):
            a(f'v_sub_f32 {vr(vS+r)}, {vr(vS+r)}, {vr(vM)}')
        for r in range(4):
            a(f'v_exp_f32 {vr(vS+r)}, {vr(vS+r)}')
        a(f's_cbranch_vccz L_nors_{tag}')
        for r in range(4):
            a(f'v_readlane_b32 {sr(sAl+r)}, {vr(vAl)}, {r}')
        a('s_nop 1')
        for i in range(8):
            for r in range(4):
                a(f'v_mul_f32 {vr(vAcc+4*i+r)}, {sr(sAl+r)}, {vr(vAcc+4*i+r)}')
        for r in range(4):
            a(f'v_mul_f32 {vr(vAz+r)}, {sr(sAl+r)}, {vr(vAz+r)}')
        a(f'L_nors_{tag}:')
        a(f'v_add_f32 {vr(vT)}, {vr(vS)}, {vr(vS+1)}')
        a(f'v_add_f32 {vr(vT+1)}, {vr(vS+2)}, {vr(vS+3)}')
        a(f'v_fma_f32 {vr(vL)}, {vr(vL)}, {vr(vAl)}, {vr(vT)}')
        for r in range(4):
            a(f'v_mul_f32 {vr(vS+r)}, {vr(vS+r)}, {vr(f+r)}')
        a(f'v_add_f32 {vr(vL)}, {vr(vL)}, {vr(vT+1)}')
        a(f'v_cvt_pk_bf16_f32 {vr(vP)}, {vr(vS)}, {vr(vS+1)}')
        a(f'v_cvt_pk_bf16_f32 {vr(vP+1)}, {vr(vS+2)}, {vr(vS+3)}')
        a('s_nop 1')
        a(f'v_mfma_f32_16x16x16_bf16 {vr(vAz,4)}, {vr(vP,2)}, {vr(vVz,2)}, {vr(vAz,4)}')
        a(f's_waitcnt vmcnt({10 if pf else 0})')
        for h in range(2):
            for c in range(4):
                for j in range(4):
                    r = vVr + 4 * (2 * j + h) + c
                    a(f'v_cvt_f32_i32 {vr(r)}, {vr(r)}')
                d = vPK + 2 * (4 * h + c)
                R = lambda j: vVr + 4 * (2 * j + h) + c
                a(f'v_cvt_pk_bf16_f32 {vr(d)}, {vr(R(0))}, {vr(R(1))}')
                a(f'v_cvt_pk_bf16_f32 {vr(d+1)}, {vr(R(2))}, {vr(R(3))}')
        if pf:
            ld_vs(); ld_V()
        else: a('s_nop 1')
        for i in range(8):
            a(f'v_mfma_f32_16x16x16_bf16 {vr(vAcc+4*i,4)}, {vr(vP,2)}, {vr(vPK+2*i,2)}, {vr(vAcc+4*i,4)}')

    if NS > 1:
        a('L_loop:')
        step(1, 'loop')
        if bar: a('s_barrier')
        a(f's_sub_u32 {sr(sCnt)}, {sr(sCnt)}, 1')
        a(f's_cmp_lg_u32 {sr(sCnt)}, 0')
        a('s_cbranch_scc1 L_loop')
    step(0, 'last')

    OB = nw * WLDS
    MB = OB + nw * 2048
    lds_bytes = MB + 2 * 4 * nw * 4
    a(f'v_mov_b32 {vr(vT+1)}, {vr(vL)}')
    a('s_nop 1')
    a(f'v_permlane16_swap_b32 {vr(vL)}, {vr(vT+1)}')
    a('s_nop 1')
    a(f'v_add_f32 {vr(vL)}, {vr(vL)}, {vr(vT+1)}')
    a(f'v_mov_b32 {vr(vT+1)}, {vr(vL)}')
    a('s_nop 1')
    a(f'v_permlane32_swap_b32 {vr(vL)}, {vr(vT+1)}')
    a('s_nop 1')
    a(f'v_add_f32 {vr(vL)}, {vr(vL)}, {vr(vT+1)}')
    a('s_nop 7')
    for i in range(8):
        for r in range(4):
            a(f'v_sub_f32 {vr(vAcc+4*i+r)}, {vr(vAcc+4*i+r)}, {vr(vAz+r)}')
    a(f's_lshl_b32 {sr(sT0)}, {sr(sWave)}, 11')
    a(f's_add_u32 {sr(sT0)}, {sr(sT0)}, {OB}')
    a(f'v_add_u32 {vr(vT)}, {sr(sT0)}, {vr(vKsOff)}')
    a(f's_lshl_b32 {sr(sT1)}, {sr(sWave)}, 2')
    a(f's_add_u32 {sr(sT1)}, {sr(sT1)}, {MB}')
    a(f'v_mul_u32_u24 {vr(vT+2)}, {nw*4}, {vr(vLane)}')
    a(f'v_add_u32 {vr(vT+2)}, {sr(sT1)}, {vr(vT+2)}')
    a('s_mov_b64 exec, 0xffff')
    for i in range(8):
        a(f'ds_write_b128 {vr(vT)}, {vr(vAcc+4*i,4)} offset:{i*256}')
    a('s_mov_b64 exec, 0xf')
    a(f'ds_write_b32 {vr(vT+2)}, {vr(vM)}')
    a(f'ds_write_b32 {vr(vT+2)}, {vr(vL)} offset:{4*nw*4}')
    a('s_mov_b64 exec, -1')
    a('s_waitcnt lgkmcnt(0)')
    a('s_barrier')
    vMl = vKr
    vO = vKr + 16
    vRes = vVr
    a(f'v_and_b32 {vr(vT)}, 3, v0')
    a(f'v_mul_u32_u24 {vr(vT)}, {nw*4}, {vr(vT)}')
    a(f'v_add_u32 {vr(vT)}, {MB}, {vr(vT)}')
    for k in range(nw // 4):
        a(f'ds_read_b128 {vr(vMl+4*k,4)}, {vr(vT)} offset:{16*k}')
        a(f'ds_read_b128 {vr(vMl+8+4*k,4)}, {vr(vT)} offset:{4*nw*4+16*k}')
    a(f'v_lshlrev_b32 {vr(vT+1)}, 2, v0')
    a(f'v_add_u32 {vr(vT+2)}, {OB}, {vr(vT+1)}')
    nch = 512 // nthr
    for ch in range(nch):
        for w in range(nw):
            a(f'ds_read_b32 {vr(vO+ch*nw+w)}, {vr(vT+2)} offset:{w*2048+ch*nthr*4}')
    a('s_waitcnt lgkmcnt(0)')
    vMx = vT + 3
    a(f'v_max3_f32 {vr(vMx)}, {vr(vMl)}, {vr(vMl+1)}, {vr(vMl+2)}')
    for w in range(3, nw):
        a(f'v_max_f32 {vr(vMx)}, {vr(vMx)}, {vr(vMl+w)}')
    for w in range(nw):
        a(f'v_sub_f32 {vr(vMl+w)}, {vr(vMl+w)}, {vr(vMx)}')
    for w in range(nw):
        a(f'v_exp_f32 {vr(vMl+w)}, {vr(vMl+w)}')
    a('s_nop 0')
    vLs = vT + 4
    a(f'v_mul_f32 {vr(vLs)}, {vr(vMl)}, {vr(vMl+8)}')
    for w in range(1, nw):
        a(f'v_fmac_f32 {vr(vLs)}, {vr(vMl+w)}, {vr(vMl+8+w)}')
    for ch in range(nch):
        a(f'v_mul_f32 {vr(vRes+ch)}, {vr(vMl)}, {vr(vO+ch*nw)}')
        for w in range(1, nw):
            a(f'v_fmac_f32 {vr(vRes+ch)}, {vr(vMl+w)}, {vr(vO+ch*nw+w)}')
    a(f's_mul_i32 {sr(sT1)}, s2, {PSTRIDE}')
    a(f's_add_u32 {sr(srdT)}, {sr(ws_)}, {sr(sT1)}')
    a(f's_addc_u32 {sr(srdT+1)}, {sr(ws_+1)}, 0')
    a(f's_and_b32 {sr(srdT+1)}, {sr(srdT+1)}, 0xffff')
    a(f's_mov_b32 {sr(srdT+2)}, {PSTRIDE}')
    a(f's_mov_b32 {sr(srdT+3)}, 0x20000')
    for ch in range(nch):
        a(f'buffer_store_dword {vr(vRes+ch)}, {vr(vT+1)}, {sr(srdT,4)}, 0 offen offset:{ch*nthr*4}')
    a('v_cmp_gt_u32 vcc, 4, v0')
    a(f's_and_saveexec_b64 {sr(sEx,2)}, vcc')
    a('s_cbranch_execz L_nost')
    a(f'buffer_store_dword {vr(vMx)}, {vr(vT+1)}, {sr(srdT,4)}, 0 offen offset:2048')
    a(f'buffer_store_dword {vr(vLs)}, {vr(vT+1)}, {sr(srdT,4)}, 0 offen offset:2064')
    a('L_nost:')
    a(f's_mov_b64 exec, {sr(sEx,2)}')
    if prof:
        a('s_waitcnt vmcnt(0)')
        a(f's_memrealtime {sr(sTime+2,2)}')
        a(f's_getreg_b32 {sr(sT0)}, hwreg(HW_REG_XCC_ID)')
        a('s_waitcnt lgkmcnt(0)')
        a(f's_add_u32 {sr(srdT)}, {sr(ws_)}, 0x4000000')
        a(f's_addc_u32 {sr(srdT+1)}, {sr(ws_+1)}, 0')
        a(f's_and_b32 {sr(srdT+1)}, {sr(srdT+1)}, 0xffff')
        a(f's_mov_b32 {sr(srdT+2)}, 0x100000')
        a(f's_mul_i32 {sr(sT1)}, s2, {nw}'); a(f's_add_u32 {sr(sT1)}, {sr(sT1)}, {sr(sWave)}'); a(f's_lshl_b32 {sr(sT1)}, {sr(sT1)}, 5')
        for i in range(4): a(f'v_mov_b32 {vr(vKr+i)}, {sr(sTime+i)}')
        a(f'v_mov_b32 {vr(vKr+4)}, {sr(sT0)}'); a(f'v_mov_b32 {vr(vKr+5)}, 0'); a(f'v_mov_b32 {vr(vKr+6)}, s2'); a(f'v_mov_b32 {vr(vKr+7)}, {sr(sWave)}')
        a(f'v_mov_b32 {vr(vT)}, 0')
        a('s_mov_b64 exec, 1')
        a(f'buffer_store_dwordx4 {vr(vKr,4)}, {vr(vT)}, {sr(srdT,4)}, {sr(sT1)} offen')
        a(f'buffer_store_dwordx4 {vr(vKr+4,4)}, {vr(vT)}, {sr(srdT,4)}, {sr(sT1)} offen offset:16')
    a('L_end:')
    a('s_endpgm')
    main = '\n'.join(out)

    out = []; a = out.append
    a(f'{K2}:')
    a('s_cmp_ge_u32 s2, 16')
    a('s_cbranch_scc1 L2_end')
    a('s_load_dwordx2 s[4:5], s[0:1], 72')
    a('s_load_dwordx2 s[6:7], s[0:1], 56')
    a('v_lshlrev_b32 v1, 2, v0')
    a('v_and_b32 v2, 3, v0')
    a('v_lshlrev_b32 v2, 2, v2')
    a('s_waitcnt lgkmcnt(0)')
    a(f's_mul_i32 s3, s2, {P*PSTRIDE}')
    a('s_add_u32 s8, s4, s3'); a('s_addc_u32 s9, s5, 0'); a('s_and_b32 s9, s9, 0xffff')
    a(f's_mov_b32 s10, {P*PSTRIDE}'); a('s_mov_b32 s11, 0x20000')
    vO, vMm, vLl = 8, 8 + P, 8 + 2 * P
    for w in range(P):
        a(f's_mov_b32 s16, {w*PSTRIDE}')
        a(f'buffer_load_dword v{vMm+w}, v2, s[8:11], s16 offen offset:2048')
        a(f'buffer_load_dword v{vLl+w}, v2, s[8:11], s16 offen offset:2064')
        a(f'buffer_load_dword v{vO+w}, v1, s[8:11], s16 offen')
    a('v_and_b32 v3, 3, v0'); a('v_lshlrev_b32 v3, 7, v3')
    a('v_lshrrev_b32 v4, 8, v0'); a('v_lshl_add_u32 v3, v4, 6, v3')
    a('v_bfe_u32 v4, v0, 2, 4'); a('v_lshl_add_u32 v3, v4, 2, v3')
    a('v_bfe_u32 v4, v0, 6, 2'); a('v_add_u32 v3, v3, v4')
    a('v_lshlrev_b32 v3, 1, v3')
    a('s_lshl_b32 s3, s2, 10')
    a('s_add_u32 s12, s6, s3'); a('s_addc_u32 s13, s7, 0'); a('s_and_b32 s13, s13, 0xffff')
    a('s_mov_b32 s14, 1024'); a('s_mov_b32 s15, 0x20000')
    a('s_waitcnt vmcnt(0)')
    a(f'v_max3_f32 v5, v{vMm}, v{vMm+1}, v{vMm+2}')
    for w in range(3, P): a(f'v_max_f32 v5, v5, v{vMm+w}')
    for w in range(P): a(f'v_sub_f32 v{vMm+w}, v{vMm+w}, v5')
    for w in range(P): a(f'v_exp_f32 v{vMm+w}, v{vMm+w}')
    a('s_nop 0')
    a(f'v_mul_f32 v6, v{vMm}, v{vLl}'); a(f'v_mul_f32 v7, v{vMm}, v{vO}')
    for w in range(1, P):
        a(f'v_fmac_f32 v6, v{vMm+w}, v{vLl+w}'); a(f'v_fmac_f32 v7, v{vMm+w}, v{vO+w}')
    a('v_rcp_f32 v4, v6')
    a('s_nop 0')
    a('v_fma_f32 v5, -v6, v4, 1.0')
    a('v_fmac_f32 v4, v5, v4')
    a('v_mul_f32 v7, v7, v4')
    a('v_cvt_pk_bf16_f32 v7, v7, v7')
    a('buffer_store_short v7, v3, s[12:15], 0 offen')
    a('L2_end:')
    a('s_endpgm')
    comb = '\n'.join(out)
    nv2 = 8 + 3 * P

    def kd(name, vg, sg):
        acc = (vg + 3) // 4 * 4
        return f'''.amdhsa_kernel {name}
  .amdhsa_next_free_vgpr {vg}
  .amdhsa_next_free_sgpr {sg}
  .amdhsa_accum_offset {acc}
  .amdhsa_group_segment_fixed_size 0
  .amdhsa_kernarg_size 80
  .amdhsa_user_sgpr_count 2
  .amdhsa_user_sgpr_kernarg_segment_ptr 1
  .amdhsa_system_sgpr_workgroup_id_x 1
  .amdhsa_float_denorm_mode_32 3
.end_amdhsa_kernel
'''
    src = HEADCOMMENT
    src += f'; @launch kernel={KN} grid=({nwg},1,1) block=({nthr},1,1) lds={lds_bytes}\n'
    src += f'; @launch kernel={K2} grid=(16,1,1) block=(512,1,1) lds=0\n'
    src += '.amdgcn_target "amdgcn-amd-amdhsa--gfx950"\n.text\n'
    src += f'.globl {KN}\n.p2align 8\n.type {KN},@function\n{main}\n'
    src += f'.globl {K2}\n.p2align 8\n.type {K2},@function\n{comb}\n'
    src += '.section .rodata,"a"\n.p2align 6\n' + kd(KN, nvgpr, S.n) + '.p2align 6\n' + kd(K2, nv2, 24)
    launches = [(KN, nwg, nthr, lds_bytes), (K2, 16, 512, 0)]
    return src, launches

if __name__ == '__main__':
    import argparse
    ap = argparse.ArgumentParser()
    ap.add_argument('-o', default='out.s')
    ap.add_argument('kv', nargs='*')
    args = ap.parse_args()
    kw = {}
    for x in args.kv:
        k, v = x.split('=')
        try: v = int(v)
        except: pass
        kw[k] = v
    src, l = gen(**kw)
    open(args.o, 'w').write(src)
    print(l)
```

```python
import sys, os
KN = 'standalone__kv_cache_quant_int4_int2_kv_with_per_channel_or_per_token_scales__decode_kernel'
K2 = 'combine_kernel'

HEADCOMMENT = '''; Kernarg layout for this problem (80 bytes, ptrs only, base s[0:1]):
'''

class Alloc:
    def __init__(self, start, limit):
        self.n = start; self.limit = limit; self.names = {}
    def get(self, name, cnt=1, align=1):
        self.n = (self.n + align - 1) // align * align
        r = self.n; self.n += cnt
        assert self.n <= self.limit, (name, self.n)
        self.names[name] = r
        return r

def vr(r, n=1):
    return f'v{r}' if n == 1 else f'v[{r}:{r+n-1}]'
def sr(r, n=1):
    return f's{r}' if n == 1 else f's[{r}:{r+n-1}]'

PSTRIDE = 4096
QROW = 288
WLDS = 1536
CEXP = 0.08838834764831845 * 1.4426950408889634

def f32hex(x):
    import struct
    return '0x%08x' % struct.unpack('<I', struct.pack('<f', x))[0]

def gen(nw=8, P=16, perm='tr', bar=1, pol='nt', fused=0, prof=0, spol='nt', cshift=2):
    nwg = 16 * P
    NS = 32768 // (P * nw * 16)
    nthr = nw * 64
    out = []
    a = out.append
    V = Alloc(1, 256); S = Alloc(3, 100)
    sWave = S.get('wave')
    sKA = S.get('ka', 16, 4)
    sKB = S.get('kb', 4, 4)
    srdK = S.get('srdK', 4, 4); srdV = S.get('srdV', 4, 4)
    srdKS = S.get('srdKS', 4, 4); srdKZ = S.get('srdKZ', 4, 4)
    srdVS = S.get('srdVS', 4, 4); srdVZ = S.get('srdVZ', 4, 4)
    srdT = S.get('srdT', 4, 4)
    sHk = S.get('hk'); sJ = S.get('j')
    sOffK = S.get('offK'); sOffS = S.get('offS'); sOffG = S.get('offG')
    sCnt = S.get('cnt'); sT0 = S.get('t0'); sT1 = S.get('t1')
    sAl = S.get('al', 4, 4)
    sMask = S.get('mask')
    sEx = S.get('ex', 2, 2)
    sTime = S.get('time', 4, 2)
    vLane = V.get('lane')
    vKoff = V.get('koff'); vVoff = V.get('voff'); vSoff = V.get('soff'); vKsOff = V.get('ksoff'); vKzOff = V.get('kzoff')
    vLqW = V.get('lqw'); vLzW = V.get('lzw'); vLqR = V.get('lqr'); vLzR = V.get('lzr')
    vM = V.get('m'); vL = V.get('l'); vAl = V.get('alpha')
    vT = V.get('t', 8, 2)
    vQc = V.get('qc', 8, 4)
    vKs = V.get('ks', 4, 4); vKz = V.get('kz'); vVs = V.get('vs', 2, 2); vVz = V.get('vz', 2, 2)
    vQw = V.get('qw', 4, 4)
    vP = V.get('p', 2, 2)
    vS = V.get('s', 4, 4)
    vAz = V.get('az', 4, 4)
    vAcc = V.get('acc', 32, 4)
    vQB = V.get('qb', 16, 4)
    vPK = V.get('pk', 16, 4)
    vKr = V.get('kraw', 32, 4)
    vVr = V.get('vraw', 32, 4)
    nvgpr = V.n

    a(f'{KN}:')
    a(f's_cmp_ge_u32 s2, {nwg}')
    a('s_cbranch_scc1 L_end')
    a(f's_load_dwordx16 {sr(sKA,16)}, s[0:1], 0')
    a(f's_load_dwordx4 {sr(sKB,4)}, s[0:1], 64')
    if prof: a(f's_memrealtime {sr(sTime,2)}')
    a(f'v_lshrrev_b32 {vr(vT)}, 6, v0')
    a(f'v_and_b32 {vr(vLane)}, 63, v0')
    a(f's_lshr_b32 {sr(sHk)}, s2, {P.bit_length()-1}')
    a(f'v_readfirstlane_b32 {sr(sWave)}, {vr(vT)}')
    a(f's_and_b32 {sr(sJ)}, s2, {P-1}')
    n15, g4 = vT + 1, vT + 2
    a(f'v_and_b32 {vr(n15)}, 15, {vr(vLane)}')
    a(f'v_lshrrev_b32 {vr(g4)}, 4, {vr(vLane)}')
    a(f'v_lshlrev_b32 {vr(vKsOff)}, 4, {vr(n15)}')
    a(f'v_lshlrev_b32 {vr(vT+3)}, 9, {vr(n15)}')
    a(f'v_lshl_add_u32 {vr(vKoff)}, {vr(g4)}, 4, {vr(vT+3)}')
    a(f'v_lshl_add_u32 {vr(vVoff)}, {vr(g4)}, 11, {vr(vKsOff)}')
    a(f'v_lshlrev_b32 {vr(vSoff)}, 3, {vr(g4)}')
    a(f'v_lshlrev_b32 {vr(vKzOff)}, 2, {vr(vLane)}')
    a(f's_mul_i32 {sr(sT0)}, {sr(sWave)}, {WLDS}')
    a(f'v_mul_u32_u24 {vr(vT+3)}, {QROW}, {vr(g4)}')
    a(f'v_add3_u32 {vr(vLqW)}, {vr(vT+3)}, {vr(vKsOff)}, {sr(sT0)}')
    a(f'v_add_u32 {vr(vLzW)}, {sr(sT0)}, {vr(vKzOff)}')
    a(f'v_add_u32 {vr(vLzW)}, {4*QROW}, {vr(vLzW)}')
    a(f'v_and_b32 {vr(vT+3)}, 3, {vr(vLane)}')
    a(f'v_mul_u32_u24 {vr(vT+3)}, {QROW}, {vr(vT+3)}')
    a(f'v_add3_u32 {vr(vLqR)}, {vr(vT+3)}, {vr(vSoff)}, {sr(sT0)}')
    a(f'v_add_u32 {vr(vLzR)}, {sr(sT0)}, {vr(vSoff)}')
    a(f'v_add_u32 {vr(vLzR)}, {4*QROW}, {vr(vLzR)}')
    a(f's_mov_b32 {sr(sMask)}, 0xffff0000')
    if perm == 'tr':
        a(f's_mul_i32 {sr(sOffK)}, {sr(sJ)}, {(32768 // P) * 512}'); stride = nw * 16 * 512
    else:
        a(f's_mul_i32 {sr(sOffK)}, {sr(sJ)}, {nw * 16 * 512}'); stride = P * nw * 16 * 512
    a(f's_lshl_b32 {sr(sT0)}, {sr(sWave)}, 13')
    a(f's_add_u32 {sr(sOffK)}, {sr(sOffK)}, {sr(sT0)}')
    a('s_waitcnt lgkmcnt(0)')
    def srd(dst, ptr, off_s, off_shift, nbytes):
        a(f's_lshl_b32 {sr(sT0)}, {sr(off_s)}, {off_shift}')
        a(f's_add_u32 {sr(dst)}, {sr(ptr)}, {sr(sT0)}')
        a(f's_addc_u32 {sr(dst+1)}, {sr(ptr+1)}, 0')
        a(f's_and_b32 {sr(dst+1)}, {sr(dst+1)}, 0xffff')
        a(f's_mov_b32 {sr(dst+2)}, {nbytes}')
        a(f's_mov_b32 {sr(dst+3)}, 0x20000')
    q_, qk_, qv_, ks_, kz_, vs_, vz_, o_ = [sKA + 2 * i for i in range(8)]
    dbg_, ws_ = sKB, sKB + 2
    srd(srdT, q_, sHk, 10, 1024)
    srd(srdK, qk_, sHk, 24, 1 << 24)
    srd(srdV, qv_, sHk, 24, 1 << 24)
    srd(srdKS, ks_, sHk, 16, 1 << 16)
    srd(srdKZ, kz_, sHk, 16, 1 << 16)
    srd(srdVS, vs_, sHk, 16, 1 << 16)
    srd(srdVZ, vz_, sHk, 16, 1 << 16)
    def offs():
        a(f's_lshr_b32 {sr(sOffS)}, {sr(sOffK)}, 8')
        a(f's_and_b32 {sr(sOffG)}, {sr(sOffS)}, 0xffffff00')
    def ld_ks():
        a(f'buffer_load_dwordx4 {vr(vKs,4)}, {vr(vKsOff)}, {sr(srdKS,4)}, {sr(sOffG)} offen {spol}')
        a(f'buffer_load_dword {vr(vKz)}, {vr(vKzOff)}, {sr(srdKZ,4)}, {sr(sOffG)} offen {spol}')
    def ld_K():
        for i in range(8):
            a(f'buffer_load_dwordx4 {vr(vKr+4*i,4)}, {vr(vKoff)}, {sr(srdK,4)}, {sr(sOffK)} offen offset:{i*64} {pol}')
    def ld_vs():
        a(f'buffer_load_dwordx2 {vr(vVs,2)}, {vr(vSoff)}, {sr(srdVS,4)}, {sr(sOffS)} offen {spol}')
        a(f'buffer_load_dwordx2 {vr(vVz,2)}, {vr(vSoff)}, {sr(srdVZ,4)}, {sr(sOffS)} offen {spol}')
    def ld_V():
        for j in range(4):
            for h in range(2):
                a(f'buffer_load_dwordx4 {vr(vVr+4*(2*j+h),4)}, {vr(vVoff)}, {sr(srdV,4)}, {sr(sOffK)} offen offset:{j*512+h*256} {pol}')
    a(f'v_lshl_add_u32 {vr(vT+3)}, {vr(g4)}, 8, {vr(vKsOff)}')
    a(f'buffer_load_dwordx4 {vr(vQw,4)}, {vr(vT+3)}, {sr(srdT,4)}, 0 offen')
    offs()
    ld_ks(); ld_K(); ld_vs(); ld_V()
    a(f'v_mov_b32 {vr(vM)}, 0xff800000')
    a(f'v_mov_b32 {vr(vL)}, 0')
    for i in range(4): a(f'v_mov_b32 {vr(vAz+i)}, 0')
    for i in range(32): a(f'v_mov_b32 {vr(vAcc+i)}, 0')
    a(f's_mov_b32 {sr(sT1)}, {f32hex(CEXP)}')
    a('s_waitcnt vmcnt(20)')
    for i in range(4):
        a(f'v_lshlrev_b32 {vr(vQc+2*i)}, 16, {vr(vQw+i)}')
        a(f'v_and_b32 {vr(vQc+2*i+1)}, {sr(sMask)}, {vr(vQw+i)}')
    for i in range(8):
        a(f'v_mul_f32 {vr(vQc+i)}, {sr(sT1)}, {vr(vQc+i)}')
    a(f's_mov_b32 {sr(sCnt)}, {NS-1}')

    def step(pf, tag):
        a('s_waitcnt vmcnt(18)')
        for i in range(4):
            a(f'v_lshlrev_b32 {vr(vT)}, 16, {vr(vKs+i)}')
            a(f'v_and_b32 {vr(vT+1)}, {sr(sMask)}, {vr(vKs+i)}')
            a(f'v_mul_f32 {vr(vT)}, {vr(vT)}, {vr(vQc+2*i)}')
            a(f'v_mul_f32 {vr(vT+1)}, {vr(vT+1)}, {vr(vQc+2*i+1)}')
            a(f'v_cvt_pk_bf16_f32 {vr(vQw+i)}, {vr(vT)}, {vr(vT+1)}')
        a(f'v_xor_b32 {vr(vT+2)}, 0x80008000, {vr(vKz)}')
        a(f'ds_write_b128 {vr(vLqW)}, {vr(vQw,4)}')
        a(f'ds_write_b32 {vr(vLzW)}, {vr(vT+2)}')
        if pf:
            a(f's_add_u32 {sr(sOffK)}, {sr(sOffK)}, {stride}')
            offs()
            ld_ks()
        for s in range(4):
            a(f'ds_read2_b64 {vr(vQB+4*s,4)}, {vr(vLqR)} offset0:{8*s} offset1:{8*s+4}')
        for s in range(4):
            a(f'ds_read2_b64 {vr(vPK+4*s,4)}, {vr(vLzR)} offset0:{8*s} offset1:{8*s+4}')
        a('s_waitcnt lgkmcnt(0)')
        for s in range(4):
            c = '0' if s == 0 else vr(vS, 4)
            a(f'v_mfma_f32_16x16x32_bf16 {vr(vS,4)}, {vr(vPK+4*s,4)}, {vr(vQB+4*s,4)}, {c}')
        a(f's_waitcnt vmcnt({12 if pf else 10})')
        for i in range(8):
            for c in range(4):
                a(f'v_cvt_f32_i32 {vr(vKr+4*i+c)}, {vr(vKr+4*i+c)}')
            d = vPK + 4 * (i // 2) + 2 * (i % 2)
            a(f'v_cvt_pk_bf16_f32 {vr(d)}, {vr(vKr+4*i)}, {vr(vKr+4*i+1)}')
            a(f'v_cvt_pk_bf16_f32 {vr(d+1)}, {vr(vKr+4*i+2)}, {vr(vKr+4*i+3)}')
        if pf: ld_K()
        else: a('s_nop 1')
        for s in range(4):
            a(f'v_mfma_f32_16x16x32_bf16 {vr(vS,4)}, {vr(vPK+4*s,4)}, {vr(vQB+4*s,4)}, {vr(vS,4)}')
        a(f's_waitcnt vmcnt({18 if pf else 8})')
        f = vT + 4
        a(f'v_lshlrev_b32 {vr(f)}, 16, {vr(vVs)}')
        a(f'v_and_b32 {vr(f+1)}, {sr(sMask)}, {vr(vVs)}')
        a(f'v_lshlrev_b32 {vr(f+2)}, 16, {vr(vVs+1)}')
        a(f'v_and_b32 {vr(f+3)}, {sr(sMask)}, {vr(vVs+1)}')
        a('s_nop 4')
        a(f'v_max3_f32 {vr(vT)}, {vr(vS)}, {vr(vS+1)}, {vr(vS+2)}')
        a(f'v_max_f32 {vr(vT)}, {vr(vT)}, {vr(vS+3)}')
        a(f'v_mov_b32 {vr(vT+1)}, {vr(vT)}')
        a('s_nop 1')
        a(f'v_permlane16_swap_b32 {vr(vT)}, {vr(vT+1)}')
        a('s_nop 1')
        a(f'v_max_f32 {vr(vT)}, {vr(vT)}, {vr(vT+1)}')
        a(f'v_mov_b32 {vr(vT+1)}, {vr(vT)}')
        a('s_nop 1')
        a(f'v_permlane32_swap_b32 {vr(vT)}, {vr(vT+1)}')
        a('s_nop 1')
        a(f'v_max3_f32 {vr(vT)}, {vr(vT)}, {vr(vT+1)}, {vr(vM)}')
        a(f'v_sub_f32 {vr(vAl)}, {vr(vM)}, {vr(vT)}')
        a(f'v_cmp_gt_f32 vcc, {vr(vT)}, {vr(vM)}')
        a(f'v_mov_b32 {vr(vM)}, {vr(vT)}')
        a(f'v_exp_f32 {vr(vAl)}, {vr(vAl)}')
        for r in range(4):
            a(f'v_sub_f32 {vr(vS+r)}, {vr(vS+r)}, {vr(vM)}')
        for r in range(4):
            a(f'v_exp_f32 {vr(vS+r)}, {vr(vS+r)}')
        a(f's_cbranch_vccz L_nors_{tag}')
        for r in range(4):
            a(f'v_readlane_b32 {sr(sAl+r)}, {vr(vAl)}, {r}')
        a('s_nop 1')
        for i in range(8):
            for r in range(4):
                a(f'v_mul_f32 {vr(vAcc+4*i+r)}, {sr(sAl+r)}, {vr(vAcc+4*i+r)}')
        for r in range(4):
            a(f'v_mul_f32 {vr(vAz+r)}, {sr(sAl+r)}, {vr(vAz+r)}')
        a(f'L_nors_{tag}:')
        a(f'v_add_f32 {vr(vT)}, {vr(vS)}, {vr(vS+1)}')
        a(f'v_add_f32 {vr(vT+1)}, {vr(vS+2)}, {vr(vS+3)}')
        a(f'v_fma_f32 {vr(vL)}, {vr(vL)}, {vr(vAl)}, {vr(vT)}')
        for r in range(4):
            a(f'v_mul_f32 {vr(vS+r)}, {vr(vS+r)}, {vr(f+r)}')
        a(f'v_add_f32 {vr(vL)}, {vr(vL)}, {vr(vT+1)}')
        a(f'v_cvt_pk_bf16_f32 {vr(vP)}, {vr(vS)}, {vr(vS+1)}')
        a(f'v_cvt_pk_bf16_f32 {vr(vP+1)}, {vr(vS+2)}, {vr(vS+3)}')
        a('s_nop 1')
        a(f'v_mfma_f32_16x16x16_bf16 {vr(vAz,4)}, {vr(vP,2)}, {vr(vVz,2)}, {vr(vAz,4)}')
        a(f's_waitcnt vmcnt({10 if pf else 0})')
        for h in range(2):
            for c in range(4):
                for j in range(4):
                    r = vVr + 4 * (2 * j + h) + c
                    a(f'v_cvt_f32_i32 {vr(r)}, {vr(r)}')
                d = vPK + 2 * (4 * h + c)
                R = lambda j: vVr + 4 * (2 * j + h) + c
                a(f'v_cvt_pk_bf16_f32 {vr(d)}, {vr(R(0))}, {vr(R(1))}')
                a(f'v_cvt_pk_bf16_f32 {vr(d+1)}, {vr(R(2))}, {vr(R(3))}')
        if pf:
            ld_vs(); ld_V()
        else: a('s_nop 1')
        for i in range(8):
            a(f'v_mfma_f32_16x16x16_bf16 {vr(vAcc+4*i,4)}, {vr(vP,2)}, {vr(vPK+2*i,2)}, {vr(vAcc+4*i,4)}')

    if NS > 1:
        a('L_loop:')
        step(1, 'loop')
        if bar: a('s_barrier')
        a(f's_sub_u32 {sr(sCnt)}, {sr(sCnt)}, 1')
        a(f's_cmp_lg_u32 {sr(sCnt)}, 0')
        a('s_cbranch_scc1 L_loop')
    step(0, 'last')

    OB = nw * WLDS
    MB = OB + nw * 2048
    lds_bytes = MB + 2 * 4 * nw * 4
    a(f'v_mov_b32 {vr(vT+1)}, {vr(vL)}')
    a('s_nop 1')
    a(f'v_permlane16_swap_b32 {vr(vL)}, {vr(vT+1)}')
    a('s_nop 1')
    a(f'v_add_f32 {vr(vL)}, {vr(vL)}, {vr(vT+1)}')
    a(f'v_mov_b32 {vr(vT+1)}, {vr(vL)}')
    a('s_nop 1')
    a(f'v_permlane32_swap_b32 {vr(vL)}, {vr(vT+1)}')
    a('s_nop 1')
    a(f'v_add_f32 {vr(vL)}, {vr(vL)}, {vr(vT+1)}')
    a('s_nop 7')
    for i in range(8):
        for r in range(4):
            a(f'v_sub_f32 {vr(vAcc+4*i+r)}, {vr(vAcc+4*i+r)}, {vr(vAz+r)}')
    a(f's_lshl_b32 {sr(sT0)}, {sr(sWave)}, 11')
    a(f's_add_u32 {sr(sT0)}, {sr(sT0)}, {OB}')
    a(f'v_add_u32 {vr(vT)}, {sr(sT0)}, {vr(vKsOff)}')
    a(f's_lshl_b32 {sr(sT1)}, {sr(sWave)}, 2')
    a(f's_add_u32 {sr(sT1)}, {sr(sT1)}, {MB}')
    a(f'v_mul_u32_u24 {vr(vT+2)}, {nw*4}, {vr(vLane)}')
    a(f'v_add_u32 {vr(vT+2)}, {sr(sT1)}, {vr(vT+2)}')
    a('s_mov_b64 exec, 0xffff')
    for i in range(8):
        a(f'ds_write_b128 {vr(vT)}, {vr(vAcc+4*i,4)} offset:{i*256}')
    a('s_mov_b64 exec, 0xf')
    a(f'ds_write_b32 {vr(vT+2)}, {vr(vM)}')
    a(f'ds_write_b32 {vr(vT+2)}, {vr(vL)} offset:{4*nw*4}')
    a('s_mov_b64 exec, -1')
    a('s_waitcnt lgkmcnt(0)')
    a('s_barrier')
    vMl = vKr
    vO = vKr + 16
    vRes = vVr
    a(f'v_and_b32 {vr(vT)}, 3, v0')
    a(f'v_mul_u32_u24 {vr(vT)}, {nw*4}, {vr(vT)}')
    a(f'v_add_u32 {vr(vT)}, {MB}, {vr(vT)}')
    for k in range(nw // 4):
        a(f'ds_read_b128 {vr(vMl+4*k,4)}, {vr(vT)} offset:{16*k}')
        a(f'ds_read_b128 {vr(vMl+8+4*k,4)}, {vr(vT)} offset:{4*nw*4+16*k}')
    a(f'v_lshlrev_b32 {vr(vT+1)}, 2, v0')
    a(f'v_add_u32 {vr(vT+2)}, {OB}, {vr(vT+1)}')
    nch = 512 // nthr
    for ch in range(nch):
        for w in range(nw):
            a(f'ds_read_b32 {vr(vO+ch*nw+w)}, {vr(vT+2)} offset:{w*2048+ch*nthr*4}')
    a('s_waitcnt lgkmcnt(0)')
    vMx = vT + 3
    a(f'v_max3_f32 {vr(vMx)}, {vr(vMl)}, {vr(vMl+1)}, {vr(vMl+2)}')
    for w in range(3, nw):
        a(f'v_max_f32 {vr(vMx)}, {vr(vMx)}, {vr(vMl+w)}')
    for w in range(nw):
        a(f'v_sub_f32 {vr(vMl+w)}, {vr(vMl+w)}, {vr(vMx)}')
    for w in range(nw):
        a(f'v_exp_f32 {vr(vMl+w)}, {vr(vMl+w)}')
    a('s_nop 0')
    vLs = vT + 4
    a(f'v_mul_f32 {vr(vLs)}, {vr(vMl)}, {vr(vMl+8)}')
    for w in range(1, nw):
        a(f'v_fmac_f32 {vr(vLs)}, {vr(vMl+w)}, {vr(vMl+8+w)}')
    for ch in range(nch):
        a(f'v_mul_f32 {vr(vRes+ch)}, {vr(vMl)}, {vr(vO+ch*nw)}')
        for w in range(1, nw):
            a(f'v_fmac_f32 {vr(vRes+ch)}, {vr(vMl+w)}, {vr(vO+ch*nw+w)}')
    a(f's_mul_i32 {sr(sT1)}, s2, {PSTRIDE}')
    a(f's_add_u32 {sr(srdT)}, {sr(ws_)}, {sr(sT1)}')
    a(f's_addc_u32 {sr(srdT+1)}, {sr(ws_+1)}, 0')
    a(f's_and_b32 {sr(srdT+1)}, {sr(srdT+1)}, 0xffff')
    a(f's_mov_b32 {sr(srdT+2)}, {PSTRIDE}')
    a(f's_mov_b32 {sr(srdT+3)}, 0x20000')
    stp = 'sc1' if fused else ''
    for ch in range(nch):
        a(f'buffer_store_dword {vr(vRes+ch)}, {vr(vT+1)}, {sr(srdT,4)}, 0 offen offset:{ch*nthr*4} {stp}')
    a('v_cmp_gt_u32 vcc, 4, v0')
    a(f's_and_saveexec_b64 {sr(sEx,2)}, vcc')
    a('s_cbranch_execz L_nost')
    a(f'buffer_store_dword {vr(vMx)}, {vr(vT+1)}, {sr(srdT,4)}, 0 offen offset:2048 {stp}')
    a(f'buffer_store_dword {vr(vLs)}, {vr(vT+1)}, {sr(srdT,4)}, 0 offen offset:2064 {stp}')
    a('L_nost:')
    a(f's_mov_b64 exec, {sr(sEx,2)}')
    if fused:
        a('s_waitcnt vmcnt(0)')
        a('s_barrier')
        a(f's_cmp_lg_u32 {sr(sWave)}, 0')
        a('s_cbranch_scc1 L_noat')
        a(f's_mov_b32 {sr(srdT)}, {sr(dbg_)}')
        a(f's_and_b32 {sr(srdT+1)}, {sr(dbg_+1)}, 0xffff')
        a(f's_mov_b32 {sr(srdT+2)}, 256')
        a(f's_lshl_b32 {sr(sT1)}, {sr(sHk)}, {cshift}')
        a('s_mov_b64 exec, 1')
        a(f'v_mov_b32 {vr(vT+5)}, 1')
        a(f'v_mov_b32 {vr(vT+6)}, 0')
        a(f'buffer_atomic_add {vr(vT+5)}, {vr(vT+6)}, {sr(srdT,4)}, {sr(sT1)} offen sc0')
        a(f'v_mov_b32 {vr(vT+6)}, {MB}')
        a('s_waitcnt vmcnt(0)')
        a(f'ds_write_b32 {vr(vT+6)}, {vr(vT+5)}')
        a('s_mov_b64 exec, -1')
        a('s_waitcnt lgkmcnt(0)')
        a('L_noat:')
        a('s_barrier')
        a(f'v_mov_b32 {vr(vT+6)}, {MB}')
        a(f'ds_read_b32 {vr(vT+5)}, {vr(vT+6)}')
        a('s_waitcnt lgkmcnt(0)')
        a(f'v_readfirstlane_b32 {sr(sT0)}, {vr(vT+5)}')
        a('s_nop 3')
        a(f's_cmp_lg_u32 {sr(sT0)}, {P-1}')
        a('s_cbranch_scc1 L_notlast')
        a(f's_mul_i32 {sr(sT1)}, {sr(sHk)}, {P*PSTRIDE}')
        a(f's_add_u32 {sr(srdT)}, {sr(ws_)}, {sr(sT1)}')
        a(f's_addc_u32 {sr(srdT+1)}, {sr(ws_+1)}, 0')
        a(f's_and_b32 {sr(srdT+1)}, {sr(srdT+1)}, 0xffff')
        a(f's_mov_b32 {sr(srdT+2)}, {P*PSTRIDE}')
        cO, cM, cL = vKr, vKr + nch * P, vKr + nch * P + P
        assert cL + P <= vVr + 32
        a(f'v_and_b32 {vr(vT+2)}, 3, v0')
        a(f'v_lshlrev_b32 {vr(vT+2)}, 2, {vr(vT+2)}')
        for w in range(P):
            a(f's_mov_b32 {sr(sT1)}, {w*PSTRIDE}')
            a(f'buffer_load_dword {vr(cM+w)}, {vr(vT+2)}, {sr(srdT,4)}, {sr(sT1)} offen offset:2048 sc1')
            a(f'buffer_load_dword {vr(cL+w)}, {vr(vT+2)}, {sr(srdT,4)}, {sr(sT1)} offen offset:2064 sc1')
            for ch in range(nch):
                a(f'buffer_load_dword {vr(cO+ch*P+w)}, {vr(vT+1)}, {sr(srdT,4)}, {sr(sT1)} offen offset:{ch*nthr*4} sc1')
        a(f's_lshl_b32 {sr(sT1)}, {sr(sHk)}, 10')
        a(f's_add_u32 {sr(srdK)}, {sr(o_)}, {sr(sT1)}')
        a(f's_addc_u32 {sr(srdK+1)}, {sr(o_+1)}, 0')
        a(f's_and_b32 {sr(srdK+1)}, {sr(srdK+1)}, 0xffff')
        a(f's_mov_b32 {sr(srdK+2)}, 1024')
        a('s_waitcnt vmcnt(0)')
        x, y, z = vT + 3, vT + 4, vT + 5
        a(f'v_max3_f32 {vr(x)}, {vr(cM)}, {vr(cM+1)}, {vr(cM+2)}')
        for w in range(3, P): a(f'v_max_f32 {vr(x)}, {vr(x)}, {vr(cM+w)}')
        for w in range(P): a(f'v_sub_f32 {vr(cM+w)}, {vr(cM+w)}, {vr(x)}')
        for w in range(P): a(f'v_exp_f32 {vr(cM+w)}, {vr(cM+w)}')
        a('s_nop 0')
        a(f'v_mul_f32 {vr(y)}, {vr(cM)}, {vr(cL)}')
        for w in range(1, P): a(f'v_fmac_f32 {vr(y)}, {vr(cM+w)}, {vr(cL+w)}')
        a(f'v_rcp_f32 {vr(z)}, {vr(y)}')
        a('s_nop 0')
        a(f'v_fma_f32 {vr(x)}, -{vr(y)}, {vr(z)}, 1.0')
        a(f'v_fmac_f32 {vr(z)}, {vr(x)}, {vr(z)}')
        for ch in range(nch):
            a(f'v_mul_f32 {vr(y)}, {vr(cM)}, {vr(cO+ch*P)}')
            for w in range(1, P): a(f'v_fmac_f32 {vr(y)}, {vr(cM+w)}, {vr(cO+ch*P+w)}')
            a(f'v_mul_f32 {vr(y)}, {vr(y)}, {vr(z)}')
            a(f'v_cvt_pk_bf16_f32 {vr(y)}, {vr(y)}, {vr(y)}')
            e = vT + 6
            a(f'v_add_u32 {vr(e)}, {ch*nthr}, v0')
            a(f'v_and_b32 {vr(x)}, 3, {vr(e)}'); a(f'v_lshlrev_b32 {vr(x)}, 7, {vr(x)}')
            a(f'v_lshrrev_b32 {vr(vT+7)}, 8, {vr(e)}'); a(f'v_lshl_add_u32 {vr(x)}, {vr(vT+7)}, 6, {vr(x)}')
            a(f'v_bfe_u32 {vr(vT+7)}, {vr(e)}, 2, 4'); a(f'v_lshl_add_u32 {vr(x)}, {vr(vT+7)}, 2, {vr(x)}')
            a(f'v_bfe_u32 {vr(vT+7)}, {vr(e)}, 6, 2'); a(f'v_add_u32 {vr(x)}, {vr(x)}, {vr(vT+7)}')
            a(f'v_lshlrev_b32 {vr(x)}, 1, {vr(x)}')
            a(f'buffer_store_short {vr(y)}, {vr(x)}, {sr(srdK,4)}, 0 offen')
        a('L_notlast:')
    if prof:
        a('s_waitcnt vmcnt(0)')
        a(f's_memrealtime {sr(sTime+2,2)}')
        a(f's_getreg_b32 {sr(sT0)}, hwreg(HW_REG_XCC_ID)')
        a('s_waitcnt lgkmcnt(0)')
        a(f's_add_u32 {sr(srdT)}, {sr(ws_)}, 0x4000000')
        a(f's_addc_u32 {sr(srdT+1)}, {sr(ws_+1)}, 0')
        a(f's_and_b32 {sr(srdT+1)}, {sr(srdT+1)}, 0xffff')
        a(f's_mov_b32 {sr(srdT+2)}, 0x100000')
        a(f's_mul_i32 {sr(sT1)}, s2, {nw}'); a(f's_add_u32 {sr(sT1)}, {sr(sT1)}, {sr(sWave)}'); a(f's_lshl_b32 {sr(sT1)}, {sr(sT1)}, 5')
        for i in range(4): a(f'v_mov_b32 {vr(vKr+i)}, {sr(sTime+i)}')
        a(f'v_mov_b32 {vr(vKr+4)}, {sr(sT0)}'); a(f'v_mov_b32 {vr(vKr+5)}, 0'); a(f'v_mov_b32 {vr(vKr+6)}, s2'); a(f'v_mov_b32 {vr(vKr+7)}, {sr(sWave)}')
        a(f'v_mov_b32 {vr(vT)}, 0')
        a('s_mov_b64 exec, 1')
        a(f'buffer_store_dwordx4 {vr(vKr,4)}, {vr(vT)}, {sr(srdT,4)}, {sr(sT1)} offen')
        a(f'buffer_store_dwordx4 {vr(vKr+4,4)}, {vr(vT)}, {sr(srdT,4)}, {sr(sT1)} offen offset:16')
    a('L_end:')
    a('s_endpgm')
    main = '\n'.join(out)

    out = []; a = out.append
    a(f'{K2}:')
    a('s_cmp_ge_u32 s2, 16')
    a('s_cbranch_scc1 L2_end')
    a('s_load_dwordx2 s[4:5], s[0:1], 72')
    a('s_load_dwordx2 s[6:7], s[0:1], 56')
    a('v_lshlrev_b32 v1, 2, v0')
    a('v_and_b32 v2, 3, v0')
    a('v_lshlrev_b32 v2, 2, v2')
    a('s_waitcnt lgkmcnt(0)')
    a(f's_mul_i32 s3, s2, {P*PSTRIDE}')
    a('s_add_u32 s8, s4, s3'); a('s_addc_u32 s9, s5, 0'); a('s_and_b32 s9, s9, 0xffff')
    a(f's_mov_b32 s10, {P*PSTRIDE}'); a('s_mov_b32 s11, 0x20000')
    vO, vMm, vLl = 8, 8 + P, 8 + 2 * P
    for w in range(P):
        a(f's_mov_b32 s16, {w*PSTRIDE}')
        a(f'buffer_load_dword v{vMm+w}, v2, s[8:11], s16 offen offset:2048')
        a(f'buffer_load_dword v{vLl+w}, v2, s[8:11], s16 offen offset:2064')
        a(f'buffer_load_dword v{vO+w}, v1, s[8:11], s16 offen')
    a('v_and_b32 v3, 3, v0'); a('v_lshlrev_b32 v3, 7, v3')
    a('v_lshrrev_b32 v4, 8, v0'); a('v_lshl_add_u32 v3, v4, 6, v3')
    a('v_bfe_u32 v4, v0, 2, 4'); a('v_lshl_add_u32 v3, v4, 2, v3')
    a('v_bfe_u32 v4, v0, 6, 2'); a('v_add_u32 v3, v3, v4')
    a('v_lshlrev_b32 v3, 1, v3')
    a('s_lshl_b32 s3, s2, 10')
    a('s_add_u32 s12, s6, s3'); a('s_addc_u32 s13, s7, 0'); a('s_and_b32 s13, s13, 0xffff')
    a('s_mov_b32 s14, 1024'); a('s_mov_b32 s15, 0x20000')
    a('s_waitcnt vmcnt(0)')
    a(f'v_max3_f32 v5, v{vMm}, v{vMm+1}, v{vMm+2}')
    for w in range(3, P): a(f'v_max_f32 v5, v5, v{vMm+w}')
    for w in range(P): a(f'v_sub_f32 v{vMm+w}, v{vMm+w}, v5')
    for w in range(P): a(f'v_exp_f32 v{vMm+w}, v{vMm+w}')
    a('s_nop 0')
    a(f'v_mul_f32 v6, v{vMm}, v{vLl}'); a(f'v_mul_f32 v7, v{vMm}, v{vO}')
    for w in range(1, P):
        a(f'v_fmac_f32 v6, v{vMm+w}, v{vLl+w}'); a(f'v_fmac_f32 v7, v{vMm+w}, v{vO+w}')
    a('v_rcp_f32 v4, v6')
    a('s_nop 0')
    a('v_fma_f32 v5, -v6, v4, 1.0')
    a('v_fmac_f32 v4, v5, v4')
    a('v_mul_f32 v7, v7, v4')
    a('v_cvt_pk_bf16_f32 v7, v7, v7')
    a('buffer_store_short v7, v3, s[12:15], 0 offen')
    a('L2_end:')
    a('s_endpgm')
    comb = '\n'.join(out)
    nv2 = 8 + 3 * P

    def kd(name, vg, sg):
        acc = (vg + 3) // 4 * 4
        return f'''.amdhsa_kernel {name}
  .amdhsa_next_free_vgpr {vg}
  .amdhsa_next_free_sgpr {sg}
  .amdhsa_accum_offset {acc}
  .amdhsa_group_segment_fixed_size 0
  .amdhsa_kernarg_size 80
  .amdhsa_user_sgpr_count 2
  .amdhsa_user_sgpr_kernarg_segment_ptr 1
  .amdhsa_system_sgpr_workgroup_id_x 1
  .amdhsa_float_denorm_mode_32 3
.end_amdhsa_kernel
'''
    src = HEADCOMMENT
    if fused:
        src += f'; @launch grid=({nwg},1,1) block=({nthr},1,1) lds={lds_bytes}\n'
    else:
        src += f'; @launch kernel={KN} grid=({nwg},1,1) block=({nthr},1,1) lds={lds_bytes}\n'
        src += f'; @launch kernel={K2} grid=(16,1,1) block=(512,1,1) lds=0\n'
    src += '.amdgcn_target "amdgcn-amd-amdhsa--gfx950"\n.text\n'
    src += f'.globl {KN}\n.p2align 8\n.type {KN},@function\n{main}\n'
    if not fused:
        src += f'.globl {K2}\n.p2align 8\n.type {K2},@function\n{comb}\n'
    src += '.section .rodata,"a"\n.p2align 6\n' + kd(KN, nvgpr, S.n)
    launches = [(KN, nwg, nthr, lds_bytes)]
    if not fused:
        src += '.p2align 6\n' + kd(K2, nv2, 24)
        launches.append((K2, 16, 512, 0))
    return src, launches

if __name__ == '__main__':
    import argparse
    ap = argparse.ArgumentParser()
    ap.add_argument('-o', default='out.s')
    ap.add_argument('kv', nargs='*')
    args = ap.parse_args()
    kw = {}
    for x in args.kv:
        k, v = x.split('=')
        try: v = int(v)
        except: pass
        kw[k] = v
    src, l = gen(**kw)
    open(args.o, 'w').write(src)
    print(l)
```

```python
import sys, os
KN = 'standalone__kv_cache_quant_int4_int2_kv_with_per_channel_or_per_token_scales__decode_kernel'
K2 = 'combine_kernel'

HEADCOMMENT = '''; Kernarg layout for this problem (80 bytes, ptrs only, base s[0:1]):
'''

class Alloc:
    def __init__(self, start, limit):
        self.n = start; self.limit = limit; self.names = {}
    def get(self, name, cnt=1, align=1):
        self.n = (self.n + align - 1) // align * align
        r = self.n; self.n += cnt
        assert self.n <= self.limit, (name, self.n)
        self.names[name] = r
        return r

def vr(r, n=1):
    return f'v{r}' if n == 1 else f'v[{r}:{r+n-1}]'
def sr(r, n=1):
    return f's{r}' if n == 1 else f's[{r}:{r+n-1}]'

PSTRIDE = 4096
QROW = 288
WLDS = 1536
CEXP = 0.08838834764831845 * 1.4426950408889634

def f32hex(x):
    import struct
    return '0x%08x' % struct.unpack('<I', struct.pack('<f', x))[0]

def gen(nw=8, P=16, perm='tr', bar=1, pol='nt', fused=0, prof=0, spol='nt', cshift=2, dbgprof=0, coff=0):
    nwg = 16 * P
    NS = 32768 // (P * nw * 16)
    nthr = nw * 64
    out = []
    a = out.append
    V = Alloc(1, 256); S = Alloc(3, 100)
    sWave = S.get('wave')
    sKA = S.get('ka', 16, 4)
    sKB = S.get('kb', 4, 4)
    srdK = S.get('srdK', 4, 4); srdV = S.get('srdV', 4, 4)
    srdKS = S.get('srdKS', 4, 4); srdKZ = S.get('srdKZ', 4, 4)
    srdVS = S.get('srdVS', 4, 4); srdVZ = S.get('srdVZ', 4, 4)
    srdT = S.get('srdT', 4, 4)
    sHk = S.get('hk'); sJ = S.get('j')
    sOffK = S.get('offK'); sOffS = S.get('offS'); sOffG = S.get('offG')
    sCnt = S.get('cnt'); sT0 = S.get('t0'); sT1 = S.get('t1')
    sAl = S.get('al', 4, 4)
    sMask = S.get('mask')
    sEx = S.get('ex', 2, 2)
    sTime = S.get('time', 4, 2)
    sTm2 = S.get('time2', 4, 2)
    vLane = V.get('lane')
    vKoff = V.get('koff'); vVoff = V.get('voff'); vSoff = V.get('soff'); vKsOff = V.get('ksoff'); vKzOff = V.get('kzoff')
    vLqW = V.get('lqw'); vLzW = V.get('lzw'); vLqR = V.get('lqr'); vLzR = V.get('lzr')
    vM = V.get('m'); vL = V.get('l'); vAl = V.get('alpha')
    vT = V.get('t', 8, 2)
    vQc = V.get('qc', 8, 4)
    vKs = V.get('ks', 4, 4); vKz = V.get('kz'); vVs = V.get('vs', 2, 2); vVz = V.get('vz', 2, 2)
    vQw = V.get('qw', 4, 4)
    vP = V.get('p', 2, 2)
    vS = V.get('s', 4, 4)
    vAz = V.get('az', 4, 4)
    vAcc = V.get('acc', 32, 4)
    vQB = V.get('qb', 16, 4)
    vPK = V.get('pk', 16, 4)
    vKr = V.get('kraw', 32, 4)
    vVr = V.get('vraw', 32, 4)
    nvgpr = V.n

    a(f'{KN}:')
    a(f's_cmp_ge_u32 s2, {nwg}')
    a('s_cbranch_scc1 L_end')
    a(f's_load_dwordx16 {sr(sKA,16)}, s[0:1], 0')
    a(f's_load_dwordx4 {sr(sKB,4)}, s[0:1], 64')
    if prof or dbgprof: a(f's_memrealtime {sr(sTime,2)}')
    if dbgprof: a(f's_memtime {sr(sTm2,2)}')
    a(f'v_lshrrev_b32 {vr(vT)}, 6, v0')
    a(f'v_and_b32 {vr(vLane)}, 63, v0')
    a(f's_lshr_b32 {sr(sHk)}, s2, {P.bit_length()-1}')
    a(f'v_readfirstlane_b32 {sr(sWave)}, {vr(vT)}')
    a(f's_and_b32 {sr(sJ)}, s2, {P-1}')
    n15, g4 = vT + 1, vT + 2
    a(f'v_and_b32 {vr(n15)}, 15, {vr(vLane)}')
    a(f'v_lshrrev_b32 {vr(g4)}, 4, {vr(vLane)}')
    a(f'v_lshlrev_b32 {vr(vKsOff)}, 4, {vr(n15)}')
    a(f'v_lshlrev_b32 {vr(vT+3)}, 9, {vr(n15)}')
    a(f'v_lshl_add_u32 {vr(vKoff)}, {vr(g4)}, 4, {vr(vT+3)}')
    a(f'v_lshl_add_u32 {vr(vVoff)}, {vr(g4)}, 11, {vr(vKsOff)}')
    a(f'v_lshlrev_b32 {vr(vSoff)}, 3, {vr(g4)}')
    a(f'v_lshlrev_b32 {vr(vKzOff)}, 2, {vr(vLane)}')
    a(f's_mul_i32 {sr(sT0)}, {sr(sWave)}, {WLDS}')
    a(f'v_mul_u32_u24 {vr(vT+3)}, {QROW}, {vr(g4)}')
    a(f'v_add3_u32 {vr(vLqW)}, {vr(vT+3)}, {vr(vKsOff)}, {sr(sT0)}')
    a(f'v_add_u32 {vr(vLzW)}, {sr(sT0)}, {vr(vKzOff)}')
    a(f'v_add_u32 {vr(vLzW)}, {4*QROW}, {vr(vLzW)}')
    a(f'v_and_b32 {vr(vT+3)}, 3, {vr(vLane)}')
    a(f'v_mul_u32_u24 {vr(vT+3)}, {QROW}, {vr(vT+3)}')
    a(f'v_add3_u32 {vr(vLqR)}, {vr(vT+3)}, {vr(vSoff)}, {sr(sT0)}')
    a(f'v_add_u32 {vr(vLzR)}, {sr(sT0)}, {vr(vSoff)}')
    a(f'v_add_u32 {vr(vLzR)}, {4*QROW}, {vr(vLzR)}')
    a(f's_mov_b32 {sr(sMask)}, 0xffff0000')
    if perm == 'tr':
        a(f's_mul_i32 {sr(sOffK)}, {sr(sJ)}, {(32768 // P) * 512}'); stride = nw * 16 * 512
    else:
        a(f's_mul_i32 {sr(sOffK)}, {sr(sJ)}, {nw * 16 * 512}'); stride = P * nw * 16 * 512
    a(f's_lshl_b32 {sr(sT0)}, {sr(sWave)}, 13')
    a(f's_add_u32 {sr(sOffK)}, {sr(sOffK)}, {sr(sT0)}')
    a('s_waitcnt lgkmcnt(0)')
    def srd(dst, ptr, off_s, off_shift, nbytes):
        a(f's_lshl_b32 {sr(sT0)}, {sr(off_s)}, {off_shift}')
        a(f's_add_u32 {sr(dst)}, {sr(ptr)}, {sr(sT0)}')
        a(f's_addc_u32 {sr(dst+1)}, {sr(ptr+1)}, 0')
        a(f's_and_b32 {sr(dst+1)}, {sr(dst+1)}, 0xffff')
        a(f's_mov_b32 {sr(dst+2)}, {nbytes}')
        a(f's_mov_b32 {sr(dst+3)}, 0x20000')
    q_, qk_, qv_, ks_, kz_, vs_, vz_, o_ = [sKA + 2 * i for i in range(8)]
    dbg_, ws_ = sKB, sKB + 2
    srd(srdT, q_, sHk, 10, 1024)
    srd(srdK, qk_, sHk, 24, 1 << 24)
    srd(srdV, qv_, sHk, 24, 1 << 24)
    srd(srdKS, ks_, sHk, 16, 1 << 16)
    srd(srdKZ, kz_, sHk, 16, 1 << 16)
    srd(srdVS, vs_, sHk, 16, 1 << 16)
    srd(srdVZ, vz_, sHk, 16, 1 << 16)
    def offs():
        a(f's_lshr_b32 {sr(sOffS)}, {sr(sOffK)}, 8')
        a(f's_and_b32 {sr(sOffG)}, {sr(sOffS)}, 0xffffff00')
    def ld_ks():
        a(f'buffer_load_dwordx4 {vr(vKs,4)}, {vr(vKsOff)}, {sr(srdKS,4)}, {sr(sOffG)} offen {spol}')
        a(f'buffer_load_dword {vr(vKz)}, {vr(vKzOff)}, {sr(srdKZ,4)}, {sr(sOffG)} offen {spol}')
    def ld_K():
        for i in range(8):
            a(f'buffer_load_dwordx4 {vr(vKr+4*i,4)}, {vr(vKoff)}, {sr(srdK,4)}, {sr(sOffK)} offen offset:{i*64} {pol}')
    def ld_vs():
        a(f'buffer_load_dwordx2 {vr(vVs,2)}, {vr(vSoff)}, {sr(srdVS,4)}, {sr(sOffS)} offen {spol}')
        a(f'buffer_load_dwordx2 {vr(vVz,2)}, {vr(vSoff)}, {sr(srdVZ,4)}, {sr(sOffS)} offen {spol}')
    def ld_V():
        for j in range(4):
            for h in range(2):
                a(f'buffer_load_dwordx4 {vr(vVr+4*(2*j+h),4)}, {vr(vVoff)}, {sr(srdV,4)}, {sr(sOffK)} offen offset:{j*512+h*256} {pol}')
    a(f'v_lshl_add_u32 {vr(vT+3)}, {vr(g4)}, 8, {vr(vKsOff)}')
    a(f'buffer_load_dwordx4 {vr(vQw,4)}, {vr(vT+3)}, {sr(srdT,4)}, 0 offen')
    offs()
    ld_ks(); ld_K(); ld_vs(); ld_V()
    a(f'v_mov_b32 {vr(vM)}, 0xff800000')
    a(f'v_mov_b32 {vr(vL)}, 0')
    for i in range(4): a(f'v_mov_b32 {vr(vAz+i)}, 0')
    for i in range(32): a(f'v_mov_b32 {vr(vAcc+i)}, 0')
    a(f's_mov_b32 {sr(sT1)}, {f32hex(CEXP)}')
    a('s_waitcnt vmcnt(20)')
    for i in range(4):
        a(f'v_lshlrev_b32 {vr(vQc+2*i)}, 16, {vr(vQw+i)}')
        a(f'v_and_b32 {vr(vQc+2*i+1)}, {sr(sMask)}, {vr(vQw+i)}')
    for i in range(8):
        a(f'v_mul_f32 {vr(vQc+i)}, {sr(sT1)}, {vr(vQc+i)}')
    a(f's_mov_b32 {sr(sCnt)}, {NS-1}')

    def step(pf, tag):
        a('s_waitcnt vmcnt(18)')
        for i in range(4):
            a(f'v_lshlrev_b32 {vr(vT)}, 16, {vr(vKs+i)}')
            a(f'v_and_b32 {vr(vT+1)}, {sr(sMask)}, {vr(vKs+i)}')
            a(f'v_mul_f32 {vr(vT)}, {vr(vT)}, {vr(vQc+2*i)}')
            a(f'v_mul_f32 {vr(vT+1)}, {vr(vT+1)}, {vr(vQc+2*i+1)}')
            a(f'v_cvt_pk_bf16_f32 {vr(vQw+i)}, {vr(vT)}, {vr(vT+1)}')
        a(f'v_xor_b32 {vr(vT+2)}, 0x80008000, {vr(vKz)}')
        a(f'ds_write_b128 {vr(vLqW)}, {vr(vQw,4)}')
        a(f'ds_write_b32 {vr(vLzW)}, {vr(vT+2)}')
        if pf:
            a(f's_add_u32 {sr(sOffK)}, {sr(sOffK)}, {stride}')
            offs()
            ld_ks()
        for s in range(4):
            a(f'ds_read2_b64 {vr(vQB+4*s,4)}, {vr(vLqR)} offset0:{8*s} offset1:{8*s+4}')
        for s in range(4):
            a(f'ds_read2_b64 {vr(vPK+4*s,4)}, {vr(vLzR)} offset0:{8*s} offset1:{8*s+4}')
        a('s_waitcnt lgkmcnt(0)')
        for s in range(4):
            c = '0' if s == 0 else vr(vS, 4)
            a(f'v_mfma_f32_16x16x32_bf16 {vr(vS,4)}, {vr(vPK+4*s,4)}, {vr(vQB+4*s,4)}, {c}')
        a(f's_waitcnt vmcnt({12 if pf else 10})')
        for i in range(8):
            for c in range(4):
                a(f'v_cvt_f32_i32 {vr(vKr+4*i+c)}, {vr(vKr+4*i+c)}')
            d = vPK + 4 * (i // 2) + 2 * (i % 2)
            a(f'v_cvt_pk_bf16_f32 {vr(d)}, {vr(vKr+4*i)}, {vr(vKr+4*i+1)}')
            a(f'v_cvt_pk_bf16_f32 {vr(d+1)}, {vr(vKr+4*i+2)}, {vr(vKr+4*i+3)}')
        if pf: ld_K()
        else: a('s_nop 1')
        for s in range(4):
            a(f'v_mfma_f32_16x16x32_bf16 {vr(vS,4)}, {vr(vPK+4*s,4)}, {vr(vQB+4*s,4)}, {vr(vS,4)}')
        a(f's_waitcnt vmcnt({18 if pf else 8})')
        f = vT + 4
        a(f'v_lshlrev_b32 {vr(f)}, 16, {vr(vVs)}')
        a(f'v_and_b32 {vr(f+1)}, {sr(sMask)}, {vr(vVs)}')
        a(f'v_lshlrev_b32 {vr(f+2)}, 16, {vr(vVs+1)}')
        a(f'v_and_b32 {vr(f+3)}, {sr(sMask)}, {vr(vVs+1)}')
        a('s_nop 4')
        a(f'v_max3_f32 {vr(vT)}, {vr(vS)}, {vr(vS+1)}, {vr(vS+2)}')
        a(f'v_max_f32 {vr(vT)}, {vr(vT)}, {vr(vS+3)}')
        a(f'v_mov_b32 {vr(vT+1)}, {vr(vT)}')
        a('s_nop 1')
        a(f'v_permlane16_swap_b32 {vr(vT)}, {vr(vT+1)}')
        a('s_nop 1')
        a(f'v_max_f32 {vr(vT)}, {vr(vT)}, {vr(vT+1)}')
        a(f'v_mov_b32 {vr(vT+1)}, {vr(vT)}')
        a('s_nop 1')
        a(f'v_permlane32_swap_b32 {vr(vT)}, {vr(vT+1)}')
        a('s_nop 1')
        a(f'v_max3_f32 {vr(vT)}, {vr(vT)}, {vr(vT+1)}, {vr(vM)}')
        a(f'v_sub_f32 {vr(vAl)}, {vr(vM)}, {vr(vT)}')
        a(f'v_cmp_gt_f32 vcc, {vr(vT)}, {vr(vM)}')
        a(f'v_mov_b32 {vr(vM)}, {vr(vT)}')
        a(f'v_exp_f32 {vr(vAl)}, {vr(vAl)}')
        for r in range(4):
            a(f'v_sub_f32 {vr(vS+r)}, {vr(vS+r)}, {vr(vM)}')
        for r in range(4):
            a(f'v_exp_f32 {vr(vS+r)}, {vr(vS+r)}')
        a(f's_cbranch_vccz L_nors_{tag}')
        for r in range(4):
            a(f'v_readlane_b32 {sr(sAl+r)}, {vr(vAl)}, {r}')
        a('s_nop 1')
        for i in range(8):
            for r in range(4):
                a(f'v_mul_f32 {vr(vAcc+4*i+r)}, {sr(sAl+r)}, {vr(vAcc+4*i+r)}')
        for r in range(4):
            a(f'v_mul_f32 {vr(vAz+r)}, {sr(sAl+r)}, {vr(vAz+r)}')
        a(f'L_nors_{tag}:')
        a(f'v_add_f32 {vr(vT)}, {vr(vS)}, {vr(vS+1)}')
        a(f'v_add_f32 {vr(vT+1)}, {vr(vS+2)}, {vr(vS+3)}')
        a(f'v_fma_f32 {vr(vL)}, {vr(vL)}, {vr(vAl)}, {vr(vT)}')
        for r in range(4):
            a(f'v_mul_f32 {vr(vS+r)}, {vr(vS+r)}, {vr(f+r)}')
        a(f'v_add_f32 {vr(vL)}, {vr(vL)}, {vr(vT+1)}')
        a(f'v_cvt_pk_bf16_f32 {vr(vP)}, {vr(vS)}, {vr(vS+1)}')
        a(f'v_cvt_pk_bf16_f32 {vr(vP+1)}, {vr(vS+2)}, {vr(vS+3)}')
        a('s_nop 1')
        a(f'v_mfma_f32_16x16x16_bf16 {vr(vAz,4)}, {vr(vP,2)}, {vr(vVz,2)}, {vr(vAz,4)}')
        a(f's_waitcnt vmcnt({10 if pf else 0})')
        for h in range(2):
            for c in range(4):
                for j in range(4):
                    r = vVr + 4 * (2 * j + h) + c
                    a(f'v_cvt_f32_i32 {vr(r)}, {vr(r)}')
                d = vPK + 2 * (4 * h + c)
                R = lambda j: vVr + 4 * (2 * j + h) + c
                a(f'v_cvt_pk_bf16_f32 {vr(d)}, {vr(R(0))}, {vr(R(1))}')
                a(f'v_cvt_pk_bf16_f32 {vr(d+1)}, {vr(R(2))}, {vr(R(3))}')
        if pf:
            ld_vs(); ld_V()
        else: a('s_nop 1')
        for i in range(8):
            a(f'v_mfma_f32_16x16x16_bf16 {vr(vAcc+4*i,4)}, {vr(vP,2)}, {vr(vPK+2*i,2)}, {vr(vAcc+4*i,4)}')

    if NS > 1:
        a('L_loop:')
        step(1, 'loop')
        if bar: a('s_barrier')
        a(f's_sub_u32 {sr(sCnt)}, {sr(sCnt)}, 1')
        a(f's_cmp_lg_u32 {sr(sCnt)}, 0')
        a('s_cbranch_scc1 L_loop')
    step(0, 'last')

    OB = nw * WLDS
    MB = OB + nw * 2048
    lds_bytes = MB + 2 * 4 * nw * 4
    a(f'v_mov_b32 {vr(vT+1)}, {vr(vL)}')
    a('s_nop 1')
    a(f'v_permlane16_swap_b32 {vr(vL)}, {vr(vT+1)}')
    a('s_nop 1')
    a(f'v_add_f32 {vr(vL)}, {vr(vL)}, {vr(vT+1)}')
    a(f'v_mov_b32 {vr(vT+1)}, {vr(vL)}')
    a('s_nop 1')
    a(f'v_permlane32_swap_b32 {vr(vL)}, {vr(vT+1)}')
    a('s_nop 1')
    a(f'v_add_f32 {vr(vL)}, {vr(vL)}, {vr(vT+1)}')
    a('s_nop 7')
    for i in range(8):
        for r in range(4):
            a(f'v_sub_f32 {vr(vAcc+4*i+r)}, {vr(vAcc+4*i+r)}, {vr(vAz+r)}')
    a(f's_lshl_b32 {sr(sT0)}, {sr(sWave)}, 11')
    a(f's_add_u32 {sr(sT0)}, {sr(sT0)}, {OB}')
    a(f'v_add_u32 {vr(vT)}, {sr(sT0)}, {vr(vKsOff)}')
    a(f's_lshl_b32 {sr(sT1)}, {sr(sWave)}, 2')
    a(f's_add_u32 {sr(sT1)}, {sr(sT1)}, {MB}')
    a(f'v_mul_u32_u24 {vr(vT+2)}, {nw*4}, {vr(vLane)}')
    a(f'v_add_u32 {vr(vT+2)}, {sr(sT1)}, {vr(vT+2)}')
    a('s_mov_b64 exec, 0xffff')
    for i in range(8):
        a(f'ds_write_b128 {vr(vT)}, {vr(vAcc+4*i,4)} offset:{i*256}')
    a('s_mov_b64 exec, 0xf')
    a(f'ds_write_b32 {vr(vT+2)}, {vr(vM)}')
    a(f'ds_write_b32 {vr(vT+2)}, {vr(vL)} offset:{4*nw*4}')
    a('s_mov_b64 exec, -1')
    a('s_waitcnt lgkmcnt(0)')
    a('s_barrier')
    vMl = vKr
    vO = vKr + 16
    vRes = vVr
    a(f'v_and_b32 {vr(vT)}, 3, v0')
    a(f'v_mul_u32_u24 {vr(vT)}, {nw*4}, {vr(vT)}')
    a(f'v_add_u32 {vr(vT)}, {MB}, {vr(vT)}')
    for k in range(nw // 4):
        a(f'ds_read_b128 {vr(vMl+4*k,4)}, {vr(vT)} offset:{16*k}')
        a(f'ds_read_b128 {vr(vMl+8+4*k,4)}, {vr(vT)} offset:{4*nw*4+16*k}')
    a(f'v_lshlrev_b32 {vr(vT+1)}, 2, v0')
    a(f'v_add_u32 {vr(vT+2)}, {OB}, {vr(vT+1)}')
    nch = 512 // nthr
    for ch in range(nch):
        for w in range(nw):
            a(f'ds_read_b32 {vr(vO+ch*nw+w)}, {vr(vT+2)} offset:{w*2048+ch*nthr*4}')
    a('s_waitcnt lgkmcnt(0)')
    vMx = vT + 3
    a(f'v_max3_f32 {vr(vMx)}, {vr(vMl)}, {vr(vMl+1)}, {vr(vMl+2)}')
    for w in range(3, nw):
        a(f'v_max_f32 {vr(vMx)}, {vr(vMx)}, {vr(vMl+w)}')
    for w in range(nw):
        a(f'v_sub_f32 {vr(vMl+w)}, {vr(vMl+w)}, {vr(vMx)}')
    for w in range(nw):
        a(f'v_exp_f32 {vr(vMl+w)}, {vr(vMl+w)}')
    a('s_nop 0')
    vLs = vT + 4
    a(f'v_mul_f32 {vr(vLs)}, {vr(vMl)}, {vr(vMl+8)}')
    for w in range(1, nw):
        a(f'v_fmac_f32 {vr(vLs)}, {vr(vMl+w)}, {vr(vMl+8+w)}')
    for ch in range(nch):
        a(f'v_mul_f32 {vr(vRes+ch)}, {vr(vMl)}, {vr(vO+ch*nw)}')
        for w in range(1, nw):
            a(f'v_fmac_f32 {vr(vRes+ch)}, {vr(vMl+w)}, {vr(vO+ch*nw+w)}')
    a(f's_mul_i32 {sr(sT1)}, s2, {PSTRIDE}')
    a(f's_add_u32 {sr(srdT)}, {sr(ws_)}, {sr(sT1)}')
    a(f's_addc_u32 {sr(srdT+1)}, {sr(ws_+1)}, 0')
    a(f's_and_b32 {sr(srdT+1)}, {sr(srdT+1)}, 0xffff')
    a(f's_mov_b32 {sr(srdT+2)}, {PSTRIDE}')
    a(f's_mov_b32 {sr(srdT+3)}, 0x20000')
    stp = 'sc1' if fused else ''
    for ch in range(nch):
        a(f'buffer_store_dword {vr(vRes+ch)}, {vr(vT+1)}, {sr(srdT,4)}, 0 offen offset:{ch*nthr*4} {stp}')
    a('v_cmp_gt_u32 vcc, 4, v0')
    a(f's_and_saveexec_b64 {sr(sEx,2)}, vcc')
    a('s_cbranch_execz L_nost')
    a(f'buffer_store_dword {vr(vMx)}, {vr(vT+1)}, {sr(srdT,4)}, 0 offen offset:2048 {stp}')
    a(f'buffer_store_dword {vr(vLs)}, {vr(vT+1)}, {sr(srdT,4)}, 0 offen offset:2064 {stp}')
    a('L_nost:')
    a(f's_mov_b64 exec, {sr(sEx,2)}')
    if fused:
        a('s_waitcnt vmcnt(0)')
        a('s_barrier')
        a(f's_cmp_lg_u32 {sr(sWave)}, 0')
        a('s_cbranch_scc1 L_noat')
        a(f's_mov_b32 {sr(srdT)}, {sr(dbg_)}')
        a(f's_and_b32 {sr(srdT+1)}, {sr(dbg_+1)}, 0xffff')
        a(f's_mov_b32 {sr(srdT+2)}, 256')
        a(f's_lshl_b32 {sr(sT1)}, {sr(sHk)}, {cshift}')
        if coff: a(f's_add_u32 {sr(sT1)}, {sr(sT1)}, {coff}')
        a('s_mov_b64 exec, 1')
        a(f'v_mov_b32 {vr(vT+5)}, 1')
        a(f'v_mov_b32 {vr(vT+6)}, 0')
        a(f'buffer_atomic_add {vr(vT+5)}, {vr(vT+6)}, {sr(srdT,4)}, {sr(sT1)} offen sc0')
        a(f'v_mov_b32 {vr(vT+6)}, {MB}')
        a('s_waitcnt vmcnt(0)')
        a(f'ds_write_b32 {vr(vT+6)}, {vr(vT+5)}')
        a('s_mov_b64 exec, -1')
        a('s_waitcnt lgkmcnt(0)')
        a('L_noat:')
        a('s_barrier')
        a(f'v_mov_b32 {vr(vT+6)}, {MB}')
        a(f'ds_read_b32 {vr(vT+5)}, {vr(vT+6)}')
        a('s_waitcnt lgkmcnt(0)')
        a(f'v_readfirstlane_b32 {sr(sT0)}, {vr(vT+5)}')
        a('s_nop 3')
        a(f's_cmp_lg_u32 {sr(sT0)}, {P-1}')
        a('s_cbranch_scc1 L_notlast')
        a(f's_mul_i32 {sr(sT1)}, {sr(sHk)}, {P*PSTRIDE}')
        a(f's_add_u32 {sr(srdT)}, {sr(ws_)}, {sr(sT1)}')
        a(f's_addc_u32 {sr(srdT+1)}, {sr(ws_+1)}, 0')
        a(f's_and_b32 {sr(srdT+1)}, {sr(srdT+1)}, 0xffff')
        a(f's_mov_b32 {sr(srdT+2)}, {P*PSTRIDE}')
        cO, cM, cL = vKr, vKr + nch * P, vKr + nch * P + P
        assert cL + P <= vVr + 32
        a(f'v_and_b32 {vr(vT+2)}, 3, v0')
        a(f'v_lshlrev_b32 {vr(vT+2)}, 2, {vr(vT+2)}')
        for w in range(P):
            a(f's_mov_b32 {sr(sT1)}, {w*PSTRIDE}')
            a(f'buffer_load_dword {vr(cM+w)}, {vr(vT+2)}, {sr(srdT,4)}, {sr(sT1)} offen offset:2048 sc1')
            a(f'buffer_load_dword {vr(cL+w)}, {vr(vT+2)}, {sr(srdT,4)}, {sr(sT1)} offen offset:2064 sc1')
            for ch in range(nch):
                a(f'buffer_load_dword {vr(cO+ch*P+w)}, {vr(vT+1)}, {sr(srdT,4)}, {sr(sT1)} offen offset:{ch*nthr*4} sc1')
        a(f's_lshl_b32 {sr(sT1)}, {sr(sHk)}, 10')
        a(f's_add_u32 {sr(srdK)}, {sr(o_)}, {sr(sT1)}')
        a(f's_addc_u32 {sr(srdK+1)}, {sr(o_+1)}, 0')
        a(f's_and_b32 {sr(srdK+1)}, {sr(srdK+1)}, 0xffff')
        a(f's_mov_b32 {sr(srdK+2)}, 1024')
        a('s_waitcnt vmcnt(0)')
        x, y, z = vT + 3, vT + 4, vT + 5
        a(f'v_max3_f32 {vr(x)}, {vr(cM)}, {vr(cM+1)}, {vr(cM+2)}')
        for w in range(3, P): a(f'v_max_f32 {vr(x)}, {vr(x)}, {vr(cM+w)}')
        for w in range(P): a(f'v_sub_f32 {vr(cM+w)}, {vr(cM+w)}, {vr(x)}')
        for w in range(P): a(f'v_exp_f32 {vr(cM+w)}, {vr(cM+w)}')
        a('s_nop 0')
        a(f'v_mul_f32 {vr(y)}, {vr(cM)}, {vr(cL)}')
        for w in range(1, P): a(f'v_fmac_f32 {vr(y)}, {vr(cM+w)}, {vr(cL+w)}')
        a(f'v_rcp_f32 {vr(z)}, {vr(y)}')
        a('s_nop 0')
        a(f'v_fma_f32 {vr(x)}, -{vr(y)}, {vr(z)}, 1.0')
        a(f'v_fmac_f32 {vr(z)}, {vr(x)}, {vr(z)}')
        for ch in range(nch):
            a(f'v_mul_f32 {vr(y)}, {vr(cM)}, {vr(cO+ch*P)}')
            for w in range(1, P): a(f'v_fmac_f32 {vr(y)}, {vr(cM+w)}, {vr(cO+ch*P+w)}')
            a(f'v_mul_f32 {vr(y)}, {vr(y)}, {vr(z)}')
            a(f'v_cvt_pk_bf16_f32 {vr(y)}, {vr(y)}, {vr(y)}')
            e = vT + 6
            a(f'v_add_u32 {vr(e)}, {ch*nthr}, v0')
            a(f'v_and_b32 {vr(x)}, 3, {vr(e)}'); a(f'v_lshlrev_b32 {vr(x)}, 7, {vr(x)}')
            a(f'v_lshrrev_b32 {vr(vT+7)}, 8, {vr(e)}'); a(f'v_lshl_add_u32 {vr(x)}, {vr(vT+7)}, 6, {vr(x)}')
            a(f'v_bfe_u32 {vr(vT+7)}, {vr(e)}, 2, 4'); a(f'v_lshl_add_u32 {vr(x)}, {vr(vT+7)}, 2, {vr(x)}')
            a(f'v_bfe_u32 {vr(vT+7)}, {vr(e)}, 6, 2'); a(f'v_add_u32 {vr(x)}, {vr(x)}, {vr(vT+7)}')
            a(f'v_lshlrev_b32 {vr(x)}, 1, {vr(x)}')
            a(f'buffer_store_short {vr(y)}, {vr(x)}, {sr(srdK,4)}, 0 offen')
        if dbgprof:
            off = 0
            a('s_waitcnt vmcnt(0)')
            a(f's_cmp_lg_u32 {sr(sWave)}, 0')
            a('s_cbranch_scc1 L_end')
            a(f's_memrealtime {sr(sTime+2,2)}')
            a(f's_memtime {sr(sTm2+2,2)}')
            a('s_waitcnt lgkmcnt(0)')
            a(f's_mov_b32 {sr(srdT)}, {sr(dbg_)}')
            a(f's_and_b32 {sr(srdT+1)}, {sr(dbg_+1)}, 0xffff')
            a(f's_mov_b32 {sr(srdT+2)}, 256')
            a(f's_mov_b32 {sr(srdT+3)}, 0x20000')
            a(f's_not_b32 {sr(sT0)}, {sr(sTime)}')
            a(f's_sub_u32 {sr(sT1)}, {sr(sTm2+2)}, {sr(sTm2)}')
            a(f's_sub_u32 {sr(sTime)}, {sr(sTime+2)}, {sr(sTime)}')
            a('s_mov_b64 exec, 1')
            a(f'v_mov_b32 {vr(vT)}, 0')
            a(f'v_mov_b32 {vr(vT+1)}, {sr(sT0)}')
            a(f'v_mov_b32 {vr(vT+2)}, {sr(sTime+2)}')
            a(f'v_mov_b32 {vr(vT+3)}, {sr(sT1)}')
            a(f'v_mov_b32 {vr(vT+4)}, {sr(sTime)}')
            for i in range(4):
                a(f'buffer_atomic_umax {vr(vT+1+i)}, {vr(vT)}, {sr(srdT,4)}, 0 offen offset:{off+4*i}')
        a('L_notlast:')
    if prof:
        a('s_waitcnt vmcnt(0)')
        a(f's_memrealtime {sr(sTime+2,2)}')
        a(f's_getreg_b32 {sr(sT0)}, hwreg(HW_REG_XCC_ID)')
        a('s_waitcnt lgkmcnt(0)')
        a(f's_add_u32 {sr(srdT)}, {sr(ws_)}, 0x4000000')
        a(f's_addc_u32 {sr(srdT+1)}, {sr(ws_+1)}, 0')
        a(f's_and_b32 {sr(srdT+1)}, {sr(srdT+1)}, 0xffff')
        a(f's_mov_b32 {sr(srdT+2)}, 0x100000')
        a(f's_mul_i32 {sr(sT1)}, s2, {nw}'); a(f's_add_u32 {sr(sT1)}, {sr(sT1)}, {sr(sWave)}'); a(f's_lshl_b32 {sr(sT1)}, {sr(sT1)}, 5')
        for i in range(4): a(f'v_mov_b32 {vr(vKr+i)}, {sr(sTime+i)}')
        a(f'v_mov_b32 {vr(vKr+4)}, {sr(sT0)}'); a(f'v_mov_b32 {vr(vKr+5)}, 0'); a(f'v_mov_b32 {vr(vKr+6)}, s2'); a(f'v_mov_b32 {vr(vKr+7)}, {sr(sWave)}')
        a(f'v_mov_b32 {vr(vT)}, 0')
        a('s_mov_b64 exec, 1')
        a(f'buffer_store_dwordx4 {vr(vKr,4)}, {vr(vT)}, {sr(srdT,4)}, {sr(sT1)} offen')
        a(f'buffer_store_dwordx4 {vr(vKr+4,4)}, {vr(vT)}, {sr(srdT,4)}, {sr(sT1)} offen offset:16')
    a('L_end:')
    a('s_endpgm')
    main = '\n'.join(out)

    out = []; a = out.append
    a(f'{K2}:')
    a('s_cmp_ge_u32 s2, 16')
    a('s_cbranch_scc1 L2_end')
    a('s_load_dwordx2 s[4:5], s[0:1], 72')
    a('s_load_dwordx2 s[6:7], s[0:1], 56')
    a('v_lshlrev_b32 v1, 2, v0')
    a('v_and_b32 v2, 3, v0')
    a('v_lshlrev_b32 v2, 2, v2')
    a('s_waitcnt lgkmcnt(0)')
    a(f's_mul_i32 s3, s2, {P*PSTRIDE}')
    a('s_add_u32 s8, s4, s3'); a('s_addc_u32 s9, s5, 0'); a('s_and_b32 s9, s9, 0xffff')
    a(f's_mov_b32 s10, {P*PSTRIDE}'); a('s_mov_b32 s11, 0x20000')
    vO, vMm, vLl = 8, 8 + P, 8 + 2 * P
    for w in range(P):
        a(f's_mov_b32 s16, {w*PSTRIDE}')
        a(f'buffer_load_dword v{vMm+w}, v2, s[8:11], s16 offen offset:2048')
        a(f'buffer_load_dword v{vLl+w}, v2, s[8:11], s16 offen offset:2064')
        a(f'buffer_load_dword v{vO+w}, v1, s[8:11], s16 offen')
    a('v_and_b32 v3, 3, v0'); a('v_lshlrev_b32 v3, 7, v3')
    a('v_lshrrev_b32 v4, 8, v0'); a('v_lshl_add_u32 v3, v4, 6, v3')
    a('v_bfe_u32 v4, v0, 2, 4'); a('v_lshl_add_u32 v3, v4, 2, v3')
    a('v_bfe_u32 v4, v0, 6, 2'); a('v_add_u32 v3, v3, v4')
    a('v_lshlrev_b32 v3, 1, v3')
    a('s_lshl_b32 s3, s2, 10')
    a('s_add_u32 s12, s6, s3'); a('s_addc_u32 s13, s7, 0'); a('s_and_b32 s13, s13, 0xffff')
    a('s_mov_b32 s14, 1024'); a('s_mov_b32 s15, 0x20000')
    a('s_waitcnt vmcnt(0)')
    a(f'v_max3_f32 v5, v{vMm}, v{vMm+1}, v{vMm+2}')
    for w in range(3, P): a(f'v_max_f32 v5, v5, v{vMm+w}')
    for w in range(P): a(f'v_sub_f32 v{vMm+w}, v{vMm+w}, v5')
    for w in range(P): a(f'v_exp_f32 v{vMm+w}, v{vMm+w}')
    a('s_nop 0')
    a(f'v_mul_f32 v6, v{vMm}, v{vLl}'); a(f'v_mul_f32 v7, v{vMm}, v{vO}')
    for w in range(1, P):
        a(f'v_fmac_f32 v6, v{vMm+w}, v{vLl+w}'); a(f'v_fmac_f32 v7, v{vMm+w}, v{vO+w}')
    a('v_rcp_f32 v4, v6')
    a('s_nop 0')
    a('v_fma_f32 v5, -v6, v4, 1.0')
    a('v_fmac_f32 v4, v5, v4')
    a('v_mul_f32 v7, v7, v4')
    a('v_cvt_pk_bf16_f32 v7, v7, v7')
    a('buffer_store_short v7, v3, s[12:15], 0 offen')
    a('L2_end:')
    a('s_endpgm')
    comb = '\n'.join(out)
    nv2 = 8 + 3 * P

    def kd(name, vg, sg):
        acc = (vg + 3) // 4 * 4
        return f'''.amdhsa_kernel {name}
  .amdhsa_next_free_vgpr {vg}
  .amdhsa_next_free_sgpr {sg}
  .amdhsa_accum_offset {acc}
  .amdhsa_group_segment_fixed_size 0
  .amdhsa_kernarg_size 80
  .amdhsa_user_sgpr_count 2
  .amdhsa_user_sgpr_kernarg_segment_ptr 1
  .amdhsa_system_sgpr_workgroup_id_x 1
  .amdhsa_float_denorm_mode_32 3
.end_amdhsa_kernel
'''
    src = HEADCOMMENT
    if fused:
        src += f'; @launch grid=({nwg},1,1) block=({nthr},1,1) lds={lds_bytes}\n'
    else:
        src += f'; @launch kernel={KN} grid=({nwg},1,1) block=({nthr},1,1) lds={lds_bytes}\n'
        src += f'; @launch kernel={K2} grid=(16,1,1) block=(512,1,1) lds=0\n'
    src += '.amdgcn_target "amdgcn-amd-amdhsa--gfx950"\n.text\n'
    src += f'.globl {KN}\n.p2align 8\n.type {KN},@function\n{main}\n'
    if not fused:
        src += f'.globl {K2}\n.p2align 8\n.type {K2},@function\n{comb}\n'
    src += '.section .rodata,"a"\n.p2align 6\n' + kd(KN, nvgpr, S.n)
    launches = [(KN, nwg, nthr, lds_bytes)]
    if not fused:
        src += '.p2align 6\n' + kd(K2, nv2, 24)
        launches.append((K2, 16, 512, 0))
    return src, launches

if __name__ == '__main__':
    import argparse
    ap = argparse.ArgumentParser()
    ap.add_argument('-o', default='out.s')
    ap.add_argument('kv', nargs='*')
    args = ap.parse_args()
    kw = {}
    for x in args.kv:
        k, v = x.split('=')
        try: v = int(v)
        except: pass
        kw[k] = v
    src, l = gen(**kw)
    open(args.o, 'w').write(src)
    print(l)
```

```python
import sys, os
KN = 'standalone__kv_cache_quant_int4_int2_kv_with_per_channel_or_per_token_scales__decode_kernel'
K2 = 'combine_kernel'

HEADCOMMENT = '''; Kernarg layout for this problem (80 bytes, ptrs only, base s[0:1]):
'''

class Alloc:
    def __init__(self, start, limit):
        self.n = start; self.limit = limit; self.names = {}
    def get(self, name, cnt=1, align=1):
        self.n = (self.n + align - 1) // align * align
        r = self.n; self.n += cnt
        assert self.n <= self.limit, (name, self.n)
        self.names[name] = r
        return r

def vr(r, n=1):
    return f'v{r}' if n == 1 else f'v[{r}:{r+n-1}]'
def sr(r, n=1):
    return f's{r}' if n == 1 else f's[{r}:{r+n-1}]'

PSTRIDE = 4096
QROW = 288
WLDS = 1536
CEXP = 0.08838834764831845 * 1.4426950408889634

def f32hex(x):
    import struct
    return '0x%08x' % struct.unpack('<I', struct.pack('<f', x))[0]

def gen(nw=8, P=16, perm='tr', bar=1, pol='nt', fused=0, prof=0, spol='nt', cshift=2, dbgprof=0, coff=0, nB=0):
    nwg = 16 * P
    NS = 32768 // (P * nw * 16)
    nthr = nw * 64
    out = []
    a = out.append
    V = Alloc(1, 256); S = Alloc(3, 100)
    sWave = S.get('wave')
    sKA = S.get('ka', 16, 4)
    sKB = S.get('kb', 4, 4)
    srdK = S.get('srdK', 4, 4); srdV = S.get('srdV', 4, 4)
    srdKS = S.get('srdKS', 4, 4); srdKZ = S.get('srdKZ', 4, 4)
    srdVS = S.get('srdVS', 4, 4); srdVZ = S.get('srdVZ', 4, 4)
    srdT = S.get('srdT', 4, 4)
    sHk = S.get('hk'); sJ = S.get('j')
    sOffK = S.get('offK'); sOffS = S.get('offS'); sOffG = S.get('offG')
    sOffK2 = S.get('offK2')
    sCnt = S.get('cnt'); sT0 = S.get('t0'); sT1 = S.get('t1')
    sAl = S.get('al', 4, 4)
    sMask = S.get('mask')
    sEx = S.get('ex', 2, 2)
    sTime = S.get('time', 4, 2)
    sTm2 = S.get('time2', 4, 2)
    sSt = S.get('stamps', 16, 2) if (prof == 2 or dbgprof) else None
    def stamp(i):
        if prof == 2 or dbgprof:
            a(f's_memrealtime {sr(sSt+2*i,2)}')
    vLane = V.get('lane')
    vKoff = V.get('koff'); vVoff = V.get('voff'); vSoff = V.get('soff'); vKsOff = V.get('ksoff'); vKzOff = V.get('kzoff')
    vKoffB = V.get('koffB'); vLqRB = V.get('lqrB'); vLzRB = V.get('lzrB')
    vLqW = V.get('lqw'); vLzW = V.get('lzw'); vLqR = V.get('lqr'); vLzR = V.get('lzr')
    vM = V.get('m'); vL = V.get('l'); vAl = V.get('alpha')
    vT = V.get('t', 8, 2)
    vQc = V.get('qc', 8, 4)
    vKs = V.get('ks', 4, 4); vKz = V.get('kz'); vVs = V.get('vs', 2, 2); vVz = V.get('vz', 2, 2)
    vQw = V.get('qw', 4, 4)
    vP = V.get('p', 2, 2)
    vS = V.get('s', 4, 4)
    vAz = V.get('az', 4, 4)
    vAcc = V.get('acc', 32, 4)
    vQB = V.get('qb', 16, 4)
    vPK = V.get('pk', 16, 4)
    vKr = V.get('kraw', 32, 4)
    vVr = V.get('vraw', 32, 4)
    nvgpr = V.n

    a(f'{KN}:')
    a(f's_cmp_ge_u32 s2, {nwg}')
    a('s_cbranch_scc1 L_end')
    a(f's_load_dwordx16 {sr(sKA,16)}, s[0:1], 0')
    a(f's_load_dwordx4 {sr(sKB,4)}, s[0:1], 64')
    if prof == 1 or dbgprof: a(f's_memrealtime {sr(sTime,2)}')
    stamp(0)
    if dbgprof: a(f's_memtime {sr(sTm2,2)}')
    a(f'v_lshrrev_b32 {vr(vT)}, 6, v0')
    a(f'v_and_b32 {vr(vLane)}, 63, v0')
    a(f's_lshr_b32 {sr(sHk)}, s2, {P.bit_length()-1}')
    a(f'v_readfirstlane_b32 {sr(sWave)}, {vr(vT)}')
    a(f's_and_b32 {sr(sJ)}, s2, {P-1}')
    n15, g4 = vT + 1, vT + 2
    a(f'v_and_b32 {vr(n15)}, 15, {vr(vLane)}')
    a(f'v_lshrrev_b32 {vr(g4)}, 4, {vr(vLane)}')
    a(f'v_lshlrev_b32 {vr(vKsOff)}, 4, {vr(n15)}')
    a(f'v_lshlrev_b32 {vr(vT+3)}, 9, {vr(n15)}')
    a(f'v_lshl_add_u32 {vr(vKoff)}, {vr(g4)}, 4, {vr(vT+3)}')
    a(f'v_lshl_add_u32 {vr(vVoff)}, {vr(g4)}, 11, {vr(vKsOff)}')
    a(f'v_lshlrev_b32 {vr(vSoff)}, 3, {vr(g4)}')
    a(f'v_lshlrev_b32 {vr(vKzOff)}, 2, {vr(vLane)}')
    a(f's_mul_i32 {sr(sT0)}, {sr(sWave)}, {WLDS}')
    a(f'v_mul_u32_u24 {vr(vT+3)}, {QROW}, {vr(g4)}')
    a(f'v_add3_u32 {vr(vLqW)}, {vr(vT+3)}, {vr(vKsOff)}, {sr(sT0)}')
    a(f'v_add_u32 {vr(vLzW)}, {sr(sT0)}, {vr(vKzOff)}')
    a(f'v_add_u32 {vr(vLzW)}, {4*QROW}, {vr(vLzW)}')
    a(f'v_and_b32 {vr(vT+3)}, 3, {vr(vLane)}')
    a(f'v_mul_u32_u24 {vr(vT+3)}, {QROW}, {vr(vT+3)}')
    a(f'v_add3_u32 {vr(vLqR)}, {vr(vT+3)}, {vr(vSoff)}, {sr(sT0)}')
    a(f'v_add_u32 {vr(vLzR)}, {sr(sT0)}, {vr(vSoff)}')
    a(f'v_add_u32 {vr(vLzR)}, {4*QROW}, {vr(vLzR)}')
    a(f'v_and_b32 {vr(vT+3)}, 7, {vr(vLane)}')
    a(f'v_lshlrev_b32 {vr(vT+3)}, 9, {vr(vT+3)}')
    a(f'v_lshrrev_b32 {vr(vT+4)}, 3, {vr(vLane)}')
    a(f'v_lshl_add_u32 {vr(vKoffB)}, {vr(vT+4)}, 4, {vr(vT+3)}')
    a(f'v_add_u32 {vr(vLqRB)}, {vr(vLqR)}, {vr(vSoff)}')
    a(f'v_add_u32 {vr(vLzRB)}, {vr(vLzR)}, {vr(vSoff)}')
    a(f's_mov_b32 {sr(sMask)}, 0xffff0000')
    if perm == 'tr':
        a(f's_mul_i32 {sr(sOffK)}, {sr(sJ)}, {(32768 // P) * 512}'); stride = nw * 16 * 512
    else:
        a(f's_mul_i32 {sr(sOffK)}, {sr(sJ)}, {nw * 16 * 512}'); stride = P * nw * 16 * 512
    a(f's_lshl_b32 {sr(sT0)}, {sr(sWave)}, 13')
    a(f's_add_u32 {sr(sOffK)}, {sr(sOffK)}, {sr(sT0)}')
    a('s_waitcnt lgkmcnt(0)')
    def srd(dst, ptr, off_s, off_shift, nbytes):
        a(f's_lshl_b32 {sr(sT0)}, {sr(off_s)}, {off_shift}')
        a(f's_add_u32 {sr(dst)}, {sr(ptr)}, {sr(sT0)}')
        a(f's_addc_u32 {sr(dst+1)}, {sr(ptr+1)}, 0')
        a(f's_and_b32 {sr(dst+1)}, {sr(dst+1)}, 0xffff')
        a(f's_mov_b32 {sr(dst+2)}, {nbytes}')
        a(f's_mov_b32 {sr(dst+3)}, 0x20000')
    q_, qk_, qv_, ks_, kz_, vs_, vz_, o_ = [sKA + 2 * i for i in range(8)]
    dbg_, ws_ = sKB, sKB + 2
    srd(srdT, q_, sHk, 10, 1024)
    srd(srdK, qk_, sHk, 24, 1 << 24)
    srd(srdV, qv_, sHk, 24, 1 << 24)
    srd(srdKS, ks_, sHk, 16, 1 << 16)
    srd(srdKZ, kz_, sHk, 16, 1 << 16)
    srd(srdVS, vs_, sHk, 16, 1 << 16)
    srd(srdVZ, vz_, sHk, 16, 1 << 16)
    def offs():
        a(f's_lshr_b32 {sr(sOffS)}, {sr(sOffK)}, 8')
        a(f's_and_b32 {sr(sOffG)}, {sr(sOffS)}, 0xffffff00')
        if nB: a(f's_add_u32 {sr(sOffK2)}, {sr(sOffK)}, 4096')
    def ld_ks():
        a(f'buffer_load_dwordx4 {vr(vKs,4)}, {vr(vKsOff)}, {sr(srdKS,4)}, {sr(sOffG)} offen {spol}')
        a(f'buffer_load_dword {vr(vKz)}, {vr(vKzOff)}, {sr(srdKZ,4)}, {sr(sOffG)} offen {spol}')
    def ld_K():
        for s in range(4):
            if s < 4 - nB:
                for i in (2*s, 2*s+1):
                    a(f'buffer_load_dwordx4 {vr(vKr+4*i,4)}, {vr(vKoff)}, {sr(srdK,4)}, {sr(sOffK)} offen offset:{i*64} {pol}')
            else:
                a(f'buffer_load_dwordx4 {vr(vKr+8*s,4)}, {vr(vKoffB)}, {sr(srdK,4)}, {sr(sOffK)} offen offset:{s*128} {pol}')
                a(f'buffer_load_dwordx4 {vr(vKr+8*s+4,4)}, {vr(vKoffB)}, {sr(srdK,4)}, {sr(sOffK2)} offen offset:{s*128} {pol}')
    def ld_vs():
        a(f'buffer_load_dwordx2 {vr(vVs,2)}, {vr(vSoff)}, {sr(srdVS,4)}, {sr(sOffS)} offen {spol}')
        a(f'buffer_load_dwordx2 {vr(vVz,2)}, {vr(vSoff)}, {sr(srdVZ,4)}, {sr(sOffS)} offen {spol}')
    def ld_V():
        for j in range(4):
            for h in range(2):
                a(f'buffer_load_dwordx4 {vr(vVr+4*(2*j+h),4)}, {vr(vVoff)}, {sr(srdV,4)}, {sr(sOffK)} offen offset:{j*512+h*256} {pol}')
    a(f'v_lshl_add_u32 {vr(vT+3)}, {vr(g4)}, 8, {vr(vKsOff)}')
    a(f'buffer_load_dwordx4 {vr(vQw,4)}, {vr(vT+3)}, {sr(srdT,4)}, 0 offen')
    offs()
    ld_ks(); ld_K(); ld_vs(); ld_V()
    a(f'v_mov_b32 {vr(vM)}, 0xff800000')
    a(f'v_mov_b32 {vr(vL)}, 0')
    for i in range(4): a(f'v_mov_b32 {vr(vAz+i)}, 0')
    for i in range(32): a(f'v_mov_b32 {vr(vAcc+i)}, 0')
    a(f's_mov_b32 {sr(sT1)}, {f32hex(CEXP)}')
    a('s_waitcnt vmcnt(20)')
    stamp(1)
    for i in range(4):
        a(f'v_lshlrev_b32 {vr(vQc+2*i)}, 16, {vr(vQw+i)}')
        a(f'v_and_b32 {vr(vQc+2*i+1)}, {sr(sMask)}, {vr(vQw+i)}')
    for i in range(8):
        a(f'v_mul_f32 {vr(vQc+i)}, {sr(sT1)}, {vr(vQc+i)}')
    a(f's_mov_b32 {sr(sCnt)}, {NS-1}')

    def step(pf, tag):
        a('s_waitcnt vmcnt(18)')
        for i in range(4):
            a(f'v_lshlrev_b32 {vr(vT)}, 16, {vr(vKs+i)}')
            a(f'v_and_b32 {vr(vT+1)}, {sr(sMask)}, {vr(vKs+i)}')
            a(f'v_mul_f32 {vr(vT)}, {vr(vT)}, {vr(vQc+2*i)}')
            a(f'v_mul_f32 {vr(vT+1)}, {vr(vT+1)}, {vr(vQc+2*i+1)}')
            a(f'v_cvt_pk_bf16_f32 {vr(vQw+i)}, {vr(vT)}, {vr(vT+1)}')
        a(f'v_xor_b32 {vr(vT+2)}, 0x80008000, {vr(vKz)}')
        a(f'ds_write_b128 {vr(vLqW)}, {vr(vQw,4)}')
        a(f'ds_write_b32 {vr(vLzW)}, {vr(vT+2)}')
        if pf:
            a(f's_add_u32 {sr(sOffK)}, {sr(sOffK)}, {stride}')
            offs()
            ld_ks()
        for s in range(4):
            if s < 4 - nB: a(f'ds_read2_b64 {vr(vQB+4*s,4)}, {vr(vLqR)} offset0:{8*s} offset1:{8*s+4}')
            else: a(f'ds_read_b128 {vr(vQB+4*s,4)}, {vr(vLqRB)} offset:{64*s}')
        for s in range(4):
            if s < 4 - nB: a(f'ds_read2_b64 {vr(vPK+4*s,4)}, {vr(vLzR)} offset0:{8*s} offset1:{8*s+4}')
            else: a(f'ds_read_b128 {vr(vPK+4*s,4)}, {vr(vLzRB)} offset:{64*s}')
        a('s_waitcnt lgkmcnt(0)')
        for s in range(4):
            c = '0' if s == 0 else vr(vS, 4)
            a(f'v_mfma_f32_16x16x32_bf16 {vr(vS,4)}, {vr(vPK+4*s,4)}, {vr(vQB+4*s,4)}, {c}')
        a(f's_waitcnt vmcnt({12 if pf else 10})')
        for i in range(8):
            for c in range(4):
                a(f'v_cvt_f32_i32 {vr(vKr+4*i+c)}, {vr(vKr+4*i+c)}')
            d = vPK + 4 * (i // 2) + 2 * (i % 2)
            a(f'v_cvt_pk_bf16_f32 {vr(d)}, {vr(vKr+4*i)}, {vr(vKr+4*i+1)}')
            a(f'v_cvt_pk_bf16_f32 {vr(d+1)}, {vr(vKr+4*i+2)}, {vr(vKr+4*i+3)}')
        for s in range(4 - nB, 4):
            a(f'v_mov_b32 {vr(vT)}, {vr(vPK+4*s)}')
            a(f'v_mov_b32 {vr(vT+1)}, {vr(vPK+4*s+1)}')
            a('s_nop 0')
            a(f'v_mov_b32_dpp {vr(vPK+4*s)}, {vr(vPK+4*s+2)} row_ror:8 row_mask:0xf bank_mask:0xc')
            a(f'v_mov_b32_dpp {vr(vPK+4*s+1)}, {vr(vPK+4*s+3)} row_ror:8 row_mask:0xf bank_mask:0xc')
            a(f'v_mov_b32_dpp {vr(vPK+4*s+2)}, {vr(vT)} row_ror:8 row_mask:0xf bank_mask:0x3')
            a(f'v_mov_b32_dpp {vr(vPK+4*s+3)}, {vr(vT+1)} row_ror:8 row_mask:0xf bank_mask:0x3')
        if pf: ld_K()
        else: a('s_nop 1')
        for s in range(4):
            a(f'v_mfma_f32_16x16x32_bf16 {vr(vS,4)}, {vr(vPK+4*s,4)}, {vr(vQB+4*s,4)}, {vr(vS,4)}')
        a(f's_waitcnt vmcnt({18 if pf else 8})')
        f = vT + 4
        a(f'v_lshlrev_b32 {vr(f)}, 16, {vr(vVs)}')
        a(f'v_and_b32 {vr(f+1)}, {sr(sMask)}, {vr(vVs)}')
        a(f'v_lshlrev_b32 {vr(f+2)}, 16, {vr(vVs+1)}')
        a(f'v_and_b32 {vr(f+3)}, {sr(sMask)}, {vr(vVs+1)}')
        a('s_nop 4')
        a(f'v_max3_f32 {vr(vT)}, {vr(vS)}, {vr(vS+1)}, {vr(vS+2)}')
        a(f'v_max_f32 {vr(vT)}, {vr(vT)}, {vr(vS+3)}')
        a(f'v_mov_b32 {vr(vT+1)}, {vr(vT)}')
        a('s_nop 1')
        a(f'v_permlane16_swap_b32 {vr(vT)}, {vr(vT+1)}')
        a('s_nop 1')
        a(f'v_max_f32 {vr(vT)}, {vr(vT)}, {vr(vT+1)}')
        a(f'v_mov_b32 {vr(vT+1)}, {vr(vT)}')
        a('s_nop 1')
        a(f'v_permlane32_swap_b32 {vr(vT)}, {vr(vT+1)}')
        a('s_nop 1')
        a(f'v_max3_f32 {vr(vT)}, {vr(vT)}, {vr(vT+1)}, {vr(vM)}')
        a(f'v_sub_f32 {vr(vAl)}, {vr(vM)}, {vr(vT)}')
        a(f'v_cmp_gt_f32 vcc, {vr(vT)}, {vr(vM)}')
        a(f'v_mov_b32 {vr(vM)}, {vr(vT)}')
        a(f'v_exp_f32 {vr(vAl)}, {vr(vAl)}')
        for r in range(4):
            a(f'v_sub_f32 {vr(vS+r)}, {vr(vS+r)}, {vr(vM)}')
        for r in range(4):
            a(f'v_exp_f32 {vr(vS+r)}, {vr(vS+r)}')
        a(f's_cbranch_vccz L_nors_{tag}')
        for r in range(4):
            a(f'v_readlane_b32 {sr(sAl+r)}, {vr(vAl)}, {r}')
        a('s_nop 1')
        for i in range(8):
            for r in range(4):
                a(f'v_mul_f32 {vr(vAcc+4*i+r)}, {sr(sAl+r)}, {vr(vAcc+4*i+r)}')
        for r in range(4):
            a(f'v_mul_f32 {vr(vAz+r)}, {sr(sAl+r)}, {vr(vAz+r)}')
        a(f'L_nors_{tag}:')
        a(f'v_add_f32 {vr(vT)}, {vr(vS)}, {vr(vS+1)}')
        a(f'v_add_f32 {vr(vT+1)}, {vr(vS+2)}, {vr(vS+3)}')
        a(f'v_fma_f32 {vr(vL)}, {vr(vL)}, {vr(vAl)}, {vr(vT)}')
        for r in range(4):
            a(f'v_mul_f32 {vr(vS+r)}, {vr(vS+r)}, {vr(f+r)}')
        a(f'v_add_f32 {vr(vL)}, {vr(vL)}, {vr(vT+1)}')
        a(f'v_cvt_pk_bf16_f32 {vr(vP)}, {vr(vS)}, {vr(vS+1)}')
        a(f'v_cvt_pk_bf16_f32 {vr(vP+1)}, {vr(vS+2)}, {vr(vS+3)}')
        a('s_nop 1')
        a(f'v_mfma_f32_16x16x16_bf16 {vr(vAz,4)}, {vr(vP,2)}, {vr(vVz,2)}, {vr(vAz,4)}')
        a(f's_waitcnt vmcnt({10 if pf else 0})')
        for h in range(2):
            for c in range(4):
                for j in range(4):
                    r = vVr + 4 * (2 * j + h) + c
                    a(f'v_cvt_f32_i32 {vr(r)}, {vr(r)}')
                d = vPK + 2 * (4 * h + c)
                R = lambda j: vVr + 4 * (2 * j + h) + c
                a(f'v_cvt_pk_bf16_f32 {vr(d)}, {vr(R(0))}, {vr(R(1))}')
                a(f'v_cvt_pk_bf16_f32 {vr(d+1)}, {vr(R(2))}, {vr(R(3))}')
        if pf:
            ld_vs(); ld_V()
        else: a('s_nop 1')
        for i in range(8):
            a(f'v_mfma_f32_16x16x16_bf16 {vr(vAcc+4*i,4)}, {vr(vP,2)}, {vr(vPK+2*i,2)}, {vr(vAcc+4*i,4)}')

    if NS > 1:
        a('L_loop:')
        step(1, 'loop')
        if bar: a('s_barrier')
        a(f's_sub_u32 {sr(sCnt)}, {sr(sCnt)}, 1')
        a(f's_cmp_lg_u32 {sr(sCnt)}, 0')
        a('s_cbranch_scc1 L_loop')
    stamp(2)
    step(0, 'last')
    stamp(3)

    OB = nw * WLDS
    MB = OB + nw * 2048
    lds_bytes = MB + 2 * 4 * nw * 4
    a(f'v_mov_b32 {vr(vT+1)}, {vr(vL)}')
    a('s_nop 1')
    a(f'v_permlane16_swap_b32 {vr(vL)}, {vr(vT+1)}')
    a('s_nop 1')
    a(f'v_add_f32 {vr(vL)}, {vr(vL)}, {vr(vT+1)}')
    a(f'v_mov_b32 {vr(vT+1)}, {vr(vL)}')
    a('s_nop 1')
    a(f'v_permlane32_swap_b32 {vr(vL)}, {vr(vT+1)}')
    a('s_nop 1')
    a(f'v_add_f32 {vr(vL)}, {vr(vL)}, {vr(vT+1)}')
    a('s_nop 7')
    for i in range(8):
        for r in range(4):
            a(f'v_sub_f32 {vr(vAcc+4*i+r)}, {vr(vAcc+4*i+r)}, {vr(vAz+r)}')
    a(f's_lshl_b32 {sr(sT0)}, {sr(sWave)}, 11')
    a(f's_add_u32 {sr(sT0)}, {sr(sT0)}, {OB}')
    a(f'v_add_u32 {vr(vT)}, {sr(sT0)}, {vr(vKsOff)}')
    a(f's_lshl_b32 {sr(sT1)}, {sr(sWave)}, 2')
    a(f's_add_u32 {sr(sT1)}, {sr(sT1)}, {MB}')
    a(f'v_mul_u32_u24 {vr(vT+2)}, {nw*4}, {vr(vLane)}')
    a(f'v_add_u32 {vr(vT+2)}, {sr(sT1)}, {vr(vT+2)}')
    a('s_mov_b64 exec, 0xffff')
    for i in range(8):
        a(f'ds_write_b128 {vr(vT)}, {vr(vAcc+4*i,4)} offset:{i*256}')
    a('s_mov_b64 exec, 0xf')
    a(f'ds_write_b32 {vr(vT+2)}, {vr(vM)}')
    a(f'ds_write_b32 {vr(vT+2)}, {vr(vL)} offset:{4*nw*4}')
    a('s_mov_b64 exec, -1')
    a('s_waitcnt lgkmcnt(0)')
    a('s_barrier')
    vMl = vKr
    vO = vKr + 16
    vRes = vVr
    a(f'v_and_b32 {vr(vT)}, 3, v0')
    a(f'v_mul_u32_u24 {vr(vT)}, {nw*4}, {vr(vT)}')
    a(f'v_add_u32 {vr(vT)}, {MB}, {vr(vT)}')
    for k in range(nw // 4):
        a(f'ds_read_b128 {vr(vMl+4*k,4)}, {vr(vT)} offset:{16*k}')
        a(f'ds_read_b128 {vr(vMl+8+4*k,4)}, {vr(vT)} offset:{4*nw*4+16*k}')
    a(f'v_lshlrev_b32 {vr(vT+1)}, 2, v0')
    a(f'v_add_u32 {vr(vT+2)}, {OB}, {vr(vT+1)}')
    nch = 512 // nthr
    for ch in range(nch):
        for w in range(nw):
            a(f'ds_read_b32 {vr(vO+ch*nw+w)}, {vr(vT+2)} offset:{w*2048+ch*nthr*4}')
    a('s_waitcnt lgkmcnt(0)')
    vMx = vT + 3
    a(f'v_max3_f32 {vr(vMx)}, {vr(vMl)}, {vr(vMl+1)}, {vr(vMl+2)}')
    for w in range(3, nw):
        a(f'v_max_f32 {vr(vMx)}, {vr(vMx)}, {vr(vMl+w)}')
    for w in range(nw):
        a(f'v_sub_f32 {vr(vMl+w)}, {vr(vMl+w)}, {vr(vMx)}')
    for w in range(nw):
        a(f'v_exp_f32 {vr(vMl+w)}, {vr(vMl+w)}')
    a('s_nop 0')
    vLs = vT + 4
    a(f'v_mul_f32 {vr(vLs)}, {vr(vMl)}, {vr(vMl+8)}')
    for w in range(1, nw):
        a(f'v_fmac_f32 {vr(vLs)}, {vr(vMl+w)}, {vr(vMl+8+w)}')
    for ch in range(nch):
        a(f'v_mul_f32 {vr(vRes+ch)}, {vr(vMl)}, {vr(vO+ch*nw)}')
        for w in range(1, nw):
            a(f'v_fmac_f32 {vr(vRes+ch)}, {vr(vMl+w)}, {vr(vO+ch*nw+w)}')
    stamp(4)
    a(f's_mul_i32 {sr(sT1)}, s2, {PSTRIDE}')
    a(f's_add_u32 {sr(srdT)}, {sr(ws_)}, {sr(sT1)}')
    a(f's_addc_u32 {sr(srdT+1)}, {sr(ws_+1)}, 0')
    a(f's_and_b32 {sr(srdT+1)}, {sr(srdT+1)}, 0xffff')
    a(f's_mov_b32 {sr(srdT+2)}, {PSTRIDE}')
    a(f's_mov_b32 {sr(srdT+3)}, 0x20000')
    stp = 'sc1' if fused else ''
    for ch in range(nch):
        a(f'buffer_store_dword {vr(vRes+ch)}, {vr(vT+1)}, {sr(srdT,4)}, 0 offen offset:{ch*nthr*4} {stp}')
    a('v_cmp_gt_u32 vcc, 4, v0')
    a(f's_and_saveexec_b64 {sr(sEx,2)}, vcc')
    a('s_cbranch_execz L_nost')
    a(f'buffer_store_dword {vr(vMx)}, {vr(vT+1)}, {sr(srdT,4)}, 0 offen offset:2048 {stp}')
    a(f'buffer_store_dword {vr(vLs)}, {vr(vT+1)}, {sr(srdT,4)}, 0 offen offset:2064 {stp}')
    a('L_nost:')
    a(f's_mov_b64 exec, {sr(sEx,2)}')
    if fused:
        a('s_waitcnt vmcnt(0)')
        stamp(5)
        a('s_barrier')
        a(f's_cmp_lg_u32 {sr(sWave)}, 0')
        a('s_cbranch_scc1 L_noat')
        a(f's_mov_b32 {sr(srdT)}, {sr(dbg_)}')
        a(f's_and_b32 {sr(srdT+1)}, {sr(dbg_+1)}, 0xffff')
        a(f's_mov_b32 {sr(srdT+2)}, 256')
        a(f's_lshl_b32 {sr(sT1)}, {sr(sHk)}, {cshift}')
        if coff: a(f's_add_u32 {sr(sT1)}, {sr(sT1)}, {coff}')
        a('s_mov_b64 exec, 1')
        a(f'v_mov_b32 {vr(vT+5)}, 1')
        a(f'v_mov_b32 {vr(vT+6)}, 0')
        a(f'buffer_atomic_add {vr(vT+5)}, {vr(vT+6)}, {sr(srdT,4)}, {sr(sT1)} offen sc0')
        a(f'v_mov_b32 {vr(vT+6)}, {MB}')
        a('s_waitcnt vmcnt(0)')
        a(f'ds_write_b32 {vr(vT+6)}, {vr(vT+5)}')
        a('s_mov_b64 exec, -1')
        a('s_waitcnt lgkmcnt(0)')
        a('L_noat:')
        a('s_barrier')
        a(f'v_mov_b32 {vr(vT+6)}, {MB}')
        a(f'ds_read_b32 {vr(vT+5)}, {vr(vT+6)}')
        a('s_waitcnt lgkmcnt(0)')
        a(f'v_readfirstlane_b32 {sr(sT0)}, {vr(vT+5)}')
        a('s_nop 3')
        stamp(6)
        a(f's_cmp_lg_u32 {sr(sT0)}, {P-1}')
        a('s_cbranch_scc1 L_notlast')
        a(f's_mul_i32 {sr(sT1)}, {sr(sHk)}, {P*PSTRIDE}')
        a(f's_add_u32 {sr(srdT)}, {sr(ws_)}, {sr(sT1)}')
        a(f's_addc_u32 {sr(srdT+1)}, {sr(ws_+1)}, 0')
        a(f's_and_b32 {sr(srdT+1)}, {sr(srdT+1)}, 0xffff')
        a(f's_mov_b32 {sr(srdT+2)}, {P*PSTRIDE}')
        cO, cM, cL = vKr, vKr + nch * P, vKr + nch * P + P
        assert cL + P <= vVr + 32
        a(f'v_and_b32 {vr(vT+2)}, 3, v0')
        a(f'v_lshlrev_b32 {vr(vT+2)}, 2, {vr(vT+2)}')
        for w in range(P):
            a(f's_mov_b32 {sr(sT1)}, {w*PSTRIDE}')
            a(f'buffer_load_dword {vr(cM+w)}, {vr(vT+2)}, {sr(srdT,4)}, {sr(sT1)} offen offset:2048 sc1')
            a(f'buffer_load_dword {vr(cL+w)}, {vr(vT+2)}, {sr(srdT,4)}, {sr(sT1)} offen offset:2064 sc1')
            for ch in range(nch):
                a(f'buffer_load_dword {vr(cO+ch*P+w)}, {vr(vT+1)}, {sr(srdT,4)}, {sr(sT1)} offen offset:{ch*nthr*4} sc1')
        a(f's_lshl_b32 {sr(sT1)}, {sr(sHk)}, 10')
        a(f's_add_u32 {sr(srdK)}, {sr(o_)}, {sr(sT1)}')
        a(f's_addc_u32 {sr(srdK+1)}, {sr(o_+1)}, 0')
        a(f's_and_b32 {sr(srdK+1)}, {sr(srdK+1)}, 0xffff')
        a(f's_mov_b32 {sr(srdK+2)}, 1024')
        a('s_waitcnt vmcnt(0)')
        x, y, z = vT + 3, vT + 4, vT + 5
        a(f'v_max3_f32 {vr(x)}, {vr(cM)}, {vr(cM+1)}, {vr(cM+2)}')
        for w in range(3, P): a(f'v_max_f32 {vr(x)}, {vr(x)}, {vr(cM+w)}')
        for w in range(P): a(f'v_sub_f32 {vr(cM+w)}, {vr(cM+w)}, {vr(x)}')
        for w in range(P): a(f'v_exp_f32 {vr(cM+w)}, {vr(cM+w)}')
        a('s_nop 0')
        a(f'v_mul_f32 {vr(y)}, {vr(cM)}, {vr(cL)}')
        for w in range(1, P): a(f'v_fmac_f32 {vr(y)}, {vr(cM+w)}, {vr(cL+w)}')
        a(f'v_rcp_f32 {vr(z)}, {vr(y)}')
        a('s_nop 0')
        a(f'v_fma_f32 {vr(x)}, -{vr(y)}, {vr(z)}, 1.0')
        a(f'v_fmac_f32 {vr(z)}, {vr(x)}, {vr(z)}')
        for ch in range(nch):
            a(f'v_mul_f32 {vr(y)}, {vr(cM)}, {vr(cO+ch*P)}')
            for w in range(1, P): a(f'v_fmac_f32 {vr(y)}, {vr(cM+w)}, {vr(cO+ch*P+w)}')
            a(f'v_mul_f32 {vr(y)}, {vr(y)}, {vr(z)}')
            a(f'v_cvt_pk_bf16_f32 {vr(y)}, {vr(y)}, {vr(y)}')
            e = vT + 6
            a(f'v_add_u32 {vr(e)}, {ch*nthr}, v0')
            a(f'v_and_b32 {vr(x)}, 3, {vr(e)}'); a(f'v_lshlrev_b32 {vr(x)}, 7, {vr(x)}')
            a(f'v_lshrrev_b32 {vr(vT+7)}, 8, {vr(e)}'); a(f'v_lshl_add_u32 {vr(x)}, {vr(vT+7)}, 6, {vr(x)}')
            a(f'v_bfe_u32 {vr(vT+7)}, {vr(e)}, 2, 4'); a(f'v_lshl_add_u32 {vr(x)}, {vr(vT+7)}, 2, {vr(x)}')
            a(f'v_bfe_u32 {vr(vT+7)}, {vr(e)}, 6, 2'); a(f'v_add_u32 {vr(x)}, {vr(x)}, {vr(vT+7)}')
            a(f'v_lshlrev_b32 {vr(x)}, 1, {vr(x)}')
            a(f'buffer_store_short {vr(y)}, {vr(x)}, {sr(srdK,4)}, 0 offen')
        if dbgprof:
            a('s_waitcnt vmcnt(0)')
            a(f's_cmp_lg_u32 {sr(sWave)}, 0')
            a('s_cbranch_scc1 L_end')
            stamp(7)
            a(f's_memtime {sr(sTm2+2,2)}')
            a('s_waitcnt lgkmcnt(0)')
            a(f's_mov_b32 {sr(srdT)}, {sr(dbg_)}')
            a(f's_and_b32 {sr(srdT+1)}, {sr(dbg_+1)}, 0xffff')
            a(f's_mov_b32 {sr(srdT+2)}, 256')
            a(f's_mov_b32 {sr(srdT+3)}, 0x20000')
            a('s_mov_b64 exec, 1')
            a(f'v_mov_b32 {vr(vT)}, 0')
            for i in range(1, 8):
                a(f's_sub_u32 {sr(sT0)}, {sr(sSt+2*i)}, {sr(sSt)}')
                a(f'v_mov_b32 {vr(vKr+i)}, {sr(sT0)}')
            a(f's_sub_u32 {sr(sT0)}, {sr(sSt+14)}, {sr(sSt+12)}'); a(f'v_mov_b32 {vr(vKr+8)}, {sr(sT0)}')
            a(f's_sub_u32 {sr(sT0)}, {sr(sSt+14)}, {sr(sSt+6)}'); a(f'v_mov_b32 {vr(vKr+9)}, {sr(sT0)}')
            a(f's_sub_u32 {sr(sT0)}, {sr(sTm2+2)}, {sr(sTm2)}'); a(f'v_mov_b32 {vr(vKr+10)}, {sr(sT0)}')
            for i in range(1, 11):
                a(f'buffer_atomic_umax {vr(vKr+i)}, {vr(vT)}, {sr(srdT,4)}, 0 offen offset:{4*i}')
        a('L_notlast:')
    if prof == 2:
        a('s_waitcnt vmcnt(0)')
        stamp(7)
        a('s_waitcnt lgkmcnt(0)')
        a(f's_cmp_lg_u32 {sr(sWave)}, 0')
        a('s_cbranch_scc1 L_end')
        a(f's_add_u32 {sr(srdT)}, {sr(ws_)}, 0x4000000')
        a(f's_addc_u32 {sr(srdT+1)}, {sr(ws_+1)}, 0')
        a(f's_and_b32 {sr(srdT+1)}, {sr(srdT+1)}, 0xffff')
        a(f's_mov_b32 {sr(srdT+2)}, 0x100000')
        a(f's_lshl_b32 {sr(sT1)}, s2, 6')
        for i in range(8): a(f'v_mov_b32 {vr(vKr+i)}, {sr(sSt+2*i)}')
        a(f's_getreg_b32 {sr(sT0)}, hwreg(HW_REG_XCC_ID)')
        a(f'v_mov_b32 {vr(vKr+8)}, {sr(sT0)}')
        a(f'v_mov_b32 {vr(vT)}, 0')
        a('s_mov_b64 exec, 1')
        a(f'buffer_store_dwordx4 {vr(vKr,4)}, {vr(vT)}, {sr(srdT,4)}, {sr(sT1)} offen')
        a(f'buffer_store_dwordx4 {vr(vKr+4,4)}, {vr(vT)}, {sr(srdT,4)}, {sr(sT1)} offen offset:16')
        a(f'buffer_store_dword {vr(vKr+8)}, {vr(vT)}, {sr(srdT,4)}, {sr(sT1)} offen offset:32')
    if prof == 1:
        a('s_waitcnt vmcnt(0)')
        a(f's_memrealtime {sr(sTime+2,2)}')
        a(f's_getreg_b32 {sr(sT0)}, hwreg(HW_REG_XCC_ID)')
        a('s_waitcnt lgkmcnt(0)')
        a(f's_add_u32 {sr(srdT)}, {sr(ws_)}, 0x4000000')
        a(f's_addc_u32 {sr(srdT+1)}, {sr(ws_+1)}, 0')
        a(f's_and_b32 {sr(srdT+1)}, {sr(srdT+1)}, 0xffff')
        a(f's_mov_b32 {sr(srdT+2)}, 0x100000')
        a(f's_mul_i32 {sr(sT1)}, s2, {nw}'); a(f's_add_u32 {sr(sT1)}, {sr(sT1)}, {sr(sWave)}'); a(f's_lshl_b32 {sr(sT1)}, {sr(sT1)}, 5')
        for i in range(4): a(f'v_mov_b32 {vr(vKr+i)}, {sr(sTime+i)}')
        a(f'v_mov_b32 {vr(vKr+4)}, {sr(sT0)}'); a(f'v_mov_b32 {vr(vKr+5)}, 0'); a(f'v_mov_b32 {vr(vKr+6)}, s2'); a(f'v_mov_b32 {vr(vKr+7)}, {sr(sWave)}')
        a(f'v_mov_b32 {vr(vT)}, 0')
        a('s_mov_b64 exec, 1')
        a(f'buffer_store_dwordx4 {vr(vKr,4)}, {vr(vT)}, {sr(srdT,4)}, {sr(sT1)} offen')
        a(f'buffer_store_dwordx4 {vr(vKr+4,4)}, {vr(vT)}, {sr(srdT,4)}, {sr(sT1)} offen offset:16')
    a('L_end:')
    a('s_endpgm')
    main = '\n'.join(out)

    out = []; a = out.append
    a(f'{K2}:')
    a('s_cmp_ge_u32 s2, 16')
    a('s_cbranch_scc1 L2_end')
    a('s_load_dwordx2 s[4:5], s[0:1], 72')
    a('s_load_dwordx2 s[6:7], s[0:1], 56')
    a('v_lshlrev_b32 v1, 2, v0')
    a('v_and_b32 v2, 3, v0')
    a('v_lshlrev_b32 v2, 2, v2')
    a('s_waitcnt lgkmcnt(0)')
    a(f's_mul_i32 s3, s2, {P*PSTRIDE}')
    a('s_add_u32 s8, s4, s3'); a('s_addc_u32 s9, s5, 0'); a('s_and_b32 s9, s9, 0xffff')
    a(f's_mov_b32 s10, {P*PSTRIDE}'); a('s_mov_b32 s11, 0x20000')
    vO, vMm, vLl = 8, 8 + P, 8 + 2 * P
    for w in range(P):
        a(f's_mov_b32 s16, {w*PSTRIDE}')
        a(f'buffer_load_dword v{vMm+w}, v2, s[8:11], s16 offen offset:2048')
        a(f'buffer_load_dword v{vLl+w}, v2, s[8:11], s16 offen offset:2064')
        a(f'buffer_load_dword v{vO+w}, v1, s[8:11], s16 offen')
    a('v_and_b32 v3, 3, v0'); a('v_lshlrev_b32 v3, 7, v3')
    a('v_lshrrev_b32 v4, 8, v0'); a('v_lshl_add_u32 v3, v4, 6, v3')
    a('v_bfe_u32 v4, v0, 2, 4'); a('v_lshl_add_u32 v3, v4, 2, v3')
    a('v_bfe_u32 v4, v0, 6, 2'); a('v_add_u32 v3, v3, v4')
    a('v_lshlrev_b32 v3, 1, v3')
    a('s_lshl_b32 s3, s2, 10')
    a('s_add_u32 s12, s6, s3'); a('s_addc_u32 s13, s7, 0'); a('s_and_b32 s13, s13, 0xffff')
    a('s_mov_b32 s14, 1024'); a('s_mov_b32 s15, 0x20000')
    a('s_waitcnt vmcnt(0)')
    a(f'v_max3_f32 v5, v{vMm}, v{vMm+1}, v{vMm+2}')
    for w in range(3, P): a(f'v_max_f32 v5, v5, v{vMm+w}')
    for w in range(P): a(f'v_sub_f32 v{vMm+w}, v{vMm+w}, v5')
    for w in range(P): a(f'v_exp_f32 v{vMm+w}, v{vMm+w}')
    a('s_nop 0')
    a(f'v_mul_f32 v6, v{vMm}, v{vLl}'); a(f'v_mul_f32 v7, v{vMm}, v{vO}')
    for w in range(1, P):
        a(f'v_fmac_f32 v6, v{vMm+w}, v{vLl+w}'); a(f'v_fmac_f32 v7, v{vMm+w}, v{vO+w}')
    a('v_rcp_f32 v4, v6')
    a('s_nop 0')
    a('v_fma_f32 v5, -v6, v4, 1.0')
    a('v_fmac_f32 v4, v5, v4')
    a('v_mul_f32 v7, v7, v4')
    a('v_cvt_pk_bf16_f32 v7, v7, v7')
    a('buffer_store_short v7, v3, s[12:15], 0 offen')
    a('L2_end:')
    a('s_endpgm')
    comb = '\n'.join(out)
    nv2 = 8 + 3 * P

    def kd(name, vg, sg):
        acc = (vg + 3) // 4 * 4
        return f'''.amdhsa_kernel {name}
  .amdhsa_next_free_vgpr {vg}
  .amdhsa_next_free_sgpr {sg}
  .amdhsa_accum_offset {acc}
  .amdhsa_group_segment_fixed_size 0
  .amdhsa_kernarg_size 80
  .amdhsa_user_sgpr_count 2
  .amdhsa_user_sgpr_kernarg_segment_ptr 1
  .amdhsa_system_sgpr_workgroup_id_x 1
  .amdhsa_float_denorm_mode_32 3
.end_amdhsa_kernel
'''
    src = HEADCOMMENT
    if fused:
        src += f'; @launch grid=({nwg},1,1) block=({nthr},1,1) lds={lds_bytes}\n'
    else:
        src += f'; @launch kernel={KN} grid=({nwg},1,1) block=({nthr},1,1) lds={lds_bytes}\n'
        src += f'; @launch kernel={K2} grid=(16,1,1) block=(512,1,1) lds=0\n'
    src += '.amdgcn_target "amdgcn-amd-amdhsa--gfx950"\n.text\n'
    src += f'.globl {KN}\n.p2align 8\n.type {KN},@function\n{main}\n'
    if not fused:
        src += f'.globl {K2}\n.p2align 8\n.type {K2},@function\n{comb}\n'
    src += '.section .rodata,"a"\n.p2align 6\n' + kd(KN, nvgpr, S.n)
    launches = [(KN, nwg, nthr, lds_bytes)]
    if not fused:
        src += '.p2align 6\n' + kd(K2, nv2, 24)
        launches.append((K2, 16, 512, 0))
    return src, launches

if __name__ == '__main__':
    import argparse
    ap = argparse.ArgumentParser()
    ap.add_argument('-o', default='out.s')
    ap.add_argument('kv', nargs='*')
    args = ap.parse_args()
    kw = {}
    for x in args.kv:
        k, v = x.split('=')
        try: v = int(v)
        except: pass
        kw[k] = v
    src, l = gen(**kw)
    open(args.o, 'w').write(src)
    print(l)
```

```python
import sys, os
KN = 'standalone__kv_cache_quant_int4_int2_kv_with_per_channel_or_per_token_scales__decode_kernel'
K2 = 'combine_kernel'

HEADCOMMENT = '''; Kernarg layout for this problem (80 bytes, ptrs only, base s[0:1]):
'''

class Alloc:
    def __init__(self, start, limit):
        self.n = start; self.limit = limit; self.names = {}
    def get(self, name, cnt=1, align=1):
        self.n = (self.n + align - 1) // align * align
        r = self.n; self.n += cnt
        assert self.n <= self.limit, (name, self.n)
        self.names[name] = r
        return r

def vr(r, n=1):
    return f'v{r}' if n == 1 else f'v[{r}:{r+n-1}]'
def sr(r, n=1):
    return f's{r}' if n == 1 else f's[{r}:{r+n-1}]'

PSTRIDE = 4096
QROW = 288
WLDS = 1536
CEXP = 0.08838834764831845 * 1.4426950408889634

def f32hex(x):
    import struct
    return '0x%08x' % struct.unpack('<I', struct.pack('<f', x))[0]

def gen(nw=8, P=16, perm='tr', bar=1, pol='nt', fused=0, prof=0, spol='nt', cshift=2, dbgprof=0, coff=0, nB=0, kpol=None, vpol=None):
    if kpol is None: kpol = pol
    if vpol is None: vpol = pol
    nwg = 16 * P
    NS = 32768 // (P * nw * 16)
    nthr = nw * 64
    out = []
    a = out.append
    V = Alloc(1, 256); S = Alloc(3, 100)
    sWave = S.get('wave')
    sKA = S.get('ka', 16, 4)
    sKB = S.get('kb', 4, 4)
    srdK = S.get('srdK', 4, 4); srdV = S.get('srdV', 4, 4)
    srdKS = S.get('srdKS', 4, 4); srdKZ = S.get('srdKZ', 4, 4)
    srdVS = S.get('srdVS', 4, 4); srdVZ = S.get('srdVZ', 4, 4)
    srdT = S.get('srdT', 4, 4)
    sHk = S.get('hk'); sJ = S.get('j')
    sOffK = S.get('offK'); sOffS = S.get('offS'); sOffG = S.get('offG')
    sOffK2 = S.get('offK2')
    sCnt = S.get('cnt'); sT0 = S.get('t0'); sT1 = S.get('t1')
    sAl = S.get('al', 4, 4)
    sMask = S.get('mask')
    sEx = S.get('ex', 2, 2)
    sTime = S.get('time', 4, 2)
    sTm2 = S.get('time2', 4, 2)
    sSt = S.get('stamps', 16, 2) if (prof == 2 or dbgprof) else None
    def stamp(i):
        if prof == 2 or dbgprof:
            a(f's_memrealtime {sr(sSt+2*i,2)}')
    vLane = V.get('lane')
    vKoff = V.get('koff'); vVoff = V.get('voff'); vSoff = V.get('soff'); vKsOff = V.get('ksoff'); vKzOff = V.get('kzoff')
    vKoffB = V.get('koffB'); vLqRB = V.get('lqrB'); vLzRB = V.get('lzrB')
    vLqW = V.get('lqw'); vLzW = V.get('lzw'); vLqR = V.get('lqr'); vLzR = V.get('lzr')
    vM = V.get('m'); vL = V.get('l'); vAl = V.get('alpha')
    vT = V.get('t', 8, 2)
    vQc = V.get('qc', 8, 4)
    vKs = V.get('ks', 4, 4); vKz = V.get('kz'); vVs = V.get('vs', 2, 2); vVz = V.get('vz', 2, 2)
    vQw = V.get('qw', 4, 4)
    vP = V.get('p', 2, 2)
    vS = V.get('s', 4, 4)
    vAz = V.get('az', 4, 4)
    vAcc = V.get('acc', 32, 4)
    vQB = V.get('qb', 16, 4)
    vPK = V.get('pk', 16, 4)
    vKr = V.get('kraw', 32, 4)
    vVr = V.get('vraw', 32, 4)
    nvgpr = V.n

    a(f'{KN}:')
    a(f's_cmp_ge_u32 s2, {nwg}')
    a('s_cbranch_scc1 L_end')
    a(f's_load_dwordx16 {sr(sKA,16)}, s[0:1], 0')
    a(f's_load_dwordx4 {sr(sKB,4)}, s[0:1], 64')
    if prof == 1 or dbgprof: a(f's_memrealtime {sr(sTime,2)}')
    stamp(0)
    if dbgprof: a(f's_memtime {sr(sTm2,2)}')
    a(f'v_lshrrev_b32 {vr(vT)}, 6, v0')
    a(f'v_and_b32 {vr(vLane)}, 63, v0')
    a(f's_lshr_b32 {sr(sHk)}, s2, {P.bit_length()-1}')
    a(f'v_readfirstlane_b32 {sr(sWave)}, {vr(vT)}')
    a(f's_and_b32 {sr(sJ)}, s2, {P-1}')
    n15, g4 = vT + 1, vT + 2
    a(f'v_and_b32 {vr(n15)}, 15, {vr(vLane)}')
    a(f'v_lshrrev_b32 {vr(g4)}, 4, {vr(vLane)}')
    a(f'v_lshlrev_b32 {vr(vKsOff)}, 4, {vr(n15)}')
    a(f'v_lshlrev_b32 {vr(vT+3)}, 9, {vr(n15)}')
    a(f'v_lshl_add_u32 {vr(vKoff)}, {vr(g4)}, 4, {vr(vT+3)}')
    a(f'v_lshl_add_u32 {vr(vVoff)}, {vr(g4)}, 11, {vr(vKsOff)}')
    a(f'v_lshlrev_b32 {vr(vSoff)}, 3, {vr(g4)}')
    a(f'v_lshlrev_b32 {vr(vKzOff)}, 2, {vr(vLane)}')
    a(f's_mul_i32 {sr(sT0)}, {sr(sWave)}, {WLDS}')
    a(f'v_mul_u32_u24 {vr(vT+3)}, {QROW}, {vr(g4)}')
    a(f'v_add3_u32 {vr(vLqW)}, {vr(vT+3)}, {vr(vKsOff)}, {sr(sT0)}')
    a(f'v_add_u32 {vr(vLzW)}, {sr(sT0)}, {vr(vKzOff)}')
    a(f'v_add_u32 {vr(vLzW)}, {4*QROW}, {vr(vLzW)}')
    a(f'v_and_b32 {vr(vT+3)}, 3, {vr(vLane)}')
    a(f'v_mul_u32_u24 {vr(vT+3)}, {QROW}, {vr(vT+3)}')
    a(f'v_add3_u32 {vr(vLqR)}, {vr(vT+3)}, {vr(vSoff)}, {sr(sT0)}')
    a(f'v_add_u32 {vr(vLzR)}, {sr(sT0)}, {vr(vSoff)}')
    a(f'v_add_u32 {vr(vLzR)}, {4*QROW}, {vr(vLzR)}')
    a(f'v_and_b32 {vr(vT+3)}, 7, {vr(vLane)}')
    a(f'v_lshlrev_b32 {vr(vT+3)}, 9, {vr(vT+3)}')
    a(f'v_lshrrev_b32 {vr(vT+4)}, 3, {vr(vLane)}')
    a(f'v_lshl_add_u32 {vr(vKoffB)}, {vr(vT+4)}, 4, {vr(vT+3)}')
    a(f'v_add_u32 {vr(vLqRB)}, {vr(vLqR)}, {vr(vSoff)}')
    a(f'v_add_u32 {vr(vLzRB)}, {vr(vLzR)}, {vr(vSoff)}')
    a(f's_mov_b32 {sr(sMask)}, 0xffff0000')
    if perm == 'tr':
        a(f's_mul_i32 {sr(sOffK)}, {sr(sJ)}, {(32768 // P) * 512}'); stride = nw * 16 * 512
    else:
        a(f's_mul_i32 {sr(sOffK)}, {sr(sJ)}, {nw * 16 * 512}'); stride = P * nw * 16 * 512
    a(f's_lshl_b32 {sr(sT0)}, {sr(sWave)}, 13')
    a(f's_add_u32 {sr(sOffK)}, {sr(sOffK)}, {sr(sT0)}')
    a('s_waitcnt lgkmcnt(0)')
    def srd(dst, ptr, off_s, off_shift, nbytes):
        a(f's_lshl_b32 {sr(sT0)}, {sr(off_s)}, {off_shift}')
        a(f's_add_u32 {sr(dst)}, {sr(ptr)}, {sr(sT0)}')
        a(f's_addc_u32 {sr(dst+1)}, {sr(ptr+1)}, 0')
        a(f's_and_b32 {sr(dst+1)}, {sr(dst+1)}, 0xffff')
        a(f's_mov_b32 {sr(dst+2)}, {nbytes}')
        a(f's_mov_b32 {sr(dst+3)}, 0x20000')
    q_, qk_, qv_, ks_, kz_, vs_, vz_, o_ = [sKA + 2 * i for i in range(8)]
    dbg_, ws_ = sKB, sKB + 2
    srd(srdT, q_, sHk, 10, 1024)
    srd(srdK, qk_, sHk, 24, 1 << 24)
    srd(srdV, qv_, sHk, 24, 1 << 24)
    srd(srdKS, ks_, sHk, 16, 1 << 16)
    srd(srdKZ, kz_, sHk, 16, 1 << 16)
    srd(srdVS, vs_, sHk, 16, 1 << 16)
    srd(srdVZ, vz_, sHk, 16, 1 << 16)
    def offs():
        a(f's_lshr_b32 {sr(sOffS)}, {sr(sOffK)}, 8')
        a(f's_and_b32 {sr(sOffG)}, {sr(sOffS)}, 0xffffff00')
        if nB: a(f's_add_u32 {sr(sOffK2)}, {sr(sOffK)}, 4096')
    def ld_ks():
        a(f'buffer_load_dwordx4 {vr(vKs,4)}, {vr(vKsOff)}, {sr(srdKS,4)}, {sr(sOffG)} offen {spol}')
        a(f'buffer_load_dword {vr(vKz)}, {vr(vKzOff)}, {sr(srdKZ,4)}, {sr(sOffG)} offen {spol}')
    def ld_K():
        for s in range(4):
            if s < 4 - nB:
                for i in (2*s, 2*s+1):
                    a(f'buffer_load_dwordx4 {vr(vKr+4*i,4)}, {vr(vKoff)}, {sr(srdK,4)}, {sr(sOffK)} offen offset:{i*64} {kpol}')
            else:
                a(f'buffer_load_dwordx4 {vr(vKr+8*s,4)}, {vr(vKoffB)}, {sr(srdK,4)}, {sr(sOffK)} offen offset:{s*128} {kpol}')
                a(f'buffer_load_dwordx4 {vr(vKr+8*s+4,4)}, {vr(vKoffB)}, {sr(srdK,4)}, {sr(sOffK2)} offen offset:{s*128} {kpol}')
    def ld_vs():
        a(f'buffer_load_dwordx2 {vr(vVs,2)}, {vr(vSoff)}, {sr(srdVS,4)}, {sr(sOffS)} offen {spol}')
        a(f'buffer_load_dwordx2 {vr(vVz,2)}, {vr(vSoff)}, {sr(srdVZ,4)}, {sr(sOffS)} offen {spol}')
    def ld_V():
        for j in range(4):
            for h in range(2):
                a(f'buffer_load_dwordx4 {vr(vVr+4*(2*j+h),4)}, {vr(vVoff)}, {sr(srdV,4)}, {sr(sOffK)} offen offset:{j*512+h*256} {vpol}')
    a(f'v_lshl_add_u32 {vr(vT+3)}, {vr(g4)}, 8, {vr(vKsOff)}')
    a(f'buffer_load_dwordx4 {vr(vQw,4)}, {vr(vT+3)}, {sr(srdT,4)}, 0 offen')
    offs()
    ld_ks(); ld_K(); ld_vs(); ld_V()
    a(f'v_mov_b32 {vr(vM)}, 0xff800000')
    a(f'v_mov_b32 {vr(vL)}, 0')
    for i in range(4): a(f'v_mov_b32 {vr(vAz+i)}, 0')
    for i in range(32): a(f'v_mov_b32 {vr(vAcc+i)}, 0')
    a(f's_mov_b32 {sr(sT1)}, {f32hex(CEXP)}')
    a('s_waitcnt vmcnt(20)')
    stamp(1)
    for i in range(4):
        a(f'v_lshlrev_b32 {vr(vQc+2*i)}, 16, {vr(vQw+i)}')
        a(f'v_and_b32 {vr(vQc+2*i+1)}, {sr(sMask)}, {vr(vQw+i)}')
    for i in range(8):
        a(f'v_mul_f32 {vr(vQc+i)}, {sr(sT1)}, {vr(vQc+i)}')
    a(f's_mov_b32 {sr(sCnt)}, {NS-1}')

    def step(pf, tag):
        a('s_waitcnt vmcnt(18)')
        for i in range(4):
            a(f'v_lshlrev_b32 {vr(vT)}, 16, {vr(vKs+i)}')
            a(f'v_and_b32 {vr(vT+1)}, {sr(sMask)}, {vr(vKs+i)}')
            a(f'v_mul_f32 {vr(vT)}, {vr(vT)}, {vr(vQc+2*i)}')
            a(f'v_mul_f32 {vr(vT+1)}, {vr(vT+1)}, {vr(vQc+2*i+1)}')
            a(f'v_cvt_pk_bf16_f32 {vr(vQw+i)}, {vr(vT)}, {vr(vT+1)}')
        a(f'v_xor_b32 {vr(vT+2)}, 0x80008000, {vr(vKz)}')
        a(f'ds_write_b128 {vr(vLqW)}, {vr(vQw,4)}')
        a(f'ds_write_b32 {vr(vLzW)}, {vr(vT+2)}')
        if pf:
            a(f's_add_u32 {sr(sOffK)}, {sr(sOffK)}, {stride}')
            offs()
            ld_ks()
        for s in range(4):
            if s < 4 - nB: a(f'ds_read2_b64 {vr(vQB+4*s,4)}, {vr(vLqR)} offset0:{8*s} offset1:{8*s+4}')
            else: a(f'ds_read_b128 {vr(vQB+4*s,4)}, {vr(vLqRB)} offset:{64*s}')
        for s in range(4):
            if s < 4 - nB: a(f'ds_read2_b64 {vr(vPK+4*s,4)}, {vr(vLzR)} offset0:{8*s} offset1:{8*s+4}')
            else: a(f'ds_read_b128 {vr(vPK+4*s,4)}, {vr(vLzRB)} offset:{64*s}')
        a('s_waitcnt lgkmcnt(0)')
        for s in range(4):
            c = '0' if s == 0 else vr(vS, 4)
            a(f'v_mfma_f32_16x16x32_bf16 {vr(vS,4)}, {vr(vPK+4*s,4)}, {vr(vQB+4*s,4)}, {c}')
        a(f's_waitcnt vmcnt({12 if pf else 10})')
        for i in range(8):
            for c in range(4):
                a(f'v_cvt_f32_i32 {vr(vKr+4*i+c)}, {vr(vKr+4*i+c)}')
            d = vPK + 4 * (i // 2) + 2 * (i % 2)
            a(f'v_cvt_pk_bf16_f32 {vr(d)}, {vr(vKr+4*i)}, {vr(vKr+4*i+1)}')
            a(f'v_cvt_pk_bf16_f32 {vr(d+1)}, {vr(vKr+4*i+2)}, {vr(vKr+4*i+3)}')
        for s in range(4 - nB, 4):
            a(f'v_mov_b32 {vr(vT)}, {vr(vPK+4*s)}')
            a(f'v_mov_b32 {vr(vT+1)}, {vr(vPK+4*s+1)}')
            a('s_nop 0')
            a(f'v_mov_b32_dpp {vr(vPK+4*s)}, {vr(vPK+4*s+2)} row_ror:8 row_mask:0xf bank_mask:0xc')
            a(f'v_mov_b32_dpp {vr(vPK+4*s+1)}, {vr(vPK+4*s+3)} row_ror:8 row_mask:0xf bank_mask:0xc')
            a(f'v_mov_b32_dpp {vr(vPK+4*s+2)}, {vr(vT)} row_ror:8 row_mask:0xf bank_mask:0x3')
            a(f'v_mov_b32_dpp {vr(vPK+4*s+3)}, {vr(vT+1)} row_ror:8 row_mask:0xf bank_mask:0x3')
        if pf: ld_K()
        else: a('s_nop 1')
        for s in range(4):
            a(f'v_mfma_f32_16x16x32_bf16 {vr(vS,4)}, {vr(vPK+4*s,4)}, {vr(vQB+4*s,4)}, {vr(vS,4)}')
        a(f's_waitcnt vmcnt({18 if pf else 8})')
        f = vT + 4
        a(f'v_lshlrev_b32 {vr(f)}, 16, {vr(vVs)}')
        a(f'v_and_b32 {vr(f+1)}, {sr(sMask)}, {vr(vVs)}')
        a(f'v_lshlrev_b32 {vr(f+2)}, 16, {vr(vVs+1)}')
        a(f'v_and_b32 {vr(f+3)}, {sr(sMask)}, {vr(vVs+1)}')
        a('s_nop 4')
        a(f'v_max3_f32 {vr(vT)}, {vr(vS)}, {vr(vS+1)}, {vr(vS+2)}')
        a(f'v_max_f32 {vr(vT)}, {vr(vT)}, {vr(vS+3)}')
        a(f'v_mov_b32 {vr(vT+1)}, {vr(vT)}')
        a('s_nop 1')
        a(f'v_permlane16_swap_b32 {vr(vT)}, {vr(vT+1)}')
        a('s_nop 1')
        a(f'v_max_f32 {vr(vT)}, {vr(vT)}, {vr(vT+1)}')
        a(f'v_mov_b32 {vr(vT+1)}, {vr(vT)}')
        a('s_nop 1')
        a(f'v_permlane32_swap_b32 {vr(vT)}, {vr(vT+1)}')
        a('s_nop 1')
        a(f'v_max3_f32 {vr(vT)}, {vr(vT)}, {vr(vT+1)}, {vr(vM)}')
        a(f'v_sub_f32 {vr(vAl)}, {vr(vM)}, {vr(vT)}')
        a(f'v_cmp_gt_f32 vcc, {vr(vT)}, {vr(vM)}')
        a(f'v_mov_b32 {vr(vM)}, {vr(vT)}')
        a(f'v_exp_f32 {vr(vAl)}, {vr(vAl)}')
        for r in range(4):
            a(f'v_sub_f32 {vr(vS+r)}, {vr(vS+r)}, {vr(vM)}')
        for r in range(4):
            a(f'v_exp_f32 {vr(vS+r)}, {vr(vS+r)}')
        a(f's_cbranch_vccz L_nors_{tag}')
        for r in range(4):
            a(f'v_readlane_b32 {sr(sAl+r)}, {vr(vAl)}, {r}')
        a('s_nop 1')
        for i in range(8):
            for r in range(4):
                a(f'v_mul_f32 {vr(vAcc+4*i+r)}, {sr(sAl+r)}, {vr(vAcc+4*i+r)}')
        for r in range(4):
            a(f'v_mul_f32 {vr(vAz+r)}, {sr(sAl+r)}, {vr(vAz+r)}')
        a(f'L_nors_{tag}:')
        a(f'v_add_f32 {vr(vT)}, {vr(vS)}, {vr(vS+1)}')
        a(f'v_add_f32 {vr(vT+1)}, {vr(vS+2)}, {vr(vS+3)}')
        a(f'v_fma_f32 {vr(vL)}, {vr(vL)}, {vr(vAl)}, {vr(vT)}')
        for r in range(4):
            a(f'v_mul_f32 {vr(vS+r)}, {vr(vS+r)}, {vr(f+r)}')
        a(f'v_add_f32 {vr(vL)}, {vr(vL)}, {vr(vT+1)}')
        a(f'v_cvt_pk_bf16_f32 {vr(vP)}, {vr(vS)}, {vr(vS+1)}')
        a(f'v_cvt_pk_bf16_f32 {vr(vP+1)}, {vr(vS+2)}, {vr(vS+3)}')
        a('s_nop 1')
        a(f'v_mfma_f32_16x16x16_bf16 {vr(vAz,4)}, {vr(vP,2)}, {vr(vVz,2)}, {vr(vAz,4)}')
        a(f's_waitcnt vmcnt({10 if pf else 0})')
        for h in range(2):
            for c in range(4):
                for j in range(4):
                    r = vVr + 4 * (2 * j + h) + c
                    a(f'v_cvt_f32_i32 {vr(r)}, {vr(r)}')
                d = vPK + 2 * (4 * h + c)
                R = lambda j: vVr + 4 * (2 * j + h) + c
                a(f'v_cvt_pk_bf16_f32 {vr(d)}, {vr(R(0))}, {vr(R(1))}')
                a(f'v_cvt_pk_bf16_f32 {vr(d+1)}, {vr(R(2))}, {vr(R(3))}')
        if pf:
            ld_vs(); ld_V()
        else: a('s_nop 1')
        for i in range(8):
            a(f'v_mfma_f32_16x16x16_bf16 {vr(vAcc+4*i,4)}, {vr(vP,2)}, {vr(vPK+2*i,2)}, {vr(vAcc+4*i,4)}')

    if NS > 1:
        a('L_loop:')
        step(1, 'loop')
        if bar: a('s_barrier')
        a(f's_sub_u32 {sr(sCnt)}, {sr(sCnt)}, 1')
        a(f's_cmp_lg_u32 {sr(sCnt)}, 0')
        a('s_cbranch_scc1 L_loop')
    stamp(2)
    step(0, 'last')
    stamp(3)

    OB = nw * WLDS
    MB = OB + nw * 2048
    lds_bytes = MB + 2 * 4 * nw * 4
    a(f'v_mov_b32 {vr(vT+1)}, {vr(vL)}')
    a('s_nop 1')
    a(f'v_permlane16_swap_b32 {vr(vL)}, {vr(vT+1)}')
    a('s_nop 1')
    a(f'v_add_f32 {vr(vL)}, {vr(vL)}, {vr(vT+1)}')
    a(f'v_mov_b32 {vr(vT+1)}, {vr(vL)}')
    a('s_nop 1')
    a(f'v_permlane32_swap_b32 {vr(vL)}, {vr(vT+1)}')
    a('s_nop 1')
    a(f'v_add_f32 {vr(vL)}, {vr(vL)}, {vr(vT+1)}')
    a('s_nop 7')
    for i in range(8):
        for r in range(4):
            a(f'v_sub_f32 {vr(vAcc+4*i+r)}, {vr(vAcc+4*i+r)}, {vr(vAz+r)}')
    a(f's_lshl_b32 {sr(sT0)}, {sr(sWave)}, 11')
    a(f's_add_u32 {sr(sT0)}, {sr(sT0)}, {OB}')
    a(f'v_add_u32 {vr(vT)}, {sr(sT0)}, {vr(vKsOff)}')
    a(f's_lshl_b32 {sr(sT1)}, {sr(sWave)}, 2')
    a(f's_add_u32 {sr(sT1)}, {sr(sT1)}, {MB}')
    a(f'v_mul_u32_u24 {vr(vT+2)}, {nw*4}, {vr(vLane)}')
    a(f'v_add_u32 {vr(vT+2)}, {sr(sT1)}, {vr(vT+2)}')
    a('s_mov_b64 exec, 0xffff')
    for i in range(8):
        a(f'ds_write_b128 {vr(vT)}, {vr(vAcc+4*i,4)} offset:{i*256}')
    a('s_mov_b64 exec, 0xf')
    a(f'ds_write_b32 {vr(vT+2)}, {vr(vM)}')
    a(f'ds_write_b32 {vr(vT+2)}, {vr(vL)} offset:{4*nw*4}')
    a('s_mov_b64 exec, -1')
    a('s_waitcnt lgkmcnt(0)')
    a('s_barrier')
    vMl = vKr
    vO = vKr + 16
    vRes = vVr
    a(f'v_and_b32 {vr(vT)}, 3, v0')
    a(f'v_mul_u32_u24 {vr(vT)}, {nw*4}, {vr(vT)}')
    a(f'v_add_u32 {vr(vT)}, {MB}, {vr(vT)}')
    for k in range(nw // 4):
        a(f'ds_read_b128 {vr(vMl+4*k,4)}, {vr(vT)} offset:{16*k}')
        a(f'ds_read_b128 {vr(vMl+8+4*k,4)}, {vr(vT)} offset:{4*nw*4+16*k}')
    a(f'v_lshlrev_b32 {vr(vT+1)}, 2, v0')
    a(f'v_add_u32 {vr(vT+2)}, {OB}, {vr(vT+1)}')
    nch = 512 // nthr
    for ch in range(nch):
        for w in range(nw):
            a(f'ds_read_b32 {vr(vO+ch*nw+w)}, {vr(vT+2)} offset:{w*2048+ch*nthr*4}')
    a('s_waitcnt lgkmcnt(0)')
    vMx = vT + 3
    a(f'v_max3_f32 {vr(vMx)}, {vr(vMl)}, {vr(vMl+1)}, {vr(vMl+2)}')
    for w in range(3, nw):
        a(f'v_max_f32 {vr(vMx)}, {vr(vMx)}, {vr(vMl+w)}')
    for w in range(nw):
        a(f'v_sub_f32 {vr(vMl+w)}, {vr(vMl+w)}, {vr(vMx)}')
    for w in range(nw):
        a(f'v_exp_f32 {vr(vMl+w)}, {vr(vMl+w)}')
    a('s_nop 0')
    vLs = vT + 4
    a(f'v_mul_f32 {vr(vLs)}, {vr(vMl)}, {vr(vMl+8)}')
    for w in range(1, nw):
        a(f'v_fmac_f32 {vr(vLs)}, {vr(vMl+w)}, {vr(vMl+8+w)}')
    for ch in range(nch):
        a(f'v_mul_f32 {vr(vRes+ch)}, {vr(vMl)}, {vr(vO+ch*nw)}')
        for w in range(1, nw):
            a(f'v_fmac_f32 {vr(vRes+ch)}, {vr(vMl+w)}, {vr(vO+ch*nw+w)}')
    stamp(4)
    a(f's_mul_i32 {sr(sT1)}, s2, {PSTRIDE}')
    a(f's_add_u32 {sr(srdT)}, {sr(ws_)}, {sr(sT1)}')
    a(f's_addc_u32 {sr(srdT+1)}, {sr(ws_+1)}, 0')
    a(f's_and_b32 {sr(srdT+1)}, {sr(srdT+1)}, 0xffff')
    a(f's_mov_b32 {sr(srdT+2)}, {PSTRIDE}')
    a(f's_mov_b32 {sr(srdT+3)}, 0x20000')
    stp = 'sc1' if fused else ''
    for ch in range(nch):
        a(f'buffer_store_dword {vr(vRes+ch)}, {vr(vT+1)}, {sr(srdT,4)}, 0 offen offset:{ch*nthr*4} {stp}')
    a('v_cmp_gt_u32 vcc, 4, v0')
    a(f's_and_saveexec_b64 {sr(sEx,2)}, vcc')
    a('s_cbranch_execz L_nost')
    a(f'buffer_store_dword {vr(vMx)}, {vr(vT+1)}, {sr(srdT,4)}, 0 offen offset:2048 {stp}')
    a(f'buffer_store_dword {vr(vLs)}, {vr(vT+1)}, {sr(srdT,4)}, 0 offen offset:2064 {stp}')
    a('L_nost:')
    a(f's_mov_b64 exec, {sr(sEx,2)}')
    if fused:
        a('s_waitcnt vmcnt(0)')
        stamp(5)
        a('s_barrier')
        a(f's_cmp_lg_u32 {sr(sWave)}, 0')
        a('s_cbranch_scc1 L_noat')
        a(f's_mov_b32 {sr(srdT)}, {sr(dbg_)}')
        a(f's_and_b32 {sr(srdT+1)}, {sr(dbg_+1)}, 0xffff')
        a(f's_mov_b32 {sr(srdT+2)}, 256')
        a(f's_lshl_b32 {sr(sT1)}, {sr(sHk)}, {cshift}')
        if coff: a(f's_add_u32 {sr(sT1)}, {sr(sT1)}, {coff}')
        a('s_mov_b64 exec, 1')
        a(f'v_mov_b32 {vr(vT+5)}, 1')
        a(f'v_mov_b32 {vr(vT+6)}, 0')
        a(f'buffer_atomic_add {vr(vT+5)}, {vr(vT+6)}, {sr(srdT,4)}, {sr(sT1)} offen sc0')
        a(f'v_mov_b32 {vr(vT+6)}, {MB}')
        a('s_waitcnt vmcnt(0)')
        a(f'ds_write_b32 {vr(vT+6)}, {vr(vT+5)}')
        a('s_mov_b64 exec, -1')
        a('s_waitcnt lgkmcnt(0)')
        a('L_noat:')
        a('s_barrier')
        a(f'v_mov_b32 {vr(vT+6)}, {MB}')
        a(f'ds_read_b32 {vr(vT+5)}, {vr(vT+6)}')
        a('s_waitcnt lgkmcnt(0)')
        a(f'v_readfirstlane_b32 {sr(sT0)}, {vr(vT+5)}')
        a('s_nop 3')
        stamp(6)
        a(f's_cmp_lg_u32 {sr(sT0)}, {P-1}')
        a('s_cbranch_scc1 L_notlast')
        a(f's_mul_i32 {sr(sT1)}, {sr(sHk)}, {P*PSTRIDE}')
        a(f's_add_u32 {sr(srdT)}, {sr(ws_)}, {sr(sT1)}')
        a(f's_addc_u32 {sr(srdT+1)}, {sr(ws_+1)}, 0')
        a(f's_and_b32 {sr(srdT+1)}, {sr(srdT+1)}, 0xffff')
        a(f's_mov_b32 {sr(srdT+2)}, {P*PSTRIDE}')
        cO, cM, cL = vKr, vKr + nch * P, vKr + nch * P + P
        assert cL + P <= vVr + 32
        a(f'v_and_b32 {vr(vT+2)}, 3, v0')
        a(f'v_lshlrev_b32 {vr(vT+2)}, 2, {vr(vT+2)}')
        for w in range(P):
            a(f's_mov_b32 {sr(sT1)}, {w*PSTRIDE}')
            a(f'buffer_load_dword {vr(cM+w)}, {vr(vT+2)}, {sr(srdT,4)}, {sr(sT1)} offen offset:2048 sc1')
            a(f'buffer_load_dword {vr(cL+w)}, {vr(vT+2)}, {sr(srdT,4)}, {sr(sT1)} offen offset:2064 sc1')
            for ch in range(nch):
                a(f'buffer_load_dword {vr(cO+ch*P+w)}, {vr(vT+1)}, {sr(srdT,4)}, {sr(sT1)} offen offset:{ch*nthr*4} sc1')
        a(f's_lshl_b32 {sr(sT1)}, {sr(sHk)}, 10')
        a(f's_add_u32 {sr(srdK)}, {sr(o_)}, {sr(sT1)}')
        a(f's_addc_u32 {sr(srdK+1)}, {sr(o_+1)}, 0')
        a(f's_and_b32 {sr(srdK+1)}, {sr(srdK+1)}, 0xffff')
        a(f's_mov_b32 {sr(srdK+2)}, 1024')
        a('s_waitcnt vmcnt(0)')
        x, y, z = vT + 3, vT + 4, vT + 5
        a(f'v_max3_f32 {vr(x)}, {vr(cM)}, {vr(cM+1)}, {vr(cM+2)}')
        for w in range(3, P): a(f'v_max_f32 {vr(x)}, {vr(x)}, {vr(cM+w)}')
        for w in range(P): a(f'v_sub_f32 {vr(cM+w)}, {vr(cM+w)}, {vr(x)}')
        for w in range(P): a(f'v_exp_f32 {vr(cM+w)}, {vr(cM+w)}')
        a('s_nop 0')
        a(f'v_mul_f32 {vr(y)}, {vr(cM)}, {vr(cL)}')
        for w in range(1, P): a(f'v_fmac_f32 {vr(y)}, {vr(cM+w)}, {vr(cL+w)}')
        a(f'v_rcp_f32 {vr(z)}, {vr(y)}')
        a('s_nop 0')
        a(f'v_fma_f32 {vr(x)}, -{vr(y)}, {vr(z)}, 1.0')
        a(f'v_fmac_f32 {vr(z)}, {vr(x)}, {vr(z)}')
        for ch in range(nch):
            a(f'v_mul_f32 {vr(y)}, {vr(cM)}, {vr(cO+ch*P)}')
            for w in range(1, P): a(f'v_fmac_f32 {vr(y)}, {vr(cM+w)}, {vr(cO+ch*P+w)}')
            a(f'v_mul_f32 {vr(y)}, {vr(y)}, {vr(z)}')
            a(f'v_cvt_pk_bf16_f32 {vr(y)}, {vr(y)}, {vr(y)}')
            e = vT + 6
            a(f'v_add_u32 {vr(e)}, {ch*nthr}, v0')
            a(f'v_and_b32 {vr(x)}, 3, {vr(e)}'); a(f'v_lshlrev_b32 {vr(x)}, 7, {vr(x)}')
            a(f'v_lshrrev_b32 {vr(vT+7)}, 8, {vr(e)}'); a(f'v_lshl_add_u32 {vr(x)}, {vr(vT+7)}, 6, {vr(x)}')
            a(f'v_bfe_u32 {vr(vT+7)}, {vr(e)}, 2, 4'); a(f'v_lshl_add_u32 {vr(x)}, {vr(vT+7)}, 2, {vr(x)}')
            a(f'v_bfe_u32 {vr(vT+7)}, {vr(e)}, 6, 2'); a(f'v_add_u32 {vr(x)}, {vr(x)}, {vr(vT+7)}')
            a(f'v_lshlrev_b32 {vr(x)}, 1, {vr(x)}')
            a(f'buffer_store_short {vr(y)}, {vr(x)}, {sr(srdK,4)}, 0 offen')
        if dbgprof:
            a('s_waitcnt vmcnt(0)')
            a(f's_cmp_lg_u32 {sr(sWave)}, 0')
            a('s_cbranch_scc1 L_end')
            stamp(7)
            a(f's_memtime {sr(sTm2+2,2)}')
            a('s_waitcnt lgkmcnt(0)')
            a(f's_mov_b32 {sr(srdT)}, {sr(dbg_)}')
            a(f's_and_b32 {sr(srdT+1)}, {sr(dbg_+1)}, 0xffff')
            a(f's_mov_b32 {sr(srdT+2)}, 256')
            a(f's_mov_b32 {sr(srdT+3)}, 0x20000')
            a('s_mov_b64 exec, 1')
            a(f'v_mov_b32 {vr(vT)}, 0')
            for i in range(1, 8):
                a(f's_sub_u32 {sr(sT0)}, {sr(sSt+2*i)}, {sr(sSt)}')
                a(f'v_mov_b32 {vr(vKr+i)}, {sr(sT0)}')
            a(f's_sub_u32 {sr(sT0)}, {sr(sSt+14)}, {sr(sSt+12)}'); a(f'v_mov_b32 {vr(vKr+8)}, {sr(sT0)}')
            a(f's_sub_u32 {sr(sT0)}, {sr(sSt+14)}, {sr(sSt+6)}'); a(f'v_mov_b32 {vr(vKr+9)}, {sr(sT0)}')
            a(f's_sub_u32 {sr(sT0)}, {sr(sTm2+2)}, {sr(sTm2)}'); a(f'v_mov_b32 {vr(vKr+10)}, {sr(sT0)}')
            for i in range(1, 11):
                a(f'buffer_atomic_umax {vr(vKr+i)}, {vr(vT)}, {sr(srdT,4)}, 0 offen offset:{4*i}')
        a('L_notlast:')
    if prof == 2:
        a('s_waitcnt vmcnt(0)')
        stamp(7)
        a('s_waitcnt lgkmcnt(0)')
        a(f's_cmp_lg_u32 {sr(sWave)}, 0')
        a('s_cbranch_scc1 L_end')
        a(f's_add_u32 {sr(srdT)}, {sr(ws_)}, 0x4000000')
        a(f's_addc_u32 {sr(srdT+1)}, {sr(ws_+1)}, 0')
        a(f's_and_b32 {sr(srdT+1)}, {sr(srdT+1)}, 0xffff')
        a(f's_mov_b32 {sr(srdT+2)}, 0x100000')
        a(f's_lshl_b32 {sr(sT1)}, s2, 6')
        for i in range(8): a(f'v_mov_b32 {vr(vKr+i)}, {sr(sSt+2*i)}')
        a(f's_getreg_b32 {sr(sT0)}, hwreg(HW_REG_XCC_ID)')
        a(f'v_mov_b32 {vr(vKr+8)}, {sr(sT0)}')
        a(f'v_mov_b32 {vr(vT)}, 0')
        a('s_mov_b64 exec, 1')
        a(f'buffer_store_dwordx4 {vr(vKr,4)}, {vr(vT)}, {sr(srdT,4)}, {sr(sT1)} offen')
        a(f'buffer_store_dwordx4 {vr(vKr+4,4)}, {vr(vT)}, {sr(srdT,4)}, {sr(sT1)} offen offset:16')
        a(f'buffer_store_dword {vr(vKr+8)}, {vr(vT)}, {sr(srdT,4)}, {sr(sT1)} offen offset:32')
    if prof == 1:
        a('s_waitcnt vmcnt(0)')
        a(f's_memrealtime {sr(sTime+2,2)}')
        a(f's_getreg_b32 {sr(sT0)}, hwreg(HW_REG_XCC_ID)')
        a('s_waitcnt lgkmcnt(0)')
        a(f's_add_u32 {sr(srdT)}, {sr(ws_)}, 0x4000000')
        a(f's_addc_u32 {sr(srdT+1)}, {sr(ws_+1)}, 0')
        a(f's_and_b32 {sr(srdT+1)}, {sr(srdT+1)}, 0xffff')
        a(f's_mov_b32 {sr(srdT+2)}, 0x100000')
        a(f's_mul_i32 {sr(sT1)}, s2, {nw}'); a(f's_add_u32 {sr(sT1)}, {sr(sT1)}, {sr(sWave)}'); a(f's_lshl_b32 {sr(sT1)}, {sr(sT1)}, 5')
        for i in range(4): a(f'v_mov_b32 {vr(vKr+i)}, {sr(sTime+i)}')
        a(f'v_mov_b32 {vr(vKr+4)}, {sr(sT0)}'); a(f'v_mov_b32 {vr(vKr+5)}, 0'); a(f'v_mov_b32 {vr(vKr+6)}, s2'); a(f'v_mov_b32 {vr(vKr+7)}, {sr(sWave)}')
        a(f'v_mov_b32 {vr(vT)}, 0')
        a('s_mov_b64 exec, 1')
        a(f'buffer_store_dwordx4 {vr(vKr,4)}, {vr(vT)}, {sr(srdT,4)}, {sr(sT1)} offen')
        a(f'buffer_store_dwordx4 {vr(vKr+4,4)}, {vr(vT)}, {sr(srdT,4)}, {sr(sT1)} offen offset:16')
    a('L_end:')
    a('s_endpgm')
    main = '\n'.join(out)

    out = []; a = out.append
    a(f'{K2}:')
    a('s_cmp_ge_u32 s2, 16')
    a('s_cbranch_scc1 L2_end')
    a('s_load_dwordx2 s[4:5], s[0:1], 72')
    a('s_load_dwordx2 s[6:7], s[0:1], 56')
    a('v_lshlrev_b32 v1, 2, v0')
    a('v_and_b32 v2, 3, v0')
    a('v_lshlrev_b32 v2, 2, v2')
    a('s_waitcnt lgkmcnt(0)')
    a(f's_mul_i32 s3, s2, {P*PSTRIDE}')
    a('s_add_u32 s8, s4, s3'); a('s_addc_u32 s9, s5, 0'); a('s_and_b32 s9, s9, 0xffff')
    a(f's_mov_b32 s10, {P*PSTRIDE}'); a('s_mov_b32 s11, 0x20000')
    vO, vMm, vLl = 8, 8 + P, 8 + 2 * P
    for w in range(P):
        a(f's_mov_b32 s16, {w*PSTRIDE}')
        a(f'buffer_load_dword v{vMm+w}, v2, s[8:11], s16 offen offset:2048')
        a(f'buffer_load_dword v{vLl+w}, v2, s[8:11], s16 offen offset:2064')
        a(f'buffer_load_dword v{vO+w}, v1, s[8:11], s16 offen')
    a('v_and_b32 v3, 3, v0'); a('v_lshlrev_b32 v3, 7, v3')
    a('v_lshrrev_b32 v4, 8, v0'); a('v_lshl_add_u32 v3, v4, 6, v3')
    a('v_bfe_u32 v4, v0, 2, 4'); a('v_lshl_add_u32 v3, v4, 2, v3')
    a('v_bfe_u32 v4, v0, 6, 2'); a('v_add_u32 v3, v3, v4')
    a('v_lshlrev_b32 v3, 1, v3')
    a('s_lshl_b32 s3, s2, 10')
    a('s_add_u32 s12, s6, s3'); a('s_addc_u32 s13, s7, 0'); a('s_and_b32 s13, s13, 0xffff')
    a('s_mov_b32 s14, 1024'); a('s_mov_b32 s15, 0x20000')
    a('s_waitcnt vmcnt(0)')
    a(f'v_max3_f32 v5, v{vMm}, v{vMm+1}, v{vMm+2}')
    for w in range(3, P): a(f'v_max_f32 v5, v5, v{vMm+w}')
    for w in range(P): a(f'v_sub_f32 v{vMm+w}, v{vMm+w}, v5')
    for w in range(P): a(f'v_exp_f32 v{vMm+w}, v{vMm+w}')
    a('s_nop 0')
    a(f'v_mul_f32 v6, v{vMm}, v{vLl}'); a(f'v_mul_f32 v7, v{vMm}, v{vO}')
    for w in range(1, P):
        a(f'v_fmac_f32 v6, v{vMm+w}, v{vLl+w}'); a(f'v_fmac_f32 v7, v{vMm+w}, v{vO+w}')
    a('v_rcp_f32 v4, v6')
    a('s_nop 0')
    a('v_fma_f32 v5, -v6, v4, 1.0')
    a('v_fmac_f32 v4, v5, v4')
    a('v_mul_f32 v7, v7, v4')
    a('v_cvt_pk_bf16_f32 v7, v7, v7')
    a('buffer_store_short v7, v3, s[12:15], 0 offen')
    a('L2_end:')
    a('s_endpgm')
    comb = '\n'.join(out)
    nv2 = 8 + 3 * P

    def kd(name, vg, sg):
        acc = (vg + 3) // 4 * 4
        return f'''.amdhsa_kernel {name}
  .amdhsa_next_free_vgpr {vg}
  .amdhsa_next_free_sgpr {sg}
  .amdhsa_accum_offset {acc}
  .amdhsa_group_segment_fixed_size 0
  .amdhsa_kernarg_size 80
  .amdhsa_user_sgpr_count 2
  .amdhsa_user_sgpr_kernarg_segment_ptr 1
  .amdhsa_system_sgpr_workgroup_id_x 1
  .amdhsa_float_denorm_mode_32 3
.end_amdhsa_kernel
'''
    src = HEADCOMMENT
    if fused:
        src += f'; @launch grid=({nwg},1,1) block=({nthr},1,1) lds={lds_bytes}\n'
    else:
        src += f'; @launch kernel={KN} grid=({nwg},1,1) block=({nthr},1,1) lds={lds_bytes}\n'
        src += f'; @launch kernel={K2} grid=(16,1,1) block=(512,1,1) lds=0\n'
    src += '.amdgcn_target "amdgcn-amd-amdhsa--gfx950"\n.text\n'
    src += f'.globl {KN}\n.p2align 8\n.type {KN},@function\n{main}\n'
    if not fused:
        src += f'.globl {K2}\n.p2align 8\n.type {K2},@function\n{comb}\n'
    src += '.section .rodata,"a"\n.p2align 6\n' + kd(KN, nvgpr, S.n)
    launches = [(KN, nwg, nthr, lds_bytes)]
    if not fused:
        src += '.p2align 6\n' + kd(K2, nv2, 24)
        launches.append((K2, 16, 512, 0))
    return src, launches

if __name__ == '__main__':
    import argparse
    ap = argparse.ArgumentParser()
    ap.add_argument('-o', default='out.s')
    ap.add_argument('kv', nargs='*')
    args = ap.parse_args()
    kw = {}
    for x in args.kv:
        k, v = x.split('=')
        try: v = int(v)
        except: pass
        kw[k] = v
    src, l = gen(**kw)
    open(args.o, 'w').write(src)
    print(l)
```

```python
import struct
KN = 'standalone__kv_cache_quant_int4_int2_kv_with_per_channel_or_per_token_scales__decode_kernel'

HEADCOMMENT = '''; KIVI-style quantised KV-cache decode attention (B=2, Hq=32, Hkv=8, Skv=32768, Dh=128), one fused launch.
'''

class Alloc:
    def __init__(self, start, limit):
        self.n = start; self.limit = limit
    def get(self, cnt=1, align=1):
        self.n = (self.n + align - 1) // align * align
        r = self.n; self.n += cnt
        assert self.n <= self.limit, self.n
        return r

def vr(r, n=1): return f'v{r}' if n == 1 else f'v[{r}:{r+n-1}]'
def sr(r, n=1): return f's{r}' if n == 1 else f's[{r}:{r+n-1}]'
def f32hex(x): return '0x%08x' % struct.unpack('<I', struct.pack('<f', x))[0]

PSTRIDE = 4096
QROW = 288
WLDS = 1536
CEXP = 0.08838834764831845 * 1.4426950408889634

def gen(nw=8, bar=1, pol='nt', spol='nt', nB=1, prof=0, dbgprof=0, coff=0, cshift=2, opol='', dry=0,
        nBalt=None, setprio=0, padto=0, vsplit=1):
    P = 16
    nwg = 16 * P
    NS = 32768 // (P * nw * 16)
    nthr = nw * 64
    nch = 512 // nthr
    out = []
    a = out.append
    V = Alloc(1, 256); S = Alloc(3, 102)
    sWave = S.get()
    sKA = S.get(16, 4); sKB = S.get(4, 4)
    srdK = S.get(4, 4); srdV = S.get(4, 4); srdKS = S.get(4, 4); srdKZ = S.get(4, 4)
    srdVS = S.get(4, 4); srdVZ = S.get(4, 4); srdT = S.get(4, 4)
    sHk = S.get(); sJ = S.get()
    sOffK = S.get(); sOffS = S.get(); sOffG = S.get(); sOffK2 = S.get()
    sCnt = S.get(); sT0 = S.get(); sT1 = S.get()
    sAl = S.get(4, 4); sMask = S.get(); sEx = S.get(2, 2)
    stamps = prof in (2, 3, 4) or dbgprof
    sSt = S.get(16, 2) if stamps else None
    sTm = S.get(4, 2) if (dbgprof or padto) else None
    def stamp(i):
        if stamps: a(f's_memrealtime {sr(sSt+2*i,2)}')
    cnt_stamp = [0]
    def stamp_it(i, it):
        if prof == 4:
            cnt_stamp[0] += 1
            a(f's_cmp_lg_u32 {sr(sCnt)}, {NS-1-it}')
            a(f's_cbranch_scc1 L_st{cnt_stamp[0]}')
            a(f's_memrealtime {sr(sSt+2*i,2)}')
            a(f'L_st{cnt_stamp[0]}:')
    vLane = V.get()
    vKoff = V.get(); vVoff = V.get(); vSoff = V.get(); vKsOff = V.get(); vKzOff = V.get()
    vKoffB = V.get(); vLqRB = V.get(); vLzRB = V.get()
    vLqW = V.get(); vLzW = V.get(); vLqR = V.get(); vLzR = V.get()
    vM = V.get(); vL = V.get(); vAl = V.get()
    vT = V.get(8, 2)
    vQc = V.get(8, 4)
    vKs = V.get(4, 4); vKz = V.get(); vVs = V.get(2, 2); vVz = V.get(2, 2)
    vQw = V.get(4, 4); vP = V.get(2, 2); vS = V.get(4, 4); vAz = V.get(4, 4)
    vAcc = V.get(32, 4); vQB = V.get(16, 4); vPK = V.get(16, 4)
    vKr = V.get(32, 4); vVr = V.get(32, 4)
    nvgpr = V.n
    OB = nw * WLDS
    MB = OB + nw * 2048
    RS = nw * 4
    TK = MB + 12 * RS
    lds_bytes = TK + 16

    a(f'{KN}:')
    a(f's_cmp_ge_u32 s2, {nwg}')
    a('s_cbranch_scc1 L_end')
    a(f's_load_dwordx16 {sr(sKA,16)}, s[0:1], 0')
    a(f's_load_dwordx4 {sr(sKB,4)}, s[0:1], 64')
    stamp(0)
    if dbgprof: a(f's_memtime {sr(sTm,2)}')
    if padto: a(f's_memrealtime {sr(sTm,2)}')
    a(f'v_lshrrev_b32 {vr(vT)}, 6, v0')
    a(f'v_and_b32 {vr(vLane)}, 63, v0')
    a(f's_lshr_b32 {sr(sHk)}, s2, 4')
    a(f'v_readfirstlane_b32 {sr(sWave)}, {vr(vT)}')
    a(f's_and_b32 {sr(sJ)}, s2, {P-1}')
    n15, g4 = vT + 1, vT + 2
    a(f'v_and_b32 {vr(n15)}, 15, {vr(vLane)}')
    a(f'v_lshrrev_b32 {vr(g4)}, 4, {vr(vLane)}')
    a(f'v_lshlrev_b32 {vr(vKsOff)}, 4, {vr(n15)}')
    a(f'v_lshlrev_b32 {vr(vT+3)}, 9, {vr(n15)}')
    a(f'v_lshl_add_u32 {vr(vKoff)}, {vr(g4)}, 4, {vr(vT+3)}')
    a(f'v_lshl_add_u32 {vr(vVoff)}, {vr(g4)}, 11, {vr(vKsOff)}')
    a(f'v_lshlrev_b32 {vr(vSoff)}, 3, {vr(g4)}')
    a(f'v_lshlrev_b32 {vr(vKzOff)}, 2, {vr(vLane)}')
    a(f'v_and_b32 {vr(vT+3)}, 7, {vr(vLane)}')
    a(f'v_lshlrev_b32 {vr(vT+3)}, 9, {vr(vT+3)}')
    a(f'v_lshrrev_b32 {vr(vT+4)}, 3, {vr(vLane)}')
    a(f'v_lshl_add_u32 {vr(vKoffB)}, {vr(vT+4)}, 4, {vr(vT+3)}')
    a(f's_lshl_b32 {sr(sOffK)}, {sr(sJ)}, 20')
    a(f's_lshl_b32 {sr(sT0)}, {sr(sWave)}, 13')
    a(f's_add_u32 {sr(sOffK)}, {sr(sOffK)}, {sr(sT0)}')
    stride = nw * 16 * 512
    def offs():
        a(f's_lshr_b32 {sr(sOffS)}, {sr(sOffK)}, 8')
        a(f's_and_b32 {sr(sOffG)}, {sr(sOffS)}, 0xffffff00')
        a(f's_add_u32 {sr(sOffK2)}, {sr(sOffK)}, 4096')
    offs()
    a('s_waitcnt lgkmcnt(0)')
    def srd(dst, ptr, off_s, off_shift, nbytes):
        a(f's_lshl_b32 {sr(sT0)}, {sr(off_s)}, {off_shift}')
        a(f's_add_u32 {sr(dst)}, {sr(ptr)}, {sr(sT0)}')
        a(f's_addc_u32 {sr(dst+1)}, {sr(ptr+1)}, 0')
        a(f's_and_b32 {sr(dst+1)}, {sr(dst+1)}, 0xffff')
        a(f's_mov_b32 {sr(dst+2)}, {nbytes}')
        a(f's_mov_b32 {sr(dst+3)}, 0x20000')
    q_, qk_, qv_, ks_, kz_, vs_, vz_, o_ = [sKA + 2 * i for i in range(8)]
    dbg_, ws_ = sKB, sKB + 2
    def ld_ks():
        a(f'buffer_load_dwordx4 {vr(vKs,4)}, {vr(vKsOff)}, {sr(srdKS,4)}, {sr(sOffG)} offen {spol}')
        a(f'buffer_load_dword {vr(vKz)}, {vr(vKzOff)}, {sr(srdKZ,4)}, {sr(sOffG)} offen {spol}')
    def ld_K(nb):
        for s in range(4):
            if s < 4 - nb:
                for i in (2*s, 2*s+1):
                    a(f'buffer_load_dwordx4 {vr(vKr+4*i,4)}, {vr(vKoff)}, {sr(srdK,4)}, {sr(sOffK)} offen offset:{i*64} {pol}')
            else:
                a(f'buffer_load_dwordx4 {vr(vKr+8*s,4)}, {vr(vKoffB)}, {sr(srdK,4)}, {sr(sOffK)} offen offset:{s*128} {pol}')
                a(f'buffer_load_dwordx4 {vr(vKr+8*s+4,4)}, {vr(vKoffB)}, {sr(srdK,4)}, {sr(sOffK2)} offen offset:{s*128} {pol}')
    def ld_vs():
        a(f'buffer_load_dwordx2 {vr(vVs,2)}, {vr(vSoff)}, {sr(srdVS,4)}, {sr(sOffS)} offen {spol}')
        a(f'buffer_load_dwordx2 {vr(vVz,2)}, {vr(vSoff)}, {sr(srdVZ,4)}, {sr(sOffS)} offen {spol}')
    def ld_V():
        for j in range(4):
            for h in range(2):
                a(f'buffer_load_dwordx4 {vr(vVr+4*(2*j+h),4)}, {vr(vVoff)}, {sr(srdV,4)}, {sr(sOffK)} offen offset:{j*512+h*256} {pol}')
    srd(srdT, q_, sHk, 10, 1024)
    a(f'v_lshl_add_u32 {vr(vT+3)}, {vr(g4)}, 8, {vr(vKsOff)}')
    a(f'buffer_load_dwordx4 {vr(vQw,4)}, {vr(vT+3)}, {sr(srdT,4)}, 0 offen')
    srd(srdKS, ks_, sHk, 16, 1 << 16)
    srd(srdKZ, kz_, sHk, 16, 1 << 16)
    srd(srdK, qk_, sHk, 24, 1 << 24)
    ld_ks(); ld_K(nB)
    srd(srdVS, vs_, sHk, 16, 1 << 16)
    srd(srdVZ, vz_, sHk, 16, 1 << 16)
    srd(srdV, qv_, sHk, 24, 1 << 24)
    ld_vs(); ld_V()
    a(f's_mul_i32 {sr(sT0)}, {sr(sWave)}, {WLDS}')
    a(f'v_mul_u32_u24 {vr(vT+3)}, {QROW}, {vr(g4)}')
    a(f'v_add3_u32 {vr(vLqW)}, {vr(vT+3)}, {vr(vKsOff)}, {sr(sT0)}')
    a(f'v_add_u32 {vr(vLzW)}, {sr(sT0)}, {vr(vKzOff)}')
    a(f'v_add_u32 {vr(vLzW)}, {4*QROW}, {vr(vLzW)}')
    a(f'v_and_b32 {vr(vT+3)}, 3, {vr(vLane)}')
    a(f'v_mul_u32_u24 {vr(vT+3)}, {QROW}, {vr(vT+3)}')
    a(f'v_add3_u32 {vr(vLqR)}, {vr(vT+3)}, {vr(vSoff)}, {sr(sT0)}')
    a(f'v_add_u32 {vr(vLzR)}, {sr(sT0)}, {vr(vSoff)}')
    a(f'v_add_u32 {vr(vLzR)}, {4*QROW}, {vr(vLzR)}')
    a(f'v_add_u32 {vr(vLqRB)}, {vr(vLqR)}, {vr(vSoff)}')
    a(f'v_add_u32 {vr(vLzRB)}, {vr(vLzR)}, {vr(vSoff)}')
    a(f's_mov_b32 {sr(sMask)}, 0xffff0000')
    a(f'v_mov_b32 {vr(vM)}, 0xff800000')
    a(f'v_mov_b32 {vr(vL)}, 0')
    for i in range(4): a(f'v_mov_b32 {vr(vAz+i)}, 0')
    for i in range(32): a(f'v_mov_b32 {vr(vAcc+i)}, 0')
    a(f's_mov_b32 {sr(sT1)}, {f32hex(CEXP)}')
    a(f's_mov_b32 {sr(sCnt)}, {NS-1}')
    if setprio: a(f's_setprio {setprio}')
    a('s_waitcnt vmcnt(20)')
    stamp(1)
    for i in range(4):
        a(f'v_lshlrev_b32 {vr(vQc+2*i)}, 16, {vr(vQw+i)}')
        a(f'v_and_b32 {vr(vQc+2*i+1)}, {sr(sMask)}, {vr(vQw+i)}')
    for i in range(8):
        a(f'v_mul_f32 {vr(vQc+i)}, {sr(sT1)}, {vr(vQc+i)}')

    def step(pf, tag, nb_cur, nb_next):
        a('s_waitcnt vmcnt(18)')
        for i in range(4):
            a(f'v_lshlrev_b32 {vr(vT)}, 16, {vr(vKs+i)}')
            a(f'v_and_b32 {vr(vT+1)}, {sr(sMask)}, {vr(vKs+i)}')
            a(f'v_mul_f32 {vr(vT)}, {vr(vT)}, {vr(vQc+2*i)}')
            a(f'v_mul_f32 {vr(vT+1)}, {vr(vT+1)}, {vr(vQc+2*i+1)}')
            a(f'v_cvt_pk_bf16_f32 {vr(vQw+i)}, {vr(vT)}, {vr(vT+1)}')
        a(f'v_xor_b32 {vr(vT+2)}, 0x80008000, {vr(vKz)}')
        a(f'ds_write_b128 {vr(vLqW)}, {vr(vQw,4)}')
        a(f'ds_write_b32 {vr(vLzW)}, {vr(vT+2)}')
        if pf:
            a(f's_add_u32 {sr(sOffK)}, {sr(sOffK)}, {stride}')
            offs()
            ld_ks()
        for s in range(4):
            if s < 4 - nb_cur: a(f'ds_read2_b64 {vr(vQB+4*s,4)}, {vr(vLqR)} offset0:{8*s} offset1:{8*s+4}')
            else: a(f'ds_read_b128 {vr(vQB+4*s,4)}, {vr(vLqRB)} offset:{64*s}')
        for s in range(4):
            if s < 4 - nb_cur: a(f'ds_read2_b64 {vr(vPK+4*s,4)}, {vr(vLzR)} offset0:{8*s} offset1:{8*s+4}')
            else: a(f'ds_read_b128 {vr(vPK+4*s,4)}, {vr(vLzRB)} offset:{64*s}')
        a('s_waitcnt lgkmcnt(0)')
        for s in range(4):
            c = '0' if s == 0 else vr(vS, 4)
            a(f'v_mfma_f32_16x16x32_bf16 {vr(vS,4)}, {vr(vPK+4*s,4)}, {vr(vQB+4*s,4)}, {c}')
        a(f's_waitcnt vmcnt({12 if pf else 10})')
        if pf: stamp_it(2, 0); stamp_it(4, 1)
        for i in range(8):
            for c in range(4):
                a(f'v_cvt_f32_i32 {vr(vKr+4*i+c)}, {vr(vKr+4*i+c)}')
            d = vPK + 4 * (i // 2) + 2 * (i % 2)
            a(f'v_cvt_pk_bf16_f32 {vr(d)}, {vr(vKr+4*i)}, {vr(vKr+4*i+1)}')
            a(f'v_cvt_pk_bf16_f32 {vr(d+1)}, {vr(vKr+4*i+2)}, {vr(vKr+4*i+3)}')
        for s in range(4 - nb_cur, 4):
            a(f'v_mov_b32 {vr(vT)}, {vr(vPK+4*s)}')
            a(f'v_mov_b32 {vr(vT+1)}, {vr(vPK+4*s+1)}')
            a('s_nop 0')
            a(f'v_mov_b32_dpp {vr(vPK+4*s)}, {vr(vPK+4*s+2)} row_ror:8 row_mask:0xf bank_mask:0xc')
            a(f'v_mov_b32_dpp {vr(vPK+4*s+1)}, {vr(vPK+4*s+3)} row_ror:8 row_mask:0xf bank_mask:0xc')
            a(f'v_mov_b32_dpp {vr(vPK+4*s+2)}, {vr(vT)} row_ror:8 row_mask:0xf bank_mask:0x3')
            a(f'v_mov_b32_dpp {vr(vPK+4*s+3)}, {vr(vT+1)} row_ror:8 row_mask:0xf bank_mask:0x3')
        if pf: ld_K(nb_next)
        else: a('s_nop 1')
        for s in range(4):
            a(f'v_mfma_f32_16x16x32_bf16 {vr(vS,4)}, {vr(vPK+4*s,4)}, {vr(vQB+4*s,4)}, {vr(vS,4)}')
        a(f's_waitcnt vmcnt({18 if pf else 8})')
        f = vT + 4
        a(f'v_lshlrev_b32 {vr(f)}, 16, {vr(vVs)}')
        a(f'v_and_b32 {vr(f+1)}, {sr(sMask)}, {vr(vVs)}')
        a(f'v_lshlrev_b32 {vr(f+2)}, 16, {vr(vVs+1)}')
        a(f'v_and_b32 {vr(f+3)}, {sr(sMask)}, {vr(vVs+1)}')
        a('s_nop 4')
        a(f'v_max3_f32 {vr(vT)}, {vr(vS)}, {vr(vS+1)}, {vr(vS+2)}')
        a(f'v_max_f32 {vr(vT)}, {vr(vT)}, {vr(vS+3)}')
        a(f'v_mov_b32 {vr(vT+1)}, {vr(vT)}')
        a('s_nop 1')
        a(f'v_permlane16_swap_b32 {vr(vT)}, {vr(vT+1)}')
        a('s_nop 1')
        a(f'v_max_f32 {vr(vT)}, {vr(vT)}, {vr(vT+1)}')
        a(f'v_mov_b32 {vr(vT+1)}, {vr(vT)}')
        a('s_nop 1')
        a(f'v_permlane32_swap_b32 {vr(vT)}, {vr(vT+1)}')
        a('s_nop 1')
        a(f'v_max3_f32 {vr(vT)}, {vr(vT)}, {vr(vT+1)}, {vr(vM)}')
        a(f'v_sub_f32 {vr(vAl)}, {vr(vM)}, {vr(vT)}')
        a(f'v_cmp_gt_f32 vcc, {vr(vT)}, {vr(vM)}')
        a(f'v_mov_b32 {vr(vM)}, {vr(vT)}')
        a(f'v_exp_f32 {vr(vAl)}, {vr(vAl)}')
        for r in range(4): a(f'v_sub_f32 {vr(vS+r)}, {vr(vS+r)}, {vr(vM)}')
        for r in range(4): a(f'v_exp_f32 {vr(vS+r)}, {vr(vS+r)}')
        a(f's_cbranch_vccz L_nors_{tag}')
        for r in range(4): a(f'v_readlane_b32 {sr(sAl+r)}, {vr(vAl)}, {r}')
        a('s_nop 1')
        for i in range(8):
            for r in range(4):
                a(f'v_mul_f32 {vr(vAcc+4*i+r)}, {sr(sAl+r)}, {vr(vAcc+4*i+r)}')
        for r in range(4): a(f'v_mul_f32 {vr(vAz+r)}, {sr(sAl+r)}, {vr(vAz+r)}')
        a(f'L_nors_{tag}:')
        a(f'v_add_f32 {vr(vT)}, {vr(vS)}, {vr(vS+1)}')
        a(f'v_add_f32 {vr(vT+1)}, {vr(vS+2)}, {vr(vS+3)}')
        a(f'v_fma_f32 {vr(vL)}, {vr(vL)}, {vr(vAl)}, {vr(vT)}')
        for r in range(4): a(f'v_mul_f32 {vr(vS+r)}, {vr(vS+r)}, {vr(f+r)}')
        a(f'v_add_f32 {vr(vL)}, {vr(vL)}, {vr(vT+1)}')
        a(f'v_cvt_pk_bf16_f32 {vr(vP)}, {vr(vS)}, {vr(vS+1)}')
        a(f'v_cvt_pk_bf16_f32 {vr(vP+1)}, {vr(vS+2)}, {vr(vS+3)}')
        a('s_nop 1')
        a(f'v_mfma_f32_16x16x16_bf16 {vr(vAz,4)}, {vr(vP,2)}, {vr(vVz,2)}, {vr(vAz,4)}')
        if not pf: early_publish()
        R = lambda j, h, c: vVr + 4 * (2 * j + h) + c
        def vhalf(jp):
            for h in range(2):
                for c in range(4):
                    a(f'v_cvt_f32_i32 {vr(R(2*jp,h,c))}, {vr(R(2*jp,h,c))}')
                    a(f'v_cvt_f32_i32 {vr(R(2*jp+1,h,c))}, {vr(R(2*jp+1,h,c))}')
                    a(f'v_cvt_pk_bf16_f32 {vr(vPK+2*(4*h+c)+jp)}, {vr(R(2*jp,h,c))}, {vr(R(2*jp+1,h,c))}')
        base = 10 if pf else 0
        if vsplit:
            a(f's_waitcnt vmcnt({base+4})'); vhalf(0)
            a(f's_waitcnt vmcnt({base})'); vhalf(1)
        else:
            a(f's_waitcnt vmcnt({base})'); vhalf(0); vhalf(1)
        if pf:
            ld_vs(); ld_V()
            stamp_it(3, 0); stamp_it(5, 1); stamp_it(6, 7)
        else: a('s_nop 1')
        for i in range(8):
            a(f'v_mfma_f32_16x16x16_bf16 {vr(vAcc+4*i,4)}, {vr(vP,2)}, {vr(vPK+2*i,2)}, {vr(vAcc+4*i,4)}')

    vF = vKr
    vLw = vKr + 8
    vZw = vKr + 16
    vMx, vLs, vZs = vKr + 24, vKr + 25, vKr + 26
    vO = vKr + 16
    def early_publish():
        a(f'v_mov_b32 {vr(vT+1)}, {vr(vL)}')
        a('s_nop 1')
        a(f'v_permlane16_swap_b32 {vr(vL)}, {vr(vT+1)}')
        a('s_nop 1')
        a(f'v_add_f32 {vr(vL)}, {vr(vL)}, {vr(vT+1)}')
        a(f'v_mov_b32 {vr(vT+1)}, {vr(vL)}')
        a('s_nop 1')
        a(f'v_permlane32_swap_b32 {vr(vL)}, {vr(vT+1)}')
        a('s_nop 1')
        a(f'v_add_f32 {vr(vL)}, {vr(vL)}, {vr(vT+1)}')
        a(f's_lshl_b32 {sr(sT1)}, {sr(sWave)}, 2')
        a(f's_add_u32 {sr(sT1)}, {sr(sT1)}, {MB}')
        a(f'v_mul_u32_u24 {vr(vT+2)}, {RS}, {vr(vLane)}')
        a(f'v_add_u32 {vr(vT+2)}, {sr(sT1)}, {vr(vT+2)}')
        a('s_mov_b64 exec, 0xf')
        a(f'ds_write_b32 {vr(vT+2)}, {vr(vM)}')
        a(f'ds_write_b32 {vr(vT+2)}, {vr(vL)} offset:{4*RS}')
        a('s_mov_b64 exec, 1')
        for r in range(4):
            a(f'ds_write_b32 {vr(vT+2)}, {vr(vAz+r)} offset:{8*RS+r*RS}')
        a('s_mov_b64 exec, -1')
        a(f'v_and_b32 {vr(vT)}, 3, v0')
        a(f'v_mul_u32_u24 {vr(vT)}, {RS}, {vr(vT)}')
        a(f'v_add_u32 {vr(vT)}, {MB}, {vr(vT)}')
        a('s_waitcnt lgkmcnt(0)')
        a('s_barrier')
        for k in range(nw // 4):
            a(f'ds_read_b128 {vr(vF+4*k,4)}, {vr(vT)} offset:{16*k}')
            a(f'ds_read_b128 {vr(vLw+4*k,4)}, {vr(vT)} offset:{4*RS+16*k}')
            a(f'ds_read_b128 {vr(vZw+4*k,4)}, {vr(vT)} offset:{8*RS+16*k}')
        a('s_waitcnt lgkmcnt(0)')
        a(f'v_max3_f32 {vr(vMx)}, {vr(vF)}, {vr(vF+1)}, {vr(vF+2)}')
        for w in range(3, nw): a(f'v_max_f32 {vr(vMx)}, {vr(vMx)}, {vr(vF+w)}')
        for w in range(nw): a(f'v_sub_f32 {vr(vF+w)}, {vr(vF+w)}, {vr(vMx)}')
        for w in range(nw): a(f'v_exp_f32 {vr(vF+w)}, {vr(vF+w)}')
        a('s_nop 0')
        a(f'v_mul_f32 {vr(vLs)}, {vr(vF)}, {vr(vLw)}')
        a(f'v_mul_f32 {vr(vZs)}, {vr(vF)}, {vr(vZw)}')
        for w in range(1, nw):
            a(f'v_fmac_f32 {vr(vLs)}, {vr(vF+w)}, {vr(vLw+w)}')
            a(f'v_fmac_f32 {vr(vZs)}, {vr(vF+w)}, {vr(vZw+w)}')

    if nBalt is None:
        a('L_loop:')
        step(1, 'loop', nB, nB)
        if bar: a('s_barrier')
        a(f's_sub_u32 {sr(sCnt)}, {sr(sCnt)}, 1')
        a(f's_cmp_lg_u32 {sr(sCnt)}, 0')
        a('s_cbranch_scc1 L_loop')
        nb_last = nB
    else:
        assert NS % 2 == 0
        a(f's_mov_b32 {sr(sCnt)}, {NS // 2 - 1}')
        a('L_loop:')
        step(1, 'loopa', nB, nBalt)
        if bar: a('s_barrier')
        step(1, 'loopb', nBalt, nB)
        if bar: a('s_barrier')
        a(f's_sub_u32 {sr(sCnt)}, {sr(sCnt)}, 1')
        a(f's_cmp_lg_u32 {sr(sCnt)}, 0')
        a('s_cbranch_scc1 L_loop')
        step(1, 'prelast', nB, nBalt)
        if bar: a('s_barrier')
        nb_last = nBalt
    if prof != 4: stamp(2)
    step(0, 'last', nb_last, nb_last)
    if prof not in (3, 4): stamp(3)
    a(f's_lshl_b32 {sr(sT0)}, {sr(sWave)}, 11')
    a(f's_add_u32 {sr(sT0)}, {sr(sT0)}, {OB}')
    a(f'v_add_u32 {vr(vT)}, {sr(sT0)}, {vr(vKsOff)}')
    a(f'v_lshlrev_b32 {vr(vT+1)}, 2, v0')
    a(f'v_add_u32 {vr(vT+2)}, {OB}, {vr(vT+1)}')
    a('s_mov_b64 exec, 0xffff')
    a('s_nop 1')
    for i in range(8):
        a(f'ds_write_b128 {vr(vT)}, {vr(vAcc+4*i,4)} offset:{i*256}')
    a('s_mov_b64 exec, -1')
    a(f's_mul_i32 {sr(sT1)}, s2, {PSTRIDE}')
    a(f's_add_u32 {sr(srdT)}, {sr(ws_)}, {sr(sT1)}')
    a(f's_addc_u32 {sr(srdT+1)}, {sr(ws_+1)}, 0')
    a(f's_and_b32 {sr(srdT+1)}, {sr(srdT+1)}, 0xffff')
    a(f's_mov_b32 {sr(srdT+2)}, {PSTRIDE}')
    a(f's_mov_b32 {sr(srdT+3)}, 0x20000')
    a('s_waitcnt lgkmcnt(0)')
    a('s_barrier')
    vOw = vVr
    vRes = vVr + 16
    for ch in range(nch):
        for w in range(nw):
            a(f'ds_read_b32 {vr(vOw+ch*nw+w)}, {vr(vT+2)} offset:{w*2048+ch*nthr*4}')
    for ch in range(nch):
        a(f's_waitcnt lgkmcnt({(nch-1-ch)*nw})')
        a(f'v_fma_f32 {vr(vRes+ch)}, {vr(vF)}, {vr(vOw+ch*nw)}, -{vr(vZs)}')
        for w in range(1, nw):
            a(f'v_fmac_f32 {vr(vRes+ch)}, {vr(vF+w)}, {vr(vOw+ch*nw+w)}')
    if prof not in (3, 4): stamp(4)
    for ch in range(nch):
        a(f'buffer_store_dword {vr(vRes+ch)}, {vr(vT+1)}, {sr(srdT,4)}, 0 offen offset:{ch*nthr*4} sc1')
    a('v_cmp_gt_u32 vcc, 4, v0')
    a(f's_and_saveexec_b64 {sr(sEx,2)}, vcc')
    a('s_cbranch_execz L_nost')
    a(f'buffer_store_dword {vr(vMx)}, {vr(vT+1)}, {sr(srdT,4)}, 0 offen offset:2048 sc1')
    a(f'buffer_store_dword {vr(vLs)}, {vr(vT+1)}, {sr(srdT,4)}, 0 offen offset:2064 sc1')
    a('L_nost:')
    a(f's_mov_b64 exec, {sr(sEx,2)}')
    a(f's_mov_b32 {sr(srdKS)}, {sr(dbg_)}')
    a(f's_and_b32 {sr(srdKS+1)}, {sr(dbg_+1)}, 0xffff')
    a(f's_mov_b32 {sr(srdKS+2)}, 256')
    a(f's_lshl_b32 {sr(sOffG)}, {sr(sHk)}, {cshift}')
    if coff: a(f's_add_u32 {sr(sOffG)}, {sr(sOffG)}, {coff}')
    a(f's_mul_i32 {sr(sT1)}, {sr(sHk)}, {P*PSTRIDE}')
    a(f's_add_u32 {sr(srdV)}, {sr(ws_)}, {sr(sT1)}')
    a(f's_addc_u32 {sr(srdV+1)}, {sr(ws_+1)}, 0')
    a(f's_and_b32 {sr(srdV+1)}, {sr(srdV+1)}, 0xffff')
    a(f's_mov_b32 {sr(srdV+2)}, {P*PSTRIDE}')
    a(f's_lshl_b32 {sr(sT1)}, {sr(sHk)}, 10')
    a(f's_add_u32 {sr(srdK)}, {sr(o_)}, {sr(sT1)}')
    a(f's_addc_u32 {sr(srdK+1)}, {sr(o_+1)}, 0')
    a(f's_and_b32 {sr(srdK+1)}, {sr(srdK+1)}, 0xffff')
    a(f's_mov_b32 {sr(srdK+2)}, 1024')
    vML = vT + 2
    vBp = vT + 3
    vOa = vT + 4
    a(f'v_and_b32 {vr(vBp)}, 3, {vr(vLane)}')
    a(f'v_lshlrev_b32 {vr(vBp)}, 2, {vr(vBp)}')
    a(f'v_lshrrev_b32 {vr(vML)}, 2, {vr(vLane)}')
    a(f'v_lshl_add_u32 {vr(vML)}, {vr(vML)}, 12, {vr(vBp)}')
    for ch in range(nch):
        e, x, y = vT + 6, vOa + ch, vT + 7
        a(f'v_add_u32 {vr(e)}, {ch*nthr}, v0')
        a(f'v_and_b32 {vr(x)}, 3, {vr(e)}'); a(f'v_lshlrev_b32 {vr(x)}, 7, {vr(x)}')
        a(f'v_lshrrev_b32 {vr(y)}, 8, {vr(e)}'); a(f'v_lshl_add_u32 {vr(x)}, {vr(y)}, 6, {vr(x)}')
        a(f'v_bfe_u32 {vr(y)}, {vr(e)}, 2, 4'); a(f'v_lshl_add_u32 {vr(x)}, {vr(y)}, 2, {vr(x)}')
        a(f'v_bfe_u32 {vr(y)}, {vr(e)}, 6, 2'); a(f'v_add_u32 {vr(x)}, {vr(x)}, {vr(y)}')
        a(f'v_lshlrev_b32 {vr(x)}, 1, {vr(x)}')
    a(f'v_mov_b32 {vr(vT+6)}, {TK}')
    a('s_waitcnt vmcnt(0)')
    if prof not in (3, 4): stamp(5)
    a('s_barrier')
    a(f's_cmp_lg_u32 {sr(sWave)}, 0')
    a('s_cbranch_scc1 L_noat')
    a('s_mov_b64 exec, 1')
    a(f'v_mov_b32 {vr(vT+7)}, 1')
    a(f'v_mov_b32 {vr(vT)}, 0')
    a(f'buffer_atomic_add {vr(vT+7)}, {vr(vT)}, {sr(srdKS,4)}, {sr(sOffG)} offen sc0')
    a('s_waitcnt vmcnt(0)')
    a(f'ds_write_b32 {vr(vT+6)}, {vr(vT+7)}')
    a('s_mov_b64 exec, -1')
    a('s_waitcnt lgkmcnt(0)')
    a('L_noat:')
    a('s_barrier')
    a(f'ds_read_b32 {vr(vT+7)}, {vr(vT+6)}')
    a('s_waitcnt lgkmcnt(0)')
    a(f'v_readfirstlane_b32 {sr(sT0)}, {vr(vT+7)}')
    a('s_nop 3')
    if prof != 4: stamp(6)
    a(f's_cmp_lg_u32 {sr(sT0)}, {P-1}')
    a('s_cbranch_scc1 L_notlast')
    cM, cL, cW = vKr, vKr + 1, vKr + 4
    cO = vVr
    assert nch * P <= 32
    a(f'buffer_load_dword {vr(cM)}, {vr(vML)}, {sr(srdV,4)}, 0 offen offset:2048 sc1')
    a(f'buffer_load_dword {vr(cL)}, {vr(vML)}, {sr(srdV,4)}, 0 offen offset:2064 sc1')
    for w in range(P):
        a(f's_movk_i32 {sr(sT1)}, {w*PSTRIDE if w*PSTRIDE < 32768 else 0}' if w*PSTRIDE < 32768 else f's_mov_b32 {sr(sT1)}, {w*PSTRIDE}')
        for ch in range(nch):
            a(f'buffer_load_dword {vr(cO+ch*P+w)}, {vr(vT+1)}, {sr(srdV,4)}, {sr(sT1)} offen offset:{ch*nthr*4} sc1')
    x, y = vKr + 2, vKr + 3
    a(f's_waitcnt vmcnt({nch*P})')
    if prof == 3: stamp(4)
    def allreduce(reg, op):
        a('s_nop 1')
        a(f'{op}_dpp {vr(reg)}, {vr(reg)}, {vr(reg)} row_ror:4 row_mask:0xf bank_mask:0xf')
        a('s_nop 1')
        a(f'{op}_dpp {vr(reg)}, {vr(reg)}, {vr(reg)} row_ror:8 row_mask:0xf bank_mask:0xf')
        a(f'v_mov_b32 {vr(y)}, {vr(reg)}')
        a('s_nop 1')
        a(f'v_permlane16_swap_b32 {vr(reg)}, {vr(y)}')
        a('s_nop 1')
        a(f'{op} {vr(reg)}, {vr(reg)}, {vr(y)}')
        a(f'v_mov_b32 {vr(y)}, {vr(reg)}')
        a('s_nop 1')
        a(f'v_permlane32_swap_b32 {vr(reg)}, {vr(y)}')
        a('s_nop 1')
        a(f'{op} {vr(reg)}, {vr(reg)}, {vr(y)}')
    a(f'v_mov_b32 {vr(x)}, {vr(cM)}')
    allreduce(x, 'v_max_f32')
    a(f'v_sub_f32 {vr(cM)}, {vr(cM)}, {vr(x)}')
    a(f'v_exp_f32 {vr(cM)}, {vr(cM)}')
    a('s_nop 0')
    a(f'v_mul_f32 {vr(x)}, {vr(cM)}, {vr(cL)}')
    allreduce(x, 'v_add_f32')
    a(f'v_rcp_f32 {vr(cL)}, {vr(x)}')
    a('s_nop 0')
    a(f'v_fma_f32 {vr(x)}, -{vr(x)}, {vr(cL)}, 1.0')
    a(f'v_fmac_f32 {vr(cL)}, {vr(x)}, {vr(cL)}')
    a(f'v_mul_f32 {vr(cM)}, {vr(cM)}, {vr(cL)}')
    a('s_nop 0')
    for w in range(P):
        a(f'ds_bpermute_b32 {vr(cW+w)}, {vr(vBp)}, {vr(cM)} offset:{16*w}')
    if prof == 3:
        a('s_waitcnt lgkmcnt(0)'); stamp(3)
    a('s_waitcnt vmcnt(0) lgkmcnt(0)')
    if prof == 3: stamp(5)
    for ch in range(nch):
        a(f'v_mul_f32 {vr(x)}, {vr(cW)}, {vr(cO+ch*P)}')
        for w in range(1, P): a(f'v_fmac_f32 {vr(x)}, {vr(cW+w)}, {vr(cO+ch*P+w)}')
        a(f'v_cvt_pk_bf16_f32 {vr(x)}, {vr(x)}, {vr(x)}')
        a(f'buffer_store_short {vr(x)}, {vr(vOa+ch)}, {sr(srdK,4)}, 0 offen {opol}')
    if dbgprof:
        a('s_waitcnt vmcnt(0)')
        a(f's_cmp_lg_u32 {sr(sWave)}, 0')
        a('s_cbranch_scc1 L_end')
        stamp(7)
        a(f's_memtime {sr(sTm+2,2)}')
        a('s_waitcnt lgkmcnt(0)')
        a('s_mov_b64 exec, 1')
        a(f'v_mov_b32 {vr(vT)}, 0')
        for i in range(1, 8):
            a(f's_sub_u32 {sr(sT0)}, {sr(sSt+2*i)}, {sr(sSt)}')
            a(f'v_mov_b32 {vr(vKr+i)}, {sr(sT0)}')
        a(f's_sub_u32 {sr(sT0)}, {sr(sSt+14)}, {sr(sSt+12)}'); a(f'v_mov_b32 {vr(vKr+8)}, {sr(sT0)}')
        a(f's_sub_u32 {sr(sT0)}, {sr(sSt+14)}, {sr(sSt+6)}'); a(f'v_mov_b32 {vr(vKr+9)}, {sr(sT0)}')
        a(f's_sub_u32 {sr(sT0)}, {sr(sTm+2)}, {sr(sTm)}'); a(f'v_mov_b32 {vr(vKr+10)}, {sr(sT0)}')
        for i in range(1, 11):
            a(f'buffer_atomic_umax {vr(vKr+i)}, {vr(vT)}, {sr(srdKS,4)}, 0 offen offset:{4*i}')
    a('L_notlast:')
    if prof in (2, 3, 4):
        a('s_waitcnt vmcnt(0)')
        stamp(7)
        a('s_waitcnt lgkmcnt(0)')
        if prof != 4:
            a(f's_cmp_lg_u32 {sr(sWave)}, 0')
            a('s_cbranch_scc1 L_end')
        a(f's_add_u32 {sr(srdT)}, {sr(ws_)}, 0x4000000')
        a(f's_addc_u32 {sr(srdT+1)}, {sr(ws_+1)}, 0')
        a(f's_and_b32 {sr(srdT+1)}, {sr(srdT+1)}, 0xffff')
        a(f's_mov_b32 {sr(srdT+2)}, 0x100000')
        if prof != 4:
            a(f's_lshl_b32 {sr(sT1)}, s2, 6')
        else:
            a(f's_mul_i32 {sr(sT1)}, s2, {nw}'); a(f's_add_u32 {sr(sT1)}, {sr(sT1)}, {sr(sWave)}'); a(f's_lshl_b32 {sr(sT1)}, {sr(sT1)}, 6')
        for i in range(8): a(f'v_mov_b32 {vr(vKr+i)}, {sr(sSt+2*i)}')
        a(f's_getreg_b32 {sr(sT0)}, hwreg(HW_REG_XCC_ID)')
        a(f'v_mov_b32 {vr(vKr+8)}, {sr(sT0)}')
        a(f's_getreg_b32 {sr(sT0)}, hwreg(HW_REG_HW_ID)')
        a(f'v_mov_b32 {vr(vKr+9)}, {sr(sT0)}')
        a(f'v_mov_b32 {vr(vT)}, 0')
        a('s_mov_b64 exec, 1')
        a(f'buffer_store_dwordx4 {vr(vKr,4)}, {vr(vT)}, {sr(srdT,4)}, {sr(sT1)} offen')
        a(f'buffer_store_dwordx4 {vr(vKr+4,4)}, {vr(vT)}, {sr(srdT,4)}, {sr(sT1)} offen offset:16')
        a(f'buffer_store_dwordx2 {vr(vKr+8,2)}, {vr(vT)}, {sr(srdT,4)}, {sr(sT1)} offen offset:32')
    if padto:
        a('s_waitcnt vmcnt(0) lgkmcnt(0)')
        a('L_pad:')
        a(f's_memrealtime {sr(sTm+2,2)}')
        a('s_waitcnt lgkmcnt(0)')
        a(f's_sub_u32 {sr(sT0)}, {sr(sTm+2)}, {sr(sTm)}')
        a(f's_cmp_lt_u32 {sr(sT0)}, {padto}')
        a('s_cbranch_scc1 L_pad')
    a('L_end:')
    a('s_endpgm')
    main = '\n'.join(out)
    acc = (nvgpr + 3) // 4 * 4
    kd = f'''.amdhsa_kernel {KN}
  .amdhsa_next_free_vgpr {nvgpr}
  .amdhsa_next_free_sgpr {S.n}
  .amdhsa_accum_offset {acc}
  .amdhsa_group_segment_fixed_size 0
  .amdhsa_kernarg_size 80
  .amdhsa_user_sgpr_count 2
  .amdhsa_user_sgpr_kernarg_segment_ptr 1
  .amdhsa_system_sgpr_workgroup_id_x 1
  .amdhsa_float_denorm_mode_32 3
.end_amdhsa_kernel
'''
    src = HEADCOMMENT + f'; @launch grid=({nwg},1,1) block=({nthr},1,1) lds={lds_bytes}\n'
    src += '.amdgcn_target "amdgcn-amd-amdhsa--gfx950"\n.text\n'
    src += f'.globl {KN}\n.p2align 8\n.type {KN},@function\n{main}\n'
    src += '.section .rodata,"a"\n.p2align 6\n' + kd
    return src, [(KN, nwg, nthr, lds_bytes)]

if __name__ == '__main__':
    import argparse
    ap = argparse.ArgumentParser()
    ap.add_argument('-o', default='out.s')
    ap.add_argument('kv', nargs='*')
    args = ap.parse_args()
    kw = {}
    for x in args.kv:
        k, v = x.split('=')
        try: v = int(v)
        except ValueError: pass
        kw[k] = v
    src, l = gen(**kw)
    open(args.o, 'w').write(src)
    print(l)
```

```python
import struct
KN = 'standalone__kv_cache_quant_int4_int2_kv_with_per_channel_or_per_token_scales__decode_kernel'

HEADCOMMENT = '''; KIVI-style quantised KV-cache decode attention (B=2, Hq=32, Hkv=8, Skv=32768, Dh=128), one fused launch.
'''

class Alloc:
    def __init__(self, start, limit):
        self.n = start; self.limit = limit
    def get(self, cnt=1, align=1):
        self.n = (self.n + align - 1) // align * align
        r = self.n; self.n += cnt
        assert self.n <= self.limit, self.n
        return r

def vr(r, n=1): return f'v{r}' if n == 1 else f'v[{r}:{r+n-1}]'
def sr(r, n=1): return f's{r}' if n == 1 else f's[{r}:{r+n-1}]'
def f32hex(x): return '0x%08x' % struct.unpack('<I', struct.pack('<f', x))[0]

PSTRIDE = 4096
QROW = 288
WLDS = 1536
CEXP = 0.08838834764831845 * 1.4426950408889634

def gen(nw=8, bar=1, pol='nt', spol='nt', nB=1, prof=0, dbgprof=0, coff=0, cshift=2, opol='', dry=0,
        nBalt=None, setprio=0, padto=0, vsplit=1, wrot=0):
    P = 16
    nwg = 16 * P
    NS = 32768 // (P * nw * 16)
    nthr = nw * 64
    nch = 512 // nthr
    out = []
    a = out.append
    V = Alloc(1, 256); S = Alloc(3, 102)
    sWave = S.get()
    sKA = S.get(16, 4); sKB = S.get(4, 4)
    srdK = S.get(4, 4); srdV = S.get(4, 4); srdKS = S.get(4, 4); srdKZ = S.get(4, 4)
    srdVS = S.get(4, 4); srdVZ = S.get(4, 4); srdT = S.get(4, 4)
    sHk = S.get(); sJ = S.get()
    sOffK = S.get(); sOffS = S.get(); sOffG = S.get(); sOffK2 = S.get()
    sCnt = S.get(); sT0 = S.get(); sT1 = S.get()
    sAl = S.get(4, 4); sMask = S.get(); sEx = S.get(2, 2)
    stamps = prof in (2, 3, 4) or dbgprof
    sSt = S.get(16, 2) if stamps else None
    sTm = S.get(4, 2) if (dbgprof or padto or prof == 2) else None
    def stamp(i):
        if stamps: a(f's_memrealtime {sr(sSt+2*i,2)}')
    cnt_stamp = [0]
    def stamp_it(i, it):
        if prof == 4:
            cnt_stamp[0] += 1
            a(f's_cmp_lg_u32 {sr(sCnt)}, {NS-1-it}')
            a(f's_cbranch_scc1 L_st{cnt_stamp[0]}')
            a(f's_memrealtime {sr(sSt+2*i,2)}')
            a(f'L_st{cnt_stamp[0]}:')
    vLane = V.get()
    vKoff = V.get(); vVoff = V.get(); vSoff = V.get(); vKsOff = V.get(); vKzOff = V.get()
    vKoffB = V.get(); vLqRB = V.get(); vLzRB = V.get()
    vLqW = V.get(); vLzW = V.get(); vLqR = V.get(); vLzR = V.get()
    vM = V.get(); vL = V.get(); vAl = V.get()
    vT = V.get(8, 2)
    vQc = V.get(8, 4)
    vKs = V.get(4, 4); vKz = V.get(); vVs = V.get(2, 2); vVz = V.get(2, 2)
    vQw = V.get(4, 4); vP = V.get(2, 2); vS = V.get(4, 4); vAz = V.get(4, 4)
    vAcc = V.get(32, 4); vQB = V.get(16, 4); vPK = V.get(16, 4)
    vKr = V.get(32, 4); vVr = V.get(32, 4)
    nvgpr = V.n
    OB = nw * WLDS
    MB = OB + nw * 2048
    RS = nw * 4
    TK = MB + 12 * RS
    lds_bytes = TK + 16

    a(f'{KN}:')
    a(f's_cmp_ge_u32 s2, {nwg}')
    a('s_cbranch_scc1 L_end')
    a(f's_load_dwordx16 {sr(sKA,16)}, s[0:1], 0')
    a(f's_load_dwordx4 {sr(sKB,4)}, s[0:1], 64')
    stamp(0)
    if dbgprof or prof == 2: a(f's_memtime {sr(sTm,2)}')
    if padto: a(f's_memrealtime {sr(sTm,2)}')
    a(f'v_lshrrev_b32 {vr(vT)}, 6, v0')
    a(f'v_and_b32 {vr(vLane)}, 63, v0')
    a(f's_lshr_b32 {sr(sHk)}, s2, 4')
    a(f'v_readfirstlane_b32 {sr(sWave)}, {vr(vT)}')
    a(f's_and_b32 {sr(sJ)}, s2, {P-1}')
    n15, g4 = vT + 1, vT + 2
    a(f'v_and_b32 {vr(n15)}, 15, {vr(vLane)}')
    a(f'v_lshrrev_b32 {vr(g4)}, 4, {vr(vLane)}')
    a(f'v_lshlrev_b32 {vr(vKsOff)}, 4, {vr(n15)}')
    a(f'v_lshlrev_b32 {vr(vT+3)}, 9, {vr(n15)}')
    a(f'v_lshl_add_u32 {vr(vKoff)}, {vr(g4)}, 4, {vr(vT+3)}')
    a(f'v_lshl_add_u32 {vr(vVoff)}, {vr(g4)}, 11, {vr(vKsOff)}')
    a(f'v_lshlrev_b32 {vr(vSoff)}, 3, {vr(g4)}')
    a(f'v_lshlrev_b32 {vr(vKzOff)}, 2, {vr(vLane)}')
    a(f'v_and_b32 {vr(vT+3)}, 7, {vr(vLane)}')
    a(f'v_lshlrev_b32 {vr(vT+3)}, 9, {vr(vT+3)}')
    a(f'v_lshrrev_b32 {vr(vT+4)}, 3, {vr(vLane)}')
    a(f'v_lshl_add_u32 {vr(vKoffB)}, {vr(vT+4)}, 4, {vr(vT+3)}')
    a(f's_lshl_b32 {sr(sOffK)}, {sr(sJ)}, 20')
    if wrot == 0:
        a(f's_lshl_b32 {sr(sT0)}, {sr(sWave)}, 13')
    else:
        if wrot == 1: a(f's_add_u32 {sr(sT0)}, {sr(sWave)}, s2')
        elif wrot == 2: a(f's_lshr_b32 {sr(sT0)}, s2, 3'); a(f's_add_u32 {sr(sT0)}, {sr(sT0)}, {sr(sWave)}')
        elif wrot == 3: a(f's_lshr_b32 {sr(sT0)}, s2, 3'); a(f's_and_b32 {sr(sT0)}, {sr(sT0)}, 1'); a(f's_lshl_b32 {sr(sT0)}, {sr(sT0)}, {(nw//2).bit_length()-1}'); a(f's_xor_b32 {sr(sT0)}, {sr(sT0)}, {sr(sWave)}')
        elif wrot == 4: a(f's_and_b32 {sr(sT0)}, s2, 1'); a(f's_lshl_b32 {sr(sT0)}, {sr(sT0)}, {(nw//2).bit_length()-1}'); a(f's_xor_b32 {sr(sT0)}, {sr(sT0)}, {sr(sWave)}')
        elif wrot == 5: a(f's_lshr_b32 {sr(sT0)}, s2, 4'); a(f's_add_u32 {sr(sT0)}, {sr(sT0)}, {sr(sWave)}')
        elif wrot == 6: a(f's_lshr_b32 {sr(sT0)}, s2, 3'); a(f's_xor_b32 {sr(sT0)}, {sr(sT0)}, {sr(sWave)}')
        elif wrot == 7: a(f's_lshr_b32 {sr(sT0)}, s2, 4'); a(f's_and_b32 {sr(sT0)}, {sr(sT0)}, 1'); a(f's_lshl_b32 {sr(sT0)}, {sr(sT0)}, 2'); a(f's_xor_b32 {sr(sT0)}, {sr(sT0)}, {sr(sWave)}')
        elif wrot == 8: a(f's_lshr_b32 {sr(sT0)}, s2, 3'); a(f's_and_b32 {sr(sT0)}, {sr(sT0)}, 3'); a(f's_lshl_b32 {sr(sT0)}, {sr(sT0)}, 1'); a(f's_xor_b32 {sr(sT0)}, {sr(sT0)}, {sr(sWave)}')
        elif wrot == 9: a(f's_lshr_b32 {sr(sT0)}, s2, 3'); a(f's_xor_b32 {sr(sT0)}, {sr(sT0)}, s2'); a(f's_and_b32 {sr(sT0)}, {sr(sT0)}, 1'); a(f's_lshl_b32 {sr(sT0)}, {sr(sT0)}, 2'); a(f's_xor_b32 {sr(sT0)}, {sr(sT0)}, {sr(sWave)}')
        elif wrot == 10: a(f's_lshr_b32 {sr(sT0)}, s2, 5'); a(f's_and_b32 {sr(sT0)}, {sr(sT0)}, 1'); a(f's_lshl_b32 {sr(sT0)}, {sr(sT0)}, 2'); a(f's_xor_b32 {sr(sT0)}, {sr(sT0)}, {sr(sWave)}')
        a(f's_and_b32 {sr(sT0)}, {sr(sT0)}, {nw-1}')
        a(f's_lshl_b32 {sr(sT0)}, {sr(sT0)}, 13')
    a(f's_add_u32 {sr(sOffK)}, {sr(sOffK)}, {sr(sT0)}')
    stride = nw * 16 * 512
    def offs():
        a(f's_lshr_b32 {sr(sOffS)}, {sr(sOffK)}, 8')
        a(f's_and_b32 {sr(sOffG)}, {sr(sOffS)}, 0xffffff00')
        a(f's_add_u32 {sr(sOffK2)}, {sr(sOffK)}, 4096')
    offs()
    a('s_waitcnt lgkmcnt(0)')
    def srd(dst, ptr, off_s, off_shift, nbytes):
        a(f's_lshl_b32 {sr(sT0)}, {sr(off_s)}, {off_shift}')
        a(f's_add_u32 {sr(dst)}, {sr(ptr)}, {sr(sT0)}')
        a(f's_addc_u32 {sr(dst+1)}, {sr(ptr+1)}, 0')
        a(f's_and_b32 {sr(dst+1)}, {sr(dst+1)}, 0xffff')
        a(f's_mov_b32 {sr(dst+2)}, {nbytes}')
        a(f's_mov_b32 {sr(dst+3)}, 0x20000')
    q_, qk_, qv_, ks_, kz_, vs_, vz_, o_ = [sKA + 2 * i for i in range(8)]
    dbg_, ws_ = sKB, sKB + 2
    def ld_ks():
        a(f'buffer_load_dwordx4 {vr(vKs,4)}, {vr(vKsOff)}, {sr(srdKS,4)}, {sr(sOffG)} offen {spol}')
        a(f'buffer_load_dword {vr(vKz)}, {vr(vKzOff)}, {sr(srdKZ,4)}, {sr(sOffG)} offen {spol}')
    def ld_K(nb):
        for s in range(4):
            if s < 4 - nb:
                for i in (2*s, 2*s+1):
                    a(f'buffer_load_dwordx4 {vr(vKr+4*i,4)}, {vr(vKoff)}, {sr(srdK,4)}, {sr(sOffK)} offen offset:{i*64} {pol}')
            else:
                a(f'buffer_load_dwordx4 {vr(vKr+8*s,4)}, {vr(vKoffB)}, {sr(srdK,4)}, {sr(sOffK)} offen offset:{s*128} {pol}')
                a(f'buffer_load_dwordx4 {vr(vKr+8*s+4,4)}, {vr(vKoffB)}, {sr(srdK,4)}, {sr(sOffK2)} offen offset:{s*128} {pol}')
    def ld_vs():
        a(f'buffer_load_dwordx2 {vr(vVs,2)}, {vr(vSoff)}, {sr(srdVS,4)}, {sr(sOffS)} offen {spol}')
        a(f'buffer_load_dwordx2 {vr(vVz,2)}, {vr(vSoff)}, {sr(srdVZ,4)}, {sr(sOffS)} offen {spol}')
    def ld_V():
        for j in range(4):
            for h in range(2):
                a(f'buffer_load_dwordx4 {vr(vVr+4*(2*j+h),4)}, {vr(vVoff)}, {sr(srdV,4)}, {sr(sOffK)} offen offset:{j*512+h*256} {pol}')
    srd(srdT, q_, sHk, 10, 1024)
    a(f'v_lshl_add_u32 {vr(vT+3)}, {vr(g4)}, 8, {vr(vKsOff)}')
    a(f'buffer_load_dwordx4 {vr(vQw,4)}, {vr(vT+3)}, {sr(srdT,4)}, 0 offen')
    srd(srdKS, ks_, sHk, 16, 1 << 16)
    srd(srdKZ, kz_, sHk, 16, 1 << 16)
    srd(srdK, qk_, sHk, 24, 1 << 24)
    ld_ks(); ld_K(nB)
    srd(srdVS, vs_, sHk, 16, 1 << 16)
    srd(srdVZ, vz_, sHk, 16, 1 << 16)
    srd(srdV, qv_, sHk, 24, 1 << 24)
    ld_vs(); ld_V()
    a(f's_mul_i32 {sr(sT0)}, {sr(sWave)}, {WLDS}')
    a(f'v_mul_u32_u24 {vr(vT+3)}, {QROW}, {vr(g4)}')
    a(f'v_add3_u32 {vr(vLqW)}, {vr(vT+3)}, {vr(vKsOff)}, {sr(sT0)}')
    a(f'v_add_u32 {vr(vLzW)}, {sr(sT0)}, {vr(vKzOff)}')
    a(f'v_add_u32 {vr(vLzW)}, {4*QROW}, {vr(vLzW)}')
    a(f'v_and_b32 {vr(vT+3)}, 3, {vr(vLane)}')
    a(f'v_mul_u32_u24 {vr(vT+3)}, {QROW}, {vr(vT+3)}')
    a(f'v_add3_u32 {vr(vLqR)}, {vr(vT+3)}, {vr(vSoff)}, {sr(sT0)}')
    a(f'v_add_u32 {vr(vLzR)}, {sr(sT0)}, {vr(vSoff)}')
    a(f'v_add_u32 {vr(vLzR)}, {4*QROW}, {vr(vLzR)}')
    a(f'v_add_u32 {vr(vLqRB)}, {vr(vLqR)}, {vr(vSoff)}')
    a(f'v_add_u32 {vr(vLzRB)}, {vr(vLzR)}, {vr(vSoff)}')
    a(f's_mov_b32 {sr(sMask)}, 0xffff0000')
    a(f'v_mov_b32 {vr(vM)}, 0xff800000')
    a(f'v_mov_b32 {vr(vL)}, 0')
    for i in range(4): a(f'v_mov_b32 {vr(vAz+i)}, 0')
    for i in range(32): a(f'v_mov_b32 {vr(vAcc+i)}, 0')
    a(f's_mov_b32 {sr(sT1)}, {f32hex(CEXP)}')
    a(f's_mov_b32 {sr(sCnt)}, {NS-1}')
    if setprio: a(f's_setprio {setprio}')
    a('s_waitcnt vmcnt(20)')
    stamp(1)
    for i in range(4):
        a(f'v_lshlrev_b32 {vr(vQc+2*i)}, 16, {vr(vQw+i)}')
        a(f'v_and_b32 {vr(vQc+2*i+1)}, {sr(sMask)}, {vr(vQw+i)}')
    for i in range(8):
        a(f'v_mul_f32 {vr(vQc+i)}, {sr(sT1)}, {vr(vQc+i)}')

    def step(pf, tag, nb_cur, nb_next):
        a('s_waitcnt vmcnt(18)')
        for i in range(4):
            a(f'v_lshlrev_b32 {vr(vT)}, 16, {vr(vKs+i)}')
            a(f'v_and_b32 {vr(vT+1)}, {sr(sMask)}, {vr(vKs+i)}')
            a(f'v_mul_f32 {vr(vT)}, {vr(vT)}, {vr(vQc+2*i)}')
            a(f'v_mul_f32 {vr(vT+1)}, {vr(vT+1)}, {vr(vQc+2*i+1)}')
            a(f'v_cvt_pk_bf16_f32 {vr(vQw+i)}, {vr(vT)}, {vr(vT+1)}')
        a(f'v_xor_b32 {vr(vT+2)}, 0x80008000, {vr(vKz)}')
        a(f'ds_write_b128 {vr(vLqW)}, {vr(vQw,4)}')
        a(f'ds_write_b32 {vr(vLzW)}, {vr(vT+2)}')
        if pf:
            a(f's_add_u32 {sr(sOffK)}, {sr(sOffK)}, {stride}')
            offs()
            ld_ks()
        for s in range(4):
            if s < 4 - nb_cur: a(f'ds_read2_b64 {vr(vQB+4*s,4)}, {vr(vLqR)} offset0:{8*s} offset1:{8*s+4}')
            else: a(f'ds_read_b128 {vr(vQB+4*s,4)}, {vr(vLqRB)} offset:{64*s}')
        for s in range(4):
            if s < 4 - nb_cur: a(f'ds_read2_b64 {vr(vPK+4*s,4)}, {vr(vLzR)} offset0:{8*s} offset1:{8*s+4}')
            else: a(f'ds_read_b128 {vr(vPK+4*s,4)}, {vr(vLzRB)} offset:{64*s}')
        a('s_waitcnt lgkmcnt(0)')
        for s in range(4):
            c = '0' if s == 0 else vr(vS, 4)
            a(f'v_mfma_f32_16x16x32_bf16 {vr(vS,4)}, {vr(vPK+4*s,4)}, {vr(vQB+4*s,4)}, {c}')
        a(f's_waitcnt vmcnt({12 if pf else 10})')
        if pf: stamp_it(2, 0); stamp_it(4, 1)
        for i in range(8):
            for c in range(4):
                a(f'v_cvt_f32_i32 {vr(vKr+4*i+c)}, {vr(vKr+4*i+c)}')
            d = vPK + 4 * (i // 2) + 2 * (i % 2)
            a(f'v_cvt_pk_bf16_f32 {vr(d)}, {vr(vKr+4*i)}, {vr(vKr+4*i+1)}')
            a(f'v_cvt_pk_bf16_f32 {vr(d+1)}, {vr(vKr+4*i+2)}, {vr(vKr+4*i+3)}')
        for s in range(4 - nb_cur, 4):
            a(f'v_mov_b32 {vr(vT)}, {vr(vPK+4*s)}')
            a(f'v_mov_b32 {vr(vT+1)}, {vr(vPK+4*s+1)}')
            a('s_nop 0')
            a(f'v_mov_b32_dpp {vr(vPK+4*s)}, {vr(vPK+4*s+2)} row_ror:8 row_mask:0xf bank_mask:0xc')
            a(f'v_mov_b32_dpp {vr(vPK+4*s+1)}, {vr(vPK+4*s+3)} row_ror:8 row_mask:0xf bank_mask:0xc')
            a(f'v_mov_b32_dpp {vr(vPK+4*s+2)}, {vr(vT)} row_ror:8 row_mask:0xf bank_mask:0x3')
            a(f'v_mov_b32_dpp {vr(vPK+4*s+3)}, {vr(vT+1)} row_ror:8 row_mask:0xf bank_mask:0x3')
        if pf: ld_K(nb_next)
        else: a('s_nop 1')
        for s in range(4):
            a(f'v_mfma_f32_16x16x32_bf16 {vr(vS,4)}, {vr(vPK+4*s,4)}, {vr(vQB+4*s,4)}, {vr(vS,4)}')
        a(f's_waitcnt vmcnt({18 if pf else 8})')
        f = vT + 4
        a(f'v_lshlrev_b32 {vr(f)}, 16, {vr(vVs)}')
        a(f'v_and_b32 {vr(f+1)}, {sr(sMask)}, {vr(vVs)}')
        a(f'v_lshlrev_b32 {vr(f+2)}, 16, {vr(vVs+1)}')
        a(f'v_and_b32 {vr(f+3)}, {sr(sMask)}, {vr(vVs+1)}')
        a('s_nop 4')
        a(f'v_max3_f32 {vr(vT)}, {vr(vS)}, {vr(vS+1)}, {vr(vS+2)}')
        a(f'v_max_f32 {vr(vT)}, {vr(vT)}, {vr(vS+3)}')
        a(f'v_mov_b32 {vr(vT+1)}, {vr(vT)}')
        a('s_nop 1')
        a(f'v_permlane16_swap_b32 {vr(vT)}, {vr(vT+1)}')
        a('s_nop 1')
        a(f'v_max_f32 {vr(vT)}, {vr(vT)}, {vr(vT+1)}')
        a(f'v_mov_b32 {vr(vT+1)}, {vr(vT)}')
        a('s_nop 1')
        a(f'v_permlane32_swap_b32 {vr(vT)}, {vr(vT+1)}')
        a('s_nop 1')
        a(f'v_max3_f32 {vr(vT)}, {vr(vT)}, {vr(vT+1)}, {vr(vM)}')
        a(f'v_sub_f32 {vr(vAl)}, {vr(vM)}, {vr(vT)}')
        a(f'v_cmp_gt_f32 vcc, {vr(vT)}, {vr(vM)}')
        a(f'v_mov_b32 {vr(vM)}, {vr(vT)}')
        a(f'v_exp_f32 {vr(vAl)}, {vr(vAl)}')
        for r in range(4): a(f'v_sub_f32 {vr(vS+r)}, {vr(vS+r)}, {vr(vM)}')
        for r in range(4): a(f'v_exp_f32 {vr(vS+r)}, {vr(vS+r)}')
        a(f's_cbranch_vccz L_nors_{tag}')
        for r in range(4): a(f'v_readlane_b32 {sr(sAl+r)}, {vr(vAl)}, {r}')
        a('s_nop 1')
        for i in range(8):
            for r in range(4):
                a(f'v_mul_f32 {vr(vAcc+4*i+r)}, {sr(sAl+r)}, {vr(vAcc+4*i+r)}')
        for r in range(4): a(f'v_mul_f32 {vr(vAz+r)}, {sr(sAl+r)}, {vr(vAz+r)}')
        a(f'L_nors_{tag}:')
        a(f'v_add_f32 {vr(vT)}, {vr(vS)}, {vr(vS+1)}')
        a(f'v_add_f32 {vr(vT+1)}, {vr(vS+2)}, {vr(vS+3)}')
        a(f'v_fma_f32 {vr(vL)}, {vr(vL)}, {vr(vAl)}, {vr(vT)}')
        for r in range(4): a(f'v_mul_f32 {vr(vS+r)}, {vr(vS+r)}, {vr(f+r)}')
        a(f'v_add_f32 {vr(vL)}, {vr(vL)}, {vr(vT+1)}')
        a(f'v_cvt_pk_bf16_f32 {vr(vP)}, {vr(vS)}, {vr(vS+1)}')
        a(f'v_cvt_pk_bf16_f32 {vr(vP+1)}, {vr(vS+2)}, {vr(vS+3)}')
        a('s_nop 1')
        a(f'v_mfma_f32_16x16x16_bf16 {vr(vAz,4)}, {vr(vP,2)}, {vr(vVz,2)}, {vr(vAz,4)}')
        if not pf: early_publish()
        R = lambda j, h, c: vVr + 4 * (2 * j + h) + c
        def vhalf(jp):
            for h in range(2):
                for c in range(4):
                    a(f'v_cvt_f32_i32 {vr(R(2*jp,h,c))}, {vr(R(2*jp,h,c))}')
                    a(f'v_cvt_f32_i32 {vr(R(2*jp+1,h,c))}, {vr(R(2*jp+1,h,c))}')
                    a(f'v_cvt_pk_bf16_f32 {vr(vPK+2*(4*h+c)+jp)}, {vr(R(2*jp,h,c))}, {vr(R(2*jp+1,h,c))}')
        base = 10 if pf else 0
        if vsplit:
            a(f's_waitcnt vmcnt({base+4})'); vhalf(0)
            a(f's_waitcnt vmcnt({base})'); vhalf(1)
        else:
            a(f's_waitcnt vmcnt({base})'); vhalf(0); vhalf(1)
        if pf:
            ld_vs(); ld_V()
            stamp_it(3, 0); stamp_it(5, 1); stamp_it(6, 7)
        else: a('s_nop 1')
        for i in range(8):
            a(f'v_mfma_f32_16x16x16_bf16 {vr(vAcc+4*i,4)}, {vr(vP,2)}, {vr(vPK+2*i,2)}, {vr(vAcc+4*i,4)}')

    vF = vKr
    vLw = vKr + 8
    vZw = vKr + 16
    vMx, vLs, vZs = vKr + 24, vKr + 25, vKr + 26
    vO = vKr + 16
    def early_publish():
        a(f'v_mov_b32 {vr(vT+1)}, {vr(vL)}')
        a('s_nop 1')
        a(f'v_permlane16_swap_b32 {vr(vL)}, {vr(vT+1)}')
        a('s_nop 1')
        a(f'v_add_f32 {vr(vL)}, {vr(vL)}, {vr(vT+1)}')
        a(f'v_mov_b32 {vr(vT+1)}, {vr(vL)}')
        a('s_nop 1')
        a(f'v_permlane32_swap_b32 {vr(vL)}, {vr(vT+1)}')
        a('s_nop 1')
        a(f'v_add_f32 {vr(vL)}, {vr(vL)}, {vr(vT+1)}')
        a(f's_lshl_b32 {sr(sT1)}, {sr(sWave)}, 2')
        a(f's_add_u32 {sr(sT1)}, {sr(sT1)}, {MB}')
        a(f'v_mul_u32_u24 {vr(vT+2)}, {RS}, {vr(vLane)}')
        a(f'v_add_u32 {vr(vT+2)}, {sr(sT1)}, {vr(vT+2)}')
        a('s_mov_b64 exec, 0xf')
        a(f'ds_write_b32 {vr(vT+2)}, {vr(vM)}')
        a(f'ds_write_b32 {vr(vT+2)}, {vr(vL)} offset:{4*RS}')
        a('s_mov_b64 exec, 1')
        for r in range(4):
            a(f'ds_write_b32 {vr(vT+2)}, {vr(vAz+r)} offset:{8*RS+r*RS}')
        a('s_mov_b64 exec, -1')
        a(f'v_and_b32 {vr(vT)}, 3, v0')
        a(f'v_mul_u32_u24 {vr(vT)}, {RS}, {vr(vT)}')
        a(f'v_add_u32 {vr(vT)}, {MB}, {vr(vT)}')
        a('s_waitcnt lgkmcnt(0)')
        a('s_barrier')
        for k in range(nw // 4):
            a(f'ds_read_b128 {vr(vF+4*k,4)}, {vr(vT)} offset:{16*k}')
            a(f'ds_read_b128 {vr(vLw+4*k,4)}, {vr(vT)} offset:{4*RS+16*k}')
            a(f'ds_read_b128 {vr(vZw+4*k,4)}, {vr(vT)} offset:{8*RS+16*k}')
        a('s_waitcnt lgkmcnt(0)')
        a(f'v_max3_f32 {vr(vMx)}, {vr(vF)}, {vr(vF+1)}, {vr(vF+2)}')
        for w in range(3, nw): a(f'v_max_f32 {vr(vMx)}, {vr(vMx)}, {vr(vF+w)}')
        for w in range(nw): a(f'v_sub_f32 {vr(vF+w)}, {vr(vF+w)}, {vr(vMx)}')
        for w in range(nw): a(f'v_exp_f32 {vr(vF+w)}, {vr(vF+w)}')
        a('s_nop 0')
        a(f'v_mul_f32 {vr(vLs)}, {vr(vF)}, {vr(vLw)}')
        a(f'v_mul_f32 {vr(vZs)}, {vr(vF)}, {vr(vZw)}')
        for w in range(1, nw):
            a(f'v_fmac_f32 {vr(vLs)}, {vr(vF+w)}, {vr(vLw+w)}')
            a(f'v_fmac_f32 {vr(vZs)}, {vr(vF+w)}, {vr(vZw+w)}')

    if nBalt is None:
        a('L_loop:')
        step(1, 'loop', nB, nB)
        if bar: a('s_barrier')
        a(f's_sub_u32 {sr(sCnt)}, {sr(sCnt)}, 1')
        a(f's_cmp_lg_u32 {sr(sCnt)}, 0')
        a('s_cbranch_scc1 L_loop')
        nb_last = nB
    else:
        assert NS % 2 == 0
        a(f's_mov_b32 {sr(sCnt)}, {NS // 2 - 1}')
        a('L_loop:')
        step(1, 'loopa', nB, nBalt)
        if bar: a('s_barrier')
        step(1, 'loopb', nBalt, nB)
        if bar: a('s_barrier')
        a(f's_sub_u32 {sr(sCnt)}, {sr(sCnt)}, 1')
        a(f's_cmp_lg_u32 {sr(sCnt)}, 0')
        a('s_cbranch_scc1 L_loop')
        step(1, 'prelast', nB, nBalt)
        if bar: a('s_barrier')
        nb_last = nBalt
    if prof != 4: stamp(2)
    step(0, 'last', nb_last, nb_last)
    if prof not in (3, 4): stamp(3)
    a(f's_lshl_b32 {sr(sT0)}, {sr(sWave)}, 11')
    a(f's_add_u32 {sr(sT0)}, {sr(sT0)}, {OB}')
    a(f'v_add_u32 {vr(vT)}, {sr(sT0)}, {vr(vKsOff)}')
    a(f'v_lshlrev_b32 {vr(vT+1)}, 2, v0')
    a(f'v_add_u32 {vr(vT+2)}, {OB}, {vr(vT+1)}')
    a('s_mov_b64 exec, 0xffff')
    a('s_nop 1')
    for i in range(8):
        a(f'ds_write_b128 {vr(vT)}, {vr(vAcc+4*i,4)} offset:{i*256}')
    a('s_mov_b64 exec, -1')
    a(f's_mul_i32 {sr(sT1)}, s2, {PSTRIDE}')
    a(f's_add_u32 {sr(srdT)}, {sr(ws_)}, {sr(sT1)}')
    a(f's_addc_u32 {sr(srdT+1)}, {sr(ws_+1)}, 0')
    a(f's_and_b32 {sr(srdT+1)}, {sr(srdT+1)}, 0xffff')
    a(f's_mov_b32 {sr(srdT+2)}, {PSTRIDE}')
    a(f's_mov_b32 {sr(srdT+3)}, 0x20000')
    a('s_waitcnt lgkmcnt(0)')
    a('s_barrier')
    vOw = vVr
    vRes = vVr + 16
    for ch in range(nch):
        for w in range(nw):
            a(f'ds_read_b32 {vr(vOw+ch*nw+w)}, {vr(vT+2)} offset:{w*2048+ch*nthr*4}')
    for ch in range(nch):
        a(f's_waitcnt lgkmcnt({(nch-1-ch)*nw})')
        a(f'v_fma_f32 {vr(vRes+ch)}, {vr(vF)}, {vr(vOw+ch*nw)}, -{vr(vZs)}')
        for w in range(1, nw):
            a(f'v_fmac_f32 {vr(vRes+ch)}, {vr(vF+w)}, {vr(vOw+ch*nw+w)}')
    if prof not in (3, 4): stamp(4)
    for ch in range(nch):
        a(f'buffer_store_dword {vr(vRes+ch)}, {vr(vT+1)}, {sr(srdT,4)}, 0 offen offset:{ch*nthr*4} sc1')
    a('v_cmp_gt_u32 vcc, 4, v0')
    a(f's_and_saveexec_b64 {sr(sEx,2)}, vcc')
    a('s_cbranch_execz L_nost')
    a(f'buffer_store_dword {vr(vMx)}, {vr(vT+1)}, {sr(srdT,4)}, 0 offen offset:2048 sc1')
    a(f'buffer_store_dword {vr(vLs)}, {vr(vT+1)}, {sr(srdT,4)}, 0 offen offset:2064 sc1')
    a('L_nost:')
    a(f's_mov_b64 exec, {sr(sEx,2)}')
    a(f's_mov_b32 {sr(srdKS)}, {sr(dbg_)}')
    a(f's_and_b32 {sr(srdKS+1)}, {sr(dbg_+1)}, 0xffff')
    a(f's_mov_b32 {sr(srdKS+2)}, 256')
    a(f's_lshl_b32 {sr(sOffG)}, {sr(sHk)}, {cshift}')
    if coff: a(f's_add_u32 {sr(sOffG)}, {sr(sOffG)}, {coff}')
    a(f's_mul_i32 {sr(sT1)}, {sr(sHk)}, {P*PSTRIDE}')
    a(f's_add_u32 {sr(srdV)}, {sr(ws_)}, {sr(sT1)}')
    a(f's_addc_u32 {sr(srdV+1)}, {sr(ws_+1)}, 0')
    a(f's_and_b32 {sr(srdV+1)}, {sr(srdV+1)}, 0xffff')
    a(f's_mov_b32 {sr(srdV+2)}, {P*PSTRIDE}')
    a(f's_lshl_b32 {sr(sT1)}, {sr(sHk)}, 10')
    a(f's_add_u32 {sr(srdK)}, {sr(o_)}, {sr(sT1)}')
    a(f's_addc_u32 {sr(srdK+1)}, {sr(o_+1)}, 0')
    a(f's_and_b32 {sr(srdK+1)}, {sr(srdK+1)}, 0xffff')
    a(f's_mov_b32 {sr(srdK+2)}, 1024')
    vML = vT + 2
    vBp = vT + 3
    vOa = vT + 4
    a(f'v_and_b32 {vr(vBp)}, 3, {vr(vLane)}')
    a(f'v_lshlrev_b32 {vr(vBp)}, 2, {vr(vBp)}')
    a(f'v_lshrrev_b32 {vr(vML)}, 2, {vr(vLane)}')
    a(f'v_lshl_add_u32 {vr(vML)}, {vr(vML)}, 12, {vr(vBp)}')
    for ch in range(nch):
        e, x, y = vT + 6, vOa + ch, vT + 7
        a(f'v_add_u32 {vr(e)}, {ch*nthr}, v0')
        a(f'v_and_b32 {vr(x)}, 3, {vr(e)}'); a(f'v_lshlrev_b32 {vr(x)}, 7, {vr(x)}')
        a(f'v_lshrrev_b32 {vr(y)}, 8, {vr(e)}'); a(f'v_lshl_add_u32 {vr(x)}, {vr(y)}, 6, {vr(x)}')
        a(f'v_bfe_u32 {vr(y)}, {vr(e)}, 2, 4'); a(f'v_lshl_add_u32 {vr(x)}, {vr(y)}, 2, {vr(x)}')
        a(f'v_bfe_u32 {vr(y)}, {vr(e)}, 6, 2'); a(f'v_add_u32 {vr(x)}, {vr(x)}, {vr(y)}')
        a(f'v_lshlrev_b32 {vr(x)}, 1, {vr(x)}')
    a(f'v_mov_b32 {vr(vT+6)}, {TK}')
    a('s_waitcnt vmcnt(0)')
    if prof not in (3, 4): stamp(5)
    a('s_barrier')
    a(f's_cmp_lg_u32 {sr(sWave)}, 0')
    a('s_cbranch_scc1 L_noat')
    a('s_mov_b64 exec, 1')
    a(f'v_mov_b32 {vr(vT+7)}, 1')
    a(f'v_mov_b32 {vr(vT)}, 0')
    a(f'buffer_atomic_add {vr(vT+7)}, {vr(vT)}, {sr(srdKS,4)}, {sr(sOffG)} offen sc0')
    a('s_waitcnt vmcnt(0)')
    a(f'ds_write_b32 {vr(vT+6)}, {vr(vT+7)}')
    a('s_mov_b64 exec, -1')
    a('s_waitcnt lgkmcnt(0)')
    a('L_noat:')
    a('s_barrier')
    a(f'ds_read_b32 {vr(vT+7)}, {vr(vT+6)}')
    a('s_waitcnt lgkmcnt(0)')
    a(f'v_readfirstlane_b32 {sr(sT0)}, {vr(vT+7)}')
    a('s_nop 3')
    if prof != 4: stamp(6)
    a(f's_cmp_lg_u32 {sr(sT0)}, {P-1}')
    a('s_cbranch_scc1 L_notlast')
    cM, cL, cW = vKr, vKr + 1, vKr + 4
    cO = vVr
    assert nch * P <= 32
    a(f'buffer_load_dword {vr(cM)}, {vr(vML)}, {sr(srdV,4)}, 0 offen offset:2048 sc1')
    a(f'buffer_load_dword {vr(cL)}, {vr(vML)}, {sr(srdV,4)}, 0 offen offset:2064 sc1')
    for w in range(P):
        a(f's_movk_i32 {sr(sT1)}, {w*PSTRIDE if w*PSTRIDE < 32768 else 0}' if w*PSTRIDE < 32768 else f's_mov_b32 {sr(sT1)}, {w*PSTRIDE}')
        for ch in range(nch):
            a(f'buffer_load_dword {vr(cO+ch*P+w)}, {vr(vT+1)}, {sr(srdV,4)}, {sr(sT1)} offen offset:{ch*nthr*4} sc1')
    x, y = vKr + 2, vKr + 3
    a(f's_waitcnt vmcnt({nch*P})')
    if prof == 3: stamp(4)
    def allreduce(reg, op):
        a('s_nop 1')
        a(f'{op}_dpp {vr(reg)}, {vr(reg)}, {vr(reg)} row_ror:4 row_mask:0xf bank_mask:0xf')
        a('s_nop 1')
        a(f'{op}_dpp {vr(reg)}, {vr(reg)}, {vr(reg)} row_ror:8 row_mask:0xf bank_mask:0xf')
        a(f'v_mov_b32 {vr(y)}, {vr(reg)}')
        a('s_nop 1')
        a(f'v_permlane16_swap_b32 {vr(reg)}, {vr(y)}')
        a('s_nop 1')
        a(f'{op} {vr(reg)}, {vr(reg)}, {vr(y)}')
        a(f'v_mov_b32 {vr(y)}, {vr(reg)}')
        a('s_nop 1')
        a(f'v_permlane32_swap_b32 {vr(reg)}, {vr(y)}')
        a('s_nop 1')
        a(f'{op} {vr(reg)}, {vr(reg)}, {vr(y)}')
    a(f'v_mov_b32 {vr(x)}, {vr(cM)}')
    allreduce(x, 'v_max_f32')
    a(f'v_sub_f32 {vr(cM)}, {vr(cM)}, {vr(x)}')
    a(f'v_exp_f32 {vr(cM)}, {vr(cM)}')
    a('s_nop 0')
    a(f'v_mul_f32 {vr(x)}, {vr(cM)}, {vr(cL)}')
    allreduce(x, 'v_add_f32')
    a(f'v_rcp_f32 {vr(cL)}, {vr(x)}')
    a('s_nop 0')
    a(f'v_fma_f32 {vr(x)}, -{vr(x)}, {vr(cL)}, 1.0')
    a(f'v_fmac_f32 {vr(cL)}, {vr(x)}, {vr(cL)}')
    a(f'v_mul_f32 {vr(cM)}, {vr(cM)}, {vr(cL)}')
    a('s_nop 0')
    for w in range(P):
        a(f'ds_bpermute_b32 {vr(cW+w)}, {vr(vBp)}, {vr(cM)} offset:{16*w}')
    if prof == 3:
        a('s_waitcnt lgkmcnt(0)'); stamp(3)
    a('s_waitcnt vmcnt(0) lgkmcnt(0)')
    if prof == 3: stamp(5)
    for ch in range(nch):
        a(f'v_mul_f32 {vr(x)}, {vr(cW)}, {vr(cO+ch*P)}')
        for w in range(1, P): a(f'v_fmac_f32 {vr(x)}, {vr(cW+w)}, {vr(cO+ch*P+w)}')
        a(f'v_cvt_pk_bf16_f32 {vr(x)}, {vr(x)}, {vr(x)}')
        a(f'buffer_store_short {vr(x)}, {vr(vOa+ch)}, {sr(srdK,4)}, 0 offen {opol}')
    if dbgprof:
        a('s_waitcnt vmcnt(0)')
        a(f's_cmp_lg_u32 {sr(sWave)}, 0')
        a('s_cbranch_scc1 L_end')
        stamp(7)
        a(f's_memtime {sr(sTm+2,2)}')
        a('s_waitcnt lgkmcnt(0)')
        a('s_mov_b64 exec, 1')
        a(f'v_mov_b32 {vr(vT)}, 0')
        for i in range(1, 8):
            a(f's_sub_u32 {sr(sT0)}, {sr(sSt+2*i)}, {sr(sSt)}')
            a(f'v_mov_b32 {vr(vKr+i)}, {sr(sT0)}')
        a(f's_sub_u32 {sr(sT0)}, {sr(sSt+14)}, {sr(sSt+12)}'); a(f'v_mov_b32 {vr(vKr+8)}, {sr(sT0)}')
        a(f's_sub_u32 {sr(sT0)}, {sr(sSt+14)}, {sr(sSt+6)}'); a(f'v_mov_b32 {vr(vKr+9)}, {sr(sT0)}')
        a(f's_sub_u32 {sr(sT0)}, {sr(sTm+2)}, {sr(sTm)}'); a(f'v_mov_b32 {vr(vKr+10)}, {sr(sT0)}')
        for i in range(1, 11):
            a(f'buffer_atomic_umax {vr(vKr+i)}, {vr(vT)}, {sr(srdKS,4)}, 0 offen offset:{4*i}')
    a('L_notlast:')
    if prof in (2, 3, 4):
        a('s_waitcnt vmcnt(0)')
        stamp(7)
        if prof == 2: a(f's_memtime {sr(sTm+2,2)}')
        a('s_waitcnt lgkmcnt(0)')
        if prof != 4:
            a(f's_cmp_lg_u32 {sr(sWave)}, 0')
            a('s_cbranch_scc1 L_end')
        a(f's_add_u32 {sr(srdT)}, {sr(ws_)}, 0x4000000')
        a(f's_addc_u32 {sr(srdT+1)}, {sr(ws_+1)}, 0')
        a(f's_and_b32 {sr(srdT+1)}, {sr(srdT+1)}, 0xffff')
        a(f's_mov_b32 {sr(srdT+2)}, 0x100000')
        if prof != 4:
            a(f's_lshl_b32 {sr(sT1)}, s2, 6')
        else:
            a(f's_mul_i32 {sr(sT1)}, s2, {nw}'); a(f's_add_u32 {sr(sT1)}, {sr(sT1)}, {sr(sWave)}'); a(f's_lshl_b32 {sr(sT1)}, {sr(sT1)}, 6')
        for i in range(8): a(f'v_mov_b32 {vr(vKr+i)}, {sr(sSt+2*i)}')
        a(f's_getreg_b32 {sr(sT0)}, hwreg(HW_REG_XCC_ID)')
        a(f'v_mov_b32 {vr(vKr+8)}, {sr(sT0)}')
        a(f's_getreg_b32 {sr(sT0)}, hwreg(HW_REG_HW_ID)')
        a(f'v_mov_b32 {vr(vKr+9)}, {sr(sT0)}')
        if prof == 2:
            a(f's_sub_u32 {sr(sT0)}, {sr(sTm+2)}, {sr(sTm)}')
            a(f'v_mov_b32 {vr(vKr+10)}, {sr(sT0)}')
        a(f'v_mov_b32 {vr(vT)}, 0')
        a('s_mov_b64 exec, 1')
        a(f'buffer_store_dwordx4 {vr(vKr,4)}, {vr(vT)}, {sr(srdT,4)}, {sr(sT1)} offen')
        a(f'buffer_store_dwordx4 {vr(vKr+4,4)}, {vr(vT)}, {sr(srdT,4)}, {sr(sT1)} offen offset:16')
        a(f'buffer_store_dwordx4 {vr(vKr+8,4)}, {vr(vT)}, {sr(srdT,4)}, {sr(sT1)} offen offset:32')
    if padto:
        a('s_waitcnt vmcnt(0) lgkmcnt(0)')
        a('L_pad:')
        a(f's_memrealtime {sr(sTm+2,2)}')
        a('s_waitcnt lgkmcnt(0)')
        a(f's_sub_u32 {sr(sT0)}, {sr(sTm+2)}, {sr(sTm)}')
        a(f's_cmp_lt_u32 {sr(sT0)}, {padto}')
        a('s_cbranch_scc1 L_pad')
    a('L_end:')
    a('s_endpgm')
    main = '\n'.join(out)
    acc = (nvgpr + 3) // 4 * 4
    kd = f'''.amdhsa_kernel {KN}
  .amdhsa_next_free_vgpr {nvgpr}
  .amdhsa_next_free_sgpr {S.n}
  .amdhsa_accum_offset {acc}
  .amdhsa_group_segment_fixed_size 0
  .amdhsa_kernarg_size 80
  .amdhsa_user_sgpr_count 2
  .amdhsa_user_sgpr_kernarg_segment_ptr 1
  .amdhsa_system_sgpr_workgroup_id_x 1
  .amdhsa_float_denorm_mode_32 3
.end_amdhsa_kernel
'''
    src = HEADCOMMENT + f'; @launch grid=({nwg},1,1) block=({nthr},1,1) lds={lds_bytes}\n'
    src += '.amdgcn_target "amdgcn-amd-amdhsa--gfx950"\n.text\n'
    src += f'.globl {KN}\n.p2align 8\n.type {KN},@function\n{main}\n'
    src += '.section .rodata,"a"\n.p2align 6\n' + kd
    return src, [(KN, nwg, nthr, lds_bytes)]

if __name__ == '__main__':
    import argparse
    ap = argparse.ArgumentParser()
    ap.add_argument('-o', default='out.s')
    ap.add_argument('kv', nargs='*')
    args = ap.parse_args()
    kw = {}
    for x in args.kv:
        k, v = x.split('=')
        try: v = int(v)
        except ValueError: pass
        kw[k] = v
    src, l = gen(**kw)
    open(args.o, 'w').write(src)
    print(l)
```

```python
import struct
KN = 'standalone__kv_cache_quant_int4_int2_kv_with_per_channel_or_per_token_scales__decode_kernel'

HEADCOMMENT = '''; KIVI-style quantised KV-cache decode attention (B=2, Hq=32, Hkv=8, Skv=32768, Dh=128), one fused launch.
'''

class Alloc:
    def __init__(self, start, limit):
        self.n = start; self.limit = limit
    def get(self, cnt=1, align=1):
        self.n = (self.n + align - 1) // align * align
        r = self.n; self.n += cnt
        assert self.n <= self.limit, self.n
        return r

def vr(r, n=1): return f'v{r}' if n == 1 else f'v[{r}:{r+n-1}]'
def sr(r, n=1): return f's{r}' if n == 1 else f's[{r}:{r+n-1}]'
def f32hex(x): return '0x%08x' % struct.unpack('<I', struct.pack('<f', x))[0]

PSTRIDE = 4096
QROW = 288
WLDS = 1536
CEXP = 0.08838834764831845 * 1.4426950408889634

def gen(nw=8, bar=1, pol='nt', spol='nt', nB=1, prof=0, dbgprof=0, coff=0, cshift=2, opol='', dry=0,
        nBalt=None, setprio=0, padto=0, vsplit=1, wrot=0, nlate=0, nBlate=4, midbar=0):
    P = 16
    nwg = 16 * P
    NS = 32768 // (P * nw * 16)
    nthr = nw * 64
    nch = 512 // nthr
    out = []
    a = out.append
    V = Alloc(1, 256); S = Alloc(3, 102)
    sWave = S.get()
    sKA = S.get(16, 4); sKB = S.get(4, 4)
    srdK = S.get(4, 4); srdV = S.get(4, 4); srdKS = S.get(4, 4); srdKZ = S.get(4, 4)
    srdVS = S.get(4, 4); srdVZ = S.get(4, 4); srdT = S.get(4, 4)
    sHk = S.get(); sJ = S.get()
    sOffK = S.get(); sOffS = S.get(); sOffG = S.get(); sOffK2 = S.get()
    sCnt = S.get(); sT0 = S.get(); sT1 = S.get()
    sAl = S.get(4, 4); sMask = S.get(); sEx = S.get(2, 2)
    stamps = prof in (2, 3, 4) or dbgprof
    sSt = S.get(16, 2) if stamps else None
    sTm = S.get(4, 2) if (dbgprof or padto or prof == 2) else None
    def stamp(i):
        if stamps: a(f's_memrealtime {sr(sSt+2*i,2)}')
    cnt_stamp = [0]
    def stamp_it(i, it):
        if prof == 4:
            cnt_stamp[0] += 1
            a(f's_cmp_lg_u32 {sr(sCnt)}, {NS-1-it}')
            a(f's_cbranch_scc1 L_st{cnt_stamp[0]}')
            a(f's_memrealtime {sr(sSt+2*i,2)}')
            a(f'L_st{cnt_stamp[0]}:')
    vLane = V.get()
    vKoff = V.get(); vVoff = V.get(); vSoff = V.get(); vKsOff = V.get(); vKzOff = V.get()
    vKoffB = V.get(); vLqRB = V.get(); vLzRB = V.get()
    vLqW = V.get(); vLzW = V.get(); vLqR = V.get(); vLzR = V.get()
    vM = V.get(); vL = V.get(); vAl = V.get()
    vT = V.get(8, 2)
    vQc = V.get(8, 4)
    vKs = V.get(4, 4); vKz = V.get(); vVs = V.get(2, 2); vVz = V.get(2, 2)
    vQw = V.get(4, 4); vP = V.get(2, 2); vS = V.get(4, 4); vAz = V.get(4, 4)
    vAcc = V.get(32, 4); vQB = V.get(16, 4); vPK = V.get(16, 4)
    vKr = V.get(32, 4); vVr = V.get(32, 4)
    nvgpr = V.n
    OB = nw * WLDS
    MB = OB + nw * 2048
    RS = nw * 4
    TK = MB + 12 * RS
    lds_bytes = TK + 16

    a(f'{KN}:')
    a(f's_cmp_ge_u32 s2, {nwg}')
    a('s_cbranch_scc1 L_end')
    a(f's_load_dwordx16 {sr(sKA,16)}, s[0:1], 0')
    a(f's_load_dwordx4 {sr(sKB,4)}, s[0:1], 64')
    stamp(0)
    if dbgprof or prof == 2: a(f's_memtime {sr(sTm,2)}')
    if padto: a(f's_memrealtime {sr(sTm,2)}')
    a(f'v_lshrrev_b32 {vr(vT)}, 6, v0')
    a(f'v_and_b32 {vr(vLane)}, 63, v0')
    a(f's_lshr_b32 {sr(sHk)}, s2, 4')
    a(f'v_readfirstlane_b32 {sr(sWave)}, {vr(vT)}')
    a(f's_and_b32 {sr(sJ)}, s2, {P-1}')
    n15, g4 = vT + 1, vT + 2
    a(f'v_and_b32 {vr(n15)}, 15, {vr(vLane)}')
    a(f'v_lshrrev_b32 {vr(g4)}, 4, {vr(vLane)}')
    a(f'v_lshlrev_b32 {vr(vKsOff)}, 4, {vr(n15)}')
    a(f'v_lshlrev_b32 {vr(vT+3)}, 9, {vr(n15)}')
    a(f'v_lshl_add_u32 {vr(vKoff)}, {vr(g4)}, 4, {vr(vT+3)}')
    a(f'v_lshl_add_u32 {vr(vVoff)}, {vr(g4)}, 11, {vr(vKsOff)}')
    a(f'v_lshlrev_b32 {vr(vSoff)}, 3, {vr(g4)}')
    a(f'v_lshlrev_b32 {vr(vKzOff)}, 2, {vr(vLane)}')
    a(f'v_and_b32 {vr(vT+3)}, 7, {vr(vLane)}')
    a(f'v_lshlrev_b32 {vr(vT+3)}, 9, {vr(vT+3)}')
    a(f'v_lshrrev_b32 {vr(vT+4)}, 3, {vr(vLane)}')
    a(f'v_lshl_add_u32 {vr(vKoffB)}, {vr(vT+4)}, 4, {vr(vT+3)}')
    a(f's_lshl_b32 {sr(sOffK)}, {sr(sJ)}, 20')
    if wrot == 0:
        a(f's_lshl_b32 {sr(sT0)}, {sr(sWave)}, 13')
    else:
        if wrot == 1: a(f's_add_u32 {sr(sT0)}, {sr(sWave)}, s2')
        elif wrot == 2: a(f's_lshr_b32 {sr(sT0)}, s2, 3'); a(f's_add_u32 {sr(sT0)}, {sr(sT0)}, {sr(sWave)}')
        elif wrot == 3: a(f's_lshr_b32 {sr(sT0)}, s2, 3'); a(f's_and_b32 {sr(sT0)}, {sr(sT0)}, 1'); a(f's_lshl_b32 {sr(sT0)}, {sr(sT0)}, {(nw//2).bit_length()-1}'); a(f's_xor_b32 {sr(sT0)}, {sr(sT0)}, {sr(sWave)}')
        elif wrot == 4: a(f's_and_b32 {sr(sT0)}, s2, 1'); a(f's_lshl_b32 {sr(sT0)}, {sr(sT0)}, {(nw//2).bit_length()-1}'); a(f's_xor_b32 {sr(sT0)}, {sr(sT0)}, {sr(sWave)}')
        elif wrot == 5: a(f's_lshr_b32 {sr(sT0)}, s2, 4'); a(f's_add_u32 {sr(sT0)}, {sr(sT0)}, {sr(sWave)}')
        elif wrot == 6: a(f's_lshr_b32 {sr(sT0)}, s2, 3'); a(f's_xor_b32 {sr(sT0)}, {sr(sT0)}, {sr(sWave)}')
        elif wrot == 7: a(f's_lshr_b32 {sr(sT0)}, s2, 4'); a(f's_and_b32 {sr(sT0)}, {sr(sT0)}, 1'); a(f's_lshl_b32 {sr(sT0)}, {sr(sT0)}, 2'); a(f's_xor_b32 {sr(sT0)}, {sr(sT0)}, {sr(sWave)}')
        elif wrot == 8: a(f's_lshr_b32 {sr(sT0)}, s2, 3'); a(f's_and_b32 {sr(sT0)}, {sr(sT0)}, 3'); a(f's_lshl_b32 {sr(sT0)}, {sr(sT0)}, 1'); a(f's_xor_b32 {sr(sT0)}, {sr(sT0)}, {sr(sWave)}')
        elif wrot == 9: a(f's_lshr_b32 {sr(sT0)}, s2, 3'); a(f's_xor_b32 {sr(sT0)}, {sr(sT0)}, s2'); a(f's_and_b32 {sr(sT0)}, {sr(sT0)}, 1'); a(f's_lshl_b32 {sr(sT0)}, {sr(sT0)}, 2'); a(f's_xor_b32 {sr(sT0)}, {sr(sT0)}, {sr(sWave)}')
        elif wrot == 10: a(f's_lshr_b32 {sr(sT0)}, s2, 5'); a(f's_and_b32 {sr(sT0)}, {sr(sT0)}, 1'); a(f's_lshl_b32 {sr(sT0)}, {sr(sT0)}, 2'); a(f's_xor_b32 {sr(sT0)}, {sr(sT0)}, {sr(sWave)}')
        a(f's_and_b32 {sr(sT0)}, {sr(sT0)}, {nw-1}')
        a(f's_lshl_b32 {sr(sT0)}, {sr(sT0)}, 13')
    a(f's_add_u32 {sr(sOffK)}, {sr(sOffK)}, {sr(sT0)}')
    stride = nw * 16 * 512
    def offs():
        a(f's_lshr_b32 {sr(sOffS)}, {sr(sOffK)}, 8')
        a(f's_and_b32 {sr(sOffG)}, {sr(sOffS)}, 0xffffff00')
        a(f's_add_u32 {sr(sOffK2)}, {sr(sOffK)}, 4096')
    offs()
    a('s_waitcnt lgkmcnt(0)')
    def srd(dst, ptr, off_s, off_shift, nbytes):
        a(f's_lshl_b32 {sr(sT0)}, {sr(off_s)}, {off_shift}')
        a(f's_add_u32 {sr(dst)}, {sr(ptr)}, {sr(sT0)}')
        a(f's_addc_u32 {sr(dst+1)}, {sr(ptr+1)}, 0')
        a(f's_and_b32 {sr(dst+1)}, {sr(dst+1)}, 0xffff')
        a(f's_mov_b32 {sr(dst+2)}, {nbytes}')
        a(f's_mov_b32 {sr(dst+3)}, 0x20000')
    q_, qk_, qv_, ks_, kz_, vs_, vz_, o_ = [sKA + 2 * i for i in range(8)]
    dbg_, ws_ = sKB, sKB + 2
    def ld_ks():
        a(f'buffer_load_dwordx4 {vr(vKs,4)}, {vr(vKsOff)}, {sr(srdKS,4)}, {sr(sOffG)} offen {spol}')
        a(f'buffer_load_dword {vr(vKz)}, {vr(vKzOff)}, {sr(srdKZ,4)}, {sr(sOffG)} offen {spol}')
    def ld_K(nb):
        for s in range(4):
            if s < 4 - nb:
                for i in (2*s, 2*s+1):
                    a(f'buffer_load_dwordx4 {vr(vKr+4*i,4)}, {vr(vKoff)}, {sr(srdK,4)}, {sr(sOffK)} offen offset:{i*64} {pol}')
            else:
                a(f'buffer_load_dwordx4 {vr(vKr+8*s,4)}, {vr(vKoffB)}, {sr(srdK,4)}, {sr(sOffK)} offen offset:{s*128} {pol}')
                a(f'buffer_load_dwordx4 {vr(vKr+8*s+4,4)}, {vr(vKoffB)}, {sr(srdK,4)}, {sr(sOffK2)} offen offset:{s*128} {pol}')
    def ld_vs():
        a(f'buffer_load_dwordx2 {vr(vVs,2)}, {vr(vSoff)}, {sr(srdVS,4)}, {sr(sOffS)} offen {spol}')
        a(f'buffer_load_dwordx2 {vr(vVz,2)}, {vr(vSoff)}, {sr(srdVZ,4)}, {sr(sOffS)} offen {spol}')
    def ld_V():
        for j in range(4):
            for h in range(2):
                a(f'buffer_load_dwordx4 {vr(vVr+4*(2*j+h),4)}, {vr(vVoff)}, {sr(srdV,4)}, {sr(sOffK)} offen offset:{j*512+h*256} {pol}')
    srd(srdT, q_, sHk, 10, 1024)
    a(f'v_lshl_add_u32 {vr(vT+3)}, {vr(g4)}, 8, {vr(vKsOff)}')
    a(f'buffer_load_dwordx4 {vr(vQw,4)}, {vr(vT+3)}, {sr(srdT,4)}, 0 offen')
    srd(srdKS, ks_, sHk, 16, 1 << 16)
    srd(srdKZ, kz_, sHk, 16, 1 << 16)
    srd(srdK, qk_, sHk, 24, 1 << 24)
    ld_ks(); ld_K(nB)
    srd(srdVS, vs_, sHk, 16, 1 << 16)
    srd(srdVZ, vz_, sHk, 16, 1 << 16)
    srd(srdV, qv_, sHk, 24, 1 << 24)
    ld_vs(); ld_V()
    a(f's_mul_i32 {sr(sT0)}, {sr(sWave)}, {WLDS}')
    a(f'v_mul_u32_u24 {vr(vT+3)}, {QROW}, {vr(g4)}')
    a(f'v_add3_u32 {vr(vLqW)}, {vr(vT+3)}, {vr(vKsOff)}, {sr(sT0)}')
    a(f'v_add_u32 {vr(vLzW)}, {sr(sT0)}, {vr(vKzOff)}')
    a(f'v_add_u32 {vr(vLzW)}, {4*QROW}, {vr(vLzW)}')
    a(f'v_and_b32 {vr(vT+3)}, 3, {vr(vLane)}')
    a(f'v_mul_u32_u24 {vr(vT+3)}, {QROW}, {vr(vT+3)}')
    a(f'v_add3_u32 {vr(vLqR)}, {vr(vT+3)}, {vr(vSoff)}, {sr(sT0)}')
    a(f'v_add_u32 {vr(vLzR)}, {sr(sT0)}, {vr(vSoff)}')
    a(f'v_add_u32 {vr(vLzR)}, {4*QROW}, {vr(vLzR)}')
    a(f'v_add_u32 {vr(vLqRB)}, {vr(vLqR)}, {vr(vSoff)}')
    a(f'v_add_u32 {vr(vLzRB)}, {vr(vLzR)}, {vr(vSoff)}')
    a(f's_mov_b32 {sr(sMask)}, 0xffff0000')
    a(f'v_mov_b32 {vr(vM)}, 0xff800000')
    a(f'v_mov_b32 {vr(vL)}, 0')
    for i in range(4): a(f'v_mov_b32 {vr(vAz+i)}, 0')
    for i in range(32): a(f'v_mov_b32 {vr(vAcc+i)}, 0')
    a(f's_mov_b32 {sr(sT1)}, {f32hex(CEXP)}')
    a(f's_mov_b32 {sr(sCnt)}, {NS-1}')
    if setprio == 1:
        a(f's_cmp_lt_u32 {sr(sWave)}, {nw//2}'); a('s_cbranch_scc1 L_prio'); a('s_setprio 1'); a('L_prio:')
    elif setprio == 2:
        a(f's_bitcmp0_b32 {sr(sWave)}, 0'); a('s_cbranch_scc1 L_prio'); a('s_setprio 1'); a('L_prio:')
    elif setprio == 3:
        for p in (1, 2, 3):
            a(f's_cmp_lt_u32 {sr(sWave)}, {p*nw//4}'); a('s_cbranch_scc1 L_prio'); a(f's_setprio {p}')
        a('L_prio:')
    a('s_waitcnt vmcnt(20)')
    stamp(1)
    for i in range(4):
        a(f'v_lshlrev_b32 {vr(vQc+2*i)}, 16, {vr(vQw+i)}')
        a(f'v_and_b32 {vr(vQc+2*i+1)}, {sr(sMask)}, {vr(vQw+i)}')
    for i in range(8):
        a(f'v_mul_f32 {vr(vQc+i)}, {sr(sT1)}, {vr(vQc+i)}')

    def step(pf, tag, nb_cur, nb_next):
        a('s_waitcnt vmcnt(18)')
        for i in range(4):
            a(f'v_lshlrev_b32 {vr(vT)}, 16, {vr(vKs+i)}')
            a(f'v_and_b32 {vr(vT+1)}, {sr(sMask)}, {vr(vKs+i)}')
            a(f'v_mul_f32 {vr(vT)}, {vr(vT)}, {vr(vQc+2*i)}')
            a(f'v_mul_f32 {vr(vT+1)}, {vr(vT+1)}, {vr(vQc+2*i+1)}')
            a(f'v_cvt_pk_bf16_f32 {vr(vQw+i)}, {vr(vT)}, {vr(vT+1)}')
        a(f'v_xor_b32 {vr(vT+2)}, 0x80008000, {vr(vKz)}')
        a(f'ds_write_b128 {vr(vLqW)}, {vr(vQw,4)}')
        a(f'ds_write_b32 {vr(vLzW)}, {vr(vT+2)}')
        if pf:
            a(f's_add_u32 {sr(sOffK)}, {sr(sOffK)}, {stride}')
            offs()
            ld_ks()
        for s in range(4):
            if s < 4 - nb_cur: a(f'ds_read2_b64 {vr(vQB+4*s,4)}, {vr(vLqR)} offset0:{8*s} offset1:{8*s+4}')
            else: a(f'ds_read_b128 {vr(vQB+4*s,4)}, {vr(vLqRB)} offset:{64*s}')
        for s in range(4):
            if s < 4 - nb_cur: a(f'ds_read2_b64 {vr(vPK+4*s,4)}, {vr(vLzR)} offset0:{8*s} offset1:{8*s+4}')
            else: a(f'ds_read_b128 {vr(vPK+4*s,4)}, {vr(vLzRB)} offset:{64*s}')
        a('s_waitcnt lgkmcnt(0)')
        for s in range(4):
            c = '0' if s == 0 else vr(vS, 4)
            a(f'v_mfma_f32_16x16x32_bf16 {vr(vS,4)}, {vr(vPK+4*s,4)}, {vr(vQB+4*s,4)}, {c}')
        if pf and midbar == 2: a('s_barrier')
        a(f's_waitcnt vmcnt({12 if pf else 10})')
        if pf: stamp_it(2, 0); stamp_it(4, 1)
        for i in range(8):
            for c in range(4):
                a(f'v_cvt_f32_i32 {vr(vKr+4*i+c)}, {vr(vKr+4*i+c)}')
            d = vPK + 4 * (i // 2) + 2 * (i % 2)
            a(f'v_cvt_pk_bf16_f32 {vr(d)}, {vr(vKr+4*i)}, {vr(vKr+4*i+1)}')
            a(f'v_cvt_pk_bf16_f32 {vr(d+1)}, {vr(vKr+4*i+2)}, {vr(vKr+4*i+3)}')
        for s in range(4 - nb_cur, 4):
            a(f'v_mov_b32 {vr(vT)}, {vr(vPK+4*s)}')
            a(f'v_mov_b32 {vr(vT+1)}, {vr(vPK+4*s+1)}')
            a('s_nop 0')
            a(f'v_mov_b32_dpp {vr(vPK+4*s)}, {vr(vPK+4*s+2)} row_ror:8 row_mask:0xf bank_mask:0xc')
            a(f'v_mov_b32_dpp {vr(vPK+4*s+1)}, {vr(vPK+4*s+3)} row_ror:8 row_mask:0xf bank_mask:0xc')
            a(f'v_mov_b32_dpp {vr(vPK+4*s+2)}, {vr(vT)} row_ror:8 row_mask:0xf bank_mask:0x3')
            a(f'v_mov_b32_dpp {vr(vPK+4*s+3)}, {vr(vT+1)} row_ror:8 row_mask:0xf bank_mask:0x3')
        if pf:
            ld_K(nb_next)
            if midbar == 1: a('s_barrier')
        else: a('s_nop 1')
        for s in range(4):
            a(f'v_mfma_f32_16x16x32_bf16 {vr(vS,4)}, {vr(vPK+4*s,4)}, {vr(vQB+4*s,4)}, {vr(vS,4)}')
        a(f's_waitcnt vmcnt({18 if pf else 8})')
        f = vT + 4
        a(f'v_lshlrev_b32 {vr(f)}, 16, {vr(vVs)}')
        a(f'v_and_b32 {vr(f+1)}, {sr(sMask)}, {vr(vVs)}')
        a(f'v_lshlrev_b32 {vr(f+2)}, 16, {vr(vVs+1)}')
        a(f'v_and_b32 {vr(f+3)}, {sr(sMask)}, {vr(vVs+1)}')
        a('s_nop 4')
        a(f'v_max3_f32 {vr(vT)}, {vr(vS)}, {vr(vS+1)}, {vr(vS+2)}')
        a(f'v_max_f32 {vr(vT)}, {vr(vT)}, {vr(vS+3)}')
        a(f'v_mov_b32 {vr(vT+1)}, {vr(vT)}')
        a('s_nop 1')
        a(f'v_permlane16_swap_b32 {vr(vT)}, {vr(vT+1)}')
        a(f'v_max_f32 {vr(vT)}, {vr(vT)}, {vr(vT+1)}')
        a(f'v_mov_b32 {vr(vT+1)}, {vr(vT)}')
        a('s_nop 1')
        a(f'v_permlane32_swap_b32 {vr(vT)}, {vr(vT+1)}')
        a(f'v_max3_f32 {vr(vT)}, {vr(vT)}, {vr(vT+1)}, {vr(vM)}')
        a(f'v_sub_f32 {vr(vAl)}, {vr(vM)}, {vr(vT)}')
        a(f'v_cmp_gt_f32 vcc, {vr(vT)}, {vr(vM)}')
        a(f'v_mov_b32 {vr(vM)}, {vr(vT)}')
        a(f'v_exp_f32 {vr(vAl)}, {vr(vAl)}')
        for r in range(4): a(f'v_sub_f32 {vr(vS+r)}, {vr(vS+r)}, {vr(vM)}')
        for r in range(4): a(f'v_exp_f32 {vr(vS+r)}, {vr(vS+r)}')
        a(f's_cbranch_vccz L_nors_{tag}')
        for r in range(4): a(f'v_readlane_b32 {sr(sAl+r)}, {vr(vAl)}, {r}')
        a('s_nop 1')
        for i in range(8):
            for r in range(4):
                a(f'v_mul_f32 {vr(vAcc+4*i+r)}, {sr(sAl+r)}, {vr(vAcc+4*i+r)}')
        for r in range(4): a(f'v_mul_f32 {vr(vAz+r)}, {sr(sAl+r)}, {vr(vAz+r)}')
        a(f'L_nors_{tag}:')
        a(f'v_add_f32 {vr(vT)}, {vr(vS)}, {vr(vS+1)}')
        a(f'v_add_f32 {vr(vT+1)}, {vr(vS+2)}, {vr(vS+3)}')
        a(f'v_fma_f32 {vr(vL)}, {vr(vL)}, {vr(vAl)}, {vr(vT)}')
        for r in range(4): a(f'v_mul_f32 {vr(vS+r)}, {vr(vS+r)}, {vr(f+r)}')
        a(f'v_add_f32 {vr(vL)}, {vr(vL)}, {vr(vT+1)}')
        a(f'v_cvt_pk_bf16_f32 {vr(vP)}, {vr(vS)}, {vr(vS+1)}')
        a(f'v_cvt_pk_bf16_f32 {vr(vP+1)}, {vr(vS+2)}, {vr(vS+3)}')
        a('s_nop 1')
        a(f'v_mfma_f32_16x16x16_bf16 {vr(vAz,4)}, {vr(vP,2)}, {vr(vVz,2)}, {vr(vAz,4)}')
        if not pf: early_publish()
        R = lambda j, h, c: vVr + 4 * (2 * j + h) + c
        def vhalf(jp):
            for h in range(2):
                for c in range(4):
                    a(f'v_cvt_f32_i32 {vr(R(2*jp,h,c))}, {vr(R(2*jp,h,c))}')
                    a(f'v_cvt_f32_i32 {vr(R(2*jp+1,h,c))}, {vr(R(2*jp+1,h,c))}')
                    a(f'v_cvt_pk_bf16_f32 {vr(vPK+2*(4*h+c)+jp)}, {vr(R(2*jp,h,c))}, {vr(R(2*jp+1,h,c))}')
        base = 10 if pf else 0
        if pf and midbar == 3: a('s_barrier')
        if vsplit:
            a(f's_waitcnt vmcnt({base+4})'); vhalf(0)
            a(f's_waitcnt vmcnt({base})'); vhalf(1)
        else:
            a(f's_waitcnt vmcnt({base})'); vhalf(0); vhalf(1)
        if pf:
            ld_vs(); ld_V()
            stamp_it(3, 0); stamp_it(5, 1); stamp_it(6, 7)
        else: a('s_nop 1')
        for i in range(8):
            a(f'v_mfma_f32_16x16x16_bf16 {vr(vAcc+4*i,4)}, {vr(vP,2)}, {vr(vPK+2*i,2)}, {vr(vAcc+4*i,4)}')

    vF = vKr
    vLw = vKr + 8
    vZw = vKr + 16
    vMx, vLs, vZs = vKr + 24, vKr + 25, vKr + 26
    vO = vKr + 16
    def early_publish():
        a(f'v_mov_b32 {vr(vT+1)}, {vr(vL)}')
        a('s_nop 1')
        a(f'v_permlane16_swap_b32 {vr(vL)}, {vr(vT+1)}')
        a(f'v_add_f32 {vr(vL)}, {vr(vL)}, {vr(vT+1)}')
        a(f'v_mov_b32 {vr(vT+1)}, {vr(vL)}')
        a('s_nop 1')
        a(f'v_permlane32_swap_b32 {vr(vL)}, {vr(vT+1)}')
        a(f'v_add_f32 {vr(vL)}, {vr(vL)}, {vr(vT+1)}')
        a(f's_lshl_b32 {sr(sT1)}, {sr(sWave)}, 2')
        a(f's_add_u32 {sr(sT1)}, {sr(sT1)}, {MB}')
        a(f'v_mul_u32_u24 {vr(vT+2)}, {RS}, {vr(vLane)}')
        a(f'v_add_u32 {vr(vT+2)}, {sr(sT1)}, {vr(vT+2)}')
        a('s_mov_b64 exec, 0xf')
        a(f'ds_write_b32 {vr(vT+2)}, {vr(vM)}')
        a(f'ds_write_b32 {vr(vT+2)}, {vr(vL)} offset:{4*RS}')
        a('s_mov_b64 exec, 1')
        for r in range(4):
            a(f'ds_write_b32 {vr(vT+2)}, {vr(vAz+r)} offset:{8*RS+r*RS}')
        a('s_mov_b64 exec, -1')
        a(f'v_and_b32 {vr(vT)}, 3, v0')
        a(f'v_mul_u32_u24 {vr(vT)}, {RS}, {vr(vT)}')
        a(f'v_add_u32 {vr(vT)}, {MB}, {vr(vT)}')
        a('s_waitcnt lgkmcnt(0)')
        a('s_barrier')
        for k in range(nw // 4):
            a(f'ds_read_b128 {vr(vF+4*k,4)}, {vr(vT)} offset:{16*k}')
            a(f'ds_read_b128 {vr(vLw+4*k,4)}, {vr(vT)} offset:{4*RS+16*k}')
            a(f'ds_read_b128 {vr(vZw+4*k,4)}, {vr(vT)} offset:{8*RS+16*k}')
        a('s_waitcnt lgkmcnt(0)')
        a(f'v_max3_f32 {vr(vMx)}, {vr(vF)}, {vr(vF+1)}, {vr(vF+2)}')
        for w in range(3, nw): a(f'v_max_f32 {vr(vMx)}, {vr(vMx)}, {vr(vF+w)}')
        for w in range(nw): a(f'v_sub_f32 {vr(vF+w)}, {vr(vF+w)}, {vr(vMx)}')
        for w in range(nw): a(f'v_exp_f32 {vr(vF+w)}, {vr(vF+w)}')
        a('s_nop 0')
        a(f'v_mul_f32 {vr(vLs)}, {vr(vF)}, {vr(vLw)}')
        a(f'v_mul_f32 {vr(vZs)}, {vr(vF)}, {vr(vZw)}')
        for w in range(1, nw):
            a(f'v_fmac_f32 {vr(vLs)}, {vr(vF+w)}, {vr(vLw+w)}')
            a(f'v_fmac_f32 {vr(vZs)}, {vr(vF+w)}, {vr(vZw+w)}')

    if nBalt is None and nlate == 0:
        a('L_loop:')
        step(1, 'loop', nB, nB)
        if bar == 1: a('s_barrier')
        elif bar > 1:
            a(f's_and_b32 {sr(sT0)}, {sr(sCnt)}, {bar-1}')
            a('s_cbranch_scc1 L_nobar')
            a('s_barrier')
            a('L_nobar:')
        a(f's_sub_u32 {sr(sCnt)}, {sr(sCnt)}, 1')
        a(f's_cmp_lg_u32 {sr(sCnt)}, 0')
        a('s_cbranch_scc1 L_loop')
        nb_last = nB
    elif nlate:
        a(f's_mov_b32 {sr(sCnt)}, {NS - nlate - 1}')
        a('L_loop:')
        step(1, 'loop', nB, nB)
        if bar: a('s_barrier')
        a(f's_sub_u32 {sr(sCnt)}, {sr(sCnt)}, 1')
        a(f's_cmp_lg_u32 {sr(sCnt)}, 0')
        a('s_cbranch_scc1 L_loop')
        step(1, 'trans', nB, nBlate)
        if bar: a('s_barrier')
        if nlate > 1:
            a(f's_mov_b32 {sr(sCnt)}, {nlate - 1}')
            a('L_loop2:')
            step(1, 'loop2', nBlate, nBlate)
            if bar: a('s_barrier')
            a(f's_sub_u32 {sr(sCnt)}, {sr(sCnt)}, 1')
            a(f's_cmp_lg_u32 {sr(sCnt)}, 0')
            a('s_cbranch_scc1 L_loop2')
        nb_last = nBlate
    else:
        assert NS % 2 == 0
        a(f's_mov_b32 {sr(sCnt)}, {NS // 2 - 1}')
        a('L_loop:')
        step(1, 'loopa', nB, nBalt)
        if bar: a('s_barrier')
        step(1, 'loopb', nBalt, nB)
        if bar: a('s_barrier')
        a(f's_sub_u32 {sr(sCnt)}, {sr(sCnt)}, 1')
        a(f's_cmp_lg_u32 {sr(sCnt)}, 0')
        a('s_cbranch_scc1 L_loop')
        step(1, 'prelast', nB, nBalt)
        if bar: a('s_barrier')
        nb_last = nBalt
    if prof != 4: stamp(2)
    step(0, 'last', nb_last, nb_last)
    if prof not in (3, 4): stamp(3)
    a(f's_lshl_b32 {sr(sT0)}, {sr(sWave)}, 11')
    a(f's_add_u32 {sr(sT0)}, {sr(sT0)}, {OB}')
    a(f'v_add_u32 {vr(vT)}, {sr(sT0)}, {vr(vKsOff)}')
    a(f'v_lshlrev_b32 {vr(vT+1)}, 2, v0')
    a(f'v_add_u32 {vr(vT+2)}, {OB}, {vr(vT+1)}')
    a('s_mov_b64 exec, 0xffff')
    a('s_nop 1')
    for i in range(8):
        a(f'ds_write_b128 {vr(vT)}, {vr(vAcc+4*i,4)} offset:{i*256}')
    a('s_mov_b64 exec, -1')
    a(f's_mul_i32 {sr(sT1)}, s2, {PSTRIDE}')
    a(f's_add_u32 {sr(srdT)}, {sr(ws_)}, {sr(sT1)}')
    a(f's_addc_u32 {sr(srdT+1)}, {sr(ws_+1)}, 0')
    a(f's_and_b32 {sr(srdT+1)}, {sr(srdT+1)}, 0xffff')
    a(f's_mov_b32 {sr(srdT+2)}, {PSTRIDE}')
    a(f's_mov_b32 {sr(srdT+3)}, 0x20000')
    a('s_waitcnt lgkmcnt(0)')
    a('s_barrier')
    vOw = vVr
    vRes = vVr + 16
    for ch in range(nch):
        for w in range(nw):
            a(f'ds_read_b32 {vr(vOw+ch*nw+w)}, {vr(vT+2)} offset:{w*2048+ch*nthr*4}')
    for ch in range(nch):
        a(f's_waitcnt lgkmcnt({(nch-1-ch)*nw})')
        a(f'v_fma_f32 {vr(vRes+ch)}, {vr(vF)}, {vr(vOw+ch*nw)}, -{vr(vZs)}')
        for w in range(1, nw):
            a(f'v_fmac_f32 {vr(vRes+ch)}, {vr(vF+w)}, {vr(vOw+ch*nw+w)}')
    if prof not in (3, 4): stamp(4)
    for ch in range(nch):
        a(f'buffer_store_dword {vr(vRes+ch)}, {vr(vT+1)}, {sr(srdT,4)}, 0 offen offset:{ch*nthr*4} sc1')
    a('v_cmp_gt_u32 vcc, 4, v0')
    a(f's_and_saveexec_b64 {sr(sEx,2)}, vcc')
    a('s_cbranch_execz L_nost')
    a(f'buffer_store_dword {vr(vMx)}, {vr(vT+1)}, {sr(srdT,4)}, 0 offen offset:2048 sc1')
    a(f'buffer_store_dword {vr(vLs)}, {vr(vT+1)}, {sr(srdT,4)}, 0 offen offset:2064 sc1')
    a('L_nost:')
    a(f's_mov_b64 exec, {sr(sEx,2)}')
    a(f's_mov_b32 {sr(srdKS)}, {sr(dbg_)}')
    a(f's_and_b32 {sr(srdKS+1)}, {sr(dbg_+1)}, 0xffff')
    a(f's_mov_b32 {sr(srdKS+2)}, 256')
    a(f's_lshl_b32 {sr(sOffG)}, {sr(sHk)}, {cshift}')
    if coff: a(f's_add_u32 {sr(sOffG)}, {sr(sOffG)}, {coff}')
    a(f's_mul_i32 {sr(sT1)}, {sr(sHk)}, {P*PSTRIDE}')
    a(f's_add_u32 {sr(srdV)}, {sr(ws_)}, {sr(sT1)}')
    a(f's_addc_u32 {sr(srdV+1)}, {sr(ws_+1)}, 0')
    a(f's_and_b32 {sr(srdV+1)}, {sr(srdV+1)}, 0xffff')
    a(f's_mov_b32 {sr(srdV+2)}, {P*PSTRIDE}')
    a(f's_lshl_b32 {sr(sT1)}, {sr(sHk)}, 10')
    a(f's_add_u32 {sr(srdK)}, {sr(o_)}, {sr(sT1)}')
    a(f's_addc_u32 {sr(srdK+1)}, {sr(o_+1)}, 0')
    a(f's_and_b32 {sr(srdK+1)}, {sr(srdK+1)}, 0xffff')
    a(f's_mov_b32 {sr(srdK+2)}, 1024')
    vML = vT + 2
    vBp = vT + 3
    vOa = vT + 4
    a(f'v_and_b32 {vr(vBp)}, 3, {vr(vLane)}')
    a(f'v_lshlrev_b32 {vr(vBp)}, 6, {vr(vBp)}')
    a(f'v_and_b32 {vr(vML)}, 15, {vr(vLane)}')
    a(f'v_lshlrev_b32 {vr(vML)}, 12, {vr(vML)}')
    a(f'v_lshrrev_b32 {vr(vT+6)}, 4, {vr(vLane)}')
    a(f'v_lshl_add_u32 {vr(vML)}, {vr(vT+6)}, 2, {vr(vML)}')
    for ch in range(nch):
        e, x, y = vT + 6, vOa + ch, vT + 7
        a(f'v_add_u32 {vr(e)}, {ch*nthr}, v0')
        a(f'v_and_b32 {vr(x)}, 3, {vr(e)}'); a(f'v_lshlrev_b32 {vr(x)}, 7, {vr(x)}')
        a(f'v_lshrrev_b32 {vr(y)}, 8, {vr(e)}'); a(f'v_lshl_add_u32 {vr(x)}, {vr(y)}, 6, {vr(x)}')
        a(f'v_bfe_u32 {vr(y)}, {vr(e)}, 2, 4'); a(f'v_lshl_add_u32 {vr(x)}, {vr(y)}, 2, {vr(x)}')
        a(f'v_bfe_u32 {vr(y)}, {vr(e)}, 6, 2'); a(f'v_add_u32 {vr(x)}, {vr(x)}, {vr(y)}')
        a(f'v_lshlrev_b32 {vr(x)}, 1, {vr(x)}')
    a(f'v_mov_b32 {vr(vT+6)}, {TK}')
    a('s_waitcnt vmcnt(0)')
    if prof not in (3, 4): stamp(5)
    a('s_barrier')
    a(f's_cmp_lg_u32 {sr(sWave)}, 0')
    a('s_cbranch_scc1 L_noat')
    a('s_mov_b64 exec, 1')
    a(f'v_mov_b32 {vr(vT+7)}, 1')
    a(f'v_mov_b32 {vr(vT)}, 0')
    a(f'buffer_atomic_add {vr(vT+7)}, {vr(vT)}, {sr(srdKS,4)}, {sr(sOffG)} offen sc0')
    a('s_waitcnt vmcnt(0)')
    a(f'ds_write_b32 {vr(vT+6)}, {vr(vT+7)}')
    a('s_mov_b64 exec, -1')
    a('s_waitcnt lgkmcnt(0)')
    a('L_noat:')
    a('s_barrier')
    a(f'ds_read_b32 {vr(vT+7)}, {vr(vT+6)}')
    a('s_waitcnt lgkmcnt(0)')
    a(f'v_readfirstlane_b32 {sr(sT0)}, {vr(vT+7)}')
    a('s_nop 3')
    if prof != 4: stamp(6)
    a(f's_cmp_lg_u32 {sr(sT0)}, {P-1}')
    a('s_cbranch_scc1 L_notlast')
    cM, cL, cW = vKr, vKr + 1, vKr + 4
    cO = vVr
    assert nch * P <= 32
    a(f'buffer_load_dword {vr(cM)}, {vr(vML)}, {sr(srdV,4)}, 0 offen offset:2048 sc1')
    a(f'buffer_load_dword {vr(cL)}, {vr(vML)}, {sr(srdV,4)}, 0 offen offset:2064 sc1')
    for w in range(P):
        a(f's_movk_i32 {sr(sT1)}, {w*PSTRIDE if w*PSTRIDE < 32768 else 0}' if w*PSTRIDE < 32768 else f's_mov_b32 {sr(sT1)}, {w*PSTRIDE}')
        for ch in range(nch):
            a(f'buffer_load_dword {vr(cO+ch*P+w)}, {vr(vT+1)}, {sr(srdV,4)}, {sr(sT1)} offen offset:{ch*nthr*4} sc1')
    x, y = vKr + 2, vKr + 3
    a(f's_waitcnt vmcnt({nch*P})')
    if prof == 3: stamp(4)
    def allreduce(reg, op):
        for k in (1, 2, 4, 8):
            a('s_nop 1')
            a(f'{op}_dpp {vr(reg)}, {vr(reg)}, {vr(reg)} row_ror:{k} row_mask:0xf bank_mask:0xf')
    a(f'v_mov_b32 {vr(x)}, {vr(cM)}')
    allreduce(x, 'v_max_f32')
    a(f'v_sub_f32 {vr(cM)}, {vr(cM)}, {vr(x)}')
    a(f'v_exp_f32 {vr(cM)}, {vr(cM)}')
    a('s_nop 0')
    a(f'v_mul_f32 {vr(x)}, {vr(cM)}, {vr(cL)}')
    allreduce(x, 'v_add_f32')
    a(f'v_rcp_f32 {vr(cL)}, {vr(x)}')
    a('s_nop 0')
    a(f'v_mul_f32 {vr(cM)}, {vr(cM)}, {vr(cL)}')
    for w in range(P):
        a(f'ds_bpermute_b32 {vr(cW+w)}, {vr(vBp)}, {vr(cM)} offset:{4*w}')
    if prof == 3:
        a('s_waitcnt lgkmcnt(0)'); stamp(3)
    a('s_waitcnt vmcnt(0) lgkmcnt(0)')
    if prof == 3: stamp(5)
    for ch in range(nch):
        a(f'v_mul_f32 {vr(x)}, {vr(cW)}, {vr(cO+ch*P)}')
        for w in range(1, P): a(f'v_fmac_f32 {vr(x)}, {vr(cW+w)}, {vr(cO+ch*P+w)}')
        a(f'v_cvt_pk_bf16_f32 {vr(x)}, {vr(x)}, {vr(x)}')
        a(f'buffer_store_short {vr(x)}, {vr(vOa+ch)}, {sr(srdK,4)}, 0 offen {opol}')
    if dbgprof:
        a('s_waitcnt vmcnt(0)')
        a(f's_cmp_lg_u32 {sr(sWave)}, 0')
        a('s_cbranch_scc1 L_end')
        stamp(7)
        a(f's_memtime {sr(sTm+2,2)}')
        a('s_waitcnt lgkmcnt(0)')
        a('s_mov_b64 exec, 1')
        a(f'v_mov_b32 {vr(vT)}, 0')
        for i in range(1, 8):
            a(f's_sub_u32 {sr(sT0)}, {sr(sSt+2*i)}, {sr(sSt)}')
            a(f'v_mov_b32 {vr(vKr+i)}, {sr(sT0)}')
        a(f's_sub_u32 {sr(sT0)}, {sr(sSt+14)}, {sr(sSt+12)}'); a(f'v_mov_b32 {vr(vKr+8)}, {sr(sT0)}')
        a(f's_sub_u32 {sr(sT0)}, {sr(sSt+14)}, {sr(sSt+6)}'); a(f'v_mov_b32 {vr(vKr+9)}, {sr(sT0)}')
        a(f's_sub_u32 {sr(sT0)}, {sr(sTm+2)}, {sr(sTm)}'); a(f'v_mov_b32 {vr(vKr+10)}, {sr(sT0)}')
        for i in range(1, 11):
            a(f'buffer_atomic_umax {vr(vKr+i)}, {vr(vT)}, {sr(srdKS,4)}, 0 offen offset:{4*i}')
    a('L_notlast:')
    if prof in (2, 3, 4):
        a('s_waitcnt vmcnt(0)')
        stamp(7)
        if prof == 2: a(f's_memtime {sr(sTm+2,2)}')
        a('s_waitcnt lgkmcnt(0)')
        if prof != 4:
            a(f's_cmp_lg_u32 {sr(sWave)}, 0')
            a('s_cbranch_scc1 L_end')
        a(f's_add_u32 {sr(srdT)}, {sr(ws_)}, 0x4000000')
        a(f's_addc_u32 {sr(srdT+1)}, {sr(ws_+1)}, 0')
        a(f's_and_b32 {sr(srdT+1)}, {sr(srdT+1)}, 0xffff')
        a(f's_mov_b32 {sr(srdT+2)}, 0x100000')
        if prof != 4:
            a(f's_lshl_b32 {sr(sT1)}, s2, 6')
        else:
            a(f's_mul_i32 {sr(sT1)}, s2, {nw}'); a(f's_add_u32 {sr(sT1)}, {sr(sT1)}, {sr(sWave)}'); a(f's_lshl_b32 {sr(sT1)}, {sr(sT1)}, 6')
        for i in range(8): a(f'v_mov_b32 {vr(vKr+i)}, {sr(sSt+2*i)}')
        a(f's_getreg_b32 {sr(sT0)}, hwreg(HW_REG_XCC_ID)')
        a(f'v_mov_b32 {vr(vKr+8)}, {sr(sT0)}')
        a(f's_getreg_b32 {sr(sT0)}, hwreg(HW_REG_HW_ID)')
        a(f'v_mov_b32 {vr(vKr+9)}, {sr(sT0)}')
        if prof == 2:
            a(f's_sub_u32 {sr(sT0)}, {sr(sTm+2)}, {sr(sTm)}')
            a(f'v_mov_b32 {vr(vKr+10)}, {sr(sT0)}')
        a(f'v_mov_b32 {vr(vT)}, 0')
        a('s_mov_b64 exec, 1')
        a(f'buffer_store_dwordx4 {vr(vKr,4)}, {vr(vT)}, {sr(srdT,4)}, {sr(sT1)} offen')
        a(f'buffer_store_dwordx4 {vr(vKr+4,4)}, {vr(vT)}, {sr(srdT,4)}, {sr(sT1)} offen offset:16')
        a(f'buffer_store_dwordx4 {vr(vKr+8,4)}, {vr(vT)}, {sr(srdT,4)}, {sr(sT1)} offen offset:32')
    if padto:
        a('s_waitcnt vmcnt(0) lgkmcnt(0)')
        a('L_pad:')
        a(f's_memrealtime {sr(sTm+2,2)}')
        a('s_waitcnt lgkmcnt(0)')
        a(f's_sub_u32 {sr(sT0)}, {sr(sTm+2)}, {sr(sTm)}')
        a(f's_cmp_lt_u32 {sr(sT0)}, {padto}')
        a('s_cbranch_scc1 L_pad')
    a('L_end:')
    a('s_endpgm')
    main = '\n'.join(out)
    acc = (nvgpr + 3) // 4 * 4
    kd = f'''.amdhsa_kernel {KN}
  .amdhsa_next_free_vgpr {nvgpr}
  .amdhsa_next_free_sgpr {S.n}
  .amdhsa_accum_offset {acc}
  .amdhsa_group_segment_fixed_size 0
  .amdhsa_kernarg_size 80
  .amdhsa_user_sgpr_count 2
  .amdhsa_user_sgpr_kernarg_segment_ptr 1
  .amdhsa_system_sgpr_workgroup_id_x 1
  .amdhsa_float_denorm_mode_32 3
.end_amdhsa_kernel
'''
    src = HEADCOMMENT + f'; @launch grid=({nwg},1,1) block=({nthr},1,1) lds={lds_bytes}\n'
    src += '.amdgcn_target "amdgcn-amd-amdhsa--gfx950"\n.text\n'
    src += f'.globl {KN}\n.p2align 8\n.type {KN},@function\n{main}\n'
    src += '.section .rodata,"a"\n.p2align 6\n' + kd
    return src, [(KN, nwg, nthr, lds_bytes)]

if __name__ == '__main__':
    import argparse
    ap = argparse.ArgumentParser()
    ap.add_argument('-o', default='out.s')
    ap.add_argument('kv', nargs='*')
    args = ap.parse_args()
    kw = {}
    for x in args.kv:
        k, v = x.split('=')
        try: v = int(v)
        except ValueError: pass
        kw[k] = v
    src, l = gen(**kw)
    open(args.o, 'w').write(src)
    print(l)
```

```python
import struct
KN = 'standalone__kv_cache_quant_int4_int2_kv_with_per_channel_or_per_token_scales__decode_kernel'

HEADCOMMENT = '''; KIVI-style quantised KV-cache decode attention (B=2, Hq=32, Hkv=8, Skv=32768, Dh=128), one fused launch.
; Kernarg layout for this problem (80 bytes, ptrs only, base s[0:1]):
'''

class Alloc:
    def __init__(self, start, limit):
        self.n = start; self.limit = limit
    def get(self, cnt=1, align=1):
        self.n = (self.n + align - 1) // align * align
        r = self.n; self.n += cnt
        assert self.n <= self.limit, self.n
        return r

def vr(r, n=1): return f'v{r}' if n == 1 else f'v[{r}:{r+n-1}]'
def sr(r, n=1): return f's{r}' if n == 1 else f's[{r}:{r+n-1}]'
def f32hex(x): return '0x%08x' % struct.unpack('<I', struct.pack('<f', x))[0]

PSTRIDE = 4096
QROW = 288
WLDS = 1536
CEXP = 0.08838834764831845 * 1.4426950408889634

def gen(nw=8, bar=1, pol='nt', spol='nt', nB=1, prof=0, dbgprof=0, coff=0, cshift=2, opol='', dry=0,
        nBalt=None, setprio=0, padto=0, vsplit=1, wrot=0, nlate=0, nBlate=4, midbar=0, perm='tr', rot=0):
    P = 16
    nwg = 16 * P
    NS = 32768 // (P * nw * 16)
    nthr = nw * 64
    nch = 512 // nthr
    out = []
    a = out.append
    V = Alloc(1, 256); S = Alloc(3, 102)
    sWave = S.get()
    sKA = S.get(16, 4); sKB = S.get(4, 4)
    srdK = S.get(4, 4); srdV = S.get(4, 4); srdKS = S.get(4, 4); srdKZ = S.get(4, 4)
    srdVS = S.get(4, 4); srdVZ = S.get(4, 4); srdT = S.get(4, 4)
    sHk = S.get(); sJ = S.get()
    sOffK = S.get(); sOffS = S.get(); sOffG = S.get(); sOffK2 = S.get()
    sCnt = S.get(); sT0 = S.get(); sT1 = S.get()
    sBase = S.get(); sPh = S.get()
    sAl = S.get(4, 4); sMask = S.get(); sEx = S.get(2, 2)
    stamps = prof in (2, 3, 4) or dbgprof
    sSt = S.get(16, 2) if stamps else None
    sTm = S.get(4, 2) if (dbgprof or padto or prof == 2) else None
    def stamp(i):
        if stamps: a(f's_memrealtime {sr(sSt+2*i,2)}')
    cnt_stamp = [0]
    def stamp_it(i, it):
        if prof == 4:
            cnt_stamp[0] += 1
            a(f's_cmp_lg_u32 {sr(sCnt)}, {NS-1-it}')
            a(f's_cbranch_scc1 L_st{cnt_stamp[0]}')
            a(f's_memrealtime {sr(sSt+2*i,2)}')
            a(f'L_st{cnt_stamp[0]}:')
    vLane = V.get()
    vKoff = V.get(); vVoff = V.get(); vSoff = V.get(); vKsOff = V.get(); vKzOff = V.get()
    vKoffB = V.get(); vLqRB = V.get(); vLzRB = V.get()
    vLqW = V.get(); vLzW = V.get(); vLqR = V.get(); vLzR = V.get()
    vM = V.get(); vL = V.get(); vAl = V.get()
    vT = V.get(8, 2)
    vQc = V.get(8, 4)
    vKs = V.get(4, 4); vKz = V.get(); vVs = V.get(2, 2); vVz = V.get(2, 2)
    vQw = V.get(4, 4); vP = V.get(2, 2); vS = V.get(4, 4); vAz = V.get(4, 4)
    vAcc = V.get(32, 4); vQB = V.get(16, 4); vPK = V.get(16, 4)
    vKr = V.get(32, 4); vVr = V.get(32, 4)
    nvgpr = V.n
    OB = nw * WLDS
    MB = OB + nw * 2048
    RS = nw * 4
    TK = MB + 12 * RS
    lds_bytes = TK + 16

    a(f'{KN}:')
    a(f's_cmp_ge_u32 s2, {nwg}')
    a('s_cbranch_scc1 L_end')
    a(f's_load_dwordx16 {sr(sKA,16)}, s[0:1], 0')
    a(f's_load_dwordx4 {sr(sKB,4)}, s[0:1], 64')
    stamp(0)
    if dbgprof or prof == 2: a(f's_memtime {sr(sTm,2)}')
    if padto: a(f's_memrealtime {sr(sTm,2)}')
    a(f'v_lshrrev_b32 {vr(vT)}, 6, v0')
    a(f'v_and_b32 {vr(vLane)}, 63, v0')
    a(f's_lshr_b32 {sr(sHk)}, s2, 4')
    a(f'v_readfirstlane_b32 {sr(sWave)}, {vr(vT)}')
    a(f's_and_b32 {sr(sJ)}, s2, {P-1}')
    n15, g4 = vT + 1, vT + 2
    a(f'v_and_b32 {vr(n15)}, 15, {vr(vLane)}')
    a(f'v_lshrrev_b32 {vr(g4)}, 4, {vr(vLane)}')
    a(f'v_lshlrev_b32 {vr(vKsOff)}, 4, {vr(n15)}')
    a(f'v_lshlrev_b32 {vr(vT+3)}, 9, {vr(n15)}')
    a(f'v_lshl_add_u32 {vr(vKoff)}, {vr(g4)}, 4, {vr(vT+3)}')
    a(f'v_lshl_add_u32 {vr(vVoff)}, {vr(g4)}, 11, {vr(vKsOff)}')
    a(f'v_lshlrev_b32 {vr(vSoff)}, 3, {vr(g4)}')
    a(f'v_lshlrev_b32 {vr(vKzOff)}, 2, {vr(vLane)}')
    a(f'v_and_b32 {vr(vT+3)}, 7, {vr(vLane)}')
    a(f'v_lshlrev_b32 {vr(vT+3)}, 9, {vr(vT+3)}')
    a(f'v_lshrrev_b32 {vr(vT+4)}, 3, {vr(vLane)}')
    a(f'v_lshl_add_u32 {vr(vKoffB)}, {vr(vT+4)}, 4, {vr(vT+3)}')
    stride = nw * 16 * 512
    region = 1 << 20
    if perm == 'tr':
        a(f's_lshl_b32 {sr(sOffK)}, {sr(sJ)}, 20')
    else:
        a(f's_mul_i32 {sr(sOffK)}, {sr(sJ)}, {stride}')
    if wrot == 0:
        a(f's_lshl_b32 {sr(sT0)}, {sr(sWave)}, 13')
    else:
        if wrot == 1: a(f's_add_u32 {sr(sT0)}, {sr(sWave)}, s2')
        elif wrot == 2: a(f's_lshr_b32 {sr(sT0)}, s2, 3'); a(f's_add_u32 {sr(sT0)}, {sr(sT0)}, {sr(sWave)}')
        elif wrot == 3: a(f's_lshr_b32 {sr(sT0)}, s2, 3'); a(f's_and_b32 {sr(sT0)}, {sr(sT0)}, 1'); a(f's_lshl_b32 {sr(sT0)}, {sr(sT0)}, {(nw//2).bit_length()-1}'); a(f's_xor_b32 {sr(sT0)}, {sr(sT0)}, {sr(sWave)}')
        elif wrot == 4: a(f's_and_b32 {sr(sT0)}, s2, 1'); a(f's_lshl_b32 {sr(sT0)}, {sr(sT0)}, {(nw//2).bit_length()-1}'); a(f's_xor_b32 {sr(sT0)}, {sr(sT0)}, {sr(sWave)}')
        elif wrot == 5: a(f's_lshr_b32 {sr(sT0)}, s2, 4'); a(f's_add_u32 {sr(sT0)}, {sr(sT0)}, {sr(sWave)}')
        elif wrot == 6: a(f's_lshr_b32 {sr(sT0)}, s2, 3'); a(f's_xor_b32 {sr(sT0)}, {sr(sT0)}, {sr(sWave)}')
        elif wrot == 7: a(f's_lshr_b32 {sr(sT0)}, s2, 4'); a(f's_and_b32 {sr(sT0)}, {sr(sT0)}, 1'); a(f's_lshl_b32 {sr(sT0)}, {sr(sT0)}, 2'); a(f's_xor_b32 {sr(sT0)}, {sr(sT0)}, {sr(sWave)}')
        elif wrot == 8: a(f's_lshr_b32 {sr(sT0)}, s2, 3'); a(f's_and_b32 {sr(sT0)}, {sr(sT0)}, 3'); a(f's_lshl_b32 {sr(sT0)}, {sr(sT0)}, 1'); a(f's_xor_b32 {sr(sT0)}, {sr(sT0)}, {sr(sWave)}')
        elif wrot == 9: a(f's_lshr_b32 {sr(sT0)}, s2, 3'); a(f's_xor_b32 {sr(sT0)}, {sr(sT0)}, s2'); a(f's_and_b32 {sr(sT0)}, {sr(sT0)}, 1'); a(f's_lshl_b32 {sr(sT0)}, {sr(sT0)}, 2'); a(f's_xor_b32 {sr(sT0)}, {sr(sT0)}, {sr(sWave)}')
        elif wrot == 10: a(f's_lshr_b32 {sr(sT0)}, s2, 5'); a(f's_and_b32 {sr(sT0)}, {sr(sT0)}, 1'); a(f's_lshl_b32 {sr(sT0)}, {sr(sT0)}, 2'); a(f's_xor_b32 {sr(sT0)}, {sr(sT0)}, {sr(sWave)}')
        a(f's_and_b32 {sr(sT0)}, {sr(sT0)}, {nw-1}')
        a(f's_lshl_b32 {sr(sT0)}, {sr(sT0)}, 13')
    a(f's_add_u32 {sr(sOffK)}, {sr(sOffK)}, {sr(sT0)}')
    if perm != 'tr':
        stride = stride * P; region = 1 << 24
    if rot:
        a(f's_mov_b32 {sr(sBase)}, {sr(sOffK)}')
        if rot == 1: a(f's_add_u32 {sr(sPh)}, {sr(sJ)}, {sr(sHk)}')
        elif rot == 2: a(f's_mul_i32 {sr(sPh)}, {sr(sJ)}, 5'); a(f's_mul_i32 {sr(sT0)}, {sr(sHk)}, 3'); a(f's_add_u32 {sr(sPh)}, {sr(sPh)}, {sr(sT0)}')
        elif rot == 3: a(f's_mov_b32 {sr(sPh)}, {sr(sJ)}')
        elif rot == 4: a(f's_mov_b32 {sr(sPh)}, {sr(sHk)}')
        elif rot == 5: a(f's_lshr_b32 {sr(sPh)}, {sr(sJ)}, 1')
        elif rot == 6: a(f's_lshr_b32 {sr(sPh)}, s2, 3')
        elif rot == 7: a(f's_lshr_b32 {sr(sPh)}, {sr(sJ)}, 1'); a(f's_add_u32 {sr(sPh)}, {sr(sPh)}, {sr(sHk)}')
        a(f's_mul_i32 {sr(sPh)}, {sr(sPh)}, {stride}')
        a(f's_and_b32 {sr(sPh)}, {sr(sPh)}, {region-1}')
        a(f's_add_u32 {sr(sOffK)}, {sr(sBase)}, {sr(sPh)}')
    def offs():
        a(f's_lshr_b32 {sr(sOffS)}, {sr(sOffK)}, 8')
        a(f's_and_b32 {sr(sOffG)}, {sr(sOffS)}, 0xffffff00')
        a(f's_add_u32 {sr(sOffK2)}, {sr(sOffK)}, 4096')
    offs()
    a('s_waitcnt lgkmcnt(0)')
    def srd(dst, ptr, off_s, off_shift, nbytes):
        a(f's_lshl_b32 {sr(sT0)}, {sr(off_s)}, {off_shift}')
        a(f's_add_u32 {sr(dst)}, {sr(ptr)}, {sr(sT0)}')
        a(f's_addc_u32 {sr(dst+1)}, {sr(ptr+1)}, 0')
        a(f's_and_b32 {sr(dst+1)}, {sr(dst+1)}, 0xffff')
        a(f's_mov_b32 {sr(dst+2)}, {nbytes}')
        a(f's_mov_b32 {sr(dst+3)}, 0x20000')
    q_, qk_, qv_, ks_, kz_, vs_, vz_, o_ = [sKA + 2 * i for i in range(8)]
    dbg_, ws_ = sKB, sKB + 2
    def ld_ks():
        a(f'buffer_load_dwordx4 {vr(vKs,4)}, {vr(vKsOff)}, {sr(srdKS,4)}, {sr(sOffG)} offen {spol}')
        a(f'buffer_load_dword {vr(vKz)}, {vr(vKzOff)}, {sr(srdKZ,4)}, {sr(sOffG)} offen {spol}')
    def ld_K(nb):
        for s in range(4):
            if s < 4 - nb:
                for i in (2*s, 2*s+1):
                    a(f'buffer_load_dwordx4 {vr(vKr+4*i,4)}, {vr(vKoff)}, {sr(srdK,4)}, {sr(sOffK)} offen offset:{i*64} {pol}')
            else:
                a(f'buffer_load_dwordx4 {vr(vKr+8*s,4)}, {vr(vKoffB)}, {sr(srdK,4)}, {sr(sOffK)} offen offset:{s*128} {pol}')
                a(f'buffer_load_dwordx4 {vr(vKr+8*s+4,4)}, {vr(vKoffB)}, {sr(srdK,4)}, {sr(sOffK2)} offen offset:{s*128} {pol}')
    def ld_vs():
        a(f'buffer_load_dwordx2 {vr(vVs,2)}, {vr(vSoff)}, {sr(srdVS,4)}, {sr(sOffS)} offen {spol}')
        a(f'buffer_load_dwordx2 {vr(vVz,2)}, {vr(vSoff)}, {sr(srdVZ,4)}, {sr(sOffS)} offen {spol}')
    def ld_V():
        for j in range(4):
            for h in range(2):
                a(f'buffer_load_dwordx4 {vr(vVr+4*(2*j+h),4)}, {vr(vVoff)}, {sr(srdV,4)}, {sr(sOffK)} offen offset:{j*512+h*256} {pol}')
    srd(srdT, q_, sHk, 10, 1024)
    a(f'v_lshl_add_u32 {vr(vT+3)}, {vr(g4)}, 8, {vr(vKsOff)}')
    a(f'buffer_load_dwordx4 {vr(vQw,4)}, {vr(vT+3)}, {sr(srdT,4)}, 0 offen')
    srd(srdKS, ks_, sHk, 16, 1 << 16)
    srd(srdKZ, kz_, sHk, 16, 1 << 16)
    srd(srdK, qk_, sHk, 24, 1 << 24)
    ld_ks(); ld_K(nB)
    srd(srdVS, vs_, sHk, 16, 1 << 16)
    srd(srdVZ, vz_, sHk, 16, 1 << 16)
    srd(srdV, qv_, sHk, 24, 1 << 24)
    ld_vs(); ld_V()
    a(f's_mul_i32 {sr(sT0)}, {sr(sWave)}, {WLDS}')
    a(f'v_mul_u32_u24 {vr(vT+3)}, {QROW}, {vr(g4)}')
    a(f'v_add3_u32 {vr(vLqW)}, {vr(vT+3)}, {vr(vKsOff)}, {sr(sT0)}')
    a(f'v_add_u32 {vr(vLzW)}, {sr(sT0)}, {vr(vKzOff)}')
    a(f'v_add_u32 {vr(vLzW)}, {4*QROW}, {vr(vLzW)}')
    a(f'v_and_b32 {vr(vT+3)}, 3, {vr(vLane)}')
    a(f'v_mul_u32_u24 {vr(vT+3)}, {QROW}, {vr(vT+3)}')
    a(f'v_add3_u32 {vr(vLqR)}, {vr(vT+3)}, {vr(vSoff)}, {sr(sT0)}')
    a(f'v_add_u32 {vr(vLzR)}, {sr(sT0)}, {vr(vSoff)}')
    a(f'v_add_u32 {vr(vLzR)}, {4*QROW}, {vr(vLzR)}')
    a(f'v_add_u32 {vr(vLqRB)}, {vr(vLqR)}, {vr(vSoff)}')
    a(f'v_add_u32 {vr(vLzRB)}, {vr(vLzR)}, {vr(vSoff)}')
    a(f's_mov_b32 {sr(sMask)}, 0xffff0000')
    a(f'v_mov_b32 {vr(vM)}, 0xff800000')
    a(f'v_mov_b32 {vr(vL)}, 0')
    for i in range(4): a(f'v_mov_b32 {vr(vAz+i)}, 0')
    for i in range(32): a(f'v_mov_b32 {vr(vAcc+i)}, 0')
    a(f's_mov_b32 {sr(sT1)}, {f32hex(CEXP)}')
    a(f's_mov_b32 {sr(sCnt)}, {NS-1}')
    if setprio == 1:
        a(f's_cmp_lt_u32 {sr(sWave)}, {nw//2}'); a('s_cbranch_scc1 L_prio'); a('s_setprio 1'); a('L_prio:')
    elif setprio == 2:
        a(f's_bitcmp0_b32 {sr(sWave)}, 0'); a('s_cbranch_scc1 L_prio'); a('s_setprio 1'); a('L_prio:')
    elif setprio == 3:
        for p in (1, 2, 3):
            a(f's_cmp_lt_u32 {sr(sWave)}, {p*nw//4}'); a('s_cbranch_scc1 L_prio'); a(f's_setprio {p}')
        a('L_prio:')
    a('s_waitcnt vmcnt(20)')
    stamp(1)
    for i in range(4):
        a(f'v_lshlrev_b32 {vr(vQc+2*i)}, 16, {vr(vQw+i)}')
        a(f'v_and_b32 {vr(vQc+2*i+1)}, {sr(sMask)}, {vr(vQw+i)}')
    for i in range(8):
        a(f'v_mul_f32 {vr(vQc+i)}, {sr(sT1)}, {vr(vQc+i)}')

    def step(pf, tag, nb_cur, nb_next):
        a('s_waitcnt vmcnt(18)')
        for i in range(4):
            a(f'v_lshlrev_b32 {vr(vT)}, 16, {vr(vKs+i)}')
            a(f'v_and_b32 {vr(vT+1)}, {sr(sMask)}, {vr(vKs+i)}')
            a(f'v_mul_f32 {vr(vT)}, {vr(vT)}, {vr(vQc+2*i)}')
            a(f'v_mul_f32 {vr(vT+1)}, {vr(vT+1)}, {vr(vQc+2*i+1)}')
            a(f'v_cvt_pk_bf16_f32 {vr(vQw+i)}, {vr(vT)}, {vr(vT+1)}')
        a(f'v_xor_b32 {vr(vT+2)}, 0x80008000, {vr(vKz)}')
        a(f'ds_write_b128 {vr(vLqW)}, {vr(vQw,4)}')
        a(f'ds_write_b32 {vr(vLzW)}, {vr(vT+2)}')
        if pf:
            if rot:
                a(f's_add_u32 {sr(sPh)}, {sr(sPh)}, {stride}')
                a(f's_and_b32 {sr(sPh)}, {sr(sPh)}, {region-1}')
                a(f's_add_u32 {sr(sOffK)}, {sr(sBase)}, {sr(sPh)}')
            else:
                a(f's_add_u32 {sr(sOffK)}, {sr(sOffK)}, {stride}')
            offs()
            ld_ks()
        for s in range(4):
            if s < 4 - nb_cur: a(f'ds_read2_b64 {vr(vQB+4*s,4)}, {vr(vLqR)} offset0:{8*s} offset1:{8*s+4}')
            else: a(f'ds_read_b128 {vr(vQB+4*s,4)}, {vr(vLqRB)} offset:{64*s}')
        for s in range(4):
            if s < 4 - nb_cur: a(f'ds_read2_b64 {vr(vPK+4*s,4)}, {vr(vLzR)} offset0:{8*s} offset1:{8*s+4}')
            else: a(f'ds_read_b128 {vr(vPK+4*s,4)}, {vr(vLzRB)} offset:{64*s}')
        a('s_waitcnt lgkmcnt(0)')
        for s in range(4):
            c = '0' if s == 0 else vr(vS, 4)
            a(f'v_mfma_f32_16x16x32_bf16 {vr(vS,4)}, {vr(vPK+4*s,4)}, {vr(vQB+4*s,4)}, {c}')
        if pf and midbar == 2: a('s_barrier')
        a(f's_waitcnt vmcnt({12 if pf else 10})')
        if pf: stamp_it(2, 0); stamp_it(4, 1)
        for i in range(8):
            for c in range(4):
                a(f'v_cvt_f32_i32 {vr(vKr+4*i+c)}, {vr(vKr+4*i+c)}')
            d = vPK + 4 * (i // 2) + 2 * (i % 2)
            a(f'v_cvt_pk_bf16_f32 {vr(d)}, {vr(vKr+4*i)}, {vr(vKr+4*i+1)}')
            a(f'v_cvt_pk_bf16_f32 {vr(d+1)}, {vr(vKr+4*i+2)}, {vr(vKr+4*i+3)}')
        for s in range(4 - nb_cur, 4):
            a(f'v_mov_b32 {vr(vT)}, {vr(vPK+4*s)}')
            a(f'v_mov_b32 {vr(vT+1)}, {vr(vPK+4*s+1)}')
            a('s_nop 0')
            a(f'v_mov_b32_dpp {vr(vPK+4*s)}, {vr(vPK+4*s+2)} row_ror:8 row_mask:0xf bank_mask:0xc')
            a(f'v_mov_b32_dpp {vr(vPK+4*s+1)}, {vr(vPK+4*s+3)} row_ror:8 row_mask:0xf bank_mask:0xc')
            a(f'v_mov_b32_dpp {vr(vPK+4*s+2)}, {vr(vT)} row_ror:8 row_mask:0xf bank_mask:0x3')
            a(f'v_mov_b32_dpp {vr(vPK+4*s+3)}, {vr(vT+1)} row_ror:8 row_mask:0xf bank_mask:0x3')
        if pf:
            ld_K(nb_next)
            if midbar == 1: a('s_barrier')
        else: a('s_nop 1')
        for s in range(4):
            a(f'v_mfma_f32_16x16x32_bf16 {vr(vS,4)}, {vr(vPK+4*s,4)}, {vr(vQB+4*s,4)}, {vr(vS,4)}')
        a(f's_waitcnt vmcnt({18 if pf else 8})')
        f = vT + 4
        a(f'v_lshlrev_b32 {vr(f)}, 16, {vr(vVs)}')
        a(f'v_and_b32 {vr(f+1)}, {sr(sMask)}, {vr(vVs)}')
        a(f'v_lshlrev_b32 {vr(f+2)}, 16, {vr(vVs+1)}')
        a(f'v_and_b32 {vr(f+3)}, {sr(sMask)}, {vr(vVs+1)}')
        a('s_nop 4')
        a(f'v_max3_f32 {vr(vT)}, {vr(vS)}, {vr(vS+1)}, {vr(vS+2)}')
        a(f'v_max_f32 {vr(vT)}, {vr(vT)}, {vr(vS+3)}')
        a(f'v_mov_b32 {vr(vT+1)}, {vr(vT)}')
        a('s_nop 1')
        a(f'v_permlane16_swap_b32 {vr(vT)}, {vr(vT+1)}')
        a(f'v_max_f32 {vr(vT)}, {vr(vT)}, {vr(vT+1)}')
        a(f'v_mov_b32 {vr(vT+1)}, {vr(vT)}')
        a('s_nop 1')
        a(f'v_permlane32_swap_b32 {vr(vT)}, {vr(vT+1)}')
        a(f'v_max3_f32 {vr(vT)}, {vr(vT)}, {vr(vT+1)}, {vr(vM)}')
        a(f'v_sub_f32 {vr(vAl)}, {vr(vM)}, {vr(vT)}')
        a(f'v_cmp_gt_f32 vcc, {vr(vT)}, {vr(vM)}')
        a(f'v_mov_b32 {vr(vM)}, {vr(vT)}')
        a(f'v_exp_f32 {vr(vAl)}, {vr(vAl)}')
        for r in range(4): a(f'v_sub_f32 {vr(vS+r)}, {vr(vS+r)}, {vr(vM)}')
        for r in range(4): a(f'v_exp_f32 {vr(vS+r)}, {vr(vS+r)}')
        a(f's_cbranch_vccz L_nors_{tag}')
        for r in range(4): a(f'v_readlane_b32 {sr(sAl+r)}, {vr(vAl)}, {r}')
        a('s_nop 1')
        for i in range(8):
            for r in range(4):
                a(f'v_mul_f32 {vr(vAcc+4*i+r)}, {sr(sAl+r)}, {vr(vAcc+4*i+r)}')
        for r in range(4): a(f'v_mul_f32 {vr(vAz+r)}, {sr(sAl+r)}, {vr(vAz+r)}')
        a(f'L_nors_{tag}:')
        a(f'v_add_f32 {vr(vT)}, {vr(vS)}, {vr(vS+1)}')
        a(f'v_add_f32 {vr(vT+1)}, {vr(vS+2)}, {vr(vS+3)}')
        a(f'v_fma_f32 {vr(vL)}, {vr(vL)}, {vr(vAl)}, {vr(vT)}')
        for r in range(4): a(f'v_mul_f32 {vr(vS+r)}, {vr(vS+r)}, {vr(f+r)}')
        a(f'v_add_f32 {vr(vL)}, {vr(vL)}, {vr(vT+1)}')
        a(f'v_cvt_pk_bf16_f32 {vr(vP)}, {vr(vS)}, {vr(vS+1)}')
        a(f'v_cvt_pk_bf16_f32 {vr(vP+1)}, {vr(vS+2)}, {vr(vS+3)}')
        a('s_nop 1')
        a(f'v_mfma_f32_16x16x16_bf16 {vr(vAz,4)}, {vr(vP,2)}, {vr(vVz,2)}, {vr(vAz,4)}')
        if not pf: early_publish()
        R = lambda j, h, c: vVr + 4 * (2 * j + h) + c
        def vhalf(jp):
            for h in range(2):
                for c in range(4):
                    a(f'v_cvt_f32_i32 {vr(R(2*jp,h,c))}, {vr(R(2*jp,h,c))}')
                    a(f'v_cvt_f32_i32 {vr(R(2*jp+1,h,c))}, {vr(R(2*jp+1,h,c))}')
                    a(f'v_cvt_pk_bf16_f32 {vr(vPK+2*(4*h+c)+jp)}, {vr(R(2*jp,h,c))}, {vr(R(2*jp+1,h,c))}')
        base = 10 if pf else 0
        if pf and midbar == 3: a('s_barrier')
        if vsplit:
            a(f's_waitcnt vmcnt({base+4})'); vhalf(0)
            a(f's_waitcnt vmcnt({base})'); vhalf(1)
        else:
            a(f's_waitcnt vmcnt({base})'); vhalf(0); vhalf(1)
        if pf:
            ld_vs(); ld_V()
            stamp_it(3, 0); stamp_it(5, 1); stamp_it(6, 7)
        else: a('s_nop 1')
        for i in range(8):
            a(f'v_mfma_f32_16x16x16_bf16 {vr(vAcc+4*i,4)}, {vr(vP,2)}, {vr(vPK+2*i,2)}, {vr(vAcc+4*i,4)}')

    vF = vKr
    vLw = vKr + 8
    vZw = vKr + 16
    vMx, vLs, vZs = vKr + 24, vKr + 25, vKr + 26
    vO = vKr + 16
    def early_publish():
        a(f'v_mov_b32 {vr(vT+1)}, {vr(vL)}')
        a('s_nop 1')
        a(f'v_permlane16_swap_b32 {vr(vL)}, {vr(vT+1)}')
        a(f'v_add_f32 {vr(vL)}, {vr(vL)}, {vr(vT+1)}')
        a(f'v_mov_b32 {vr(vT+1)}, {vr(vL)}')
        a('s_nop 1')
        a(f'v_permlane32_swap_b32 {vr(vL)}, {vr(vT+1)}')
        a(f'v_add_f32 {vr(vL)}, {vr(vL)}, {vr(vT+1)}')
        a(f's_lshl_b32 {sr(sT1)}, {sr(sWave)}, 2')
        a(f's_add_u32 {sr(sT1)}, {sr(sT1)}, {MB}')
        a(f'v_mul_u32_u24 {vr(vT+2)}, {RS}, {vr(vLane)}')
        a(f'v_add_u32 {vr(vT+2)}, {sr(sT1)}, {vr(vT+2)}')
        a('s_mov_b64 exec, 0xf')
        a(f'ds_write_b32 {vr(vT+2)}, {vr(vM)}')
        a(f'ds_write_b32 {vr(vT+2)}, {vr(vL)} offset:{4*RS}')
        a('s_mov_b64 exec, 1')
        for r in range(4):
            a(f'ds_write_b32 {vr(vT+2)}, {vr(vAz+r)} offset:{8*RS+r*RS}')
        a('s_mov_b64 exec, -1')
        a(f'v_and_b32 {vr(vT)}, 3, v0')
        a(f'v_mul_u32_u24 {vr(vT)}, {RS}, {vr(vT)}')
        a(f'v_add_u32 {vr(vT)}, {MB}, {vr(vT)}')
        a('s_waitcnt lgkmcnt(0)')
        a('s_barrier')
        for k in range(nw // 4):
            a(f'ds_read_b128 {vr(vF+4*k,4)}, {vr(vT)} offset:{16*k}')
            a(f'ds_read_b128 {vr(vLw+4*k,4)}, {vr(vT)} offset:{4*RS+16*k}')
            a(f'ds_read_b128 {vr(vZw+4*k,4)}, {vr(vT)} offset:{8*RS+16*k}')
        a('s_waitcnt lgkmcnt(0)')
        a(f'v_max3_f32 {vr(vMx)}, {vr(vF)}, {vr(vF+1)}, {vr(vF+2)}')
        for w in range(3, nw): a(f'v_max_f32 {vr(vMx)}, {vr(vMx)}, {vr(vF+w)}')
        for w in range(nw): a(f'v_sub_f32 {vr(vF+w)}, {vr(vF+w)}, {vr(vMx)}')
        for w in range(nw): a(f'v_exp_f32 {vr(vF+w)}, {vr(vF+w)}')
        a('s_nop 0')
        a(f'v_mul_f32 {vr(vLs)}, {vr(vF)}, {vr(vLw)}')
        a(f'v_mul_f32 {vr(vZs)}, {vr(vF)}, {vr(vZw)}')
        for w in range(1, nw):
            a(f'v_fmac_f32 {vr(vLs)}, {vr(vF+w)}, {vr(vLw+w)}')
            a(f'v_fmac_f32 {vr(vZs)}, {vr(vF+w)}, {vr(vZw+w)}')

    if nBalt is None and nlate == 0:
        a('L_loop:')
        step(1, 'loop', nB, nB)
        if bar == 1: a('s_barrier')
        elif bar > 1:
            a(f's_and_b32 {sr(sT0)}, {sr(sCnt)}, {bar-1}')
            a('s_cbranch_scc1 L_nobar')
            a('s_barrier')
            a('L_nobar:')
        a(f's_sub_u32 {sr(sCnt)}, {sr(sCnt)}, 1')
        a(f's_cmp_lg_u32 {sr(sCnt)}, 0')
        a('s_cbranch_scc1 L_loop')
        nb_last = nB
    elif nlate:
        a(f's_mov_b32 {sr(sCnt)}, {NS - nlate - 1}')
        a('L_loop:')
        step(1, 'loop', nB, nB)
        if bar: a('s_barrier')
        a(f's_sub_u32 {sr(sCnt)}, {sr(sCnt)}, 1')
        a(f's_cmp_lg_u32 {sr(sCnt)}, 0')
        a('s_cbranch_scc1 L_loop')
        step(1, 'trans', nB, nBlate)
        if bar: a('s_barrier')
        if nlate > 1:
            a(f's_mov_b32 {sr(sCnt)}, {nlate - 1}')
            a('L_loop2:')
            step(1, 'loop2', nBlate, nBlate)
            if bar: a('s_barrier')
            a(f's_sub_u32 {sr(sCnt)}, {sr(sCnt)}, 1')
            a(f's_cmp_lg_u32 {sr(sCnt)}, 0')
            a('s_cbranch_scc1 L_loop2')
        nb_last = nBlate
    else:
        assert NS % 2 == 0
        a(f's_mov_b32 {sr(sCnt)}, {NS // 2 - 1}')
        a('L_loop:')
        step(1, 'loopa', nB, nBalt)
        if bar: a('s_barrier')
        step(1, 'loopb', nBalt, nB)
        if bar: a('s_barrier')
        a(f's_sub_u32 {sr(sCnt)}, {sr(sCnt)}, 1')
        a(f's_cmp_lg_u32 {sr(sCnt)}, 0')
        a('s_cbranch_scc1 L_loop')
        step(1, 'prelast', nB, nBalt)
        if bar: a('s_barrier')
        nb_last = nBalt
    if prof != 4: stamp(2)
    step(0, 'last', nb_last, nb_last)
    if prof not in (3, 4): stamp(3)
    a(f's_lshl_b32 {sr(sT0)}, {sr(sWave)}, 11')
    a(f's_add_u32 {sr(sT0)}, {sr(sT0)}, {OB}')
    a(f'v_add_u32 {vr(vT)}, {sr(sT0)}, {vr(vKsOff)}')
    a(f'v_lshlrev_b32 {vr(vT+1)}, 2, v0')
    a(f'v_add_u32 {vr(vT+2)}, {OB}, {vr(vT+1)}')
    a('s_mov_b64 exec, 0xffff')
    a('s_nop 1')
    for i in range(8):
        a(f'ds_write_b128 {vr(vT)}, {vr(vAcc+4*i,4)} offset:{i*256}')
    a('s_mov_b64 exec, -1')
    a(f's_mul_i32 {sr(sT1)}, s2, {PSTRIDE}')
    a(f's_add_u32 {sr(srdT)}, {sr(ws_)}, {sr(sT1)}')
    a(f's_addc_u32 {sr(srdT+1)}, {sr(ws_+1)}, 0')
    a(f's_and_b32 {sr(srdT+1)}, {sr(srdT+1)}, 0xffff')
    a(f's_mov_b32 {sr(srdT+2)}, {PSTRIDE}')
    a(f's_mov_b32 {sr(srdT+3)}, 0x20000')
    a('s_waitcnt lgkmcnt(0)')
    a('s_barrier')
    vOw = vVr
    vRes = vVr + 16
    for ch in range(nch):
        for w in range(nw):
            a(f'ds_read_b32 {vr(vOw+ch*nw+w)}, {vr(vT+2)} offset:{w*2048+ch*nthr*4}')
    for ch in range(nch):
        a(f's_waitcnt lgkmcnt({(nch-1-ch)*nw})')
        a(f'v_fma_f32 {vr(vRes+ch)}, {vr(vF)}, {vr(vOw+ch*nw)}, -{vr(vZs)}')
        for w in range(1, nw):
            a(f'v_fmac_f32 {vr(vRes+ch)}, {vr(vF+w)}, {vr(vOw+ch*nw+w)}')
    if prof not in (3, 4): stamp(4)
    for ch in range(nch):
        a(f'buffer_store_dword {vr(vRes+ch)}, {vr(vT+1)}, {sr(srdT,4)}, 0 offen offset:{ch*nthr*4} sc1')
    a('v_cmp_gt_u32 vcc, 4, v0')
    a(f's_and_saveexec_b64 {sr(sEx,2)}, vcc')
    a('s_cbranch_execz L_nost')
    a(f'buffer_store_dword {vr(vMx)}, {vr(vT+1)}, {sr(srdT,4)}, 0 offen offset:2048 sc1')
    a(f'buffer_store_dword {vr(vLs)}, {vr(vT+1)}, {sr(srdT,4)}, 0 offen offset:2064 sc1')
    a('L_nost:')
    a(f's_mov_b64 exec, {sr(sEx,2)}')
    a(f's_mov_b32 {sr(srdKS)}, {sr(dbg_)}')
    a(f's_and_b32 {sr(srdKS+1)}, {sr(dbg_+1)}, 0xffff')
    a(f's_mov_b32 {sr(srdKS+2)}, 256')
    a(f's_lshl_b32 {sr(sOffG)}, {sr(sHk)}, {cshift}')
    if coff: a(f's_add_u32 {sr(sOffG)}, {sr(sOffG)}, {coff}')
    a(f's_mul_i32 {sr(sT1)}, {sr(sHk)}, {P*PSTRIDE}')
    a(f's_add_u32 {sr(srdV)}, {sr(ws_)}, {sr(sT1)}')
    a(f's_addc_u32 {sr(srdV+1)}, {sr(ws_+1)}, 0')
    a(f's_and_b32 {sr(srdV+1)}, {sr(srdV+1)}, 0xffff')
    a(f's_mov_b32 {sr(srdV+2)}, {P*PSTRIDE}')
    a(f's_lshl_b32 {sr(sT1)}, {sr(sHk)}, 10')
    a(f's_add_u32 {sr(srdK)}, {sr(o_)}, {sr(sT1)}')
    a(f's_addc_u32 {sr(srdK+1)}, {sr(o_+1)}, 0')
    a(f's_and_b32 {sr(srdK+1)}, {sr(srdK+1)}, 0xffff')
    a(f's_mov_b32 {sr(srdK+2)}, 1024')
    vML = vT + 2
    vBp = vT + 3
    vOa = vT + 4
    a(f'v_and_b32 {vr(vBp)}, 3, {vr(vLane)}')
    a(f'v_lshlrev_b32 {vr(vBp)}, 6, {vr(vBp)}')
    a(f'v_and_b32 {vr(vML)}, 15, {vr(vLane)}')
    a(f'v_lshlrev_b32 {vr(vML)}, 12, {vr(vML)}')
    a(f'v_lshrrev_b32 {vr(vT+6)}, 4, {vr(vLane)}')
    a(f'v_lshl_add_u32 {vr(vML)}, {vr(vT+6)}, 2, {vr(vML)}')
    for ch in range(nch):
        e, x, y = vT + 6, vOa + ch, vT + 7
        a(f'v_add_u32 {vr(e)}, {ch*nthr}, v0')
        a(f'v_and_b32 {vr(x)}, 3, {vr(e)}'); a(f'v_lshlrev_b32 {vr(x)}, 7, {vr(x)}')
        a(f'v_lshrrev_b32 {vr(y)}, 8, {vr(e)}'); a(f'v_lshl_add_u32 {vr(x)}, {vr(y)}, 6, {vr(x)}')
        a(f'v_bfe_u32 {vr(y)}, {vr(e)}, 2, 4'); a(f'v_lshl_add_u32 {vr(x)}, {vr(y)}, 2, {vr(x)}')
        a(f'v_bfe_u32 {vr(y)}, {vr(e)}, 6, 2'); a(f'v_add_u32 {vr(x)}, {vr(x)}, {vr(y)}')
        a(f'v_lshlrev_b32 {vr(x)}, 1, {vr(x)}')
    a(f'v_mov_b32 {vr(vT+6)}, {TK}')
    a('s_waitcnt vmcnt(0)')
    if prof not in (3, 4): stamp(5)
    a('s_barrier')
    a(f's_cmp_lg_u32 {sr(sWave)}, 0')
    a('s_cbranch_scc1 L_noat')
    a('s_mov_b64 exec, 1')
    a(f'v_mov_b32 {vr(vT+7)}, 1')
    a(f'v_mov_b32 {vr(vT)}, 0')
    a(f'buffer_atomic_add {vr(vT+7)}, {vr(vT)}, {sr(srdKS,4)}, {sr(sOffG)} offen sc0')
    a('s_waitcnt vmcnt(0)')
    a(f'ds_write_b32 {vr(vT+6)}, {vr(vT+7)}')
    a('s_mov_b64 exec, -1')
    a('s_waitcnt lgkmcnt(0)')
    a('L_noat:')
    a('s_barrier')
    a(f'ds_read_b32 {vr(vT+7)}, {vr(vT+6)}')
    a('s_waitcnt lgkmcnt(0)')
    a(f'v_readfirstlane_b32 {sr(sT0)}, {vr(vT+7)}')
    a('s_nop 3')
    if prof != 4: stamp(6)
    a(f's_cmp_lg_u32 {sr(sT0)}, {P-1}')
    a('s_cbranch_scc1 L_notlast')
    cM, cL, cW = vKr, vKr + 1, vKr + 4
    cO = vVr
    assert nch * P <= 32
    a(f'buffer_load_dword {vr(cM)}, {vr(vML)}, {sr(srdV,4)}, 0 offen offset:2048 sc1')
    a(f'buffer_load_dword {vr(cL)}, {vr(vML)}, {sr(srdV,4)}, 0 offen offset:2064 sc1')
    for w in range(P):
        a(f's_movk_i32 {sr(sT1)}, {w*PSTRIDE if w*PSTRIDE < 32768 else 0}' if w*PSTRIDE < 32768 else f's_mov_b32 {sr(sT1)}, {w*PSTRIDE}')
        for ch in range(nch):
            a(f'buffer_load_dword {vr(cO+ch*P+w)}, {vr(vT+1)}, {sr(srdV,4)}, {sr(sT1)} offen offset:{ch*nthr*4} sc1')
    x, y = vKr + 2, vKr + 3
    a(f's_waitcnt vmcnt({nch*P})')
    if prof == 3: stamp(4)
    def allreduce(reg, op):
        for k in (1, 2, 4, 8):
            a('s_nop 1')
            a(f'{op}_dpp {vr(reg)}, {vr(reg)}, {vr(reg)} row_ror:{k} row_mask:0xf bank_mask:0xf')
    a(f'v_mov_b32 {vr(x)}, {vr(cM)}')
    allreduce(x, 'v_max_f32')
    a(f'v_sub_f32 {vr(cM)}, {vr(cM)}, {vr(x)}')
    a(f'v_exp_f32 {vr(cM)}, {vr(cM)}')
    a('s_nop 0')
    a(f'v_mul_f32 {vr(x)}, {vr(cM)}, {vr(cL)}')
    allreduce(x, 'v_add_f32')
    a(f'v_rcp_f32 {vr(cL)}, {vr(x)}')
    a('s_nop 0')
    a(f'v_mul_f32 {vr(cM)}, {vr(cM)}, {vr(cL)}')
    for w in range(P):
        a(f'ds_bpermute_b32 {vr(cW+w)}, {vr(vBp)}, {vr(cM)} offset:{4*w}')
    if prof == 3:
        a('s_waitcnt lgkmcnt(0)'); stamp(3)
    a('s_waitcnt vmcnt(0) lgkmcnt(0)')
    if prof == 3: stamp(5)
    for ch in range(nch):
        a(f'v_mul_f32 {vr(x)}, {vr(cW)}, {vr(cO+ch*P)}')
        for w in range(1, P): a(f'v_fmac_f32 {vr(x)}, {vr(cW+w)}, {vr(cO+ch*P+w)}')
        a(f'v_cvt_pk_bf16_f32 {vr(x)}, {vr(x)}, {vr(x)}')
        a(f'buffer_store_short {vr(x)}, {vr(vOa+ch)}, {sr(srdK,4)}, 0 offen {opol}')
    if dbgprof:
        a('s_waitcnt vmcnt(0)')
        a(f's_cmp_lg_u32 {sr(sWave)}, 0')
        a('s_cbranch_scc1 L_end')
        stamp(7)
        a(f's_memtime {sr(sTm+2,2)}')
        a('s_waitcnt lgkmcnt(0)')
        a('s_mov_b64 exec, 1')
        a(f'v_mov_b32 {vr(vT)}, 0')
        for i in range(1, 8):
            a(f's_sub_u32 {sr(sT0)}, {sr(sSt+2*i)}, {sr(sSt)}')
            a(f'v_mov_b32 {vr(vKr+i)}, {sr(sT0)}')
        a(f's_sub_u32 {sr(sT0)}, {sr(sSt+14)}, {sr(sSt+12)}'); a(f'v_mov_b32 {vr(vKr+8)}, {sr(sT0)}')
        a(f's_sub_u32 {sr(sT0)}, {sr(sSt+14)}, {sr(sSt+6)}'); a(f'v_mov_b32 {vr(vKr+9)}, {sr(sT0)}')
        a(f's_sub_u32 {sr(sT0)}, {sr(sTm+2)}, {sr(sTm)}'); a(f'v_mov_b32 {vr(vKr+10)}, {sr(sT0)}')
        for i in range(1, 11):
            a(f'buffer_atomic_umax {vr(vKr+i)}, {vr(vT)}, {sr(srdKS,4)}, 0 offen offset:{4*i}')
    a('L_notlast:')
    if prof in (2, 3, 4):
        a('s_waitcnt vmcnt(0)')
        stamp(7)
        if prof == 2: a(f's_memtime {sr(sTm+2,2)}')
        a('s_waitcnt lgkmcnt(0)')
        if prof != 4:
            a(f's_cmp_lg_u32 {sr(sWave)}, 0')
            a('s_cbranch_scc1 L_end')
        a(f's_add_u32 {sr(srdT)}, {sr(ws_)}, 0x4000000')
        a(f's_addc_u32 {sr(srdT+1)}, {sr(ws_+1)}, 0')
        a(f's_and_b32 {sr(srdT+1)}, {sr(srdT+1)}, 0xffff')
        a(f's_mov_b32 {sr(srdT+2)}, 0x100000')
        if prof != 4:
            a(f's_lshl_b32 {sr(sT1)}, s2, 6')
        else:
            a(f's_mul_i32 {sr(sT1)}, s2, {nw}'); a(f's_add_u32 {sr(sT1)}, {sr(sT1)}, {sr(sWave)}'); a(f's_lshl_b32 {sr(sT1)}, {sr(sT1)}, 6')
        for i in range(8): a(f'v_mov_b32 {vr(vKr+i)}, {sr(sSt+2*i)}')
        a(f's_getreg_b32 {sr(sT0)}, hwreg(HW_REG_XCC_ID)')
        a(f'v_mov_b32 {vr(vKr+8)}, {sr(sT0)}')
        a(f's_getreg_b32 {sr(sT0)}, hwreg(HW_REG_HW_ID)')
        a(f'v_mov_b32 {vr(vKr+9)}, {sr(sT0)}')
        if prof == 2:
            a(f's_sub_u32 {sr(sT0)}, {sr(sTm+2)}, {sr(sTm)}')
            a(f'v_mov_b32 {vr(vKr+10)}, {sr(sT0)}')
        a(f'v_mov_b32 {vr(vT)}, 0')
        a('s_mov_b64 exec, 1')
        a(f'buffer_store_dwordx4 {vr(vKr,4)}, {vr(vT)}, {sr(srdT,4)}, {sr(sT1)} offen')
        a(f'buffer_store_dwordx4 {vr(vKr+4,4)}, {vr(vT)}, {sr(srdT,4)}, {sr(sT1)} offen offset:16')
        a(f'buffer_store_dwordx4 {vr(vKr+8,4)}, {vr(vT)}, {sr(srdT,4)}, {sr(sT1)} offen offset:32')
    if padto:
        a('s_waitcnt vmcnt(0) lgkmcnt(0)')
        a('L_pad:')
        a(f's_memrealtime {sr(sTm+2,2)}')
        a('s_waitcnt lgkmcnt(0)')
        a(f's_sub_u32 {sr(sT0)}, {sr(sTm+2)}, {sr(sTm)}')
        a(f's_cmp_lt_u32 {sr(sT0)}, {padto}')
        a('s_cbranch_scc1 L_pad')
    a('L_end:')
    a('s_endpgm')
    main = '\n'.join(out)
    acc = (nvgpr + 3) // 4 * 4
    kd = f'''.amdhsa_kernel {KN}
  .amdhsa_next_free_vgpr {nvgpr}
  .amdhsa_next_free_sgpr {S.n}
  .amdhsa_accum_offset {acc}
  .amdhsa_group_segment_fixed_size 0
  .amdhsa_kernarg_size 80
  .amdhsa_user_sgpr_count 2
  .amdhsa_user_sgpr_kernarg_segment_ptr 1
  .amdhsa_system_sgpr_workgroup_id_x 1
  .amdhsa_float_denorm_mode_32 3
.end_amdhsa_kernel
'''
    src = HEADCOMMENT + f'; @launch grid=({nwg},1,1) block=({nthr},1,1) lds={lds_bytes}\n'
    src += '.amdgcn_target "amdgcn-amd-amdhsa--gfx950"\n.text\n'
    src += f'.globl {KN}\n.p2align 8\n.type {KN},@function\n{main}\n'
    src += '.section .rodata,"a"\n.p2align 6\n' + kd
    return src, [(KN, nwg, nthr, lds_bytes)]

if __name__ == '__main__':
    import argparse
    ap = argparse.ArgumentParser()
    ap.add_argument('-o', default='out.s')
    ap.add_argument('kv', nargs='*')
    args = ap.parse_args()
    kw = {}
    for x in args.kv:
        k, v = x.split('=')
        try: v = int(v)
        except ValueError: pass
        kw[k] = v
    src, l = gen(**kw)
    open(args.o, 'w').write(src)
    print(l)
```

```python
import struct
KN = 'standalone__kv_cache_quant_int4_int2_kv_with_per_channel_or_per_token_scales__decode_kernel'

HEADCOMMENT = '''; KIVI-style quantised KV-cache decode attention (B=2, Hq=32, Hkv=8, Skv=32768, Dh=128), one fused launch.
; Kernarg layout for this problem (80 bytes, ptrs only, base s[0:1]):
'''

class Alloc:
    def __init__(self, start, limit):
        self.n = start; self.limit = limit
    def get(self, cnt=1, align=1):
        self.n = (self.n + align - 1) // align * align
        r = self.n; self.n += cnt
        assert self.n <= self.limit, self.n
        return r

def vr(r, n=1): return f'v{r}' if n == 1 else f'v[{r}:{r+n-1}]'
def sr(r, n=1): return f's{r}' if n == 1 else f's[{r}:{r+n-1}]'
def f32hex(x): return '0x%08x' % struct.unpack('<I', struct.pack('<f', x))[0]

PSTRIDE = 4096
QROW = 288
WLDS = 1536
CEXP = 0.08838834764831845 * 1.4426950408889634

def gen(nw=8, bar=1, pol='nt', spol='nt', nB=1, prof=0, dbgprof=0, coff=0, cshift=2, opol='', dry=0,
        nBalt=None, setprio=0, padto=0, vsplit=1, wrot=0, nlate=0, nBlate=4, midbar=0, perm='tr', rot=0, hshift=24, wperm=0):
    P = 16
    nwg = 16 * P
    NS = 32768 // (P * nw * 16)
    nthr = nw * 64
    nch = 512 // nthr
    out = []
    a = out.append
    V = Alloc(1, 256); S = Alloc(3, 102)
    sWave = S.get()
    sKA = S.get(16, 4); sKB = S.get(4, 4)
    srdK = S.get(4, 4); srdV = S.get(4, 4); srdKS = S.get(4, 4); srdKZ = S.get(4, 4)
    srdVS = S.get(4, 4); srdVZ = S.get(4, 4); srdT = S.get(4, 4)
    sHk = S.get(); sJ = S.get()
    sOffK = S.get(); sOffS = S.get(); sOffG = S.get(); sOffK2 = S.get()
    sCnt = S.get(); sT0 = S.get(); sT1 = S.get()
    sBase = S.get(); sPh = S.get()
    sAl = S.get(4, 4); sMask = S.get(); sEx = S.get(2, 2)
    stamps = prof in (2, 3, 4) or dbgprof
    sSt = S.get(16, 2) if stamps else None
    sTm = S.get(4, 2) if (dbgprof or padto or prof == 2) else None
    def stamp(i):
        if stamps: a(f's_memrealtime {sr(sSt+2*i,2)}')
    cnt_stamp = [0]
    def stamp_it(i, it):
        if prof == 4:
            cnt_stamp[0] += 1
            a(f's_cmp_lg_u32 {sr(sCnt)}, {NS-1-it}')
            a(f's_cbranch_scc1 L_st{cnt_stamp[0]}')
            a(f's_memrealtime {sr(sSt+2*i,2)}')
            a(f'L_st{cnt_stamp[0]}:')
    vLane = V.get()
    vKoff = V.get(); vVoff = V.get(); vSoff = V.get(); vKsOff = V.get(); vKzOff = V.get()
    vKoffB = V.get(); vLqRB = V.get(); vLzRB = V.get()
    vLqW = V.get(); vLzW = V.get(); vLqR = V.get(); vLzR = V.get()
    vM = V.get(); vL = V.get(); vAl = V.get()
    vT = V.get(8, 2)
    vQc = V.get(8, 4)
    vKs = V.get(4, 4); vKz = V.get(); vVs = V.get(2, 2); vVz = V.get(2, 2)
    vQw = V.get(4, 4); vP = V.get(2, 2); vS = V.get(4, 4); vAz = V.get(4, 4)
    vAcc = V.get(32, 4); vQB = V.get(16, 4); vPK = V.get(16, 4)
    vKr = V.get(32, 4); vVr = V.get(32, 4)
    nvgpr = V.n
    OB = nw * WLDS
    MB = OB + nw * 2048
    RS = nw * 4
    TK = MB + 12 * RS
    lds_bytes = TK + 16

    a(f'{KN}:')
    a(f's_cmp_ge_u32 s2, {nwg}')
    a('s_cbranch_scc1 L_end')
    a(f's_load_dwordx16 {sr(sKA,16)}, s[0:1], 0')
    a(f's_load_dwordx4 {sr(sKB,4)}, s[0:1], 64')
    stamp(0)
    if dbgprof or prof == 2: a(f's_memtime {sr(sTm,2)}')
    if padto: a(f's_memrealtime {sr(sTm,2)}')
    a(f'v_lshrrev_b32 {vr(vT)}, 6, v0')
    a(f'v_and_b32 {vr(vLane)}, 63, v0')
    a(f's_lshr_b32 {sr(sHk)}, s2, 4')
    a(f'v_readfirstlane_b32 {sr(sWave)}, {vr(vT)}')
    a(f's_and_b32 {sr(sJ)}, s2, {P-1}')
    n15, g4 = vT + 1, vT + 2
    a(f'v_and_b32 {vr(n15)}, 15, {vr(vLane)}')
    a(f'v_lshrrev_b32 {vr(g4)}, 4, {vr(vLane)}')
    a(f'v_lshlrev_b32 {vr(vKsOff)}, 4, {vr(n15)}')
    a(f'v_lshlrev_b32 {vr(vT+3)}, 9, {vr(n15)}')
    a(f'v_lshl_add_u32 {vr(vKoff)}, {vr(g4)}, 4, {vr(vT+3)}')
    a(f'v_lshl_add_u32 {vr(vVoff)}, {vr(g4)}, 11, {vr(vKsOff)}')
    a(f'v_lshlrev_b32 {vr(vSoff)}, 3, {vr(g4)}')
    a(f'v_lshlrev_b32 {vr(vKzOff)}, 2, {vr(vLane)}')
    a(f'v_and_b32 {vr(vT+3)}, 7, {vr(vLane)}')
    a(f'v_lshlrev_b32 {vr(vT+3)}, 9, {vr(vT+3)}')
    a(f'v_lshrrev_b32 {vr(vT+4)}, 3, {vr(vLane)}')
    a(f'v_lshl_add_u32 {vr(vKoffB)}, {vr(vT+4)}, 4, {vr(vT+3)}')
    stride = nw * 16 * 512
    region = 1 << 20
    if perm == 'tr':
        a(f's_lshl_b32 {sr(sOffK)}, {sr(sJ)}, 20')
    else:
        a(f's_mul_i32 {sr(sOffK)}, {sr(sJ)}, {stride}')
    if wrot == 0:
        a(f's_lshl_b32 {sr(sT0)}, {sr(sWave)}, 13')
    else:
        if wrot == 1: a(f's_add_u32 {sr(sT0)}, {sr(sWave)}, s2')
        elif wrot == 2: a(f's_lshr_b32 {sr(sT0)}, s2, 3'); a(f's_add_u32 {sr(sT0)}, {sr(sT0)}, {sr(sWave)}')
        elif wrot == 3: a(f's_lshr_b32 {sr(sT0)}, s2, 3'); a(f's_and_b32 {sr(sT0)}, {sr(sT0)}, 1'); a(f's_lshl_b32 {sr(sT0)}, {sr(sT0)}, {(nw//2).bit_length()-1}'); a(f's_xor_b32 {sr(sT0)}, {sr(sT0)}, {sr(sWave)}')
        elif wrot == 4: a(f's_and_b32 {sr(sT0)}, s2, 1'); a(f's_lshl_b32 {sr(sT0)}, {sr(sT0)}, {(nw//2).bit_length()-1}'); a(f's_xor_b32 {sr(sT0)}, {sr(sT0)}, {sr(sWave)}')
        elif wrot == 5: a(f's_lshr_b32 {sr(sT0)}, s2, 4'); a(f's_add_u32 {sr(sT0)}, {sr(sT0)}, {sr(sWave)}')
        elif wrot == 6: a(f's_lshr_b32 {sr(sT0)}, s2, 3'); a(f's_xor_b32 {sr(sT0)}, {sr(sT0)}, {sr(sWave)}')
        elif wrot == 7: a(f's_lshr_b32 {sr(sT0)}, s2, 4'); a(f's_and_b32 {sr(sT0)}, {sr(sT0)}, 1'); a(f's_lshl_b32 {sr(sT0)}, {sr(sT0)}, 2'); a(f's_xor_b32 {sr(sT0)}, {sr(sT0)}, {sr(sWave)}')
        elif wrot == 8: a(f's_lshr_b32 {sr(sT0)}, s2, 3'); a(f's_and_b32 {sr(sT0)}, {sr(sT0)}, 3'); a(f's_lshl_b32 {sr(sT0)}, {sr(sT0)}, 1'); a(f's_xor_b32 {sr(sT0)}, {sr(sT0)}, {sr(sWave)}')
        elif wrot == 9: a(f's_lshr_b32 {sr(sT0)}, s2, 3'); a(f's_xor_b32 {sr(sT0)}, {sr(sT0)}, s2'); a(f's_and_b32 {sr(sT0)}, {sr(sT0)}, 1'); a(f's_lshl_b32 {sr(sT0)}, {sr(sT0)}, 2'); a(f's_xor_b32 {sr(sT0)}, {sr(sT0)}, {sr(sWave)}')
        elif wrot == 10: a(f's_lshr_b32 {sr(sT0)}, s2, 5'); a(f's_and_b32 {sr(sT0)}, {sr(sT0)}, 1'); a(f's_lshl_b32 {sr(sT0)}, {sr(sT0)}, 2'); a(f's_xor_b32 {sr(sT0)}, {sr(sT0)}, {sr(sWave)}')
        a(f's_and_b32 {sr(sT0)}, {sr(sT0)}, {nw-1}')
        a(f's_lshl_b32 {sr(sT0)}, {sr(sT0)}, 13')
    if wperm:
        assert nw == 8
        a(f's_lshr_b32 {sr(sT0)}, {sr(sT0)}, 13')
        if wperm == 1:
            a(f's_and_b32 {sr(sT1)}, {sr(sT0)}, 1'); a(f's_lshl_b32 {sr(sT1)}, {sr(sT1)}, 2'); a(f's_lshr_b32 {sr(sT0)}, {sr(sT0)}, 1'); a(f's_or_b32 {sr(sT0)}, {sr(sT0)}, {sr(sT1)}')
        elif wperm == 2:
            a(f's_and_b32 {sr(sT1)}, {sr(sT0)}, 3'); a(f's_lshl_b32 {sr(sT1)}, {sr(sT1)}, 1'); a(f's_lshr_b32 {sr(sT0)}, {sr(sT0)}, 2'); a(f's_or_b32 {sr(sT0)}, {sr(sT0)}, {sr(sT1)}')
        elif wperm == 3:
            a(f's_brev_b32 {sr(sT0)}, {sr(sT0)}'); a(f's_lshr_b32 {sr(sT0)}, {sr(sT0)}, 29')
        a(f's_lshl_b32 {sr(sT0)}, {sr(sT0)}, 13')
    a(f's_add_u32 {sr(sOffK)}, {sr(sOffK)}, {sr(sT0)}')
    if perm != 'tr':
        stride = stride * P; region = 1 << 24
    if rot:
        a(f's_mov_b32 {sr(sBase)}, {sr(sOffK)}')
        if rot == 1: a(f's_add_u32 {sr(sPh)}, {sr(sJ)}, {sr(sHk)}')
        elif rot == 2: a(f's_mul_i32 {sr(sPh)}, {sr(sJ)}, 5'); a(f's_mul_i32 {sr(sT0)}, {sr(sHk)}, 3'); a(f's_add_u32 {sr(sPh)}, {sr(sPh)}, {sr(sT0)}')
        elif rot == 3: a(f's_mov_b32 {sr(sPh)}, {sr(sJ)}')
        elif rot == 4: a(f's_mov_b32 {sr(sPh)}, {sr(sHk)}')
        elif rot == 5: a(f's_lshr_b32 {sr(sPh)}, {sr(sJ)}, 1')
        elif rot == 6: a(f's_lshr_b32 {sr(sPh)}, s2, 3')
        elif rot == 7: a(f's_lshr_b32 {sr(sPh)}, {sr(sJ)}, 1'); a(f's_add_u32 {sr(sPh)}, {sr(sPh)}, {sr(sHk)}')
        elif rot == 8: a(f's_lshl_b32 {sr(sPh)}, {sr(sWave)}, 1')
        elif rot == 9: a(f's_mov_b32 {sr(sPh)}, {sr(sWave)}')
        elif rot == 10: a(f's_lshl_b32 {sr(sPh)}, {sr(sWave)}, 1'); a(f's_add_u32 {sr(sPh)}, {sr(sPh)}, {sr(sHk)}')
        elif rot == 11: a(f's_lshr_b32 {sr(sPh)}, {sr(sWave)}, 2'); a(f's_lshl_b32 {sr(sPh)}, {sr(sPh)}, 3')
        elif rot == 12: a(f's_and_b32 {sr(sPh)}, {sr(sWave)}, 3'); a(f's_lshl_b32 {sr(sPh)}, {sr(sPh)}, 2')
        a(f's_mul_i32 {sr(sPh)}, {sr(sPh)}, {stride}')
        a(f's_and_b32 {sr(sPh)}, {sr(sPh)}, {region-1}')
        a(f's_add_u32 {sr(sOffK)}, {sr(sBase)}, {sr(sPh)}')
    def offs():
        a(f's_lshr_b32 {sr(sOffS)}, {sr(sOffK)}, 8')
        a(f's_and_b32 {sr(sOffG)}, {sr(sOffS)}, 0xffffff00')
        a(f's_add_u32 {sr(sOffK2)}, {sr(sOffK)}, 4096')
    offs()
    a('s_waitcnt lgkmcnt(0)')
    def srd(dst, ptr, off_s, off_shift, nbytes):
        if off_shift > 28: a(f's_lshr_b32 {sr(sT1)}, {sr(off_s)}, {32-off_shift}')
        a(f's_lshl_b32 {sr(sT0)}, {sr(off_s)}, {off_shift}')
        a(f's_add_u32 {sr(dst)}, {sr(ptr)}, {sr(sT0)}')
        if off_shift > 28:
            a(f's_addc_u32 {sr(dst+1)}, {sr(ptr+1)}, {sr(sT1)}')
        else:
            a(f's_addc_u32 {sr(dst+1)}, {sr(ptr+1)}, 0')
        a(f's_and_b32 {sr(dst+1)}, {sr(dst+1)}, 0xffff')
        a(f's_mov_b32 {sr(dst+2)}, {nbytes}')
        a(f's_mov_b32 {sr(dst+3)}, 0x20000')
    q_, qk_, qv_, ks_, kz_, vs_, vz_, o_ = [sKA + 2 * i for i in range(8)]
    dbg_, ws_ = sKB, sKB + 2
    def ld_ks():
        a(f'buffer_load_dwordx4 {vr(vKs,4)}, {vr(vKsOff)}, {sr(srdKS,4)}, {sr(sOffG)} offen {spol}')
        a(f'buffer_load_dword {vr(vKz)}, {vr(vKzOff)}, {sr(srdKZ,4)}, {sr(sOffG)} offen {spol}')
    def ld_K(nb):
        for s in range(4):
            if s < 4 - nb:
                for i in (2*s, 2*s+1):
                    a(f'buffer_load_dwordx4 {vr(vKr+4*i,4)}, {vr(vKoff)}, {sr(srdK,4)}, {sr(sOffK)} offen offset:{i*64} {pol}')
            else:
                a(f'buffer_load_dwordx4 {vr(vKr+8*s,4)}, {vr(vKoffB)}, {sr(srdK,4)}, {sr(sOffK)} offen offset:{s*128} {pol}')
                a(f'buffer_load_dwordx4 {vr(vKr+8*s+4,4)}, {vr(vKoffB)}, {sr(srdK,4)}, {sr(sOffK2)} offen offset:{s*128} {pol}')
    def ld_vs():
        a(f'buffer_load_dwordx2 {vr(vVs,2)}, {vr(vSoff)}, {sr(srdVS,4)}, {sr(sOffS)} offen {spol}')
        a(f'buffer_load_dwordx2 {vr(vVz,2)}, {vr(vSoff)}, {sr(srdVZ,4)}, {sr(sOffS)} offen {spol}')
    def ld_V():
        for j in range(4):
            for h in range(2):
                a(f'buffer_load_dwordx4 {vr(vVr+4*(2*j+h),4)}, {vr(vVoff)}, {sr(srdV,4)}, {sr(sOffK)} offen offset:{j*512+h*256} {pol}')
    srd(srdT, q_, sHk, 10, 1024)
    a(f'v_lshl_add_u32 {vr(vT+3)}, {vr(g4)}, 8, {vr(vKsOff)}')
    a(f'buffer_load_dwordx4 {vr(vQw,4)}, {vr(vT+3)}, {sr(srdT,4)}, 0 offen {spol}')
    srd(srdKS, ks_, sHk, 16, 1 << 16)
    srd(srdKZ, kz_, sHk, 16, 1 << 16)
    srd(srdK, qk_, sHk, hshift, 1 << 24)
    ld_ks(); ld_K(nB)
    srd(srdVS, vs_, sHk, 16, 1 << 16)
    srd(srdVZ, vz_, sHk, 16, 1 << 16)
    srd(srdV, qv_, sHk, hshift, 1 << 24)
    ld_vs(); ld_V()
    a(f's_mul_i32 {sr(sT0)}, {sr(sWave)}, {WLDS}')
    a(f'v_mul_u32_u24 {vr(vT+3)}, {QROW}, {vr(g4)}')
    a(f'v_add3_u32 {vr(vLqW)}, {vr(vT+3)}, {vr(vKsOff)}, {sr(sT0)}')
    a(f'v_add_u32 {vr(vLzW)}, {sr(sT0)}, {vr(vKzOff)}')
    a(f'v_add_u32 {vr(vLzW)}, {4*QROW}, {vr(vLzW)}')
    a(f'v_and_b32 {vr(vT+3)}, 3, {vr(vLane)}')
    a(f'v_mul_u32_u24 {vr(vT+3)}, {QROW}, {vr(vT+3)}')
    a(f'v_add3_u32 {vr(vLqR)}, {vr(vT+3)}, {vr(vSoff)}, {sr(sT0)}')
    a(f'v_add_u32 {vr(vLzR)}, {sr(sT0)}, {vr(vSoff)}')
    a(f'v_add_u32 {vr(vLzR)}, {4*QROW}, {vr(vLzR)}')
    a(f'v_add_u32 {vr(vLqRB)}, {vr(vLqR)}, {vr(vSoff)}')
    a(f'v_add_u32 {vr(vLzRB)}, {vr(vLzR)}, {vr(vSoff)}')
    a(f's_mov_b32 {sr(sMask)}, 0xffff0000')
    a(f'v_mov_b32 {vr(vM)}, 0xff800000')
    a(f'v_mov_b32 {vr(vL)}, 0')
    for i in range(4): a(f'v_mov_b32 {vr(vAz+i)}, 0')
    for i in range(32): a(f'v_mov_b32 {vr(vAcc+i)}, 0')
    a(f's_mov_b32 {sr(sT1)}, {f32hex(CEXP)}')
    a(f's_mov_b32 {sr(sCnt)}, {NS-1}')
    if setprio == 1:
        a(f's_cmp_lt_u32 {sr(sWave)}, {nw//2}'); a('s_cbranch_scc1 L_prio'); a('s_setprio 1'); a('L_prio:')
    elif setprio == 2:
        a(f's_bitcmp0_b32 {sr(sWave)}, 0'); a('s_cbranch_scc1 L_prio'); a('s_setprio 1'); a('L_prio:')
    elif setprio == 3:
        for p in (1, 2, 3):
            a(f's_cmp_lt_u32 {sr(sWave)}, {p*nw//4}'); a('s_cbranch_scc1 L_prio'); a(f's_setprio {p}')
        a('L_prio:')
    a('s_waitcnt vmcnt(20)')
    stamp(1)
    for i in range(4):
        a(f'v_lshlrev_b32 {vr(vQc+2*i)}, 16, {vr(vQw+i)}')
        a(f'v_and_b32 {vr(vQc+2*i+1)}, {sr(sMask)}, {vr(vQw+i)}')
    for i in range(8):
        a(f'v_mul_f32 {vr(vQc+i)}, {sr(sT1)}, {vr(vQc+i)}')

    def step(pf, tag, nb_cur, nb_next):
        a('s_waitcnt vmcnt(18)')
        for i in range(4):
            a(f'v_lshlrev_b32 {vr(vT)}, 16, {vr(vKs+i)}')
            a(f'v_and_b32 {vr(vT+1)}, {sr(sMask)}, {vr(vKs+i)}')
            a(f'v_mul_f32 {vr(vT)}, {vr(vT)}, {vr(vQc+2*i)}')
            a(f'v_mul_f32 {vr(vT+1)}, {vr(vT+1)}, {vr(vQc+2*i+1)}')
            a(f'v_cvt_pk_bf16_f32 {vr(vQw+i)}, {vr(vT)}, {vr(vT+1)}')
        a(f'v_xor_b32 {vr(vT+2)}, 0x80008000, {vr(vKz)}')
        a(f'ds_write_b128 {vr(vLqW)}, {vr(vQw,4)}')
        a(f'ds_write_b32 {vr(vLzW)}, {vr(vT+2)}')
        if pf:
            if rot:
                a(f's_add_u32 {sr(sPh)}, {sr(sPh)}, {stride}')
                a(f's_and_b32 {sr(sPh)}, {sr(sPh)}, {region-1}')
                a(f's_add_u32 {sr(sOffK)}, {sr(sBase)}, {sr(sPh)}')
            else:
                a(f's_add_u32 {sr(sOffK)}, {sr(sOffK)}, {stride}')
            offs()
            ld_ks()
        for s in range(4):
            if s < 4 - nb_cur: a(f'ds_read2_b64 {vr(vQB+4*s,4)}, {vr(vLqR)} offset0:{8*s} offset1:{8*s+4}')
            else: a(f'ds_read_b128 {vr(vQB+4*s,4)}, {vr(vLqRB)} offset:{64*s}')
        for s in range(4):
            if s < 4 - nb_cur: a(f'ds_read2_b64 {vr(vPK+4*s,4)}, {vr(vLzR)} offset0:{8*s} offset1:{8*s+4}')
            else: a(f'ds_read_b128 {vr(vPK+4*s,4)}, {vr(vLzRB)} offset:{64*s}')
        a('s_waitcnt lgkmcnt(0)')
        for s in range(4):
            c = '0' if s == 0 else vr(vS, 4)
            a(f'v_mfma_f32_16x16x32_bf16 {vr(vS,4)}, {vr(vPK+4*s,4)}, {vr(vQB+4*s,4)}, {c}')
        if pf and midbar == 2: a('s_barrier')
        a(f's_waitcnt vmcnt({12 if pf else 10})')
        if pf: stamp_it(2, 0); stamp_it(4, 1)
        for i in range(8):
            for c in range(4):
                a(f'v_cvt_f32_i32 {vr(vKr+4*i+c)}, {vr(vKr+4*i+c)}')
            d = vPK + 4 * (i // 2) + 2 * (i % 2)
            a(f'v_cvt_pk_bf16_f32 {vr(d)}, {vr(vKr+4*i)}, {vr(vKr+4*i+1)}')
            a(f'v_cvt_pk_bf16_f32 {vr(d+1)}, {vr(vKr+4*i+2)}, {vr(vKr+4*i+3)}')
        for s in range(4 - nb_cur, 4):
            a(f'v_mov_b32 {vr(vT)}, {vr(vPK+4*s)}')
            a(f'v_mov_b32 {vr(vT+1)}, {vr(vPK+4*s+1)}')
            a('s_nop 0')
            a(f'v_mov_b32_dpp {vr(vPK+4*s)}, {vr(vPK+4*s+2)} row_ror:8 row_mask:0xf bank_mask:0xc')
            a(f'v_mov_b32_dpp {vr(vPK+4*s+1)}, {vr(vPK+4*s+3)} row_ror:8 row_mask:0xf bank_mask:0xc')
            a(f'v_mov_b32_dpp {vr(vPK+4*s+2)}, {vr(vT)} row_ror:8 row_mask:0xf bank_mask:0x3')
            a(f'v_mov_b32_dpp {vr(vPK+4*s+3)}, {vr(vT+1)} row_ror:8 row_mask:0xf bank_mask:0x3')
        if pf:
            ld_K(nb_next)
            if midbar == 1: a('s_barrier')
        else: a('s_nop 1')
        for s in range(4):
            a(f'v_mfma_f32_16x16x32_bf16 {vr(vS,4)}, {vr(vPK+4*s,4)}, {vr(vQB+4*s,4)}, {vr(vS,4)}')
        a(f's_waitcnt vmcnt({18 if pf else 8})')
        f = vT + 4
        a(f'v_lshlrev_b32 {vr(f)}, 16, {vr(vVs)}')
        a(f'v_and_b32 {vr(f+1)}, {sr(sMask)}, {vr(vVs)}')
        a(f'v_lshlrev_b32 {vr(f+2)}, 16, {vr(vVs+1)}')
        a(f'v_and_b32 {vr(f+3)}, {sr(sMask)}, {vr(vVs+1)}')
        a('s_nop 4')
        a(f'v_max3_f32 {vr(vT)}, {vr(vS)}, {vr(vS+1)}, {vr(vS+2)}')
        a(f'v_max_f32 {vr(vT)}, {vr(vT)}, {vr(vS+3)}')
        a(f'v_mov_b32 {vr(vT+1)}, {vr(vT)}')
        a('s_nop 1')
        a(f'v_permlane16_swap_b32 {vr(vT)}, {vr(vT+1)}')
        a(f'v_max_f32 {vr(vT)}, {vr(vT)}, {vr(vT+1)}')
        a(f'v_mov_b32 {vr(vT+1)}, {vr(vT)}')
        a('s_nop 1')
        a(f'v_permlane32_swap_b32 {vr(vT)}, {vr(vT+1)}')
        a(f'v_max3_f32 {vr(vT)}, {vr(vT)}, {vr(vT+1)}, {vr(vM)}')
        a(f'v_sub_f32 {vr(vAl)}, {vr(vM)}, {vr(vT)}')
        a(f'v_cmp_gt_f32 vcc, {vr(vT)}, {vr(vM)}')
        a(f'v_mov_b32 {vr(vM)}, {vr(vT)}')
        a(f'v_exp_f32 {vr(vAl)}, {vr(vAl)}')
        for r in range(4): a(f'v_sub_f32 {vr(vS+r)}, {vr(vS+r)}, {vr(vM)}')
        for r in range(4): a(f'v_exp_f32 {vr(vS+r)}, {vr(vS+r)}')
        a(f's_cbranch_vccz L_nors_{tag}')
        for r in range(4): a(f'v_readlane_b32 {sr(sAl+r)}, {vr(vAl)}, {r}')
        a('s_nop 1')
        for i in range(8):
            for r in range(4):
                a(f'v_mul_f32 {vr(vAcc+4*i+r)}, {sr(sAl+r)}, {vr(vAcc+4*i+r)}')
        for r in range(4): a(f'v_mul_f32 {vr(vAz+r)}, {sr(sAl+r)}, {vr(vAz+r)}')
        a(f'L_nors_{tag}:')
        a(f'v_add_f32 {vr(vT)}, {vr(vS)}, {vr(vS+1)}')
        a(f'v_add_f32 {vr(vT+1)}, {vr(vS+2)}, {vr(vS+3)}')
        a(f'v_fma_f32 {vr(vL)}, {vr(vL)}, {vr(vAl)}, {vr(vT)}')
        for r in range(4): a(f'v_mul_f32 {vr(vS+r)}, {vr(vS+r)}, {vr(f+r)}')
        a(f'v_add_f32 {vr(vL)}, {vr(vL)}, {vr(vT+1)}')
        a(f'v_cvt_pk_bf16_f32 {vr(vP)}, {vr(vS)}, {vr(vS+1)}')
        a(f'v_cvt_pk_bf16_f32 {vr(vP+1)}, {vr(vS+2)}, {vr(vS+3)}')
        a('s_nop 1')
        a(f'v_mfma_f32_16x16x16_bf16 {vr(vAz,4)}, {vr(vP,2)}, {vr(vVz,2)}, {vr(vAz,4)}')
        if not pf: early_publish()
        R = lambda j, h, c: vVr + 4 * (2 * j + h) + c
        def vhalf(jp):
            for h in range(2):
                for c in range(4):
                    a(f'v_cvt_f32_i32 {vr(R(2*jp,h,c))}, {vr(R(2*jp,h,c))}')
                    a(f'v_cvt_f32_i32 {vr(R(2*jp+1,h,c))}, {vr(R(2*jp+1,h,c))}')
                    a(f'v_cvt_pk_bf16_f32 {vr(vPK+2*(4*h+c)+jp)}, {vr(R(2*jp,h,c))}, {vr(R(2*jp+1,h,c))}')
        base = 10 if pf else 0
        if pf and midbar == 3: a('s_barrier')
        if vsplit:
            a(f's_waitcnt vmcnt({base+4})'); vhalf(0)
            a(f's_waitcnt vmcnt({base})'); vhalf(1)
        else:
            a(f's_waitcnt vmcnt({base})'); vhalf(0); vhalf(1)
        if pf:
            ld_vs(); ld_V()
            stamp_it(3, 0); stamp_it(5, 1); stamp_it(6, 7)
        else: a('s_nop 1')
        for i in range(8):
            a(f'v_mfma_f32_16x16x16_bf16 {vr(vAcc+4*i,4)}, {vr(vP,2)}, {vr(vPK+2*i,2)}, {vr(vAcc+4*i,4)}')

    vF = vKr
    vLw = vKr + 8
    vZw = vKr + 16
    vMx, vLs, vZs = vKr + 24, vKr + 25, vKr + 26
    vO = vKr + 16
    def early_publish():
        a(f'v_mov_b32 {vr(vT+1)}, {vr(vL)}')
        a('s_nop 1')
        a(f'v_permlane16_swap_b32 {vr(vL)}, {vr(vT+1)}')
        a(f'v_add_f32 {vr(vL)}, {vr(vL)}, {vr(vT+1)}')
        a(f'v_mov_b32 {vr(vT+1)}, {vr(vL)}')
        a('s_nop 1')
        a(f'v_permlane32_swap_b32 {vr(vL)}, {vr(vT+1)}')
        a(f'v_add_f32 {vr(vL)}, {vr(vL)}, {vr(vT+1)}')
        a(f's_lshl_b32 {sr(sT1)}, {sr(sWave)}, 2')
        a(f's_add_u32 {sr(sT1)}, {sr(sT1)}, {MB}')
        a(f'v_mul_u32_u24 {vr(vT+2)}, {RS}, {vr(vLane)}')
        a(f'v_add_u32 {vr(vT+2)}, {sr(sT1)}, {vr(vT+2)}')
        a('s_mov_b64 exec, 0xf')
        a(f'ds_write_b32 {vr(vT+2)}, {vr(vM)}')
        a(f'ds_write_b32 {vr(vT+2)}, {vr(vL)} offset:{4*RS}')
        a('s_mov_b64 exec, 1')
        for r in range(4):
            a(f'ds_write_b32 {vr(vT+2)}, {vr(vAz+r)} offset:{8*RS+r*RS}')
        a('s_mov_b64 exec, -1')
        a(f'v_and_b32 {vr(vT)}, 3, v0')
        a(f'v_mul_u32_u24 {vr(vT)}, {RS}, {vr(vT)}')
        a(f'v_add_u32 {vr(vT)}, {MB}, {vr(vT)}')
        a('s_waitcnt lgkmcnt(0)')
        a('s_barrier')
        for k in range(nw // 4):
            a(f'ds_read_b128 {vr(vF+4*k,4)}, {vr(vT)} offset:{16*k}')
            a(f'ds_read_b128 {vr(vLw+4*k,4)}, {vr(vT)} offset:{4*RS+16*k}')
            a(f'ds_read_b128 {vr(vZw+4*k,4)}, {vr(vT)} offset:{8*RS+16*k}')
        a('s_waitcnt lgkmcnt(0)')
        a(f'v_max3_f32 {vr(vMx)}, {vr(vF)}, {vr(vF+1)}, {vr(vF+2)}')
        for w in range(3, nw): a(f'v_max_f32 {vr(vMx)}, {vr(vMx)}, {vr(vF+w)}')
        for w in range(nw): a(f'v_sub_f32 {vr(vF+w)}, {vr(vF+w)}, {vr(vMx)}')
        for w in range(nw): a(f'v_exp_f32 {vr(vF+w)}, {vr(vF+w)}')
        a('s_nop 0')
        a(f'v_mul_f32 {vr(vLs)}, {vr(vF)}, {vr(vLw)}')
        a(f'v_mul_f32 {vr(vZs)}, {vr(vF)}, {vr(vZw)}')
        for w in range(1, nw):
            a(f'v_fmac_f32 {vr(vLs)}, {vr(vF+w)}, {vr(vLw+w)}')
            a(f'v_fmac_f32 {vr(vZs)}, {vr(vF+w)}, {vr(vZw+w)}')

    if nBalt is None and nlate == 0:
        a('L_loop:')
        step(1, 'loop', nB, nB)
        if bar == 1: a('s_barrier')
        elif bar > 1:
            a(f's_and_b32 {sr(sT0)}, {sr(sCnt)}, {bar-1}')
            a('s_cbranch_scc1 L_nobar')
            a('s_barrier')
            a('L_nobar:')
        a(f's_sub_u32 {sr(sCnt)}, {sr(sCnt)}, 1')
        a(f's_cmp_lg_u32 {sr(sCnt)}, 0')
        a('s_cbranch_scc1 L_loop')
        nb_last = nB
    elif nlate:
        a(f's_mov_b32 {sr(sCnt)}, {NS - nlate - 1}')
        a('L_loop:')
        step(1, 'loop', nB, nB)
        if bar: a('s_barrier')
        a(f's_sub_u32 {sr(sCnt)}, {sr(sCnt)}, 1')
        a(f's_cmp_lg_u32 {sr(sCnt)}, 0')
        a('s_cbranch_scc1 L_loop')
        step(1, 'trans', nB, nBlate)
        if bar: a('s_barrier')
        if nlate > 1:
            a(f's_mov_b32 {sr(sCnt)}, {nlate - 1}')
            a('L_loop2:')
            step(1, 'loop2', nBlate, nBlate)
            if bar: a('s_barrier')
            a(f's_sub_u32 {sr(sCnt)}, {sr(sCnt)}, 1')
            a(f's_cmp_lg_u32 {sr(sCnt)}, 0')
            a('s_cbranch_scc1 L_loop2')
        nb_last = nBlate
    else:
        assert NS % 2 == 0
        a(f's_mov_b32 {sr(sCnt)}, {NS // 2 - 1}')
        a('L_loop:')
        step(1, 'loopa', nB, nBalt)
        if bar: a('s_barrier')
        step(1, 'loopb', nBalt, nB)
        if bar: a('s_barrier')
        a(f's_sub_u32 {sr(sCnt)}, {sr(sCnt)}, 1')
        a(f's_cmp_lg_u32 {sr(sCnt)}, 0')
        a('s_cbranch_scc1 L_loop')
        step(1, 'prelast', nB, nBalt)
        if bar: a('s_barrier')
        nb_last = nBalt
    if prof != 4: stamp(2)
    step(0, 'last', nb_last, nb_last)
    if prof not in (3, 4): stamp(3)
    a(f's_lshl_b32 {sr(sT0)}, {sr(sWave)}, 11')
    a(f's_add_u32 {sr(sT0)}, {sr(sT0)}, {OB}')
    a(f'v_add_u32 {vr(vT)}, {sr(sT0)}, {vr(vKsOff)}')
    a(f'v_lshlrev_b32 {vr(vT+1)}, 2, v0')
    a(f'v_add_u32 {vr(vT+2)}, {OB}, {vr(vT+1)}')
    a('s_mov_b64 exec, 0xffff')
    a('s_nop 1')
    for i in range(8):
        a(f'ds_write_b128 {vr(vT)}, {vr(vAcc+4*i,4)} offset:{i*256}')
    a('s_mov_b64 exec, -1')
    a(f's_mul_i32 {sr(sT1)}, s2, {PSTRIDE}')
    a(f's_add_u32 {sr(srdT)}, {sr(ws_)}, {sr(sT1)}')
    a(f's_addc_u32 {sr(srdT+1)}, {sr(ws_+1)}, 0')
    a(f's_and_b32 {sr(srdT+1)}, {sr(srdT+1)}, 0xffff')
    a(f's_mov_b32 {sr(srdT+2)}, {PSTRIDE}')
    a(f's_mov_b32 {sr(srdT+3)}, 0x20000')
    a('s_waitcnt lgkmcnt(0)')
    a('s_barrier')
    vOw = vVr
    vRes = vVr + 16
    for ch in range(nch):
        for w in range(nw):
            a(f'ds_read_b32 {vr(vOw+ch*nw+w)}, {vr(vT+2)} offset:{w*2048+ch*nthr*4}')
    for ch in range(nch):
        a(f's_waitcnt lgkmcnt({(nch-1-ch)*nw})')
        a(f'v_fma_f32 {vr(vRes+ch)}, {vr(vF)}, {vr(vOw+ch*nw)}, -{vr(vZs)}')
        for w in range(1, nw):
            a(f'v_fmac_f32 {vr(vRes+ch)}, {vr(vF+w)}, {vr(vOw+ch*nw+w)}')
    if prof not in (3, 4): stamp(4)
    for ch in range(nch):
        a(f'buffer_store_dword {vr(vRes+ch)}, {vr(vT+1)}, {sr(srdT,4)}, 0 offen offset:{ch*nthr*4} sc1')
    a('v_cmp_gt_u32 vcc, 4, v0')
    a(f's_and_saveexec_b64 {sr(sEx,2)}, vcc')
    a('s_cbranch_execz L_nost')
    a(f'buffer_store_dword {vr(vMx)}, {vr(vT+1)}, {sr(srdT,4)}, 0 offen offset:2048 sc1')
    a(f'buffer_store_dword {vr(vLs)}, {vr(vT+1)}, {sr(srdT,4)}, 0 offen offset:2064 sc1')
    a('L_nost:')
    a(f's_mov_b64 exec, {sr(sEx,2)}')
    a(f's_mov_b32 {sr(srdKS)}, {sr(dbg_)}')
    a(f's_and_b32 {sr(srdKS+1)}, {sr(dbg_+1)}, 0xffff')
    a(f's_mov_b32 {sr(srdKS+2)}, 256')
    a(f's_lshl_b32 {sr(sOffG)}, {sr(sHk)}, {cshift}')
    if coff: a(f's_add_u32 {sr(sOffG)}, {sr(sOffG)}, {coff}')
    a(f's_mul_i32 {sr(sT1)}, {sr(sHk)}, {P*PSTRIDE}')
    a(f's_add_u32 {sr(srdV)}, {sr(ws_)}, {sr(sT1)}')
    a(f's_addc_u32 {sr(srdV+1)}, {sr(ws_+1)}, 0')
    a(f's_and_b32 {sr(srdV+1)}, {sr(srdV+1)}, 0xffff')
    a(f's_mov_b32 {sr(srdV+2)}, {P*PSTRIDE}')
    a(f's_lshl_b32 {sr(sT1)}, {sr(sHk)}, 10')
    a(f's_add_u32 {sr(srdK)}, {sr(o_)}, {sr(sT1)}')
    a(f's_addc_u32 {sr(srdK+1)}, {sr(o_+1)}, 0')
    a(f's_and_b32 {sr(srdK+1)}, {sr(srdK+1)}, 0xffff')
    a(f's_mov_b32 {sr(srdK+2)}, 1024')
    vML = vT + 2
    vBp = vT + 3
    vOa = vT + 4
    a(f'v_and_b32 {vr(vBp)}, 3, {vr(vLane)}')
    a(f'v_lshlrev_b32 {vr(vBp)}, 6, {vr(vBp)}')
    a(f'v_and_b32 {vr(vML)}, 15, {vr(vLane)}')
    a(f'v_lshlrev_b32 {vr(vML)}, 12, {vr(vML)}')
    a(f'v_lshrrev_b32 {vr(vT+6)}, 4, {vr(vLane)}')
    a(f'v_lshl_add_u32 {vr(vML)}, {vr(vT+6)}, 2, {vr(vML)}')
    for ch in range(nch):
        e, x, y = vT + 6, vOa + ch, vT + 7
        a(f'v_add_u32 {vr(e)}, {ch*nthr}, v0')
        a(f'v_and_b32 {vr(x)}, 3, {vr(e)}'); a(f'v_lshlrev_b32 {vr(x)}, 7, {vr(x)}')
        a(f'v_lshrrev_b32 {vr(y)}, 8, {vr(e)}'); a(f'v_lshl_add_u32 {vr(x)}, {vr(y)}, 6, {vr(x)}')
        a(f'v_bfe_u32 {vr(y)}, {vr(e)}, 2, 4'); a(f'v_lshl_add_u32 {vr(x)}, {vr(y)}, 2, {vr(x)}')
        a(f'v_bfe_u32 {vr(y)}, {vr(e)}, 6, 2'); a(f'v_add_u32 {vr(x)}, {vr(x)}, {vr(y)}')
        a(f'v_lshlrev_b32 {vr(x)}, 1, {vr(x)}')
    a(f'v_mov_b32 {vr(vT+6)}, {TK}')
    a('s_waitcnt vmcnt(0)')
    if prof not in (3, 4): stamp(5)
    a('s_barrier')
    a(f's_cmp_lg_u32 {sr(sWave)}, 0')
    a('s_cbranch_scc1 L_noat')
    a('s_mov_b64 exec, 1')
    a(f'v_mov_b32 {vr(vT+7)}, 1')
    a(f'v_mov_b32 {vr(vT)}, 0')
    a(f'buffer_atomic_add {vr(vT+7)}, {vr(vT)}, {sr(srdKS,4)}, {sr(sOffG)} offen sc0')
    a('s_waitcnt vmcnt(0)')
    a(f'ds_write_b32 {vr(vT+6)}, {vr(vT+7)}')
    a('s_mov_b64 exec, -1')
    a('s_waitcnt lgkmcnt(0)')
    a('L_noat:')
    a('s_barrier')
    a(f'ds_read_b32 {vr(vT+7)}, {vr(vT+6)}')
    a('s_waitcnt lgkmcnt(0)')
    a(f'v_readfirstlane_b32 {sr(sT0)}, {vr(vT+7)}')
    a('s_nop 3')
    if prof != 4: stamp(6)
    a(f's_cmp_lg_u32 {sr(sT0)}, {P-1}')
    a('s_cbranch_scc1 L_notlast')
    cM, cL, cW = vKr, vKr + 1, vKr + 4
    cO = vVr
    assert nch * P <= 32
    a(f'buffer_load_dword {vr(cM)}, {vr(vML)}, {sr(srdV,4)}, 0 offen offset:2048 sc1')
    a(f'buffer_load_dword {vr(cL)}, {vr(vML)}, {sr(srdV,4)}, 0 offen offset:2064 sc1')
    for w in range(P):
        a(f's_movk_i32 {sr(sT1)}, {w*PSTRIDE if w*PSTRIDE < 32768 else 0}' if w*PSTRIDE < 32768 else f's_mov_b32 {sr(sT1)}, {w*PSTRIDE}')
        for ch in range(nch):
            a(f'buffer_load_dword {vr(cO+ch*P+w)}, {vr(vT+1)}, {sr(srdV,4)}, {sr(sT1)} offen offset:{ch*nthr*4} sc1')
    x, y = vKr + 2, vKr + 3
    a(f's_waitcnt vmcnt({nch*P})')
    if prof == 3: stamp(4)
    def allreduce(reg, op):
        for k in (1, 2, 4, 8):
            a('s_nop 1')
            a(f'{op}_dpp {vr(reg)}, {vr(reg)}, {vr(reg)} row_ror:{k} row_mask:0xf bank_mask:0xf')
    a(f'v_mov_b32 {vr(x)}, {vr(cM)}')
    allreduce(x, 'v_max_f32')
    a(f'v_sub_f32 {vr(cM)}, {vr(cM)}, {vr(x)}')
    a(f'v_exp_f32 {vr(cM)}, {vr(cM)}')
    a('s_nop 0')
    a(f'v_mul_f32 {vr(x)}, {vr(cM)}, {vr(cL)}')
    allreduce(x, 'v_add_f32')
    a(f'v_rcp_f32 {vr(cL)}, {vr(x)}')
    a('s_nop 0')
    a(f'v_mul_f32 {vr(cM)}, {vr(cM)}, {vr(cL)}')
    for w in range(P):
        a(f'ds_bpermute_b32 {vr(cW+w)}, {vr(vBp)}, {vr(cM)} offset:{4*w}')
    if prof == 3:
        a('s_waitcnt lgkmcnt(0)'); stamp(3)
    a('s_waitcnt vmcnt(0) lgkmcnt(0)')
    if prof == 3: stamp(5)
    for ch in range(nch):
        a(f'v_mul_f32 {vr(x)}, {vr(cW)}, {vr(cO+ch*P)}')
        for w in range(1, P): a(f'v_fmac_f32 {vr(x)}, {vr(cW+w)}, {vr(cO+ch*P+w)}')
        a(f'v_cvt_pk_bf16_f32 {vr(x)}, {vr(x)}, {vr(x)}')
        a(f'buffer_store_short {vr(x)}, {vr(vOa+ch)}, {sr(srdK,4)}, 0 offen {opol}')
    if dbgprof:
        a('s_waitcnt vmcnt(0)')
        a(f's_cmp_lg_u32 {sr(sWave)}, 0')
        a('s_cbranch_scc1 L_end')
        stamp(7)
        a(f's_memtime {sr(sTm+2,2)}')
        a('s_waitcnt lgkmcnt(0)')
        a('s_mov_b64 exec, 1')
        a(f'v_mov_b32 {vr(vT)}, 0')
        for i in range(1, 8):
            a(f's_sub_u32 {sr(sT0)}, {sr(sSt+2*i)}, {sr(sSt)}')
            a(f'v_mov_b32 {vr(vKr+i)}, {sr(sT0)}')
        a(f's_sub_u32 {sr(sT0)}, {sr(sSt+14)}, {sr(sSt+12)}'); a(f'v_mov_b32 {vr(vKr+8)}, {sr(sT0)}')
        a(f's_sub_u32 {sr(sT0)}, {sr(sSt+14)}, {sr(sSt+6)}'); a(f'v_mov_b32 {vr(vKr+9)}, {sr(sT0)}')
        a(f's_sub_u32 {sr(sT0)}, {sr(sTm+2)}, {sr(sTm)}'); a(f'v_mov_b32 {vr(vKr+10)}, {sr(sT0)}')
        for i in range(1, 11):
            a(f'buffer_atomic_umax {vr(vKr+i)}, {vr(vT)}, {sr(srdKS,4)}, 0 offen offset:{4*i}')
    a('L_notlast:')
    if prof in (2, 3, 4):
        a('s_waitcnt vmcnt(0)')
        stamp(7)
        if prof == 2: a(f's_memtime {sr(sTm+2,2)}')
        a('s_waitcnt lgkmcnt(0)')
        if prof != 4:
            a(f's_cmp_lg_u32 {sr(sWave)}, 0')
            a('s_cbranch_scc1 L_end')
        a(f's_add_u32 {sr(srdT)}, {sr(ws_)}, 0x4000000')
        a(f's_addc_u32 {sr(srdT+1)}, {sr(ws_+1)}, 0')
        a(f's_and_b32 {sr(srdT+1)}, {sr(srdT+1)}, 0xffff')
        a(f's_mov_b32 {sr(srdT+2)}, 0x100000')
        if prof != 4:
            a(f's_lshl_b32 {sr(sT1)}, s2, 6')
        else:
            a(f's_mul_i32 {sr(sT1)}, s2, {nw}'); a(f's_add_u32 {sr(sT1)}, {sr(sT1)}, {sr(sWave)}'); a(f's_lshl_b32 {sr(sT1)}, {sr(sT1)}, 6')
        for i in range(8): a(f'v_mov_b32 {vr(vKr+i)}, {sr(sSt+2*i)}')
        a(f's_getreg_b32 {sr(sT0)}, hwreg(HW_REG_XCC_ID)')
        a(f'v_mov_b32 {vr(vKr+8)}, {sr(sT0)}')
        a(f's_getreg_b32 {sr(sT0)}, hwreg(HW_REG_HW_ID)')
        a(f'v_mov_b32 {vr(vKr+9)}, {sr(sT0)}')
        if prof == 2:
            a(f's_sub_u32 {sr(sT0)}, {sr(sTm+2)}, {sr(sTm)}')
            a(f'v_mov_b32 {vr(vKr+10)}, {sr(sT0)}')
        a(f'v_mov_b32 {vr(vT)}, 0')
        a('s_mov_b64 exec, 1')
        a(f'buffer_store_dwordx4 {vr(vKr,4)}, {vr(vT)}, {sr(srdT,4)}, {sr(sT1)} offen')
        a(f'buffer_store_dwordx4 {vr(vKr+4,4)}, {vr(vT)}, {sr(srdT,4)}, {sr(sT1)} offen offset:16')
        a(f'buffer_store_dwordx4 {vr(vKr+8,4)}, {vr(vT)}, {sr(srdT,4)}, {sr(sT1)} offen offset:32')
    if padto:
        a('s_waitcnt vmcnt(0) lgkmcnt(0)')
        a('L_pad:')
        a(f's_memrealtime {sr(sTm+2,2)}')
        a('s_waitcnt lgkmcnt(0)')
        a(f's_sub_u32 {sr(sT0)}, {sr(sTm+2)}, {sr(sTm)}')
        a(f's_cmp_lt_u32 {sr(sT0)}, {padto}')
        a('s_cbranch_scc1 L_pad')
    a('L_end:')
    a('s_endpgm')
    main = '\n'.join(out)
    acc = (nvgpr + 3) // 4 * 4
    kd = f'''.amdhsa_kernel {KN}
  .amdhsa_next_free_vgpr {nvgpr}
  .amdhsa_next_free_sgpr {S.n}
  .amdhsa_accum_offset {acc}
  .amdhsa_group_segment_fixed_size 0
  .amdhsa_kernarg_size 80
  .amdhsa_user_sgpr_count 2
  .amdhsa_user_sgpr_kernarg_segment_ptr 1
  .amdhsa_system_sgpr_workgroup_id_x 1
  .amdhsa_float_denorm_mode_32 3
.end_amdhsa_kernel
'''
    src = HEADCOMMENT + f'; @launch grid=({nwg},1,1) block=({nthr},1,1) lds={lds_bytes}\n'
    src += '.amdgcn_target "amdgcn-amd-amdhsa--gfx950"\n.text\n'
    src += f'.globl {KN}\n.p2align 8\n.type {KN},@function\n{main}\n'
    src += '.section .rodata,"a"\n.p2align 6\n' + kd
    return src, [(KN, nwg, nthr, lds_bytes)]

if __name__ == '__main__':
    import argparse
    ap = argparse.ArgumentParser()
    ap.add_argument('-o', default='out.s')
    ap.add_argument('kv', nargs='*')
    args = ap.parse_args()
    kw = {}
    for x in args.kv:
        k, v = x.split('=')
        try: v = int(v)
        except ValueError: pass
        kw[k] = v
    src, l = gen(**kw)
    open(args.o, 'w').write(src)
    print(l)
```

```python
import struct
KN = 'standalone__kv_cache_quant_int4_int2_kv_with_per_channel_or_per_token_scales__decode_kernel'

HEADCOMMENT = '''; KIVI-style quantised KV-cache decode attention (B=2, Hq=32, Hkv=8, Skv=32768, Dh=128), one fused launch.
; Kernarg layout for this problem (80 bytes, ptrs only, base s[0:1]):
;
; Phase 1 streams the K tiles: scores = qk . bf16(q*ks*c) - kz . bf16(q*ks*c) on the matrix cores (c = Dh^-0.5*log2 e),
;   scores parked in LDS, running maximum kept.  Phase 2 streams the V tiles: p = exp2(s - max),
'''

class Alloc:
    def __init__(self, start, limit):
        self.n = start; self.limit = limit
    def get(self, cnt=1, align=1):
        self.n = (self.n + align - 1) // align * align
        r = self.n; self.n += cnt
        assert self.n <= self.limit, self.n
        return r

def vr(r, n=1): return f'v{r}' if n == 1 else f'v[{r}:{r+n-1}]'
def sr(r, n=1): return f's{r}' if n == 1 else f's[{r}:{r+n-1}]'
def f32hex(x): return '0x%08x' % struct.unpack('<I', struct.pack('<f', x))[0]

PSTRIDE = 4096
QROW = 288
WLDS = 1536
CEXP = 0.08838834764831845 * 1.4426950408889634

def gen(nw=8, bar=1, pol='nt', spol='nt', nB=2, prof=0, dbgprof=0, coff=0, cshift=2, opol='', padto=0,
        wrot=0, perm='tr', minvgpr=176, kbar=None, vbar=None, minlds=0):
    P = 16
    nwg = 16 * P
    NT = 32768 // (P * nw * 16)
    nthr = nw * 64
    nch = 512 // nthr
    if kbar is None: kbar = bar
    if vbar is None: vbar = bar
    out = []
    a = out.append
    V = Alloc(1, 256); S = Alloc(3, 102)
    sWave = S.get()
    sKA = S.get(16, 4); sKB = S.get(4, 4)
    srdK = S.get(4, 4); srdV = S.get(4, 4); srdKS = S.get(4, 4); srdKZ = S.get(4, 4)
    srdVS = S.get(4, 4); srdVZ = S.get(4, 4); srdT = S.get(4, 4)
    sHk = S.get(); sJ = S.get()
    sOffK = S.get(); sOffS = S.get(); sOffG = S.get(); sOffK2 = S.get(); sOff0 = S.get()
    sCnt = S.get(); sT0 = S.get(); sT1 = S.get()
    sMask = S.get(); sEx = S.get(2, 2); sQuad = S.get(2, 2)
    stamps = prof == 2 or dbgprof
    sSt = S.get(16, 2) if stamps else None
    sTm = S.get(4, 2) if (dbgprof or padto or prof == 2) else None
    def stamp(i):
        if stamps: a(f's_memrealtime {sr(sSt+2*i,2)}')
    vLane = V.get()
    vKoff = V.get(); vVoff = V.get(); vSoff = V.get(); vKsOff = V.get(); vKzOff = V.get()
    vKoffB = V.get(); vLqRB = V.get(); vLzRB = V.get()
    vLqW = V.get(); vLzW = V.get(); vLqR = V.get(); vLzR = V.get()
    vSa = V.get()
    vM = V.get(); vL = V.get()
    vT = V.get(8, 2)
    vQc = V.get(8, 4)
    vKs = V.get(4, 4); vKz = V.get(); vVs = V.get(2, 2); vVz = V.get(2, 2)
    vQw = V.get(4, 4); vP = V.get(2, 2); vS = V.get(4, 4); vAz = V.get(4, 4)
    vAcc = V.get(32, 4); vQB = V.get(16, 4); vPK = V.get(16, 4)
    vR = V.get(32, 4)
    nvgpr = max(V.n, minvgpr)
    SB = nw * WLDS
    OB = SB + nw * NT * 256
    MB = OB + nw * 2048
    RS = nw * 4
    TK = MB + 12 * RS
    lds_bytes = max(TK + 16, minlds)

    a(f'{KN}:')
    a(f's_cmp_ge_u32 s2, {nwg}')
    a('s_cbranch_scc1 L_end')
    a(f's_load_dwordx16 {sr(sKA,16)}, s[0:1], 0')
    a(f's_load_dwordx4 {sr(sKB,4)}, s[0:1], 64')
    stamp(0)
    if dbgprof or prof == 2: a(f's_memtime {sr(sTm,2)}')
    if padto: a(f's_memrealtime {sr(sTm,2)}')
    a(f'v_lshrrev_b32 {vr(vT)}, 6, v0')
    a(f'v_and_b32 {vr(vLane)}, 63, v0')
    a(f's_lshr_b32 {sr(sHk)}, s2, 4')
    a(f'v_readfirstlane_b32 {sr(sWave)}, {vr(vT)}')
    a(f's_and_b32 {sr(sJ)}, s2, {P-1}')
    n15, g4 = vT + 1, vT + 2
    a(f'v_and_b32 {vr(n15)}, 15, {vr(vLane)}')
    a(f'v_lshrrev_b32 {vr(g4)}, 4, {vr(vLane)}')
    a(f'v_lshlrev_b32 {vr(vKsOff)}, 4, {vr(n15)}')
    a(f'v_lshlrev_b32 {vr(vT+3)}, 9, {vr(n15)}')
    a(f'v_lshl_add_u32 {vr(vKoff)}, {vr(g4)}, 4, {vr(vT+3)}')
    a(f'v_lshl_add_u32 {vr(vVoff)}, {vr(g4)}, 11, {vr(vKsOff)}')
    a(f'v_lshlrev_b32 {vr(vSoff)}, 3, {vr(g4)}')
    a(f'v_lshlrev_b32 {vr(vKzOff)}, 2, {vr(vLane)}')
    a(f'v_and_b32 {vr(vT+3)}, 7, {vr(vLane)}')
    a(f'v_lshlrev_b32 {vr(vT+3)}, 9, {vr(vT+3)}')
    a(f'v_lshrrev_b32 {vr(vT+4)}, 3, {vr(vLane)}')
    a(f'v_lshl_add_u32 {vr(vKoffB)}, {vr(vT+4)}, 4, {vr(vT+3)}')
    stride = nw * 16 * 512
    if perm == 'tr': a(f's_lshl_b32 {sr(sOff0)}, {sr(sJ)}, 20')
    else: a(f's_mul_i32 {sr(sOff0)}, {sr(sJ)}, {stride}')
    if wrot == 0: a(f's_lshl_b32 {sr(sT0)}, {sr(sWave)}, 13')
    else:
        if wrot == 3: a(f's_lshr_b32 {sr(sT0)}, s2, 3'); a(f's_and_b32 {sr(sT0)}, {sr(sT0)}, 1'); a(f's_lshl_b32 {sr(sT0)}, {sr(sT0)}, {(nw//2).bit_length()-1}'); a(f's_xor_b32 {sr(sT0)}, {sr(sT0)}, {sr(sWave)}')
        elif wrot == 8: a(f's_lshr_b32 {sr(sT0)}, s2, 3'); a(f's_and_b32 {sr(sT0)}, {sr(sT0)}, 3'); a(f's_lshl_b32 {sr(sT0)}, {sr(sT0)}, 1'); a(f's_xor_b32 {sr(sT0)}, {sr(sT0)}, {sr(sWave)}')
        a(f's_and_b32 {sr(sT0)}, {sr(sT0)}, {nw-1}')
        a(f's_lshl_b32 {sr(sT0)}, {sr(sT0)}, 13')
    a(f's_add_u32 {sr(sOff0)}, {sr(sOff0)}, {sr(sT0)}')
    if perm != 'tr': stride = stride * P
    a(f's_mov_b32 {sr(sOffK)}, {sr(sOff0)}')
    def offsK():
        a(f's_lshr_b32 {sr(sOffG)}, {sr(sOffK)}, 8')
        a(f's_and_b32 {sr(sOffG)}, {sr(sOffG)}, 0xffffff00')
        if nB: a(f's_add_u32 {sr(sOffK2)}, {sr(sOffK)}, 4096')
    def offsV():
        a(f's_lshr_b32 {sr(sOffS)}, {sr(sOffK)}, 8')
    offsK()
    a('s_waitcnt lgkmcnt(0)')
    def srd(dst, ptr, off_s, off_shift, nbytes):
        a(f's_lshl_b32 {sr(sT0)}, {sr(off_s)}, {off_shift}')
        a(f's_add_u32 {sr(dst)}, {sr(ptr)}, {sr(sT0)}')
        a(f's_addc_u32 {sr(dst+1)}, {sr(ptr+1)}, 0')
        a(f's_and_b32 {sr(dst+1)}, {sr(dst+1)}, 0xffff')
        a(f's_mov_b32 {sr(dst+2)}, {nbytes}')
        a(f's_mov_b32 {sr(dst+3)}, 0x20000')
    q_, qk_, qv_, ks_, kz_, vs_, vz_, o_ = [sKA + 2 * i for i in range(8)]
    dbg_, ws_ = sKB, sKB + 2
    def ld_ks():
        a(f'buffer_load_dwordx4 {vr(vKs,4)}, {vr(vKsOff)}, {sr(srdKS,4)}, {sr(sOffG)} offen {spol}')
        a(f'buffer_load_dword {vr(vKz)}, {vr(vKzOff)}, {sr(srdKZ,4)}, {sr(sOffG)} offen {spol}')
    def ld_K():
        for s in range(4):
            if s < 4 - nB:
                for i in (2*s, 2*s+1):
                    a(f'buffer_load_dwordx4 {vr(vR+4*i,4)}, {vr(vKoff)}, {sr(srdK,4)}, {sr(sOffK)} offen offset:{i*64} {pol}')
            else:
                a(f'buffer_load_dwordx4 {vr(vR+8*s,4)}, {vr(vKoffB)}, {sr(srdK,4)}, {sr(sOffK)} offen offset:{s*128} {pol}')
                a(f'buffer_load_dwordx4 {vr(vR+8*s+4,4)}, {vr(vKoffB)}, {sr(srdK,4)}, {sr(sOffK2)} offen offset:{s*128} {pol}')
    def ld_vs():
        a(f'buffer_load_dwordx2 {vr(vVs,2)}, {vr(vSoff)}, {sr(srdVS,4)}, {sr(sOffS)} offen {spol}')
        a(f'buffer_load_dwordx2 {vr(vVz,2)}, {vr(vSoff)}, {sr(srdVZ,4)}, {sr(sOffS)} offen {spol}')
    def ld_V():
        for j in range(4):
            for h in range(2):
                a(f'buffer_load_dwordx4 {vr(vR+4*(2*j+h),4)}, {vr(vVoff)}, {sr(srdV,4)}, {sr(sOffK)} offen offset:{j*512+h*256} {pol}')
    srd(srdT, q_, sHk, 10, 1024)
    a(f'v_lshl_add_u32 {vr(vT+3)}, {vr(g4)}, 8, {vr(vKsOff)}')
    a(f'buffer_load_dwordx4 {vr(vQw,4)}, {vr(vT+3)}, {sr(srdT,4)}, 0 offen {spol}')
    srd(srdKS, ks_, sHk, 16, 1 << 16)
    srd(srdKZ, kz_, sHk, 16, 1 << 16)
    srd(srdK, qk_, sHk, 24, 1 << 24)
    ld_ks(); ld_K()
    srd(srdVS, vs_, sHk, 16, 1 << 16)
    srd(srdVZ, vz_, sHk, 16, 1 << 16)
    srd(srdV, qv_, sHk, 24, 1 << 24)
    a(f's_mul_i32 {sr(sT0)}, {sr(sWave)}, {WLDS}')
    a(f'v_mul_u32_u24 {vr(vT+3)}, {QROW}, {vr(g4)}')
    a(f'v_add3_u32 {vr(vLqW)}, {vr(vT+3)}, {vr(vKsOff)}, {sr(sT0)}')
    a(f'v_add_u32 {vr(vLzW)}, {sr(sT0)}, {vr(vKzOff)}')
    a(f'v_add_u32 {vr(vLzW)}, {4*QROW}, {vr(vLzW)}')
    a(f'v_and_b32 {vr(vT+4)}, 3, {vr(vLane)}')
    a(f'v_mul_u32_u24 {vr(vT+3)}, {QROW}, {vr(vT+4)}')
    a(f'v_add3_u32 {vr(vLqR)}, {vr(vT+3)}, {vr(vSoff)}, {sr(sT0)}')
    a(f'v_add_u32 {vr(vLzR)}, {sr(sT0)}, {vr(vSoff)}')
    a(f'v_add_u32 {vr(vLzR)}, {4*QROW}, {vr(vLzR)}')
    a(f'v_add_u32 {vr(vLqRB)}, {vr(vLqR)}, {vr(vSoff)}')
    a(f'v_add_u32 {vr(vLzRB)}, {vr(vLzR)}, {vr(vSoff)}')
    a(f's_mul_i32 {sr(sT0)}, {sr(sWave)}, {NT*256}')
    a(f's_add_u32 {sr(sT0)}, {sr(sT0)}, {SB}')
    a(f'v_lshlrev_b32 {vr(vT+4)}, 4, {vr(vT+4)}')
    a(f'v_lshl_add_u32 {vr(vSa)}, {vr(g4)}, 6, {vr(vT+4)}')
    a(f'v_add_u32 {vr(vSa)}, {sr(sT0)}, {vr(vSa)}')
    a(f's_mov_b32 {sr(sMask)}, 0xffff0000')
    a(f's_mov_b32 {sr(sQuad)}, 0x000f000f')
    a(f's_mov_b32 {sr(sQuad+1)}, 0x000f000f')
    a(f'v_mov_b32 {vr(vM)}, 0xff800000')
    a(f'v_mov_b32 {vr(vL)}, 0')
    for i in range(4): a(f'v_mov_b32 {vr(vAz+i)}, 0')
    for i in range(32): a(f'v_mov_b32 {vr(vAcc+i)}, 0')
    a(f's_mov_b32 {sr(sT1)}, {f32hex(CEXP)}')
    a(f's_mov_b32 {sr(sCnt)}, {NT-1}')
    a('s_waitcnt vmcnt(10)')
    stamp(1)
    for i in range(4):
        a(f'v_lshlrev_b32 {vr(vQc+2*i)}, 16, {vr(vQw+i)}')
        a(f'v_and_b32 {vr(vQc+2*i+1)}, {sr(sMask)}, {vr(vQw+i)}')
    for i in range(8):
        a(f'v_mul_f32 {vr(vQc+i)}, {sr(sT1)}, {vr(vQc+i)}')

    def kstep(nxt):
        a('s_waitcnt vmcnt(8)')
        for i in range(4):
            a(f'v_lshlrev_b32 {vr(vT)}, 16, {vr(vKs+i)}')
            a(f'v_and_b32 {vr(vT+1)}, {sr(sMask)}, {vr(vKs+i)}')
            a(f'v_mul_f32 {vr(vT)}, {vr(vT)}, {vr(vQc+2*i)}')
            a(f'v_mul_f32 {vr(vT+1)}, {vr(vT+1)}, {vr(vQc+2*i+1)}')
            a(f'v_cvt_pk_bf16_f32 {vr(vQw+i)}, {vr(vT)}, {vr(vT+1)}')
        a(f'v_xor_b32 {vr(vT+2)}, 0x80008000, {vr(vKz)}')
        a(f'ds_write_b128 {vr(vLqW)}, {vr(vQw,4)}')
        a(f'ds_write_b32 {vr(vLzW)}, {vr(vT+2)}')
        if nxt == 'K':
            a(f's_add_u32 {sr(sOffK)}, {sr(sOffK)}, {stride}')
            offsK(); ld_ks()
        else:
            a(f's_mov_b32 {sr(sOffK)}, {sr(sOff0)}')
            offsV(); ld_vs()
        for s in range(4):
            if s < 4 - nB: a(f'ds_read2_b64 {vr(vQB+4*s,4)}, {vr(vLqR)} offset0:{8*s} offset1:{8*s+4}')
            else: a(f'ds_read_b128 {vr(vQB+4*s,4)}, {vr(vLqRB)} offset:{64*s}')
        for s in range(4):
            if s < 4 - nB: a(f'ds_read2_b64 {vr(vPK+4*s,4)}, {vr(vLzR)} offset0:{8*s} offset1:{8*s+4}')
            else: a(f'ds_read_b128 {vr(vPK+4*s,4)}, {vr(vLzRB)} offset:{64*s}')
        a('s_waitcnt lgkmcnt(0)')
        for s in range(4):
            c = '0' if s == 0 else vr(vS, 4)
            a(f'v_mfma_f32_16x16x32_bf16 {vr(vS,4)}, {vr(vPK+4*s,4)}, {vr(vQB+4*s,4)}, {c}')
        a('s_waitcnt vmcnt(2)')
        for i in range(8):
            for c in range(4):
                a(f'v_cvt_f32_i32 {vr(vR+4*i+c)}, {vr(vR+4*i+c)}')
            d = vPK + 4 * (i // 2) + 2 * (i % 2)
            a(f'v_cvt_pk_bf16_f32 {vr(d)}, {vr(vR+4*i)}, {vr(vR+4*i+1)}')
            a(f'v_cvt_pk_bf16_f32 {vr(d+1)}, {vr(vR+4*i+2)}, {vr(vR+4*i+3)}')
        if nxt == 'K': ld_K()
        else: ld_V()
        for s in range(4 - nB, 4):
            a(f'v_mov_b32 {vr(vT)}, {vr(vPK+4*s)}')
            a(f'v_mov_b32 {vr(vT+1)}, {vr(vPK+4*s+1)}')
            a('s_nop 0')
            a(f'v_mov_b32_dpp {vr(vPK+4*s)}, {vr(vPK+4*s+2)} row_ror:8 row_mask:0xf bank_mask:0xc')
            a(f'v_mov_b32_dpp {vr(vPK+4*s+1)}, {vr(vPK+4*s+3)} row_ror:8 row_mask:0xf bank_mask:0xc')
            a(f'v_mov_b32_dpp {vr(vPK+4*s+2)}, {vr(vT)} row_ror:8 row_mask:0xf bank_mask:0x3')
            a(f'v_mov_b32_dpp {vr(vPK+4*s+3)}, {vr(vT+1)} row_ror:8 row_mask:0xf bank_mask:0x3')
        a('s_nop 1')
        for s in range(4):
            a(f'v_mfma_f32_16x16x32_bf16 {vr(vS,4)}, {vr(vPK+4*s,4)}, {vr(vQB+4*s,4)}, {vr(vS,4)}')
        a('s_nop 7')
        a(f's_mov_b64 exec, {sr(sQuad,2)}')
        a(f'ds_write_b128 {vr(vSa)}, {vr(vS,4)}')
        a('s_mov_b64 exec, -1')
        a(f'v_max3_f32 {vr(vM)}, {vr(vS)}, {vr(vS+1)}, {vr(vM)}')
        a(f'v_max3_f32 {vr(vM)}, {vr(vS+2)}, {vr(vS+3)}, {vr(vM)}')
        a(f'v_add_u32 {vr(vSa)}, 256, {vr(vSa)}')

    vF = vQB
    vLw = vQB + 8
    vZw = vQc
    vMx, vLs, vZs = vKs, vKs + 1, vKs + 2
    def early_publish():
        a(f'v_mov_b32 {vr(vT+1)}, {vr(vL)}')
        a('s_nop 1')
        a(f'v_permlane16_swap_b32 {vr(vL)}, {vr(vT+1)}')
        a(f'v_add_f32 {vr(vL)}, {vr(vL)}, {vr(vT+1)}')
        a(f'v_mov_b32 {vr(vT+1)}, {vr(vL)}')
        a('s_nop 1')
        a(f'v_permlane32_swap_b32 {vr(vL)}, {vr(vT+1)}')
        a(f'v_add_f32 {vr(vL)}, {vr(vL)}, {vr(vT+1)}')
        a(f's_lshl_b32 {sr(sT1)}, {sr(sWave)}, 2')
        a(f's_add_u32 {sr(sT1)}, {sr(sT1)}, {MB}')
        a(f'v_mul_u32_u24 {vr(vT+2)}, {RS}, {vr(vLane)}')
        a(f'v_add_u32 {vr(vT+2)}, {sr(sT1)}, {vr(vT+2)}')
        a('s_mov_b64 exec, 0xf')
        a(f'ds_write_b32 {vr(vT+2)}, {vr(vM)}')
        a(f'ds_write_b32 {vr(vT+2)}, {vr(vL)} offset:{4*RS}')
        a('s_mov_b64 exec, 1')
        for r in range(4):
            a(f'ds_write_b32 {vr(vT+2)}, {vr(vAz+r)} offset:{8*RS+r*RS}')
        a('s_mov_b64 exec, -1')
        a(f'v_and_b32 {vr(vT)}, 3, v0')
        a(f'v_mul_u32_u24 {vr(vT)}, {RS}, {vr(vT)}')
        a(f'v_add_u32 {vr(vT)}, {MB}, {vr(vT)}')
        a('s_waitcnt lgkmcnt(0)')
        a('s_barrier')
        for k in range(nw // 4):
            a(f'ds_read_b128 {vr(vF+4*k,4)}, {vr(vT)} offset:{16*k}')
            a(f'ds_read_b128 {vr(vLw+4*k,4)}, {vr(vT)} offset:{4*RS+16*k}')
            a(f'ds_read_b128 {vr(vZw+4*k,4)}, {vr(vT)} offset:{8*RS+16*k}')
        a('s_waitcnt lgkmcnt(0)')
        a(f'v_max3_f32 {vr(vMx)}, {vr(vF)}, {vr(vF+1)}, {vr(vF+2)}')
        for w in range(3, nw): a(f'v_max_f32 {vr(vMx)}, {vr(vMx)}, {vr(vF+w)}')
        for w in range(nw): a(f'v_sub_f32 {vr(vF+w)}, {vr(vF+w)}, {vr(vMx)}')
        for w in range(nw): a(f'v_exp_f32 {vr(vF+w)}, {vr(vF+w)}')
        a('s_nop 0')
        a(f'v_mul_f32 {vr(vLs)}, {vr(vF)}, {vr(vLw)}')
        a(f'v_mul_f32 {vr(vZs)}, {vr(vF)}, {vr(vZw)}')
        for w in range(1, nw):
            a(f'v_fmac_f32 {vr(vLs)}, {vr(vF+w)}, {vr(vLw+w)}')
            a(f'v_fmac_f32 {vr(vZs)}, {vr(vF+w)}, {vr(vZw+w)}')

    def vstep(pf):
        f = vT + 4
        a('s_waitcnt vmcnt(8) lgkmcnt(0)')
        a(f'v_lshlrev_b32 {vr(f)}, 16, {vr(vVs)}')
        a(f'v_and_b32 {vr(f+1)}, {sr(sMask)}, {vr(vVs)}')
        a(f'v_lshlrev_b32 {vr(f+2)}, 16, {vr(vVs+1)}')
        a(f'v_and_b32 {vr(f+3)}, {sr(sMask)}, {vr(vVs+1)}')
        for r in range(4): a(f'v_sub_f32 {vr(vS+r)}, {vr(vS+r)}, {vr(vM)}')
        for r in range(4): a(f'v_exp_f32 {vr(vS+r)}, {vr(vS+r)}')
        a('s_nop 0')
        a(f'v_add_f32 {vr(vT)}, {vr(vS)}, {vr(vS+1)}')
        a(f'v_add_f32 {vr(vT+1)}, {vr(vS+2)}, {vr(vS+3)}')
        for r in range(4): a(f'v_mul_f32 {vr(vS+r)}, {vr(vS+r)}, {vr(f+r)}')
        a(f'v_add_f32 {vr(vL)}, {vr(vL)}, {vr(vT)}')
        a(f'v_cvt_pk_bf16_f32 {vr(vP)}, {vr(vS)}, {vr(vS+1)}')
        a(f'v_cvt_pk_bf16_f32 {vr(vP+1)}, {vr(vS+2)}, {vr(vS+3)}')
        a(f'v_add_f32 {vr(vL)}, {vr(vL)}, {vr(vT+1)}')
        a('s_nop 0')
        a(f'v_mfma_f32_16x16x16_bf16 {vr(vAz,4)}, {vr(vP,2)}, {vr(vVz,2)}, {vr(vAz,4)}')
        if pf:
            a(f's_add_u32 {sr(sOffK)}, {sr(sOffK)}, {stride}')
            offsV(); ld_vs()
            a(f'v_add_u32 {vr(vSa)}, 256, {vr(vSa)}')
            a(f'ds_read_b128 {vr(vS,4)}, {vr(vSa)}')
        else:
            early_publish()
        R = lambda j, h, c: vR + 4 * (2 * j + h) + c
        def vhalf(jp):
            for h in range(2):
                for c in range(4):
                    a(f'v_cvt_f32_i32 {vr(R(2*jp,h,c))}, {vr(R(2*jp,h,c))}')
                    a(f'v_cvt_f32_i32 {vr(R(2*jp+1,h,c))}, {vr(R(2*jp+1,h,c))}')
                    a(f'v_cvt_pk_bf16_f32 {vr(vPK+2*(4*h+c)+jp)}, {vr(R(2*jp,h,c))}, {vr(R(2*jp+1,h,c))}')
        base = 2 if pf else 0
        a(f's_waitcnt vmcnt({base+4})'); vhalf(0)
        a(f's_waitcnt vmcnt({base})'); vhalf(1)
        if pf: ld_V()
        else: a('s_nop 1')
        for i in range(8):
            a(f'v_mfma_f32_16x16x16_bf16 {vr(vAcc+4*i,4)}, {vr(vP,2)}, {vr(vPK+2*i,2)}, {vr(vAcc+4*i,4)}')

    a('L_kloop:')
    kstep('K')
    if kbar: a('s_barrier')
    a(f's_sub_u32 {sr(sCnt)}, {sr(sCnt)}, 1')
    a(f's_cmp_lg_u32 {sr(sCnt)}, 0')
    a('s_cbranch_scc1 L_kloop')
    kstep('V')
    if kbar: a('s_barrier')
    stamp(2)
    a(f'v_subrev_u32 {vr(vSa)}, {NT*256}, {vr(vSa)}')
    a(f'v_mov_b32 {vr(vT+1)}, {vr(vM)}')
    a(f'ds_read_b128 {vr(vS,4)}, {vr(vSa)}')
    a('s_nop 0')
    a(f'v_permlane16_swap_b32 {vr(vM)}, {vr(vT+1)}')
    a(f'v_max_f32 {vr(vM)}, {vr(vM)}, {vr(vT+1)}')
    a(f'v_mov_b32 {vr(vT+1)}, {vr(vM)}')
    a('s_nop 1')
    a(f'v_permlane32_swap_b32 {vr(vM)}, {vr(vT+1)}')
    a(f'v_max_f32 {vr(vM)}, {vr(vM)}, {vr(vT+1)}')
    a(f's_mov_b32 {sr(sCnt)}, {NT-1}')
    a('L_vloop:')
    vstep(1)
    if vbar: a('s_barrier')
    a(f's_sub_u32 {sr(sCnt)}, {sr(sCnt)}, 1')
    a(f's_cmp_lg_u32 {sr(sCnt)}, 0')
    a('s_cbranch_scc1 L_vloop')
    vstep(0)
    stamp(3)
    a(f's_lshl_b32 {sr(sT0)}, {sr(sWave)}, 11')
    a(f's_add_u32 {sr(sT0)}, {sr(sT0)}, {OB}')
    a(f'v_add_u32 {vr(vT)}, {sr(sT0)}, {vr(vKsOff)}')
    a(f'v_lshlrev_b32 {vr(vT+1)}, 2, v0')
    a(f'v_add_u32 {vr(vT+2)}, {OB}, {vr(vT+1)}')
    a('s_mov_b64 exec, 0xffff')
    a('s_nop 1')
    for i in range(8):
        a(f'ds_write_b128 {vr(vT)}, {vr(vAcc+4*i,4)} offset:{i*256}')
    a('s_mov_b64 exec, -1')
    a(f's_mul_i32 {sr(sT1)}, s2, {PSTRIDE}')
    a(f's_add_u32 {sr(srdT)}, {sr(ws_)}, {sr(sT1)}')
    a(f's_addc_u32 {sr(srdT+1)}, {sr(ws_+1)}, 0')
    a(f's_and_b32 {sr(srdT+1)}, {sr(srdT+1)}, 0xffff')
    a(f's_mov_b32 {sr(srdT+2)}, {PSTRIDE}')
    a(f's_mov_b32 {sr(srdT+3)}, 0x20000')
    a('s_waitcnt lgkmcnt(0)')
    a('s_barrier')
    vOw = vR
    vRes = vR + 16
    for ch in range(nch):
        for w in range(nw):
            a(f'ds_read_b32 {vr(vOw+ch*nw+w)}, {vr(vT+2)} offset:{w*2048+ch*nthr*4}')
    for ch in range(nch):
        a(f's_waitcnt lgkmcnt({(nch-1-ch)*nw})')
        a(f'v_fma_f32 {vr(vRes+ch)}, {vr(vF)}, {vr(vOw+ch*nw)}, -{vr(vZs)}')
        for w in range(1, nw):
            a(f'v_fmac_f32 {vr(vRes+ch)}, {vr(vF+w)}, {vr(vOw+ch*nw+w)}')
    stamp(4)
    for ch in range(nch):
        a(f'buffer_store_dword {vr(vRes+ch)}, {vr(vT+1)}, {sr(srdT,4)}, 0 offen offset:{ch*nthr*4} sc1')
    a('v_cmp_gt_u32 vcc, 4, v0')
    a(f's_and_saveexec_b64 {sr(sEx,2)}, vcc')
    a('s_cbranch_execz L_nost')
    a(f'buffer_store_dword {vr(vMx)}, {vr(vT+1)}, {sr(srdT,4)}, 0 offen offset:2048 sc1')
    a(f'buffer_store_dword {vr(vLs)}, {vr(vT+1)}, {sr(srdT,4)}, 0 offen offset:2064 sc1')
    a('L_nost:')
    a(f's_mov_b64 exec, {sr(sEx,2)}')
    a(f's_mov_b32 {sr(srdKS)}, {sr(dbg_)}')
    a(f's_and_b32 {sr(srdKS+1)}, {sr(dbg_+1)}, 0xffff')
    a(f's_mov_b32 {sr(srdKS+2)}, 256')
    a(f's_lshl_b32 {sr(sOffG)}, {sr(sHk)}, {cshift}')
    if coff: a(f's_add_u32 {sr(sOffG)}, {sr(sOffG)}, {coff}')
    a(f's_mul_i32 {sr(sT1)}, {sr(sHk)}, {P*PSTRIDE}')
    a(f's_add_u32 {sr(srdV)}, {sr(ws_)}, {sr(sT1)}')
    a(f's_addc_u32 {sr(srdV+1)}, {sr(ws_+1)}, 0')
    a(f's_and_b32 {sr(srdV+1)}, {sr(srdV+1)}, 0xffff')
    a(f's_mov_b32 {sr(srdV+2)}, {P*PSTRIDE}')
    a(f's_lshl_b32 {sr(sT1)}, {sr(sHk)}, 10')
    a(f's_add_u32 {sr(srdK)}, {sr(o_)}, {sr(sT1)}')
    a(f's_addc_u32 {sr(srdK+1)}, {sr(o_+1)}, 0')
    a(f's_and_b32 {sr(srdK+1)}, {sr(srdK+1)}, 0xffff')
    a(f's_mov_b32 {sr(srdK+2)}, 1024')
    vML = vT + 2; vBp = vT + 3; vOa = vT + 4
    a(f'v_and_b32 {vr(vBp)}, 3, {vr(vLane)}')
    a(f'v_lshlrev_b32 {vr(vBp)}, 6, {vr(vBp)}')
    a(f'v_and_b32 {vr(vML)}, 15, {vr(vLane)}')
    a(f'v_lshlrev_b32 {vr(vML)}, 12, {vr(vML)}')
    a(f'v_lshrrev_b32 {vr(vT+6)}, 4, {vr(vLane)}')
    a(f'v_lshl_add_u32 {vr(vML)}, {vr(vT+6)}, 2, {vr(vML)}')
    for ch in range(nch):
        e, x, y = vT + 6, vOa + ch, vT + 7
        a(f'v_add_u32 {vr(e)}, {ch*nthr}, v0')
        a(f'v_and_b32 {vr(x)}, 3, {vr(e)}'); a(f'v_lshlrev_b32 {vr(x)}, 7, {vr(x)}')
        a(f'v_lshrrev_b32 {vr(y)}, 8, {vr(e)}'); a(f'v_lshl_add_u32 {vr(x)}, {vr(y)}, 6, {vr(x)}')
        a(f'v_bfe_u32 {vr(y)}, {vr(e)}, 2, 4'); a(f'v_lshl_add_u32 {vr(x)}, {vr(y)}, 2, {vr(x)}')
        a(f'v_bfe_u32 {vr(y)}, {vr(e)}, 6, 2'); a(f'v_add_u32 {vr(x)}, {vr(x)}, {vr(y)}')
        a(f'v_lshlrev_b32 {vr(x)}, 1, {vr(x)}')
    a(f'v_mov_b32 {vr(vT+6)}, {TK}')
    a('s_waitcnt vmcnt(0)')
    stamp(5)
    a('s_barrier')
    a(f's_cmp_lg_u32 {sr(sWave)}, 0')
    a('s_cbranch_scc1 L_noat')
    a('s_mov_b64 exec, 1')
    a(f'v_mov_b32 {vr(vT+7)}, 1')
    a(f'v_mov_b32 {vr(vT)}, 0')
    a(f'buffer_atomic_add {vr(vT+7)}, {vr(vT)}, {sr(srdKS,4)}, {sr(sOffG)} offen sc0')
    a('s_waitcnt vmcnt(0)')
    a(f'ds_write_b32 {vr(vT+6)}, {vr(vT+7)}')
    a('s_mov_b64 exec, -1')
    a('s_waitcnt lgkmcnt(0)')
    a('L_noat:')
    a('s_barrier')
    a(f'ds_read_b32 {vr(vT+7)}, {vr(vT+6)}')
    a('s_waitcnt lgkmcnt(0)')
    a(f'v_readfirstlane_b32 {sr(sT0)}, {vr(vT+7)}')
    a('s_nop 3')
    stamp(6)
    a(f's_cmp_lg_u32 {sr(sT0)}, {P-1}')
    a('s_cbranch_scc1 L_notlast')
    cM, cL, x, y = vQB, vQB + 1, vQB + 2, vQB + 3
    cW = vPK
    cO = vR if nch == 1 else vAcc
    a(f'buffer_load_dword {vr(cM)}, {vr(vML)}, {sr(srdV,4)}, 0 offen offset:2048 sc1')
    a(f'buffer_load_dword {vr(cL)}, {vr(vML)}, {sr(srdV,4)}, 0 offen offset:2064 sc1')
    for w in range(P):
        a(f's_mov_b32 {sr(sT1)}, {w*PSTRIDE}')
        for ch in range(nch):
            a(f'buffer_load_dword {vr(cO+ch*P+w)}, {vr(vT+1)}, {sr(srdV,4)}, {sr(sT1)} offen offset:{ch*nthr*4} sc1')
    a(f's_waitcnt vmcnt({nch*P})')
    def allreduce(reg, op):
        for k in (1, 2, 4, 8):
            a('s_nop 1')
            a(f'{op}_dpp {vr(reg)}, {vr(reg)}, {vr(reg)} row_ror:{k} row_mask:0xf bank_mask:0xf')
    a(f'v_mov_b32 {vr(x)}, {vr(cM)}')
    allreduce(x, 'v_max_f32')
    a(f'v_sub_f32 {vr(cM)}, {vr(cM)}, {vr(x)}')
    a(f'v_exp_f32 {vr(cM)}, {vr(cM)}')
    a('s_nop 0')
    a(f'v_mul_f32 {vr(x)}, {vr(cM)}, {vr(cL)}')
    allreduce(x, 'v_add_f32')
    a(f'v_rcp_f32 {vr(cL)}, {vr(x)}')
    a('s_nop 0')
    a(f'v_mul_f32 {vr(cM)}, {vr(cM)}, {vr(cL)}')
    for w in range(P):
        a(f'ds_bpermute_b32 {vr(cW+w)}, {vr(vBp)}, {vr(cM)} offset:{4*w}')
    a('s_waitcnt vmcnt(0) lgkmcnt(0)')
    for ch in range(nch):
        a(f'v_mul_f32 {vr(x)}, {vr(cW)}, {vr(cO+ch*P)}')
        for w in range(1, P): a(f'v_fmac_f32 {vr(x)}, {vr(cW+w)}, {vr(cO+ch*P+w)}')
        a(f'v_cvt_pk_bf16_f32 {vr(x)}, {vr(x)}, {vr(x)}')
        a(f'buffer_store_short {vr(x)}, {vr(vOa+ch)}, {sr(srdK,4)}, 0 offen {opol}')
    if dbgprof:
        a('s_waitcnt vmcnt(0)')
        a(f's_cmp_lg_u32 {sr(sWave)}, 0')
        a('s_cbranch_scc1 L_end')
        stamp(7)
        a(f's_memtime {sr(sTm+2,2)}')
        a('s_waitcnt lgkmcnt(0)')
        a('s_mov_b64 exec, 1')
        a(f'v_mov_b32 {vr(vT)}, 0')
        for i in range(1, 8):
            a(f's_sub_u32 {sr(sT0)}, {sr(sSt+2*i)}, {sr(sSt)}')
            a(f'v_mov_b32 {vr(vR+i)}, {sr(sT0)}')
        for i in range(1, 8):
            a(f'buffer_atomic_umax {vr(vR+i)}, {vr(vT)}, {sr(srdKS,4)}, 0 offen offset:{4*i}')
    a('L_notlast:')
    if prof == 2:
        a('s_waitcnt vmcnt(0)')
        stamp(7)
        a(f's_memtime {sr(sTm+2,2)}')
        a('s_waitcnt lgkmcnt(0)')
        a(f's_cmp_lg_u32 {sr(sWave)}, 0')
        a('s_cbranch_scc1 L_end')
        a(f's_add_u32 {sr(srdT)}, {sr(ws_)}, 0x4000000')
        a(f's_addc_u32 {sr(srdT+1)}, {sr(ws_+1)}, 0')
        a(f's_and_b32 {sr(srdT+1)}, {sr(srdT+1)}, 0xffff')
        a(f's_mov_b32 {sr(srdT+2)}, 0x100000')
        a(f's_lshl_b32 {sr(sT1)}, s2, 6')
        for i in range(8): a(f'v_mov_b32 {vr(vR+i)}, {sr(sSt+2*i)}')
        a(f's_getreg_b32 {sr(sT0)}, hwreg(HW_REG_XCC_ID)')
        a(f'v_mov_b32 {vr(vR+8)}, {sr(sT0)}')
        a(f's_getreg_b32 {sr(sT0)}, hwreg(HW_REG_HW_ID)')
        a(f'v_mov_b32 {vr(vR+9)}, {sr(sT0)}')
        a(f's_sub_u32 {sr(sT0)}, {sr(sTm+2)}, {sr(sTm)}')
        a(f'v_mov_b32 {vr(vR+10)}, {sr(sT0)}')
        a(f'v_mov_b32 {vr(vT)}, 0')
        a('s_mov_b64 exec, 1')
        a(f'buffer_store_dwordx4 {vr(vR,4)}, {vr(vT)}, {sr(srdT,4)}, {sr(sT1)} offen')
        a(f'buffer_store_dwordx4 {vr(vR+4,4)}, {vr(vT)}, {sr(srdT,4)}, {sr(sT1)} offen offset:16')
        a(f'buffer_store_dwordx4 {vr(vR+8,4)}, {vr(vT)}, {sr(srdT,4)}, {sr(sT1)} offen offset:32')
    if padto:
        a('s_waitcnt vmcnt(0) lgkmcnt(0)')
        a('L_pad:')
        a(f's_memrealtime {sr(sTm+2,2)}')
        a('s_waitcnt lgkmcnt(0)')
        a(f's_sub_u32 {sr(sT0)}, {sr(sTm+2)}, {sr(sTm)}')
        a(f's_cmp_lt_u32 {sr(sT0)}, {padto}')
        a('s_cbranch_scc1 L_pad')
    a('L_end:')
    a('s_endpgm')
    main = '\n'.join(out)
    acc = (nvgpr + 3) // 4 * 4
    kd = f'''.amdhsa_kernel {KN}
  .amdhsa_next_free_vgpr {nvgpr}
  .amdhsa_next_free_sgpr {S.n}
  .amdhsa_accum_offset {acc}
  .amdhsa_group_segment_fixed_size 0
  .amdhsa_kernarg_size 80
  .amdhsa_user_sgpr_count 2
  .amdhsa_user_sgpr_kernarg_segment_ptr 1
  .amdhsa_system_sgpr_workgroup_id_x 1
  .amdhsa_float_denorm_mode_32 3
.end_amdhsa_kernel
'''
    src = HEADCOMMENT + f'; @launch grid=({nwg},1,1) block=({nthr},1,1) lds={lds_bytes}\n'
    src += '.amdgcn_target "amdgcn-amd-amdhsa--gfx950"\n.text\n'
    src += f'.globl {KN}\n.p2align 8\n.type {KN},@function\n{main}\n'
    src += '.section .rodata,"a"\n.p2align 6\n' + kd
    return src, [(KN, nwg, nthr, lds_bytes)]

if __name__ == '__main__':
    import argparse
    ap = argparse.ArgumentParser()
    ap.add_argument('-o', default='out.s')
    ap.add_argument('kv', nargs='*')
    args = ap.parse_args()
    kw = {}
    for x in args.kv:
        k, v = x.split('=')
        try: v = int(v)
        except ValueError: pass
        kw[k] = v
    src, l = gen(**kw)
    open(args.o, 'w').write(src)
    print(l)
```

```python
import struct
KN = 'standalone__kv_cache_quant_int4_int2_kv_with_per_channel_or_per_token_scales__decode_kernel'

HEADCOMMENT = '''; KIVI-style quantised KV-cache decode attention (B=2, Hq=32, Hkv=8, Skv=32768, Dh=128), one fused launch.
; Kernarg layout for this problem (80 bytes, ptrs only, base s[0:1]):
;
; Phase 1 streams the K tiles: scores = qk . bf16(q*ks*c) - kz . bf16(q*ks*c) on the matrix cores (c = Dh^-0.5*log2 e),
;   scores parked in LDS, running maximum kept.  Phase 2 streams the V tiles: p = exp2(s - max),
'''

class Alloc:
    def __init__(self, start, limit):
        self.n = start; self.limit = limit
    def get(self, cnt=1, align=1):
        self.n = (self.n + align - 1) // align * align
        r = self.n; self.n += cnt
        assert self.n <= self.limit, self.n
        return r

def vr(r, n=1): return f'v{r}' if n == 1 else f'v[{r}:{r+n-1}]'
def sr(r, n=1): return f's{r}' if n == 1 else f's[{r}:{r+n-1}]'
def f32hex(x): return '0x%08x' % struct.unpack('<I', struct.pack('<f', x))[0]

PSTRIDE = 4096
QROW = 288
WLDS = 1536
CEXP = 0.08838834764831845 * 1.4426950408889634

def gen(nw=8, bar=1, pol='nt', spol='nt', nB=2, prof=0, dbgprof=0, coff=0, cshift=2, opol='', padto=0,
        wrot=0, perm='tr', minvgpr=176, kbar=None, vbar=None, minlds=0, roll=0, x2=0):
    P = 16
    nwg = 16 * P
    NT = 32768 // (P * nw * 16)
    nthr = nw * 64
    nch = 512 // nthr
    if kbar is None: kbar = bar
    if vbar is None: vbar = bar
    out = []
    a = out.append
    V = Alloc(1, 256); S = Alloc(3, 102)
    sWave = S.get()
    sKA = S.get(16, 4); sKB = S.get(4, 4)
    srdK = S.get(4, 4); srdV = S.get(4, 4); srdKS = S.get(4, 4); srdKZ = S.get(4, 4)
    srdVS = S.get(4, 4); srdVZ = S.get(4, 4); srdT = S.get(4, 4)
    sHk = S.get(); sJ = S.get()
    sOffK = S.get(); sOffS = S.get(); sOffG = S.get(); sOffK2 = S.get(); sOff0 = S.get()
    sCnt = S.get(); sT0 = S.get(); sT1 = S.get()
    sMask = S.get(); sEx = S.get(2, 2); sQuad = S.get(2, 2)
    stamps = prof == 2 or dbgprof
    sSt = S.get(16, 2) if stamps else None
    sTm = S.get(4, 2) if (dbgprof or padto or prof == 2) else None
    def stamp(i):
        if stamps: a(f's_memrealtime {sr(sSt+2*i,2)}')
    vLane = V.get()
    vKoff = V.get(); vVoff = V.get(); vSoff = V.get(); vKsOff = V.get(); vKzOff = V.get()
    vKoffB = V.get(); vLqRB = V.get(); vLzRB = V.get()
    vLqW = V.get(); vLzW = V.get(); vLqR = V.get(); vLzR = V.get()
    vSa = V.get()
    vM = V.get(); vL = V.get()
    vT = V.get(8, 2)
    vQc = V.get(8, 4)
    vKs = V.get(4, 4); vKz = V.get(); vVs = V.get(2, 2); vVz = V.get(2, 2)
    vQw = V.get(4, 4); vP = V.get(2, 2); vS = V.get(4, 4); vAz = V.get(4, 4)
    vAcc = V.get(32, 4); vQB = V.get(16, 4); vPK = V.get(16, 4)
    vR = V.get(32, 4)
    nvgpr = max(V.n, minvgpr)
    SB = nw * WLDS
    OB = SB + nw * NT * 256
    MB = OB + nw * 2048
    RS = nw * 4
    TK = MB + 12 * RS
    lds_bytes = max(TK + 16, minlds)

    a(f'{KN}:')
    a(f's_cmp_ge_u32 s2, {nwg}')
    a('s_cbranch_scc1 L_end')
    a(f's_load_dwordx16 {sr(sKA,16)}, s[0:1], 0')
    a(f's_load_dwordx4 {sr(sKB,4)}, s[0:1], 64')
    stamp(0)
    if dbgprof or prof == 2: a(f's_memtime {sr(sTm,2)}')
    if padto: a(f's_memrealtime {sr(sTm,2)}')
    a(f'v_lshrrev_b32 {vr(vT)}, 6, v0')
    a(f'v_and_b32 {vr(vLane)}, 63, v0')
    a(f's_lshr_b32 {sr(sHk)}, s2, 4')
    a(f'v_readfirstlane_b32 {sr(sWave)}, {vr(vT)}')
    a(f's_and_b32 {sr(sJ)}, s2, {P-1}')
    n15, g4 = vT + 1, vT + 2
    a(f'v_and_b32 {vr(n15)}, 15, {vr(vLane)}')
    a(f'v_lshrrev_b32 {vr(g4)}, 4, {vr(vLane)}')
    a(f'v_lshlrev_b32 {vr(vKsOff)}, 4, {vr(n15)}')
    a(f'v_lshlrev_b32 {vr(vT+3)}, 9, {vr(n15)}')
    a(f'v_lshl_add_u32 {vr(vKoff)}, {vr(g4)}, 4, {vr(vT+3)}')
    a(f'v_lshl_add_u32 {vr(vVoff)}, {vr(g4)}, 11, {vr(vKsOff)}')
    a(f'v_lshlrev_b32 {vr(vSoff)}, 3, {vr(g4)}')
    a(f'v_lshlrev_b32 {vr(vKzOff)}, 2, {vr(vLane)}')
    a(f'v_and_b32 {vr(vT+3)}, 7, {vr(vLane)}')
    a(f'v_lshlrev_b32 {vr(vT+3)}, 9, {vr(vT+3)}')
    a(f'v_lshrrev_b32 {vr(vT+4)}, 3, {vr(vLane)}')
    a(f'v_lshl_add_u32 {vr(vKoffB)}, {vr(vT+4)}, 4, {vr(vT+3)}')
    stride = nw * 16 * 512
    if perm == 'tr': a(f's_lshl_b32 {sr(sOff0)}, {sr(sJ)}, 20')
    else: a(f's_mul_i32 {sr(sOff0)}, {sr(sJ)}, {stride}')
    if wrot == 0: a(f's_lshl_b32 {sr(sT0)}, {sr(sWave)}, 13')
    else:
        if wrot == 3: a(f's_lshr_b32 {sr(sT0)}, s2, 3'); a(f's_and_b32 {sr(sT0)}, {sr(sT0)}, 1'); a(f's_lshl_b32 {sr(sT0)}, {sr(sT0)}, {(nw//2).bit_length()-1}'); a(f's_xor_b32 {sr(sT0)}, {sr(sT0)}, {sr(sWave)}')
        elif wrot == 8: a(f's_lshr_b32 {sr(sT0)}, s2, 3'); a(f's_and_b32 {sr(sT0)}, {sr(sT0)}, 3'); a(f's_lshl_b32 {sr(sT0)}, {sr(sT0)}, 1'); a(f's_xor_b32 {sr(sT0)}, {sr(sT0)}, {sr(sWave)}')
        a(f's_and_b32 {sr(sT0)}, {sr(sT0)}, {nw-1}')
        a(f's_lshl_b32 {sr(sT0)}, {sr(sT0)}, 13')
    a(f's_add_u32 {sr(sOff0)}, {sr(sOff0)}, {sr(sT0)}')
    if perm != 'tr': stride = stride * P
    a(f's_mov_b32 {sr(sOffK)}, {sr(sOff0)}')
    def offsK():
        a(f's_lshr_b32 {sr(sOffG)}, {sr(sOffK)}, 8')
        a(f's_and_b32 {sr(sOffG)}, {sr(sOffG)}, 0xffffff00')
        if nB: a(f's_add_u32 {sr(sOffK2)}, {sr(sOffK)}, 4096')
    def offsV():
        a(f's_lshr_b32 {sr(sOffS)}, {sr(sOffK)}, 8')
    offsK()
    a('s_waitcnt lgkmcnt(0)')
    def srd(dst, ptr, off_s, off_shift, nbytes):
        a(f's_lshl_b32 {sr(sT0)}, {sr(off_s)}, {off_shift}')
        a(f's_add_u32 {sr(dst)}, {sr(ptr)}, {sr(sT0)}')
        a(f's_addc_u32 {sr(dst+1)}, {sr(ptr+1)}, 0')
        a(f's_and_b32 {sr(dst+1)}, {sr(dst+1)}, 0xffff')
        a(f's_mov_b32 {sr(dst+2)}, {nbytes}')
        a(f's_mov_b32 {sr(dst+3)}, 0x20000')
    q_, qk_, qv_, ks_, kz_, vs_, vz_, o_ = [sKA + 2 * i for i in range(8)]
    dbg_, ws_ = sKB, sKB + 2
    def ld_ks():
        a(f'buffer_load_dwordx4 {vr(vKs,4)}, {vr(vKsOff)}, {sr(srdKS,4)}, {sr(sOffG)} offen {spol}')
        a(f'buffer_load_dword {vr(vKz)}, {vr(vKzOff)}, {sr(srdKZ,4)}, {sr(sOffG)} offen {spol}')
    def ld_K1(i):
        s = i // 2
        if s < 4 - nB:
            a(f'buffer_load_dwordx4 {vr(vR+4*i,4)}, {vr(vKoff)}, {sr(srdK,4)}, {sr(sOffK)} offen offset:{i*64} {pol}')
        else:
            a(f'buffer_load_dwordx4 {vr(vR+4*i,4)}, {vr(vKoffB)}, {sr(srdK,4)}, {sr(sOffK if i % 2 == 0 else sOffK2)} offen offset:{s*128} {pol}')
    def ld_K():
        for i in range(8): ld_K1(i)
    def ld_vs():
        a(f'buffer_load_dwordx2 {vr(vVs,2)}, {vr(vSoff)}, {sr(srdVS,4)}, {sr(sOffS)} offen {spol}')
        a(f'buffer_load_dwordx2 {vr(vVz,2)}, {vr(vSoff)}, {sr(srdVZ,4)}, {sr(sOffS)} offen {spol}')
    VSEQ = [(0,0),(1,0),(0,1),(1,1),(2,0),(3,0),(2,1),(3,1)]
    def ld_V1(k):
        j, h = VSEQ[k]
        a(f'buffer_load_dwordx4 {vr(vR+4*k,4)}, {vr(vVoff)}, {sr(srdV,4)}, {sr(sOffK)} offen offset:{j*512+h*256} {pol}')
    def ld_V():
        for k in range(8): ld_V1(k)
    srd(srdT, q_, sHk, 10, 1024)
    a(f'v_lshl_add_u32 {vr(vT+3)}, {vr(g4)}, 8, {vr(vKsOff)}')
    a(f'buffer_load_dwordx4 {vr(vQw,4)}, {vr(vT+3)}, {sr(srdT,4)}, 0 offen {spol}')
    srd(srdKS, ks_, sHk, 16, 1 << 16)
    srd(srdKZ, kz_, sHk, 16, 1 << 16)
    srd(srdK, qk_, sHk, 24, 1 << 24)
    ld_ks(); ld_K()
    srd(srdVS, vs_, sHk, 16, 1 << 16)
    srd(srdVZ, vz_, sHk, 16, 1 << 16)
    srd(srdV, qv_, sHk, 24, 1 << 24)
    a(f's_mul_i32 {sr(sT0)}, {sr(sWave)}, {WLDS}')
    a(f'v_mul_u32_u24 {vr(vT+3)}, {QROW}, {vr(g4)}')
    a(f'v_add3_u32 {vr(vLqW)}, {vr(vT+3)}, {vr(vKsOff)}, {sr(sT0)}')
    a(f'v_add_u32 {vr(vLzW)}, {sr(sT0)}, {vr(vKzOff)}')
    a(f'v_add_u32 {vr(vLzW)}, {4*QROW}, {vr(vLzW)}')
    a(f'v_and_b32 {vr(vT+4)}, 3, {vr(vLane)}')
    a(f'v_mul_u32_u24 {vr(vT+3)}, {QROW}, {vr(vT+4)}')
    a(f'v_add3_u32 {vr(vLqR)}, {vr(vT+3)}, {vr(vSoff)}, {sr(sT0)}')
    a(f'v_add_u32 {vr(vLzR)}, {sr(sT0)}, {vr(vSoff)}')
    a(f'v_add_u32 {vr(vLzR)}, {4*QROW}, {vr(vLzR)}')
    a(f'v_add_u32 {vr(vLqRB)}, {vr(vLqR)}, {vr(vSoff)}')
    a(f'v_add_u32 {vr(vLzRB)}, {vr(vLzR)}, {vr(vSoff)}')
    a(f's_mul_i32 {sr(sT0)}, {sr(sWave)}, {NT*256}')
    a(f's_add_u32 {sr(sT0)}, {sr(sT0)}, {SB}')
    a(f'v_lshlrev_b32 {vr(vT+4)}, 4, {vr(vT+4)}')
    a(f'v_lshl_add_u32 {vr(vSa)}, {vr(g4)}, 6, {vr(vT+4)}')
    a(f'v_add_u32 {vr(vSa)}, {sr(sT0)}, {vr(vSa)}')
    a(f's_mov_b32 {sr(sMask)}, 0xffff0000')
    a(f's_mov_b32 {sr(sQuad)}, 0x000f000f')
    a(f's_mov_b32 {sr(sQuad+1)}, 0x000f000f')
    a(f'v_mov_b32 {vr(vM)}, 0xff800000')
    a(f'v_mov_b32 {vr(vL)}, 0')
    for i in range(4): a(f'v_mov_b32 {vr(vAz+i)}, 0')
    for i in range(32): a(f'v_mov_b32 {vr(vAcc+i)}, 0')
    a(f's_mov_b32 {sr(sT1)}, {f32hex(CEXP)}')
    a(f's_mov_b32 {sr(sCnt)}, {NT-1}')
    a('s_waitcnt vmcnt(10)')
    stamp(1)
    for i in range(4):
        a(f'v_lshlrev_b32 {vr(vQc+2*i)}, 16, {vr(vQw+i)}')
        a(f'v_and_b32 {vr(vQc+2*i+1)}, {sr(sMask)}, {vr(vQw+i)}')
    for i in range(8):
        a(f'v_mul_f32 {vr(vQc+i)}, {sr(sT1)}, {vr(vQc+i)}')

    def kstep(nxt):
        a('s_waitcnt vmcnt(8)')
        for i in range(4):
            a(f'v_lshlrev_b32 {vr(vT)}, 16, {vr(vKs+i)}')
            a(f'v_and_b32 {vr(vT+1)}, {sr(sMask)}, {vr(vKs+i)}')
            a(f'v_mul_f32 {vr(vT)}, {vr(vT)}, {vr(vQc+2*i)}')
            a(f'v_mul_f32 {vr(vT+1)}, {vr(vT+1)}, {vr(vQc+2*i+1)}')
            a(f'v_cvt_pk_bf16_f32 {vr(vQw+i)}, {vr(vT)}, {vr(vT+1)}')
        a(f'v_xor_b32 {vr(vT+2)}, 0x80008000, {vr(vKz)}')
        a(f'ds_write_b128 {vr(vLqW)}, {vr(vQw,4)}')
        a(f'ds_write_b32 {vr(vLzW)}, {vr(vT+2)}')
        if nxt == 'K':
            a(f's_add_u32 {sr(sOffK)}, {sr(sOffK)}, {stride}')
            offsK(); ld_ks()
        else:
            a(f's_mov_b32 {sr(sOffK)}, {sr(sOff0)}')
            offsV(); ld_vs()
        for s in range(4):
            if s < 4 - nB: a(f'ds_read2_b64 {vr(vQB+4*s,4)}, {vr(vLqR)} offset0:{8*s} offset1:{8*s+4}')
            else: a(f'ds_read_b128 {vr(vQB+4*s,4)}, {vr(vLqRB)} offset:{64*s}')
        for s in range(4):
            if s < 4 - nB: a(f'ds_read2_b64 {vr(vPK+4*s,4)}, {vr(vLzR)} offset0:{8*s} offset1:{8*s+4}')
            else: a(f'ds_read_b128 {vr(vPK+4*s,4)}, {vr(vLzRB)} offset:{64*s}')
        a('s_waitcnt lgkmcnt(0)')
        for s in range(4):
            c = '0' if s == 0 else vr(vS, 4)
            a(f'v_mfma_f32_16x16x32_bf16 {vr(vS,4)}, {vr(vPK+4*s,4)}, {vr(vQB+4*s,4)}, {c}')
        rollk = roll in (1, 2)
        if not rollk: a('s_waitcnt vmcnt(2)')
        for i in range(8):
            if rollk: a('s_waitcnt vmcnt(9)')
            for c in range(4):
                a(f'v_cvt_f32_i32 {vr(vR+4*i+c)}, {vr(vR+4*i+c)}')
            d = vPK + 4 * (i // 2) + 2 * (i % 2)
            a(f'v_cvt_pk_bf16_f32 {vr(d)}, {vr(vR+4*i)}, {vr(vR+4*i+1)}')
            a(f'v_cvt_pk_bf16_f32 {vr(d+1)}, {vr(vR+4*i+2)}, {vr(vR+4*i+3)}')
            if rollk:
                if nxt == 'K': ld_K1(i)
                else: ld_V1(i)
        if not rollk:
            if nxt == 'K': ld_K()
            else: ld_V()
        for s in range(4 - nB, 4):
            a(f'v_mov_b32 {vr(vT)}, {vr(vPK+4*s)}')
            a(f'v_mov_b32 {vr(vT+1)}, {vr(vPK+4*s+1)}')
            a('s_nop 0')
            a(f'v_mov_b32_dpp {vr(vPK+4*s)}, {vr(vPK+4*s+2)} row_ror:8 row_mask:0xf bank_mask:0xc')
            a(f'v_mov_b32_dpp {vr(vPK+4*s+1)}, {vr(vPK+4*s+3)} row_ror:8 row_mask:0xf bank_mask:0xc')
            a(f'v_mov_b32_dpp {vr(vPK+4*s+2)}, {vr(vT)} row_ror:8 row_mask:0xf bank_mask:0x3')
            a(f'v_mov_b32_dpp {vr(vPK+4*s+3)}, {vr(vT+1)} row_ror:8 row_mask:0xf bank_mask:0x3')
        a('s_nop 1')
        for s in range(4):
            a(f'v_mfma_f32_16x16x32_bf16 {vr(vS,4)}, {vr(vPK+4*s,4)}, {vr(vQB+4*s,4)}, {vr(vS,4)}')
        a('s_nop 7')
        a(f's_mov_b64 exec, {sr(sQuad,2)}')
        a(f'ds_write_b128 {vr(vSa)}, {vr(vS,4)}')
        a('s_mov_b64 exec, -1')
        a(f'v_max3_f32 {vr(vM)}, {vr(vS)}, {vr(vS+1)}, {vr(vM)}')
        a(f'v_max3_f32 {vr(vM)}, {vr(vS+2)}, {vr(vS+3)}, {vr(vM)}')
        a(f'v_add_u32 {vr(vSa)}, 256, {vr(vSa)}')

    vF = vQB
    vLw = vQB + 8
    vZw = vQc
    vMx, vLs, vZs = vKs, vKs + 1, vKs + 2
    def early_publish():
        a(f'v_mov_b32 {vr(vT+1)}, {vr(vL)}')
        a('s_nop 1')
        a(f'v_permlane16_swap_b32 {vr(vL)}, {vr(vT+1)}')
        a(f'v_add_f32 {vr(vL)}, {vr(vL)}, {vr(vT+1)}')
        a(f'v_mov_b32 {vr(vT+1)}, {vr(vL)}')
        a('s_nop 1')
        a(f'v_permlane32_swap_b32 {vr(vL)}, {vr(vT+1)}')
        a(f'v_add_f32 {vr(vL)}, {vr(vL)}, {vr(vT+1)}')
        a(f's_lshl_b32 {sr(sT1)}, {sr(sWave)}, 2')
        a(f's_add_u32 {sr(sT1)}, {sr(sT1)}, {MB}')
        a(f'v_mul_u32_u24 {vr(vT+2)}, {RS}, {vr(vLane)}')
        a(f'v_add_u32 {vr(vT+2)}, {sr(sT1)}, {vr(vT+2)}')
        a('s_mov_b64 exec, 0xf')
        a(f'ds_write_b32 {vr(vT+2)}, {vr(vM)}')
        a(f'ds_write_b32 {vr(vT+2)}, {vr(vL)} offset:{4*RS}')
        a('s_mov_b64 exec, 1')
        for r in range(4):
            a(f'ds_write_b32 {vr(vT+2)}, {vr(vAz+r)} offset:{8*RS+r*RS}')
        a('s_mov_b64 exec, -1')
        a(f'v_and_b32 {vr(vT)}, 3, v0')
        a(f'v_mul_u32_u24 {vr(vT)}, {RS}, {vr(vT)}')
        a(f'v_add_u32 {vr(vT)}, {MB}, {vr(vT)}')
        a('s_waitcnt lgkmcnt(0)')
        a('s_barrier')
        for k in range(nw // 4):
            a(f'ds_read_b128 {vr(vF+4*k,4)}, {vr(vT)} offset:{16*k}')
            a(f'ds_read_b128 {vr(vLw+4*k,4)}, {vr(vT)} offset:{4*RS+16*k}')
            a(f'ds_read_b128 {vr(vZw+4*k,4)}, {vr(vT)} offset:{8*RS+16*k}')
        a('s_waitcnt lgkmcnt(0)')
        a(f'v_max3_f32 {vr(vMx)}, {vr(vF)}, {vr(vF+1)}, {vr(vF+2)}')
        for w in range(3, nw): a(f'v_max_f32 {vr(vMx)}, {vr(vMx)}, {vr(vF+w)}')
        for w in range(nw): a(f'v_sub_f32 {vr(vF+w)}, {vr(vF+w)}, {vr(vMx)}')
        for w in range(nw): a(f'v_exp_f32 {vr(vF+w)}, {vr(vF+w)}')
        a('s_nop 0')
        a(f'v_mul_f32 {vr(vLs)}, {vr(vF)}, {vr(vLw)}')
        a(f'v_mul_f32 {vr(vZs)}, {vr(vF)}, {vr(vZw)}')
        for w in range(1, nw):
            a(f'v_fmac_f32 {vr(vLs)}, {vr(vF+w)}, {vr(vLw+w)}')
            a(f'v_fmac_f32 {vr(vZs)}, {vr(vF+w)}, {vr(vZw+w)}')

    def vstep(pf):
        f = vT + 4
        a('s_waitcnt vmcnt(8) lgkmcnt(0)')
        a(f'v_lshlrev_b32 {vr(f)}, 16, {vr(vVs)}')
        a(f'v_and_b32 {vr(f+1)}, {sr(sMask)}, {vr(vVs)}')
        a(f'v_lshlrev_b32 {vr(f+2)}, 16, {vr(vVs+1)}')
        a(f'v_and_b32 {vr(f+3)}, {sr(sMask)}, {vr(vVs+1)}')
        for r in range(4): a(f'v_sub_f32 {vr(vS+r)}, {vr(vS+r)}, {vr(vM)}')
        for r in range(4): a(f'v_exp_f32 {vr(vS+r)}, {vr(vS+r)}')
        a('s_nop 0')
        a(f'v_add_f32 {vr(vT)}, {vr(vS)}, {vr(vS+1)}')
        a(f'v_add_f32 {vr(vT+1)}, {vr(vS+2)}, {vr(vS+3)}')
        for r in range(4): a(f'v_mul_f32 {vr(vS+r)}, {vr(vS+r)}, {vr(f+r)}')
        a(f'v_add_f32 {vr(vL)}, {vr(vL)}, {vr(vT)}')
        a(f'v_cvt_pk_bf16_f32 {vr(vP)}, {vr(vS)}, {vr(vS+1)}')
        a(f'v_cvt_pk_bf16_f32 {vr(vP+1)}, {vr(vS+2)}, {vr(vS+3)}')
        a(f'v_add_f32 {vr(vL)}, {vr(vL)}, {vr(vT+1)}')
        a('s_nop 0')
        a(f'v_mfma_f32_16x16x16_bf16 {vr(vAz,4)}, {vr(vP,2)}, {vr(vVz,2)}, {vr(vAz,4)}')
        if pf:
            a(f's_add_u32 {sr(sOffK)}, {sr(sOffK)}, {stride}')
            offsV(); ld_vs()
            a(f'v_add_u32 {vr(vSa)}, 256, {vr(vSa)}')
            a(f'ds_read_b128 {vr(vS,4)}, {vr(vSa)}')
        else:
            early_publish()
        def vpair(p):
            jp, h = p >> 1, p & 1
            for c in range(4):
                r0, r1 = vR + 8 * p + c, vR + 8 * p + 4 + c
                a(f'v_cvt_f32_i32 {vr(r0)}, {vr(r0)}')
                a(f'v_cvt_f32_i32 {vr(r1)}, {vr(r1)}')
                a(f'v_cvt_pk_bf16_f32 {vr(vPK+2*(4*h+c)+jp)}, {vr(r0)}, {vr(r1)}')
        if roll in (1, 3):
            for p in range(4):
                a(f's_waitcnt vmcnt({8 if pf else 6-2*p})')
                vpair(p)
                if pf: ld_V1(2*p); ld_V1(2*p+1)
            if not pf: a('s_nop 1')
        else:
            base = 2 if pf else 0
            a(f's_waitcnt vmcnt({base+4})'); vpair(0); vpair(1)
            a(f's_waitcnt vmcnt({base})'); vpair(2); vpair(3)
            if pf: ld_V()
            else: a('s_nop 1')
        for i in range(8):
            a(f'v_mfma_f32_16x16x16_bf16 {vr(vAcc+4*i,4)}, {vr(vP,2)}, {vr(vPK+2*i,2)}, {vr(vAcc+4*i,4)}')

    a('L_kloop:')
    kstep('K')
    if kbar: a('s_barrier')
    a(f's_sub_u32 {sr(sCnt)}, {sr(sCnt)}, 1')
    a(f's_cmp_lg_u32 {sr(sCnt)}, 0')
    a('s_cbranch_scc1 L_kloop')
    kstep('V')
    if kbar: a('s_barrier')
    stamp(2)
    a(f'v_subrev_u32 {vr(vSa)}, {NT*256}, {vr(vSa)}')
    a(f'v_mov_b32 {vr(vT+1)}, {vr(vM)}')
    a(f'ds_read_b128 {vr(vS,4)}, {vr(vSa)}')
    a('s_nop 0')
    a(f'v_permlane16_swap_b32 {vr(vM)}, {vr(vT+1)}')
    a(f'v_max_f32 {vr(vM)}, {vr(vM)}, {vr(vT+1)}')
    a(f'v_mov_b32 {vr(vT+1)}, {vr(vM)}')
    a('s_nop 1')
    a(f'v_permlane32_swap_b32 {vr(vM)}, {vr(vT+1)}')
    a(f'v_max_f32 {vr(vM)}, {vr(vM)}, {vr(vT+1)}')
    a(f's_mov_b32 {sr(sCnt)}, {NT-1}')
    a('L_vloop:')
    vstep(1)
    if vbar: a('s_barrier')
    a(f's_sub_u32 {sr(sCnt)}, {sr(sCnt)}, 1')
    a(f's_cmp_lg_u32 {sr(sCnt)}, 0')
    a('s_cbranch_scc1 L_vloop')
    vstep(0)
    stamp(3)
    a(f's_lshl_b32 {sr(sT0)}, {sr(sWave)}, 11')
    a(f's_add_u32 {sr(sT0)}, {sr(sT0)}, {OB}')
    a(f'v_add_u32 {vr(vT)}, {sr(sT0)}, {vr(vKsOff)}')
    a(f'v_lshlrev_b32 {vr(vT+1)}, 2, v0')
    a(f'v_add_u32 {vr(vT+2)}, {OB}, {vr(vT+1)}')
    a('s_mov_b64 exec, 0xffff')
    a('s_nop 1')
    for i in range(8):
        a(f'ds_write_b128 {vr(vT)}, {vr(vAcc+4*i,4)} offset:{i*256}')
    a('s_mov_b64 exec, -1')
    a(f's_mul_i32 {sr(sT1)}, s2, {PSTRIDE}')
    a(f's_add_u32 {sr(srdT)}, {sr(ws_)}, {sr(sT1)}')
    a(f's_addc_u32 {sr(srdT+1)}, {sr(ws_+1)}, 0')
    a(f's_and_b32 {sr(srdT+1)}, {sr(srdT+1)}, 0xffff')
    a(f's_mov_b32 {sr(srdT+2)}, {PSTRIDE}')
    a(f's_mov_b32 {sr(srdT+3)}, 0x20000')
    a('s_waitcnt lgkmcnt(0)')
    a('s_barrier')
    vOw = vR
    vRes = vR + 16
    vPo = vSa
    for ch in range(nch):
        for w in range(nw):
            a(f'ds_read_b32 {vr(vOw+ch*nw+w)}, {vr(vT+2)} offset:{w*2048+ch*nthr*4}')
    for ch in range(nch):
        a(f's_waitcnt lgkmcnt({(nch-1-ch)*nw})')
        a(f'v_fma_f32 {vr(vRes+ch)}, {vr(vF)}, {vr(vOw+ch*nw)}, -{vr(vZs)}')
        for w in range(1, nw):
            a(f'v_fmac_f32 {vr(vRes+ch)}, {vr(vF+w)}, {vr(vOw+ch*nw+w)}')
    stamp(4)
    if nch == 1 or not x2:
        for ch in range(nch):
            a(f'buffer_store_dword {vr(vRes+ch)}, {vr(vT+1)}, {sr(srdT,4)}, 0 offen offset:{ch*nthr*4} sc1')
    else:
        a(f'v_lshlrev_b32 {vr(vPo)}, 3, v0')
        a(f'buffer_store_dwordx2 {vr(vRes,2)}, {vr(vPo)}, {sr(srdT,4)}, 0 offen sc1')
    a('v_cmp_gt_u32 vcc, 4, v0')
    a(f's_and_saveexec_b64 {sr(sEx,2)}, vcc')
    a('s_cbranch_execz L_nost')
    a(f'buffer_store_dword {vr(vMx)}, {vr(vT+1)}, {sr(srdT,4)}, 0 offen offset:2048 sc1')
    a(f'buffer_store_dword {vr(vLs)}, {vr(vT+1)}, {sr(srdT,4)}, 0 offen offset:2064 sc1')
    a('L_nost:')
    a(f's_mov_b64 exec, {sr(sEx,2)}')
    a(f's_mov_b32 {sr(srdKS)}, {sr(dbg_)}')
    a(f's_and_b32 {sr(srdKS+1)}, {sr(dbg_+1)}, 0xffff')
    a(f's_mov_b32 {sr(srdKS+2)}, 256')
    a(f's_lshl_b32 {sr(sOffG)}, {sr(sHk)}, {cshift}')
    if coff: a(f's_add_u32 {sr(sOffG)}, {sr(sOffG)}, {coff}')
    a(f's_mul_i32 {sr(sT1)}, {sr(sHk)}, {P*PSTRIDE}')
    a(f's_add_u32 {sr(srdV)}, {sr(ws_)}, {sr(sT1)}')
    a(f's_addc_u32 {sr(srdV+1)}, {sr(ws_+1)}, 0')
    a(f's_and_b32 {sr(srdV+1)}, {sr(srdV+1)}, 0xffff')
    a(f's_mov_b32 {sr(srdV+2)}, {P*PSTRIDE}')
    a(f's_lshl_b32 {sr(sT1)}, {sr(sHk)}, 10')
    a(f's_add_u32 {sr(srdK)}, {sr(o_)}, {sr(sT1)}')
    a(f's_addc_u32 {sr(srdK+1)}, {sr(o_+1)}, 0')
    a(f's_and_b32 {sr(srdK+1)}, {sr(srdK+1)}, 0xffff')
    a(f's_mov_b32 {sr(srdK+2)}, 1024')
    vML = vT + 2; vBp = vT + 3; vOa = vT + 4
    a(f'v_and_b32 {vr(vBp)}, 3, {vr(vLane)}')
    a(f'v_lshlrev_b32 {vr(vBp)}, 6, {vr(vBp)}')
    a(f'v_and_b32 {vr(vML)}, 15, {vr(vLane)}')
    a(f'v_lshlrev_b32 {vr(vML)}, 12, {vr(vML)}')
    a(f'v_lshrrev_b32 {vr(vT+6)}, 4, {vr(vLane)}')
    a(f'v_lshl_add_u32 {vr(vML)}, {vr(vT+6)}, 2, {vr(vML)}')
    for ch in range(nch):
        e, x, y = vT + 6, vOa + ch, vT + 7
        a(f'v_add_u32 {vr(e)}, {ch*nthr}, v0')
        a(f'v_and_b32 {vr(x)}, 3, {vr(e)}'); a(f'v_lshlrev_b32 {vr(x)}, 7, {vr(x)}')
        a(f'v_lshrrev_b32 {vr(y)}, 8, {vr(e)}'); a(f'v_lshl_add_u32 {vr(x)}, {vr(y)}, 6, {vr(x)}')
        a(f'v_bfe_u32 {vr(y)}, {vr(e)}, 2, 4'); a(f'v_lshl_add_u32 {vr(x)}, {vr(y)}, 2, {vr(x)}')
        a(f'v_bfe_u32 {vr(y)}, {vr(e)}, 6, 2'); a(f'v_add_u32 {vr(x)}, {vr(x)}, {vr(y)}')
        a(f'v_lshlrev_b32 {vr(x)}, 1, {vr(x)}')
    a(f'v_mov_b32 {vr(vT+6)}, {TK}')
    a('s_waitcnt vmcnt(0)')
    stamp(5)
    a('s_barrier')
    a(f's_cmp_lg_u32 {sr(sWave)}, 0')
    a('s_cbranch_scc1 L_noat')
    a('s_mov_b64 exec, 1')
    a(f'v_mov_b32 {vr(vT+7)}, 1')
    a(f'v_mov_b32 {vr(vT)}, 0')
    a(f'buffer_atomic_add {vr(vT+7)}, {vr(vT)}, {sr(srdKS,4)}, {sr(sOffG)} offen sc0')
    a('s_waitcnt vmcnt(0)')
    a(f'ds_write_b32 {vr(vT+6)}, {vr(vT+7)}')
    a('s_mov_b64 exec, -1')
    a('s_waitcnt lgkmcnt(0)')
    a('L_noat:')
    a('s_barrier')
    a(f'ds_read_b32 {vr(vT+7)}, {vr(vT+6)}')
    a('s_waitcnt lgkmcnt(0)')
    a(f'v_readfirstlane_b32 {sr(sT0)}, {vr(vT+7)}')
    a('s_nop 3')
    stamp(6)
    a(f's_cmp_lg_u32 {sr(sT0)}, {P-1}')
    a('s_cbranch_scc1 L_notlast')
    cM, cL, x, y = vQB, vQB + 1, vQB + 2, vQB + 3
    cW = vPK
    cO = vR if nch == 1 else vAcc
    a(f'buffer_load_dword {vr(cM)}, {vr(vML)}, {sr(srdV,4)}, 0 offen offset:2048 sc1')
    a(f'buffer_load_dword {vr(cL)}, {vr(vML)}, {sr(srdV,4)}, 0 offen offset:2064 sc1')
    for w in range(P):
        a(f's_mov_b32 {sr(sT1)}, {w*PSTRIDE}')
        if nch == 1: a(f'buffer_load_dword {vr(cO+w)}, {vr(vT+1)}, {sr(srdV,4)}, {sr(sT1)} offen sc1')
        elif not x2:
            for ch in range(nch): a(f'buffer_load_dword {vr(cO+2*w+ch)}, {vr(vT+1)}, {sr(srdV,4)}, {sr(sT1)} offen offset:{ch*nthr*4} sc1')
        else: a(f'buffer_load_dwordx2 {vr(cO+2*w,2)}, {vr(vPo)}, {sr(srdV,4)}, {sr(sT1)} offen sc1')
    a(f's_waitcnt vmcnt({P if (nch == 1 or x2) else nch*P})')
    def allreduce(reg, op):
        for k in (1, 2, 4, 8):
            a('s_nop 1')
            a(f'{op}_dpp {vr(reg)}, {vr(reg)}, {vr(reg)} row_ror:{k} row_mask:0xf bank_mask:0xf')
    a(f'v_mov_b32 {vr(x)}, {vr(cM)}')
    allreduce(x, 'v_max_f32')
    a(f'v_sub_f32 {vr(cM)}, {vr(cM)}, {vr(x)}')
    a(f'v_exp_f32 {vr(cM)}, {vr(cM)}')
    a('s_nop 0')
    a(f'v_mul_f32 {vr(x)}, {vr(cM)}, {vr(cL)}')
    allreduce(x, 'v_add_f32')
    a(f'v_rcp_f32 {vr(cL)}, {vr(x)}')
    a('s_nop 0')
    a(f'v_mul_f32 {vr(cM)}, {vr(cM)}, {vr(cL)}')
    for w in range(P):
        a(f'ds_bpermute_b32 {vr(cW+w)}, {vr(vBp)}, {vr(cM)} offset:{4*w}')
    a('s_waitcnt vmcnt(0) lgkmcnt(0)')
    for ch in range(nch):
        o = (lambda w: cO + w) if nch == 1 else (lambda w: cO + 2 * w + ch)
        a(f'v_mul_f32 {vr(x)}, {vr(cW)}, {vr(o(0))}')
        for w in range(1, P): a(f'v_fmac_f32 {vr(x)}, {vr(cW+w)}, {vr(o(w))}')
        a(f'v_cvt_pk_bf16_f32 {vr(x)}, {vr(x)}, {vr(x)}')
        a(f'buffer_store_short {vr(x)}, {vr(vOa+ch)}, {sr(srdK,4)}, 0 offen {opol}')
    if dbgprof:
        a('s_waitcnt vmcnt(0)')
        a(f's_cmp_lg_u32 {sr(sWave)}, 0')
        a('s_cbranch_scc1 L_end')
        stamp(7)
        a(f's_memtime {sr(sTm+2,2)}')
        a('s_waitcnt lgkmcnt(0)')
        a('s_mov_b64 exec, 1')
        a(f'v_mov_b32 {vr(vT)}, 0')
        for i in range(1, 8):
            a(f's_sub_u32 {sr(sT0)}, {sr(sSt+2*i)}, {sr(sSt)}')
            a(f'v_mov_b32 {vr(vR+i)}, {sr(sT0)}')
        for i in range(1, 8):
            a(f'buffer_atomic_umax {vr(vR+i)}, {vr(vT)}, {sr(srdKS,4)}, 0 offen offset:{4*i}')
    a('L_notlast:')
    if prof == 2:
        a('s_waitcnt vmcnt(0)')
        stamp(7)
        a(f's_memtime {sr(sTm+2,2)}')
        a('s_waitcnt lgkmcnt(0)')
        a(f's_cmp_lg_u32 {sr(sWave)}, 0')
        a('s_cbranch_scc1 L_end')
        a(f's_add_u32 {sr(srdT)}, {sr(ws_)}, 0x4000000')
        a(f's_addc_u32 {sr(srdT+1)}, {sr(ws_+1)}, 0')
        a(f's_and_b32 {sr(srdT+1)}, {sr(srdT+1)}, 0xffff')
        a(f's_mov_b32 {sr(srdT+2)}, 0x100000')
        a(f's_lshl_b32 {sr(sT1)}, s2, 6')
        for i in range(8): a(f'v_mov_b32 {vr(vR+i)}, {sr(sSt+2*i)}')
        a(f's_getreg_b32 {sr(sT0)}, hwreg(HW_REG_XCC_ID)')
        a(f'v_mov_b32 {vr(vR+8)}, {sr(sT0)}')
        a(f's_getreg_b32 {sr(sT0)}, hwreg(HW_REG_HW_ID)')
        a(f'v_mov_b32 {vr(vR+9)}, {sr(sT0)}')
        a(f's_sub_u32 {sr(sT0)}, {sr(sTm+2)}, {sr(sTm)}')
        a(f'v_mov_b32 {vr(vR+10)}, {sr(sT0)}')
        a(f'v_mov_b32 {vr(vT)}, 0')
        a('s_mov_b64 exec, 1')
        a(f'buffer_store_dwordx4 {vr(vR,4)}, {vr(vT)}, {sr(srdT,4)}, {sr(sT1)} offen')
        a(f'buffer_store_dwordx4 {vr(vR+4,4)}, {vr(vT)}, {sr(srdT,4)}, {sr(sT1)} offen offset:16')
        a(f'buffer_store_dwordx4 {vr(vR+8,4)}, {vr(vT)}, {sr(srdT,4)}, {sr(sT1)} offen offset:32')
    if padto:
        a('s_waitcnt vmcnt(0) lgkmcnt(0)')
        a('L_pad:')
        a(f's_memrealtime {sr(sTm+2,2)}')
        a('s_waitcnt lgkmcnt(0)')
        a(f's_sub_u32 {sr(sT0)}, {sr(sTm+2)}, {sr(sTm)}')
        a(f's_cmp_lt_u32 {sr(sT0)}, {padto}')
        a('s_cbranch_scc1 L_pad')
    a('L_end:')
    a('s_endpgm')
    main = '\n'.join(out)
    acc = (nvgpr + 3) // 4 * 4
    kd = f'''.amdhsa_kernel {KN}
  .amdhsa_next_free_vgpr {nvgpr}
  .amdhsa_next_free_sgpr {S.n}
  .amdhsa_accum_offset {acc}
  .amdhsa_group_segment_fixed_size 0
  .amdhsa_kernarg_size 80
  .amdhsa_user_sgpr_count 2
  .amdhsa_user_sgpr_kernarg_segment_ptr 1
  .amdhsa_system_sgpr_workgroup_id_x 1
  .amdhsa_float_denorm_mode_32 3
.end_amdhsa_kernel
'''
    src = HEADCOMMENT + f'; @launch grid=({nwg},1,1) block=({nthr},1,1) lds={lds_bytes}\n'
    src += '.amdgcn_target "amdgcn-amd-amdhsa--gfx950"\n.text\n'
    src += f'.globl {KN}\n.p2align 8\n.type {KN},@function\n{main}\n'
    src += '.section .rodata,"a"\n.p2align 6\n' + kd
    return src, [(KN, nwg, nthr, lds_bytes)]

if __name__ == '__main__':
    import argparse
    ap = argparse.ArgumentParser()
    ap.add_argument('-o', default='out.s')
    ap.add_argument('kv', nargs='*')
    args = ap.parse_args()
    kw = {}
    for x in args.kv:
        k, v = x.split('=')
        try: v = int(v)
        except ValueError: pass
        kw[k] = v
    src, l = gen(**kw)
    open(args.o, 'w').write(src)
    print(l)
```

```python
import struct
KN = 'standalone__kv_cache_quant_int4_int2_kv_with_per_channel_or_per_token_scales__decode_kernel'

HEADCOMMENT = '''; KIVI-style quantised KV-cache decode attention (B=2, Hq=32, Hkv=8, Skv=32768, Dh=128), one fused launch.
; Kernarg layout for this problem (80 bytes, ptrs only, base s[0:1]):
;
; Phase 1 streams the K tiles: scores = qk . bf16(q*ks*c) - kz . bf16(q*ks*c) on the matrix cores (c = Dh^-0.5*log2 e),
;   scores parked in LDS, running maximum kept.  Phase 2 streams the V tiles: p = exp2(s - max),
'''

class Alloc:
    def __init__(self, start, limit):
        self.n = start; self.limit = limit
    def get(self, cnt=1, align=1):
        self.n = (self.n + align - 1) // align * align
        r = self.n; self.n += cnt
        assert self.n <= self.limit, self.n
        return r

def vr(r, n=1): return f'v{r}' if n == 1 else f'v[{r}:{r+n-1}]'
def sr(r, n=1): return f's{r}' if n == 1 else f's[{r}:{r+n-1}]'
def f32hex(x): return '0x%08x' % struct.unpack('<I', struct.pack('<f', x))[0]

PSTRIDE = 4096
QROW = 288
WLDS = 1536
CEXP = 0.08838834764831845 * 1.4426950408889634

def gen(nw=8, bar=1, pol='nt', spol='nt', nB=2, prof=0, dbgprof=0, coff=0, cshift=2, opol='', padto=0,
        wrot=0, perm='tr', minvgpr=176, kbar=None, vbar=None, minlds=0, roll=0, x2=0, vlate=0, rkO=0, rvO=0, rkE=0, rvE=0):
    P = 16
    nwg = 16 * P
    NT = 32768 // (P * nw * 16)
    nthr = nw * 64
    nch = 512 // nthr
    if kbar is None: kbar = bar
    if vbar is None: vbar = bar
    out = []
    a = out.append
    V = Alloc(1, 256); S = Alloc(3, 102)
    sWave = S.get()
    sKA = S.get(16, 4); sKB = S.get(4, 4)
    srdK = S.get(4, 4); srdV = S.get(4, 4); srdKS = S.get(4, 4); srdKZ = S.get(4, 4)
    srdVS = S.get(4, 4); srdVZ = S.get(4, 4); srdT = S.get(4, 4)
    sHk = S.get(); sJ = S.get()
    sOffK = S.get(); sOffS = S.get(); sOffG = S.get(); sOffK2 = S.get(); sOff0 = S.get()
    sCnt = S.get(); sT0 = S.get(); sT1 = S.get()
    sMask = S.get(); sOdd = S.get(); sEx = S.get(2, 2); sQuad = S.get(2, 2)
    stamps = prof == 2 or dbgprof
    sSt = S.get(16, 2) if stamps else None
    sTm = S.get(4, 2) if (dbgprof or padto or prof == 2) else None
    def stamp(i):
        if stamps: a(f's_memrealtime {sr(sSt+2*i,2)}')
    vLane = V.get()
    vKoff = V.get(); vVoff = V.get(); vSoff = V.get(); vKsOff = V.get(); vKzOff = V.get()
    vKoffB = V.get(); vLqRB = V.get(); vLzRB = V.get()
    vLqW = V.get(); vLzW = V.get(); vLqR = V.get(); vLzR = V.get()
    vSa = V.get()
    vM = V.get(); vL = V.get()
    vT = V.get(8, 2)
    vQc = V.get(8, 4)
    vKs = V.get(4, 4); vKz = V.get(); vVs = V.get(2, 2); vVz = V.get(2, 2)
    vQw = V.get(4, 4); vP = V.get(2, 2); vS = V.get(4, 4); vAz = V.get(4, 4)
    vAcc = V.get(32, 4); vQB = V.get(16, 4); vPK = V.get(16, 4)
    vR = V.get(32, 4)
    nvgpr = max(V.n, minvgpr)
    SB = nw * WLDS
    OB = SB + nw * NT * 256
    MB = OB + nw * 2048
    RS = nw * 4
    TK = MB + 12 * RS
    lds_bytes = max(TK + 16, minlds)

    a(f'{KN}:')
    a(f's_cmp_ge_u32 s2, {nwg}')
    a('s_cbranch_scc1 L_end')
    a(f's_load_dwordx16 {sr(sKA,16)}, s[0:1], 0')
    a(f's_load_dwordx4 {sr(sKB,4)}, s[0:1], 64')
    stamp(0)
    if dbgprof or prof == 2: a(f's_memtime {sr(sTm,2)}')
    if padto: a(f's_memrealtime {sr(sTm,2)}')
    a(f'v_lshrrev_b32 {vr(vT)}, 6, v0')
    a(f'v_and_b32 {vr(vLane)}, 63, v0')
    a(f's_lshr_b32 {sr(sHk)}, s2, 4')
    a(f'v_readfirstlane_b32 {sr(sWave)}, {vr(vT)}')
    a(f's_and_b32 {sr(sJ)}, s2, {P-1}')
    n15, g4 = vT + 1, vT + 2
    a(f'v_and_b32 {vr(n15)}, 15, {vr(vLane)}')
    a(f'v_lshrrev_b32 {vr(g4)}, 4, {vr(vLane)}')
    a(f'v_lshlrev_b32 {vr(vKsOff)}, 4, {vr(n15)}')
    a(f'v_lshlrev_b32 {vr(vT+3)}, 9, {vr(n15)}')
    a(f'v_lshl_add_u32 {vr(vKoff)}, {vr(g4)}, 4, {vr(vT+3)}')
    a(f'v_lshl_add_u32 {vr(vVoff)}, {vr(g4)}, 11, {vr(vKsOff)}')
    a(f'v_lshlrev_b32 {vr(vSoff)}, 3, {vr(g4)}')
    a(f'v_lshlrev_b32 {vr(vKzOff)}, 2, {vr(vLane)}')
    a(f'v_and_b32 {vr(vT+3)}, 7, {vr(vLane)}')
    a(f'v_lshlrev_b32 {vr(vT+3)}, 9, {vr(vT+3)}')
    a(f'v_lshrrev_b32 {vr(vT+4)}, 3, {vr(vLane)}')
    a(f'v_lshl_add_u32 {vr(vKoffB)}, {vr(vT+4)}, 4, {vr(vT+3)}')
    stride = nw * 16 * 512
    if perm == 'tr': a(f's_lshl_b32 {sr(sOff0)}, {sr(sJ)}, 20')
    else: a(f's_mul_i32 {sr(sOff0)}, {sr(sJ)}, {stride}')
    if wrot == 0: a(f's_lshl_b32 {sr(sT0)}, {sr(sWave)}, 13')
    else:
        if wrot == 3: a(f's_lshr_b32 {sr(sT0)}, s2, 3'); a(f's_and_b32 {sr(sT0)}, {sr(sT0)}, 1'); a(f's_lshl_b32 {sr(sT0)}, {sr(sT0)}, {(nw//2).bit_length()-1}'); a(f's_xor_b32 {sr(sT0)}, {sr(sT0)}, {sr(sWave)}')
        elif wrot == 8: a(f's_lshr_b32 {sr(sT0)}, s2, 3'); a(f's_and_b32 {sr(sT0)}, {sr(sT0)}, 3'); a(f's_lshl_b32 {sr(sT0)}, {sr(sT0)}, 1'); a(f's_xor_b32 {sr(sT0)}, {sr(sT0)}, {sr(sWave)}')
        a(f's_and_b32 {sr(sT0)}, {sr(sT0)}, {nw-1}')
        a(f's_lshl_b32 {sr(sT0)}, {sr(sT0)}, 13')
    a(f's_add_u32 {sr(sOff0)}, {sr(sOff0)}, {sr(sT0)}')
    if perm != 'tr': stride = stride * P
    a(f's_mov_b32 {sr(sOffK)}, {sr(sOff0)}')
    def offsK():
        a(f's_lshr_b32 {sr(sOffG)}, {sr(sOffK)}, 8')
        a(f's_and_b32 {sr(sOffG)}, {sr(sOffG)}, 0xffffff00')
        if nB: a(f's_add_u32 {sr(sOffK2)}, {sr(sOffK)}, 4096')
    def offsV():
        a(f's_lshr_b32 {sr(sOffS)}, {sr(sOffK)}, 8')
    offsK()
    a('s_waitcnt lgkmcnt(0)')
    def srd(dst, ptr, off_s, off_shift, nbytes):
        a(f's_lshl_b32 {sr(sT0)}, {sr(off_s)}, {off_shift}')
        a(f's_add_u32 {sr(dst)}, {sr(ptr)}, {sr(sT0)}')
        a(f's_addc_u32 {sr(dst+1)}, {sr(ptr+1)}, 0')
        a(f's_and_b32 {sr(dst+1)}, {sr(dst+1)}, 0xffff')
        a(f's_mov_b32 {sr(dst+2)}, {nbytes}')
        a(f's_mov_b32 {sr(dst+3)}, 0x20000')
    q_, qk_, qv_, ks_, kz_, vs_, vz_, o_ = [sKA + 2 * i for i in range(8)]
    dbg_, ws_ = sKB, sKB + 2
    def ld_ks():
        a(f'buffer_load_dwordx4 {vr(vKs,4)}, {vr(vKsOff)}, {sr(srdKS,4)}, {sr(sOffG)} offen {spol}')
        a(f'buffer_load_dword {vr(vKz)}, {vr(vKzOff)}, {sr(srdKZ,4)}, {sr(sOffG)} offen {spol}')
    def ld_K1(i):
        s = i // 2
        if s < 4 - nB:
            a(f'buffer_load_dwordx4 {vr(vR+4*i,4)}, {vr(vKoff)}, {sr(srdK,4)}, {sr(sOffK)} offen offset:{i*64} {pol}')
        else:
            a(f'buffer_load_dwordx4 {vr(vR+4*i,4)}, {vr(vKoffB)}, {sr(srdK,4)}, {sr(sOffK if i % 2 == 0 else sOffK2)} offen offset:{s*128} {pol}')
    def ld_K():
        for i in range(8): ld_K1(i)
    def ld_vs():
        a(f'buffer_load_dwordx2 {vr(vVs,2)}, {vr(vSoff)}, {sr(srdVS,4)}, {sr(sOffS)} offen {spol}')
        a(f'buffer_load_dwordx2 {vr(vVz,2)}, {vr(vSoff)}, {sr(srdVZ,4)}, {sr(sOffS)} offen {spol}')
    VSEQ = [(0,0),(1,0),(0,1),(1,1),(2,0),(3,0),(2,1),(3,1)]
    def ld_V1(k):
        j, h = VSEQ[k]
        a(f'buffer_load_dwordx4 {vr(vR+4*k,4)}, {vr(vVoff)}, {sr(srdV,4)}, {sr(sOffK)} offen offset:{j*512+h*256} {pol}')
    def ld_V():
        for k in range(8): ld_V1(k)
    srd(srdT, q_, sHk, 10, 1024)
    a(f'v_lshl_add_u32 {vr(vT+3)}, {vr(g4)}, 8, {vr(vKsOff)}')
    a(f'buffer_load_dwordx4 {vr(vQw,4)}, {vr(vT+3)}, {sr(srdT,4)}, 0 offen {spol}')
    srd(srdKS, ks_, sHk, 16, 1 << 16)
    srd(srdKZ, kz_, sHk, 16, 1 << 16)
    srd(srdK, qk_, sHk, 24, 1 << 24)
    ld_ks(); ld_K()
    srd(srdVS, vs_, sHk, 16, 1 << 16)
    srd(srdVZ, vz_, sHk, 16, 1 << 16)
    srd(srdV, qv_, sHk, 24, 1 << 24)
    a(f's_mul_i32 {sr(sT0)}, {sr(sWave)}, {WLDS}')
    a(f'v_mul_u32_u24 {vr(vT+3)}, {QROW}, {vr(g4)}')
    a(f'v_add3_u32 {vr(vLqW)}, {vr(vT+3)}, {vr(vKsOff)}, {sr(sT0)}')
    a(f'v_add_u32 {vr(vLzW)}, {sr(sT0)}, {vr(vKzOff)}')
    a(f'v_add_u32 {vr(vLzW)}, {4*QROW}, {vr(vLzW)}')
    a(f'v_and_b32 {vr(vT+4)}, 3, {vr(vLane)}')
    a(f'v_mul_u32_u24 {vr(vT+3)}, {QROW}, {vr(vT+4)}')
    a(f'v_add3_u32 {vr(vLqR)}, {vr(vT+3)}, {vr(vSoff)}, {sr(sT0)}')
    a(f'v_add_u32 {vr(vLzR)}, {sr(sT0)}, {vr(vSoff)}')
    a(f'v_add_u32 {vr(vLzR)}, {4*QROW}, {vr(vLzR)}')
    a(f'v_add_u32 {vr(vLqRB)}, {vr(vLqR)}, {vr(vSoff)}')
    a(f'v_add_u32 {vr(vLzRB)}, {vr(vLzR)}, {vr(vSoff)}')
    a(f's_mul_i32 {sr(sT0)}, {sr(sWave)}, {NT*256}')
    a(f's_add_u32 {sr(sT0)}, {sr(sT0)}, {SB}')
    a(f'v_lshlrev_b32 {vr(vT+4)}, 4, {vr(vT+4)}')
    a(f'v_lshl_add_u32 {vr(vSa)}, {vr(g4)}, 6, {vr(vT+4)}')
    a(f'v_add_u32 {vr(vSa)}, {sr(sT0)}, {vr(vSa)}')
    a(f's_mov_b32 {sr(sMask)}, 0xffff0000')
    a(f's_mov_b32 {sr(sQuad)}, 0x000f000f')
    a(f's_mov_b32 {sr(sQuad+1)}, 0x000f000f')
    a(f'v_mov_b32 {vr(vM)}, 0xff800000')
    a(f'v_mov_b32 {vr(vL)}, 0')
    for i in range(4): a(f'v_mov_b32 {vr(vAz+i)}, 0')
    for i in range(32): a(f'v_mov_b32 {vr(vAcc+i)}, 0')
    a(f's_mov_b32 {sr(sT1)}, {f32hex(CEXP)}')
    a(f's_mov_b32 {sr(sCnt)}, {NT-1}')
    a('s_waitcnt vmcnt(10)')
    stamp(1)
    for i in range(4):
        a(f'v_lshlrev_b32 {vr(vQc+2*i)}, 16, {vr(vQw+i)}')
        a(f'v_and_b32 {vr(vQc+2*i+1)}, {sr(sMask)}, {vr(vQw+i)}')
    for i in range(8):
        a(f'v_mul_f32 {vr(vQc+i)}, {sr(sT1)}, {vr(vQc+i)}')

    def kstep(nxt, rk=None):
        a('s_waitcnt vmcnt(8)')
        for i in range(4):
            a(f'v_lshlrev_b32 {vr(vT)}, 16, {vr(vKs+i)}')
            a(f'v_and_b32 {vr(vT+1)}, {sr(sMask)}, {vr(vKs+i)}')
            a(f'v_mul_f32 {vr(vT)}, {vr(vT)}, {vr(vQc+2*i)}')
            a(f'v_mul_f32 {vr(vT+1)}, {vr(vT+1)}, {vr(vQc+2*i+1)}')
            a(f'v_cvt_pk_bf16_f32 {vr(vQw+i)}, {vr(vT)}, {vr(vT+1)}')
        a(f'v_xor_b32 {vr(vT+2)}, 0x80008000, {vr(vKz)}')
        a(f'ds_write_b128 {vr(vLqW)}, {vr(vQw,4)}')
        a(f'ds_write_b32 {vr(vLzW)}, {vr(vT+2)}')
        if nxt == 'K':
            a(f's_add_u32 {sr(sOffK)}, {sr(sOffK)}, {stride}')
            offsK(); ld_ks()
        else:
            a(f's_mov_b32 {sr(sOffK)}, {sr(sOff0)}')
            offsV(); ld_vs()
        for s in range(4):
            if s < 4 - nB: a(f'ds_read2_b64 {vr(vQB+4*s,4)}, {vr(vLqR)} offset0:{8*s} offset1:{8*s+4}')
            else: a(f'ds_read_b128 {vr(vQB+4*s,4)}, {vr(vLqRB)} offset:{64*s}')
        for s in range(4):
            if s < 4 - nB: a(f'ds_read2_b64 {vr(vPK+4*s,4)}, {vr(vLzR)} offset0:{8*s} offset1:{8*s+4}')
            else: a(f'ds_read_b128 {vr(vPK+4*s,4)}, {vr(vLzRB)} offset:{64*s}')
        a('s_waitcnt lgkmcnt(0)')
        for s in range(4):
            c = '0' if s == 0 else vr(vS, 4)
            a(f'v_mfma_f32_16x16x32_bf16 {vr(vS,4)}, {vr(vPK+4*s,4)}, {vr(vQB+4*s,4)}, {c}')
        if rk is None: rk = 8 if roll in (1, 2) else 0
        def kcvt(i):
            for c in range(4):
                a(f'v_cvt_f32_i32 {vr(vR+4*i+c)}, {vr(vR+4*i+c)}')
            d = vPK + 4 * (i // 2) + 2 * (i % 2)
            a(f'v_cvt_pk_bf16_f32 {vr(d)}, {vr(vR+4*i)}, {vr(vR+4*i+1)}')
            a(f'v_cvt_pk_bf16_f32 {vr(d+1)}, {vr(vR+4*i+2)}, {vr(vR+4*i+3)}')
        nld = ld_K1 if nxt == 'K' else ld_V1
        for i in range(rk):
            a('s_waitcnt vmcnt(9)')
            kcvt(i); nld(i)
        if rk < 8:
            a(f's_waitcnt vmcnt({2+rk})')
            for i in range(rk, 8): kcvt(i)
            for i in range(rk, 8): nld(i)
        for s in range(4 - nB, 4):
            a(f'v_mov_b32 {vr(vT)}, {vr(vPK+4*s)}')
            a(f'v_mov_b32 {vr(vT+1)}, {vr(vPK+4*s+1)}')
            a('s_nop 0')
            a(f'v_mov_b32_dpp {vr(vPK+4*s)}, {vr(vPK+4*s+2)} row_ror:8 row_mask:0xf bank_mask:0xc')
            a(f'v_mov_b32_dpp {vr(vPK+4*s+1)}, {vr(vPK+4*s+3)} row_ror:8 row_mask:0xf bank_mask:0xc')
            a(f'v_mov_b32_dpp {vr(vPK+4*s+2)}, {vr(vT)} row_ror:8 row_mask:0xf bank_mask:0x3')
            a(f'v_mov_b32_dpp {vr(vPK+4*s+3)}, {vr(vT+1)} row_ror:8 row_mask:0xf bank_mask:0x3')
        a('s_nop 1')
        for s in range(4):
            a(f'v_mfma_f32_16x16x32_bf16 {vr(vS,4)}, {vr(vPK+4*s,4)}, {vr(vQB+4*s,4)}, {vr(vS,4)}')
        a('s_nop 7')
        a(f's_mov_b64 exec, {sr(sQuad,2)}')
        a(f'ds_write_b128 {vr(vSa)}, {vr(vS,4)}')
        a('s_mov_b64 exec, -1')
        a(f'v_max3_f32 {vr(vM)}, {vr(vS)}, {vr(vS+1)}, {vr(vM)}')
        a(f'v_max3_f32 {vr(vM)}, {vr(vS+2)}, {vr(vS+3)}, {vr(vM)}')
        a(f'v_add_u32 {vr(vSa)}, 256, {vr(vSa)}')

    vF = vQB
    vLw = vQB + 8
    vZw = vQc
    vMx, vLs, vZs = vKs, vKs + 1, vKs + 2
    def early_publish():
        a(f'v_mov_b32 {vr(vT+1)}, {vr(vL)}')
        a('s_nop 1')
        a(f'v_permlane16_swap_b32 {vr(vL)}, {vr(vT+1)}')
        a(f'v_add_f32 {vr(vL)}, {vr(vL)}, {vr(vT+1)}')
        a(f'v_mov_b32 {vr(vT+1)}, {vr(vL)}')
        a('s_nop 1')
        a(f'v_permlane32_swap_b32 {vr(vL)}, {vr(vT+1)}')
        a(f'v_add_f32 {vr(vL)}, {vr(vL)}, {vr(vT+1)}')
        a(f's_lshl_b32 {sr(sT1)}, {sr(sWave)}, 2')
        a(f's_add_u32 {sr(sT1)}, {sr(sT1)}, {MB}')
        a(f'v_mul_u32_u24 {vr(vT+2)}, {RS}, {vr(vLane)}')
        a(f'v_add_u32 {vr(vT+2)}, {sr(sT1)}, {vr(vT+2)}')
        a('s_mov_b64 exec, 0xf')
        a(f'ds_write_b32 {vr(vT+2)}, {vr(vM)}')
        a(f'ds_write_b32 {vr(vT+2)}, {vr(vL)} offset:{4*RS}')
        a('s_mov_b64 exec, 1')
        for r in range(4):
            a(f'ds_write_b32 {vr(vT+2)}, {vr(vAz+r)} offset:{8*RS+r*RS}')
        a('s_mov_b64 exec, -1')
        a(f'v_and_b32 {vr(vT)}, 3, v0')
        a(f'v_mul_u32_u24 {vr(vT)}, {RS}, {vr(vT)}')
        a(f'v_add_u32 {vr(vT)}, {MB}, {vr(vT)}')
        a('s_waitcnt lgkmcnt(0)')
        a('s_barrier')
        for k in range(nw // 4):
            a(f'ds_read_b128 {vr(vF+4*k,4)}, {vr(vT)} offset:{16*k}')
            a(f'ds_read_b128 {vr(vLw+4*k,4)}, {vr(vT)} offset:{4*RS+16*k}')
            a(f'ds_read_b128 {vr(vZw+4*k,4)}, {vr(vT)} offset:{8*RS+16*k}')
        a('s_waitcnt lgkmcnt(0)')
        a(f'v_max3_f32 {vr(vMx)}, {vr(vF)}, {vr(vF+1)}, {vr(vF+2)}')
        for w in range(3, nw): a(f'v_max_f32 {vr(vMx)}, {vr(vMx)}, {vr(vF+w)}')
        for w in range(nw): a(f'v_sub_f32 {vr(vF+w)}, {vr(vF+w)}, {vr(vMx)}')
        for w in range(nw): a(f'v_exp_f32 {vr(vF+w)}, {vr(vF+w)}')
        a('s_nop 0')
        a(f'v_mul_f32 {vr(vLs)}, {vr(vF)}, {vr(vLw)}')
        a(f'v_mul_f32 {vr(vZs)}, {vr(vF)}, {vr(vZw)}')
        for w in range(1, nw):
            a(f'v_fmac_f32 {vr(vLs)}, {vr(vF+w)}, {vr(vLw+w)}')
            a(f'v_fmac_f32 {vr(vZs)}, {vr(vF+w)}, {vr(vZw+w)}')

    def vstep(pf, rv=None):
        if rv is None: rv = 4 if roll in (1, 3) else 0
        f = vT + 4
        a('s_waitcnt vmcnt(8) lgkmcnt(0)')
        a(f'v_lshlrev_b32 {vr(f)}, 16, {vr(vVs)}')
        a(f'v_and_b32 {vr(f+1)}, {sr(sMask)}, {vr(vVs)}')
        a(f'v_lshlrev_b32 {vr(f+2)}, 16, {vr(vVs+1)}')
        a(f'v_and_b32 {vr(f+3)}, {sr(sMask)}, {vr(vVs+1)}')
        for r in range(4): a(f'v_sub_f32 {vr(vS+r)}, {vr(vS+r)}, {vr(vM)}')
        for r in range(4): a(f'v_exp_f32 {vr(vS+r)}, {vr(vS+r)}')
        a('s_nop 0')
        a(f'v_add_f32 {vr(vT)}, {vr(vS)}, {vr(vS+1)}')
        a(f'v_add_f32 {vr(vT+1)}, {vr(vS+2)}, {vr(vS+3)}')
        for r in range(4): a(f'v_mul_f32 {vr(vS+r)}, {vr(vS+r)}, {vr(f+r)}')
        a(f'v_add_f32 {vr(vL)}, {vr(vL)}, {vr(vT)}')
        a(f'v_cvt_pk_bf16_f32 {vr(vP)}, {vr(vS)}, {vr(vS+1)}')
        a(f'v_cvt_pk_bf16_f32 {vr(vP+1)}, {vr(vS+2)}, {vr(vS+3)}')
        a(f'v_add_f32 {vr(vL)}, {vr(vL)}, {vr(vT+1)}')
        a('s_nop 0')
        a(f'v_mfma_f32_16x16x16_bf16 {vr(vAz,4)}, {vr(vP,2)}, {vr(vVz,2)}, {vr(vAz,4)}')
        if pf:
            a(f's_add_u32 {sr(sOffK)}, {sr(sOffK)}, {stride}')
            offsV(); ld_vs()
            a(f'v_add_u32 {vr(vSa)}, 256, {vr(vSa)}')
            a(f'ds_read_b128 {vr(vS,4)}, {vr(vSa)}')
        else:
            early_publish()
        def vpair(p):
            jp, h = p >> 1, p & 1
            for c in range(4):
                r0, r1 = vR + 8 * p + c, vR + 8 * p + 4 + c
                a(f'v_cvt_f32_i32 {vr(r0)}, {vr(r0)}')
                a(f'v_cvt_f32_i32 {vr(r1)}, {vr(r1)}')
                a(f'v_cvt_pk_bf16_f32 {vr(vPK+2*(4*h+c)+jp)}, {vr(r0)}, {vr(r1)}')
        if not pf:
            for p in range(4):
                a(f's_waitcnt vmcnt({6-2*p})'); vpair(p)
            a('s_nop 1')
        else:
            for p in range(rv):
                a('s_waitcnt vmcnt(8)')
                vpair(p); ld_V1(2*p); ld_V1(2*p+1)
            if rv < 4:
                if rv <= 1:
                    a(f's_waitcnt vmcnt({2+2*rv+4})')
                    for p in range(rv, 2): vpair(p)
                    a(f's_waitcnt vmcnt({2+2*rv})')
                    for p in range(2, 4): vpair(p)
                else:
                    a(f's_waitcnt vmcnt({2+2*rv})')
                    for p in range(rv, 4): vpair(p)
                for k in range(2*rv, 8): ld_V1(k)
        for i in range(8):
            a(f'v_mfma_f32_16x16x16_bf16 {vr(vAcc+4*i,4)}, {vr(vP,2)}, {vr(vPK+2*i,2)}, {vr(vAcc+4*i,4)}')

    split = (rkO, rvO) != (rkE, rvE)
    if split:
        a(f's_getreg_b32 {sr(sOdd)}, hwreg(HW_REG_XCC_ID)')
        a(f's_and_b32 {sr(sOdd)}, {sr(sOdd)}, 1')
    def kloop(tag, rk):
        a(f'L_kloop{tag}:')
        kstep('K', rk)
        if kbar: a('s_barrier')
        a(f's_sub_u32 {sr(sCnt)}, {sr(sCnt)}, 1')
        a(f's_cmp_lg_u32 {sr(sCnt)}, 0')
        a(f's_cbranch_scc1 L_kloop{tag}')
    if split and rkO != rkE:
        a(f's_cmp_lg_u32 {sr(sOdd)}, 0'); a('s_cbranch_scc1 L_kloopO')
        kloop('E', rkE); a('s_branch L_kdone')
        kloop('O', rkO); a('L_kdone:')
    else:
        kloop('', rkE if split or rkE else None)
    kstep('V')
    if kbar: a('s_barrier')
    stamp(2)
    a(f'v_subrev_u32 {vr(vSa)}, {NT*256}, {vr(vSa)}')
    a(f'v_mov_b32 {vr(vT+1)}, {vr(vM)}')
    a(f'ds_read_b128 {vr(vS,4)}, {vr(vSa)}')
    a('s_nop 0')
    a(f'v_permlane16_swap_b32 {vr(vM)}, {vr(vT+1)}')
    a(f'v_max_f32 {vr(vM)}, {vr(vM)}, {vr(vT+1)}')
    a(f'v_mov_b32 {vr(vT+1)}, {vr(vM)}')
    a('s_nop 1')
    a(f'v_permlane32_swap_b32 {vr(vM)}, {vr(vT+1)}')
    a(f'v_max_f32 {vr(vM)}, {vr(vM)}, {vr(vT+1)}')
    a(f's_mov_b32 {sr(sCnt)}, {NT-1}')
    if vlate: a(f's_mov_b32 {sr(sCnt)}, {NT-1-vlate}')
    def vloop(tag, rv):
        a(f'L_vloop{tag}:')
        vstep(1, rv)
        if vbar: a('s_barrier')
        a(f's_sub_u32 {sr(sCnt)}, {sr(sCnt)}, 1')
        a(f's_cmp_lg_u32 {sr(sCnt)}, 0')
        a(f's_cbranch_scc1 L_vloop{tag}')
    if split and rvO != rvE:
        a(f's_cmp_lg_u32 {sr(sOdd)}, 0'); a('s_cbranch_scc1 L_vloopO')
        vloop('E', rvE); a('s_branch L_vdone')
        vloop('O', rvO); a('L_vdone:')
    else:
        vloop('', rvE if split or rvE else None)
    if vlate:
        a(f's_mov_b32 {sr(sCnt)}, {vlate}')
        a('L_vloop2:')
        vstep(1, 4)
        if vbar: a('s_barrier')
        a(f's_sub_u32 {sr(sCnt)}, {sr(sCnt)}, 1')
        a(f's_cmp_lg_u32 {sr(sCnt)}, 0')
        a('s_cbranch_scc1 L_vloop2')
    vstep(0)
    stamp(3)
    a(f's_lshl_b32 {sr(sT0)}, {sr(sWave)}, 11')
    a(f's_add_u32 {sr(sT0)}, {sr(sT0)}, {OB}')
    a(f'v_add_u32 {vr(vT)}, {sr(sT0)}, {vr(vKsOff)}')
    a(f'v_lshlrev_b32 {vr(vT+1)}, 2, v0')
    a(f'v_add_u32 {vr(vT+2)}, {OB}, {vr(vT+1)}')
    a('s_mov_b64 exec, 0xffff')
    a('s_nop 1')
    for i in range(8):
        a(f'ds_write_b128 {vr(vT)}, {vr(vAcc+4*i,4)} offset:{i*256}')
    a('s_mov_b64 exec, -1')
    a(f's_mul_i32 {sr(sT1)}, s2, {PSTRIDE}')
    a(f's_add_u32 {sr(srdT)}, {sr(ws_)}, {sr(sT1)}')
    a(f's_addc_u32 {sr(srdT+1)}, {sr(ws_+1)}, 0')
    a(f's_and_b32 {sr(srdT+1)}, {sr(srdT+1)}, 0xffff')
    a(f's_mov_b32 {sr(srdT+2)}, {PSTRIDE}')
    a(f's_mov_b32 {sr(srdT+3)}, 0x20000')
    a('s_waitcnt lgkmcnt(0)')
    a('s_barrier')
    vOw = vR
    vRes = vR + 16
    vPo = vSa
    for ch in range(nch):
        for w in range(nw):
            a(f'ds_read_b32 {vr(vOw+ch*nw+w)}, {vr(vT+2)} offset:{w*2048+ch*nthr*4}')
    for ch in range(nch):
        a(f's_waitcnt lgkmcnt({(nch-1-ch)*nw})')
        a(f'v_fma_f32 {vr(vRes+ch)}, {vr(vF)}, {vr(vOw+ch*nw)}, -{vr(vZs)}')
        for w in range(1, nw):
            a(f'v_fmac_f32 {vr(vRes+ch)}, {vr(vF+w)}, {vr(vOw+ch*nw+w)}')
    stamp(4)
    if nch == 1 or not x2:
        for ch in range(nch):
            a(f'buffer_store_dword {vr(vRes+ch)}, {vr(vT+1)}, {sr(srdT,4)}, 0 offen offset:{ch*nthr*4} sc1')
    else:
        a(f'v_lshlrev_b32 {vr(vPo)}, 3, v0')
        a(f'buffer_store_dwordx2 {vr(vRes,2)}, {vr(vPo)}, {sr(srdT,4)}, 0 offen sc1')
    a('v_cmp_gt_u32 vcc, 4, v0')
    a(f's_and_saveexec_b64 {sr(sEx,2)}, vcc')
    a('s_cbranch_execz L_nost')
    a(f'buffer_store_dword {vr(vMx)}, {vr(vT+1)}, {sr(srdT,4)}, 0 offen offset:2048 sc1')
    a(f'buffer_store_dword {vr(vLs)}, {vr(vT+1)}, {sr(srdT,4)}, 0 offen offset:2064 sc1')
    a('L_nost:')
    a(f's_mov_b64 exec, {sr(sEx,2)}')
    a(f's_mov_b32 {sr(srdKS)}, {sr(dbg_)}')
    a(f's_and_b32 {sr(srdKS+1)}, {sr(dbg_+1)}, 0xffff')
    a(f's_mov_b32 {sr(srdKS+2)}, 256')
    a(f's_lshl_b32 {sr(sOffG)}, {sr(sHk)}, {cshift}')
    if coff: a(f's_add_u32 {sr(sOffG)}, {sr(sOffG)}, {coff}')
    a(f's_mul_i32 {sr(sT1)}, {sr(sHk)}, {P*PSTRIDE}')
    a(f's_add_u32 {sr(srdV)}, {sr(ws_)}, {sr(sT1)}')
    a(f's_addc_u32 {sr(srdV+1)}, {sr(ws_+1)}, 0')
    a(f's_and_b32 {sr(srdV+1)}, {sr(srdV+1)}, 0xffff')
    a(f's_mov_b32 {sr(srdV+2)}, {P*PSTRIDE}')
    a(f's_lshl_b32 {sr(sT1)}, {sr(sHk)}, 10')
    a(f's_add_u32 {sr(srdK)}, {sr(o_)}, {sr(sT1)}')
    a(f's_addc_u32 {sr(srdK+1)}, {sr(o_+1)}, 0')
    a(f's_and_b32 {sr(srdK+1)}, {sr(srdK+1)}, 0xffff')
    a(f's_mov_b32 {sr(srdK+2)}, 1024')
    vML = vT + 2; vBp = vT + 3; vOa = vT + 4
    a(f'v_and_b32 {vr(vBp)}, 3, {vr(vLane)}')
    a(f'v_lshlrev_b32 {vr(vBp)}, 6, {vr(vBp)}')
    a(f'v_and_b32 {vr(vML)}, 15, {vr(vLane)}')
    a(f'v_lshlrev_b32 {vr(vML)}, 12, {vr(vML)}')
    a(f'v_lshrrev_b32 {vr(vT+6)}, 4, {vr(vLane)}')
    a(f'v_lshl_add_u32 {vr(vML)}, {vr(vT+6)}, 2, {vr(vML)}')
    for ch in range(nch):
        e, x, y = vT + 6, vOa + ch, vT + 7
        a(f'v_add_u32 {vr(e)}, {ch*nthr}, v0')
        a(f'v_and_b32 {vr(x)}, 3, {vr(e)}'); a(f'v_lshlrev_b32 {vr(x)}, 7, {vr(x)}')
        a(f'v_lshrrev_b32 {vr(y)}, 8, {vr(e)}'); a(f'v_lshl_add_u32 {vr(x)}, {vr(y)}, 6, {vr(x)}')
        a(f'v_bfe_u32 {vr(y)}, {vr(e)}, 2, 4'); a(f'v_lshl_add_u32 {vr(x)}, {vr(y)}, 2, {vr(x)}')
        a(f'v_bfe_u32 {vr(y)}, {vr(e)}, 6, 2'); a(f'v_add_u32 {vr(x)}, {vr(x)}, {vr(y)}')
        a(f'v_lshlrev_b32 {vr(x)}, 1, {vr(x)}')
    a(f'v_mov_b32 {vr(vT+6)}, {TK}')
    a('s_waitcnt vmcnt(0)')
    stamp(5)
    a('s_barrier')
    a(f's_cmp_lg_u32 {sr(sWave)}, 0')
    a('s_cbranch_scc1 L_noat')
    a('s_mov_b64 exec, 1')
    a(f'v_mov_b32 {vr(vT+7)}, 1')
    a(f'v_mov_b32 {vr(vT)}, 0')
    a(f'buffer_atomic_add {vr(vT+7)}, {vr(vT)}, {sr(srdKS,4)}, {sr(sOffG)} offen sc0')
    a('s_waitcnt vmcnt(0)')
    a(f'ds_write_b32 {vr(vT+6)}, {vr(vT+7)}')
    a('s_mov_b64 exec, -1')
    a('s_waitcnt lgkmcnt(0)')
    a('L_noat:')
    a('s_barrier')
    a(f'ds_read_b32 {vr(vT+7)}, {vr(vT+6)}')
    a('s_waitcnt lgkmcnt(0)')
    a(f'v_readfirstlane_b32 {sr(sT0)}, {vr(vT+7)}')
    a('s_nop 3')
    stamp(6)
    a(f's_cmp_lg_u32 {sr(sT0)}, {P-1}')
    a('s_cbranch_scc1 L_notlast')
    cM, cL, x, y = vQB, vQB + 1, vQB + 2, vQB + 3
    cW = vPK
    cO = vR if nch == 1 else vAcc
    a(f'buffer_load_dword {vr(cM)}, {vr(vML)}, {sr(srdV,4)}, 0 offen offset:2048 sc1')
    a(f'buffer_load_dword {vr(cL)}, {vr(vML)}, {sr(srdV,4)}, 0 offen offset:2064 sc1')
    for w in range(P):
        a(f's_mov_b32 {sr(sT1)}, {w*PSTRIDE}')
        if nch == 1: a(f'buffer_load_dword {vr(cO+w)}, {vr(vT+1)}, {sr(srdV,4)}, {sr(sT1)} offen sc1')
        elif not x2:
            for ch in range(nch): a(f'buffer_load_dword {vr(cO+2*w+ch)}, {vr(vT+1)}, {sr(srdV,4)}, {sr(sT1)} offen offset:{ch*nthr*4} sc1')
        else: a(f'buffer_load_dwordx2 {vr(cO+2*w,2)}, {vr(vPo)}, {sr(srdV,4)}, {sr(sT1)} offen sc1')
    a(f's_waitcnt vmcnt({P if (nch == 1 or x2) else nch*P})')
    def allreduce(reg, op):
        for k in (1, 2, 4, 8):
            a('s_nop 1')
            a(f'{op}_dpp {vr(reg)}, {vr(reg)}, {vr(reg)} row_ror:{k} row_mask:0xf bank_mask:0xf')
    a(f'v_mov_b32 {vr(x)}, {vr(cM)}')
    allreduce(x, 'v_max_f32')
    a(f'v_sub_f32 {vr(cM)}, {vr(cM)}, {vr(x)}')
    a(f'v_exp_f32 {vr(cM)}, {vr(cM)}')
    a('s_nop 0')
    a(f'v_mul_f32 {vr(x)}, {vr(cM)}, {vr(cL)}')
    allreduce(x, 'v_add_f32')
    a(f'v_rcp_f32 {vr(cL)}, {vr(x)}')
    a('s_nop 0')
    a(f'v_mul_f32 {vr(cM)}, {vr(cM)}, {vr(cL)}')
    for w in range(P):
        a(f'ds_bpermute_b32 {vr(cW+w)}, {vr(vBp)}, {vr(cM)} offset:{4*w}')
    a('s_waitcnt vmcnt(0) lgkmcnt(0)')
    for ch in range(nch):
        o = (lambda w: cO + w) if nch == 1 else (lambda w: cO + 2 * w + ch)
        a(f'v_mul_f32 {vr(x)}, {vr(cW)}, {vr(o(0))}')
        for w in range(1, P): a(f'v_fmac_f32 {vr(x)}, {vr(cW+w)}, {vr(o(w))}')
        a(f'v_cvt_pk_bf16_f32 {vr(x)}, {vr(x)}, {vr(x)}')
        a(f'buffer_store_short {vr(x)}, {vr(vOa+ch)}, {sr(srdK,4)}, 0 offen {opol}')
    if dbgprof:
        a('s_waitcnt vmcnt(0)')
        a(f's_cmp_lg_u32 {sr(sWave)}, 0')
        a('s_cbranch_scc1 L_end')
        stamp(7)
        a(f's_memtime {sr(sTm+2,2)}')
        a('s_waitcnt lgkmcnt(0)')
        a('s_mov_b64 exec, 1')
        a(f'v_mov_b32 {vr(vT)}, 0')
        for i in range(1, 8):
            a(f's_sub_u32 {sr(sT0)}, {sr(sSt+2*i)}, {sr(sSt)}')
            a(f'v_mov_b32 {vr(vR+i)}, {sr(sT0)}')
        for i in range(1, 8):
            a(f'buffer_atomic_umax {vr(vR+i)}, {vr(vT)}, {sr(srdKS,4)}, 0 offen offset:{4*i}')
    a('L_notlast:')
    if prof == 2:
        a('s_waitcnt vmcnt(0)')
        stamp(7)
        a(f's_memtime {sr(sTm+2,2)}')
        a('s_waitcnt lgkmcnt(0)')
        a(f's_cmp_lg_u32 {sr(sWave)}, 0')
        a('s_cbranch_scc1 L_end')
        a(f's_add_u32 {sr(srdT)}, {sr(ws_)}, 0x4000000')
        a(f's_addc_u32 {sr(srdT+1)}, {sr(ws_+1)}, 0')
        a(f's_and_b32 {sr(srdT+1)}, {sr(srdT+1)}, 0xffff')
        a(f's_mov_b32 {sr(srdT+2)}, 0x100000')
        a(f's_lshl_b32 {sr(sT1)}, s2, 6')
        for i in range(8): a(f'v_mov_b32 {vr(vR+i)}, {sr(sSt+2*i)}')
        a(f's_getreg_b32 {sr(sT0)}, hwreg(HW_REG_XCC_ID)')
        a(f'v_mov_b32 {vr(vR+8)}, {sr(sT0)}')
        a(f's_getreg_b32 {sr(sT0)}, hwreg(HW_REG_HW_ID)')
        a(f'v_mov_b32 {vr(vR+9)}, {sr(sT0)}')
        a(f's_sub_u32 {sr(sT0)}, {sr(sTm+2)}, {sr(sTm)}')
        a(f'v_mov_b32 {vr(vR+10)}, {sr(sT0)}')
        a(f'v_mov_b32 {vr(vT)}, 0')
        a('s_mov_b64 exec, 1')
        a(f'buffer_store_dwordx4 {vr(vR,4)}, {vr(vT)}, {sr(srdT,4)}, {sr(sT1)} offen')
        a(f'buffer_store_dwordx4 {vr(vR+4,4)}, {vr(vT)}, {sr(srdT,4)}, {sr(sT1)} offen offset:16')
        a(f'buffer_store_dwordx4 {vr(vR+8,4)}, {vr(vT)}, {sr(srdT,4)}, {sr(sT1)} offen offset:32')
    if padto:
        a('s_waitcnt vmcnt(0) lgkmcnt(0)')
        a('L_pad:')
        a(f's_memrealtime {sr(sTm+2,2)}')
        a('s_waitcnt lgkmcnt(0)')
        a(f's_sub_u32 {sr(sT0)}, {sr(sTm+2)}, {sr(sTm)}')
        a(f's_cmp_lt_u32 {sr(sT0)}, {padto}')
        a('s_cbranch_scc1 L_pad')
    a('L_end:')
    a('s_endpgm')
    main = '\n'.join(out)
    acc = (nvgpr + 3) // 4 * 4
    kd = f'''.amdhsa_kernel {KN}
  .amdhsa_next_free_vgpr {nvgpr}
  .amdhsa_next_free_sgpr {S.n}
  .amdhsa_accum_offset {acc}
  .amdhsa_group_segment_fixed_size 0
  .amdhsa_kernarg_size 80
  .amdhsa_user_sgpr_count 2
  .amdhsa_user_sgpr_kernarg_segment_ptr 1
  .amdhsa_system_sgpr_workgroup_id_x 1
  .amdhsa_float_denorm_mode_32 3
.end_amdhsa_kernel
'''
    src = HEADCOMMENT + f'; @launch grid=({nwg},1,1) block=({nthr},1,1) lds={lds_bytes}\n'
    src += '.amdgcn_target "amdgcn-amd-amdhsa--gfx950"\n.text\n'
    src += f'.globl {KN}\n.p2align 8\n.type {KN},@function\n{main}\n'
    src += '.section .rodata,"a"\n.p2align 6\n' + kd
    return src, [(KN, nwg, nthr, lds_bytes)]

if __name__ == '__main__':
    import argparse
    ap = argparse.ArgumentParser()
    ap.add_argument('-o', default='out.s')
    ap.add_argument('kv', nargs='*')
    args = ap.parse_args()
    kw = {}
    for x in args.kv:
        k, v = x.split('=')
        try: v = int(v)
        except ValueError: pass
        kw[k] = v
    src, l = gen(**kw)
    open(args.o, 'w').write(src)
    print(l)
```

```python
import struct
KN = 'standalone__kv_cache_quant_int4_int2_kv_with_per_channel_or_per_token_scales__decode_kernel'

HEADCOMMENT = '''; KIVI-style quantised KV-cache decode attention (B=2, Hq=32, Hkv=8, Skv=32768, Dh=128), one fused launch.
; Kernarg layout for this problem (80 bytes, ptrs only, base s[0:1]):
;
; Phase 1 streams the K tiles: scores = qk . bf16(q*ks*c) - kz . bf16(q*ks*c) on the matrix cores (c = Dh^-0.5*log2 e),
;   scores parked in LDS, running maximum kept.  Phase 2 streams the V tiles: p = exp2(s - max),
'''

class Alloc:
    def __init__(self, start, limit):
        self.n = start; self.limit = limit
    def get(self, cnt=1, align=1):
        self.n = (self.n + align - 1) // align * align
        r = self.n; self.n += cnt
        assert self.n <= self.limit, self.n
        return r

def vr(r, n=1): return f'v{r}' if n == 1 else f'v[{r}:{r+n-1}]'
def sr(r, n=1): return f's{r}' if n == 1 else f's[{r}:{r+n-1}]'
def f32hex(x): return '0x%08x' % struct.unpack('<I', struct.pack('<f', x))[0]

PSTRIDE = 4096
QROW = 288
WLDS = 1536
CEXP = 0.08838834764831845 * 1.4426950408889634

def gen(nw=8, bar=1, pol='nt', spol='nt', nB=2, prof=0, dbgprof=0, coff=0, cshift=2, opol='', padto=0,
        wrot=0, perm='tr', minvgpr=176, kbar=None, vbar=None, minlds=0, roll=0, x2=0, vlate=0, rkO=0, rvO=0, rkE=0, rvE=0, pre0=0):
    P = 16
    nwg = 16 * P
    NT = 32768 // (P * nw * 16)
    nthr = nw * 64
    nch = 512 // nthr
    if kbar is None: kbar = bar
    if vbar is None: vbar = bar
    out = []
    a = out.append
    V = Alloc(1, 256); S = Alloc(3, 102)
    sWave = S.get()
    sKA = S.get(16, 4); sKB = S.get(4, 4)
    srdK = S.get(4, 4); srdV = S.get(4, 4); srdKS = S.get(4, 4); srdKZ = S.get(4, 4)
    srdVS = S.get(4, 4); srdVZ = S.get(4, 4); srdT = S.get(4, 4)
    sHk = S.get(); sJ = S.get()
    sOffK = S.get(); sOffS = S.get(); sOffG = S.get(); sOffK2 = S.get(); sOff0 = S.get()
    sCnt = S.get(); sT0 = S.get(); sT1 = S.get()
    sMask = S.get(); sOdd = S.get(); sEx = S.get(2, 2); sQuad = S.get(2, 2)
    stamps = prof == 2 or dbgprof
    sSt = S.get(16, 2) if stamps else None
    sTm = S.get(4, 2) if (dbgprof or padto or prof == 2) else None
    def stamp(i):
        if stamps: a(f's_memrealtime {sr(sSt+2*i,2)}')
    vLane = V.get()
    vKoff = V.get(); vVoff = V.get(); vSoff = V.get(); vKsOff = V.get(); vKzOff = V.get()
    vKoffB = V.get(); vLqRB = V.get(); vLzRB = V.get()
    vLqW = V.get(); vLzW = V.get(); vLqR = V.get(); vLzR = V.get()
    vSa = V.get()
    vM = V.get(); vL = V.get()
    vT = V.get(8, 2)
    vQc = V.get(8, 4)
    vKs = V.get(4, 4); vKz = V.get(); vVs = V.get(2, 2); vVz = V.get(2, 2)
    vQw = V.get(4, 4); vP = V.get(2, 2); vS = V.get(4, 4); vAz = V.get(4, 4)
    vAcc = V.get(32, 4); vQB = V.get(16, 4); vPK = V.get(16, 4)
    vR = V.get(32, 4)
    vRB = V.get(32, 4) if pre0 else None
    vVs0 = V.get(2, 2) if pre0 else None; vVz0 = V.get(2, 2) if pre0 else None
    nvgpr = max(V.n, minvgpr)
    SB = nw * WLDS
    OB = SB + nw * NT * 256
    MB = OB + nw * 2048
    RS = nw * 4
    TK = MB + 12 * RS
    lds_bytes = max(TK + 16, minlds)

    a(f'{KN}:')
    a(f's_cmp_ge_u32 s2, {nwg}')
    a('s_cbranch_scc1 L_end')
    a(f's_load_dwordx16 {sr(sKA,16)}, s[0:1], 0')
    a(f's_load_dwordx4 {sr(sKB,4)}, s[0:1], 64')
    stamp(0)
    if dbgprof or prof == 2: a(f's_memtime {sr(sTm,2)}')
    if padto: a(f's_memrealtime {sr(sTm,2)}')
    a(f'v_lshrrev_b32 {vr(vT)}, 6, v0')
    a(f'v_and_b32 {vr(vLane)}, 63, v0')
    a(f's_lshr_b32 {sr(sHk)}, s2, 4')
    a(f'v_readfirstlane_b32 {sr(sWave)}, {vr(vT)}')
    a(f's_and_b32 {sr(sJ)}, s2, {P-1}')
    n15, g4 = vT + 1, vT + 2
    a(f'v_and_b32 {vr(n15)}, 15, {vr(vLane)}')
    a(f'v_lshrrev_b32 {vr(g4)}, 4, {vr(vLane)}')
    a(f'v_lshlrev_b32 {vr(vKsOff)}, 4, {vr(n15)}')
    a(f'v_lshlrev_b32 {vr(vT+3)}, 9, {vr(n15)}')
    a(f'v_lshl_add_u32 {vr(vKoff)}, {vr(g4)}, 4, {vr(vT+3)}')
    a(f'v_lshl_add_u32 {vr(vVoff)}, {vr(g4)}, 11, {vr(vKsOff)}')
    a(f'v_lshlrev_b32 {vr(vSoff)}, 3, {vr(g4)}')
    a(f'v_lshlrev_b32 {vr(vKzOff)}, 2, {vr(vLane)}')
    a(f'v_and_b32 {vr(vT+3)}, 7, {vr(vLane)}')
    a(f'v_lshlrev_b32 {vr(vT+3)}, 9, {vr(vT+3)}')
    a(f'v_lshrrev_b32 {vr(vT+4)}, 3, {vr(vLane)}')
    a(f'v_lshl_add_u32 {vr(vKoffB)}, {vr(vT+4)}, 4, {vr(vT+3)}')
    stride = nw * 16 * 512
    if perm == 'tr': a(f's_lshl_b32 {sr(sOff0)}, {sr(sJ)}, 20')
    else: a(f's_mul_i32 {sr(sOff0)}, {sr(sJ)}, {stride}')
    if wrot == 0: a(f's_lshl_b32 {sr(sT0)}, {sr(sWave)}, 13')
    else:
        if wrot == 3: a(f's_lshr_b32 {sr(sT0)}, s2, 3'); a(f's_and_b32 {sr(sT0)}, {sr(sT0)}, 1'); a(f's_lshl_b32 {sr(sT0)}, {sr(sT0)}, {(nw//2).bit_length()-1}'); a(f's_xor_b32 {sr(sT0)}, {sr(sT0)}, {sr(sWave)}')
        elif wrot == 8: a(f's_lshr_b32 {sr(sT0)}, s2, 3'); a(f's_and_b32 {sr(sT0)}, {sr(sT0)}, 3'); a(f's_lshl_b32 {sr(sT0)}, {sr(sT0)}, 1'); a(f's_xor_b32 {sr(sT0)}, {sr(sT0)}, {sr(sWave)}')
        a(f's_and_b32 {sr(sT0)}, {sr(sT0)}, {nw-1}')
        a(f's_lshl_b32 {sr(sT0)}, {sr(sT0)}, 13')
    a(f's_add_u32 {sr(sOff0)}, {sr(sOff0)}, {sr(sT0)}')
    if perm != 'tr': stride = stride * P
    a(f's_mov_b32 {sr(sOffK)}, {sr(sOff0)}')
    def offsK():
        a(f's_lshr_b32 {sr(sOffG)}, {sr(sOffK)}, 8')
        a(f's_and_b32 {sr(sOffG)}, {sr(sOffG)}, 0xffffff00')
        if nB: a(f's_add_u32 {sr(sOffK2)}, {sr(sOffK)}, 4096')
    def offsV():
        a(f's_lshr_b32 {sr(sOffS)}, {sr(sOffK)}, 8')
    offsK()
    a('s_waitcnt lgkmcnt(0)')
    def srd(dst, ptr, off_s, off_shift, nbytes):
        a(f's_lshl_b32 {sr(sT0)}, {sr(off_s)}, {off_shift}')
        a(f's_add_u32 {sr(dst)}, {sr(ptr)}, {sr(sT0)}')
        a(f's_addc_u32 {sr(dst+1)}, {sr(ptr+1)}, 0')
        a(f's_and_b32 {sr(dst+1)}, {sr(dst+1)}, 0xffff')
        a(f's_mov_b32 {sr(dst+2)}, {nbytes}')
        a(f's_mov_b32 {sr(dst+3)}, 0x20000')
    q_, qk_, qv_, ks_, kz_, vs_, vz_, o_ = [sKA + 2 * i for i in range(8)]
    dbg_, ws_ = sKB, sKB + 2
    def ld_ks():
        a(f'buffer_load_dwordx4 {vr(vKs,4)}, {vr(vKsOff)}, {sr(srdKS,4)}, {sr(sOffG)} offen {spol}')
        a(f'buffer_load_dword {vr(vKz)}, {vr(vKzOff)}, {sr(srdKZ,4)}, {sr(sOffG)} offen {spol}')
    def ld_K1(i):
        s = i // 2
        if s < 4 - nB:
            a(f'buffer_load_dwordx4 {vr(vR+4*i,4)}, {vr(vKoff)}, {sr(srdK,4)}, {sr(sOffK)} offen offset:{i*64} {pol}')
        else:
            a(f'buffer_load_dwordx4 {vr(vR+4*i,4)}, {vr(vKoffB)}, {sr(srdK,4)}, {sr(sOffK if i % 2 == 0 else sOffK2)} offen offset:{s*128} {pol}')
    def ld_K():
        for i in range(8): ld_K1(i)
    def ld_vs(rs=None, rz=None):
        rs = vVs if rs is None else rs; rz = vVz if rz is None else rz
        a(f'buffer_load_dwordx2 {vr(rs,2)}, {vr(vSoff)}, {sr(srdVS,4)}, {sr(sOffS)} offen {spol}')
        a(f'buffer_load_dwordx2 {vr(rz,2)}, {vr(vSoff)}, {sr(srdVZ,4)}, {sr(sOffS)} offen {spol}')
    VSEQ = [(0,0),(1,0),(0,1),(1,1),(2,0),(3,0),(2,1),(3,1)]
    def ld_V1(k, rb=None):
        j, h = VSEQ[k]
        rb = vR if rb is None else rb
        a(f'buffer_load_dwordx4 {vr(rb+4*k,4)}, {vr(vVoff)}, {sr(srdV,4)}, {sr(sOffK)} offen offset:{j*512+h*256} {pol}')
    def ld_V():
        for k in range(8): ld_V1(k)
    if pre0:
        srd(srdVS, vs_, sHk, 16, 1 << 16)
        srd(srdVZ, vz_, sHk, 16, 1 << 16)
        srd(srdV, qv_, sHk, 24, 1 << 24)
        offsV(); ld_vs(vVs0, vVz0)
        for k in range(8): ld_V1(k, vRB)
    srd(srdT, q_, sHk, 10, 1024)
    a(f'v_lshl_add_u32 {vr(vT+3)}, {vr(g4)}, 8, {vr(vKsOff)}')
    a(f'buffer_load_dwordx4 {vr(vQw,4)}, {vr(vT+3)}, {sr(srdT,4)}, 0 offen {spol}')
    srd(srdKS, ks_, sHk, 16, 1 << 16)
    srd(srdKZ, kz_, sHk, 16, 1 << 16)
    srd(srdK, qk_, sHk, 24, 1 << 24)
    ld_ks(); ld_K()
    if not pre0:
        srd(srdVS, vs_, sHk, 16, 1 << 16)
        srd(srdVZ, vz_, sHk, 16, 1 << 16)
        srd(srdV, qv_, sHk, 24, 1 << 24)
    a(f's_mul_i32 {sr(sT0)}, {sr(sWave)}, {WLDS}')
    a(f'v_mul_u32_u24 {vr(vT+3)}, {QROW}, {vr(g4)}')
    a(f'v_add3_u32 {vr(vLqW)}, {vr(vT+3)}, {vr(vKsOff)}, {sr(sT0)}')
    a(f'v_add_u32 {vr(vLzW)}, {sr(sT0)}, {vr(vKzOff)}')
    a(f'v_add_u32 {vr(vLzW)}, {4*QROW}, {vr(vLzW)}')
    a(f'v_and_b32 {vr(vT+4)}, 3, {vr(vLane)}')
    a(f'v_mul_u32_u24 {vr(vT+3)}, {QROW}, {vr(vT+4)}')
    a(f'v_add3_u32 {vr(vLqR)}, {vr(vT+3)}, {vr(vSoff)}, {sr(sT0)}')
    a(f'v_add_u32 {vr(vLzR)}, {sr(sT0)}, {vr(vSoff)}')
    a(f'v_add_u32 {vr(vLzR)}, {4*QROW}, {vr(vLzR)}')
    a(f'v_add_u32 {vr(vLqRB)}, {vr(vLqR)}, {vr(vSoff)}')
    a(f'v_add_u32 {vr(vLzRB)}, {vr(vLzR)}, {vr(vSoff)}')
    a(f's_mul_i32 {sr(sT0)}, {sr(sWave)}, {NT*256}')
    a(f's_add_u32 {sr(sT0)}, {sr(sT0)}, {SB}')
    a(f'v_lshlrev_b32 {vr(vT+4)}, 4, {vr(vT+4)}')
    a(f'v_lshl_add_u32 {vr(vSa)}, {vr(g4)}, 6, {vr(vT+4)}')
    a(f'v_add_u32 {vr(vSa)}, {sr(sT0)}, {vr(vSa)}')
    a(f's_mov_b32 {sr(sMask)}, 0xffff0000')
    a(f's_mov_b32 {sr(sQuad)}, 0x000f000f')
    a(f's_mov_b32 {sr(sQuad+1)}, 0x000f000f')
    a(f'v_mov_b32 {vr(vM)}, 0xff800000')
    a(f'v_mov_b32 {vr(vL)}, 0')
    for i in range(4): a(f'v_mov_b32 {vr(vAz+i)}, 0')
    for i in range(32): a(f'v_mov_b32 {vr(vAcc+i)}, 0')
    a(f's_mov_b32 {sr(sT1)}, {f32hex(CEXP)}')
    a(f's_mov_b32 {sr(sCnt)}, {NT-1}')
    a('s_waitcnt vmcnt(10)')
    stamp(1)
    for i in range(4):
        a(f'v_lshlrev_b32 {vr(vQc+2*i)}, 16, {vr(vQw+i)}')
        a(f'v_and_b32 {vr(vQc+2*i+1)}, {sr(sMask)}, {vr(vQw+i)}')
    for i in range(8):
        a(f'v_mul_f32 {vr(vQc+i)}, {sr(sT1)}, {vr(vQc+i)}')

    def kstep(nxt, rk=None):
        a('s_waitcnt vmcnt(8)')
        for i in range(4):
            a(f'v_lshlrev_b32 {vr(vT)}, 16, {vr(vKs+i)}')
            a(f'v_and_b32 {vr(vT+1)}, {sr(sMask)}, {vr(vKs+i)}')
            a(f'v_mul_f32 {vr(vT)}, {vr(vT)}, {vr(vQc+2*i)}')
            a(f'v_mul_f32 {vr(vT+1)}, {vr(vT+1)}, {vr(vQc+2*i+1)}')
            a(f'v_cvt_pk_bf16_f32 {vr(vQw+i)}, {vr(vT)}, {vr(vT+1)}')
        a(f'v_xor_b32 {vr(vT+2)}, 0x80008000, {vr(vKz)}')
        a(f'ds_write_b128 {vr(vLqW)}, {vr(vQw,4)}')
        a(f'ds_write_b32 {vr(vLzW)}, {vr(vT+2)}')
        if nxt == 'K':
            a(f's_add_u32 {sr(sOffK)}, {sr(sOffK)}, {stride}')
            offsK(); ld_ks()
        else:
            if pre0: a(f's_add_u32 {sr(sOffK)}, {sr(sOff0)}, {stride}')
            else: a(f's_mov_b32 {sr(sOffK)}, {sr(sOff0)}')
            offsV(); ld_vs()
        for s in range(4):
            if s < 4 - nB: a(f'ds_read2_b64 {vr(vQB+4*s,4)}, {vr(vLqR)} offset0:{8*s} offset1:{8*s+4}')
            else: a(f'ds_read_b128 {vr(vQB+4*s,4)}, {vr(vLqRB)} offset:{64*s}')
        for s in range(4):
            if s < 4 - nB: a(f'ds_read2_b64 {vr(vPK+4*s,4)}, {vr(vLzR)} offset0:{8*s} offset1:{8*s+4}')
            else: a(f'ds_read_b128 {vr(vPK+4*s,4)}, {vr(vLzRB)} offset:{64*s}')
        a('s_waitcnt lgkmcnt(0)')
        for s in range(4):
            c = '0' if s == 0 else vr(vS, 4)
            a(f'v_mfma_f32_16x16x32_bf16 {vr(vS,4)}, {vr(vPK+4*s,4)}, {vr(vQB+4*s,4)}, {c}')
        if rk is None: rk = 8 if roll in (1, 2) else 0
        def kcvt(i):
            for c in range(4):
                a(f'v_cvt_f32_i32 {vr(vR+4*i+c)}, {vr(vR+4*i+c)}')
            d = vPK + 4 * (i // 2) + 2 * (i % 2)
            a(f'v_cvt_pk_bf16_f32 {vr(d)}, {vr(vR+4*i)}, {vr(vR+4*i+1)}')
            a(f'v_cvt_pk_bf16_f32 {vr(d+1)}, {vr(vR+4*i+2)}, {vr(vR+4*i+3)}')
        nld = ld_K1 if nxt == 'K' else ld_V1
        for i in range(rk):
            a('s_waitcnt vmcnt(9)')
            kcvt(i); nld(i)
        if rk < 8:
            a(f's_waitcnt vmcnt({2+rk})')
            for i in range(rk, 8): kcvt(i)
            for i in range(rk, 8): nld(i)
        for s in range(4 - nB, 4):
            a(f'v_mov_b32 {vr(vT)}, {vr(vPK+4*s)}')
            a(f'v_mov_b32 {vr(vT+1)}, {vr(vPK+4*s+1)}')
            a('s_nop 0')
            a(f'v_mov_b32_dpp {vr(vPK+4*s)}, {vr(vPK+4*s+2)} row_ror:8 row_mask:0xf bank_mask:0xc')
            a(f'v_mov_b32_dpp {vr(vPK+4*s+1)}, {vr(vPK+4*s+3)} row_ror:8 row_mask:0xf bank_mask:0xc')
            a(f'v_mov_b32_dpp {vr(vPK+4*s+2)}, {vr(vT)} row_ror:8 row_mask:0xf bank_mask:0x3')
            a(f'v_mov_b32_dpp {vr(vPK+4*s+3)}, {vr(vT+1)} row_ror:8 row_mask:0xf bank_mask:0x3')
        a('s_nop 1')
        for s in range(4):
            a(f'v_mfma_f32_16x16x32_bf16 {vr(vS,4)}, {vr(vPK+4*s,4)}, {vr(vQB+4*s,4)}, {vr(vS,4)}')
        a('s_nop 7')
        a(f's_mov_b64 exec, {sr(sQuad,2)}')
        a(f'ds_write_b128 {vr(vSa)}, {vr(vS,4)}')
        a('s_mov_b64 exec, -1')
        a(f'v_max3_f32 {vr(vM)}, {vr(vS)}, {vr(vS+1)}, {vr(vM)}')
        a(f'v_max3_f32 {vr(vM)}, {vr(vS+2)}, {vr(vS+3)}, {vr(vM)}')
        a(f'v_add_u32 {vr(vSa)}, 256, {vr(vSa)}')

    vF = vQB
    vLw = vQB + 8
    vZw = vQc
    vMx, vLs, vZs = vKs, vKs + 1, vKs + 2
    def early_publish():
        a(f'v_mov_b32 {vr(vT+1)}, {vr(vL)}')
        a('s_nop 1')
        a(f'v_permlane16_swap_b32 {vr(vL)}, {vr(vT+1)}')
        a(f'v_add_f32 {vr(vL)}, {vr(vL)}, {vr(vT+1)}')
        a(f'v_mov_b32 {vr(vT+1)}, {vr(vL)}')
        a('s_nop 1')
        a(f'v_permlane32_swap_b32 {vr(vL)}, {vr(vT+1)}')
        a(f'v_add_f32 {vr(vL)}, {vr(vL)}, {vr(vT+1)}')
        a(f's_lshl_b32 {sr(sT1)}, {sr(sWave)}, 2')
        a(f's_add_u32 {sr(sT1)}, {sr(sT1)}, {MB}')
        a(f'v_mul_u32_u24 {vr(vT+2)}, {RS}, {vr(vLane)}')
        a(f'v_add_u32 {vr(vT+2)}, {sr(sT1)}, {vr(vT+2)}')
        a('s_mov_b64 exec, 0xf')
        a(f'ds_write_b32 {vr(vT+2)}, {vr(vM)}')
        a(f'ds_write_b32 {vr(vT+2)}, {vr(vL)} offset:{4*RS}')
        a('s_mov_b64 exec, 1')
        for r in range(4):
            a(f'ds_write_b32 {vr(vT+2)}, {vr(vAz+r)} offset:{8*RS+r*RS}')
        a('s_mov_b64 exec, -1')
        a(f'v_and_b32 {vr(vT)}, 3, v0')
        a(f'v_mul_u32_u24 {vr(vT)}, {RS}, {vr(vT)}')
        a(f'v_add_u32 {vr(vT)}, {MB}, {vr(vT)}')
        a('s_waitcnt lgkmcnt(0)')
        a('s_barrier')
        for k in range(nw // 4):
            a(f'ds_read_b128 {vr(vF+4*k,4)}, {vr(vT)} offset:{16*k}')
            a(f'ds_read_b128 {vr(vLw+4*k,4)}, {vr(vT)} offset:{4*RS+16*k}')
            a(f'ds_read_b128 {vr(vZw+4*k,4)}, {vr(vT)} offset:{8*RS+16*k}')
        a('s_waitcnt lgkmcnt(0)')
        a(f'v_max3_f32 {vr(vMx)}, {vr(vF)}, {vr(vF+1)}, {vr(vF+2)}')
        for w in range(3, nw): a(f'v_max_f32 {vr(vMx)}, {vr(vMx)}, {vr(vF+w)}')
        for w in range(nw): a(f'v_sub_f32 {vr(vF+w)}, {vr(vF+w)}, {vr(vMx)}')
        for w in range(nw): a(f'v_exp_f32 {vr(vF+w)}, {vr(vF+w)}')
        a('s_nop 0')
        a(f'v_mul_f32 {vr(vLs)}, {vr(vF)}, {vr(vLw)}')
        a(f'v_mul_f32 {vr(vZs)}, {vr(vF)}, {vr(vZw)}')
        for w in range(1, nw):
            a(f'v_fmac_f32 {vr(vLs)}, {vr(vF+w)}, {vr(vLw+w)}')
            a(f'v_fmac_f32 {vr(vZs)}, {vr(vF+w)}, {vr(vZw+w)}')

    def vstep(pf, rv=None, first=False):
        if rv is None: rv = 4 if roll in (1, 3) else 0
        vVs_, vVz_, vR_ = (vVs0, vVz0, vRB) if first else (vVs, vVz, vR)
        f = vT + 4
        a('s_waitcnt lgkmcnt(0)' if first else 's_waitcnt vmcnt(8) lgkmcnt(0)')
        a(f'v_lshlrev_b32 {vr(f)}, 16, {vr(vVs_)}')
        a(f'v_and_b32 {vr(f+1)}, {sr(sMask)}, {vr(vVs_)}')
        a(f'v_lshlrev_b32 {vr(f+2)}, 16, {vr(vVs_+1)}')
        a(f'v_and_b32 {vr(f+3)}, {sr(sMask)}, {vr(vVs_+1)}')
        for r in range(4): a(f'v_sub_f32 {vr(vS+r)}, {vr(vS+r)}, {vr(vM)}')
        for r in range(4): a(f'v_exp_f32 {vr(vS+r)}, {vr(vS+r)}')
        a('s_nop 0')
        a(f'v_add_f32 {vr(vT)}, {vr(vS)}, {vr(vS+1)}')
        a(f'v_add_f32 {vr(vT+1)}, {vr(vS+2)}, {vr(vS+3)}')
        for r in range(4): a(f'v_mul_f32 {vr(vS+r)}, {vr(vS+r)}, {vr(f+r)}')
        a(f'v_add_f32 {vr(vL)}, {vr(vL)}, {vr(vT)}')
        a(f'v_cvt_pk_bf16_f32 {vr(vP)}, {vr(vS)}, {vr(vS+1)}')
        a(f'v_cvt_pk_bf16_f32 {vr(vP+1)}, {vr(vS+2)}, {vr(vS+3)}')
        a(f'v_add_f32 {vr(vL)}, {vr(vL)}, {vr(vT+1)}')
        a('s_nop 0')
        a(f'v_mfma_f32_16x16x16_bf16 {vr(vAz,4)}, {vr(vP,2)}, {vr(vVz_,2)}, {vr(vAz,4)}')
        if first:
            a(f'v_add_u32 {vr(vSa)}, 256, {vr(vSa)}')
            a(f'ds_read_b128 {vr(vS,4)}, {vr(vSa)}')
        elif pf:
            a(f's_add_u32 {sr(sOffK)}, {sr(sOffK)}, {stride}')
            offsV(); ld_vs()
            a(f'v_add_u32 {vr(vSa)}, 256, {vr(vSa)}')
            a(f'ds_read_b128 {vr(vS,4)}, {vr(vSa)}')
        else:
            early_publish()
        def vpair(p):
            jp, h = p >> 1, p & 1
            for c in range(4):
                r0, r1 = vR_ + 8 * p + c, vR_ + 8 * p + 4 + c
                a(f'v_cvt_f32_i32 {vr(r0)}, {vr(r0)}')
                a(f'v_cvt_f32_i32 {vr(r1)}, {vr(r1)}')
                a(f'v_cvt_pk_bf16_f32 {vr(vPK+2*(4*h+c)+jp)}, {vr(r0)}, {vr(r1)}')
        if first:
            for p in range(4): vpair(p)
            a('s_nop 1')
        elif not pf:
            for p in range(4):
                a(f's_waitcnt vmcnt({6-2*p})'); vpair(p)
            a('s_nop 1')
        else:
            for p in range(rv):
                a('s_waitcnt vmcnt(8)')
                vpair(p); ld_V1(2*p); ld_V1(2*p+1)
            if rv < 4:
                if rv <= 1:
                    a(f's_waitcnt vmcnt({2+2*rv+4})')
                    for p in range(rv, 2): vpair(p)
                    a(f's_waitcnt vmcnt({2+2*rv})')
                    for p in range(2, 4): vpair(p)
                else:
                    a(f's_waitcnt vmcnt({2+2*rv})')
                    for p in range(rv, 4): vpair(p)
                for k in range(2*rv, 8): ld_V1(k)
        for i in range(8):
            a(f'v_mfma_f32_16x16x16_bf16 {vr(vAcc+4*i,4)}, {vr(vP,2)}, {vr(vPK+2*i,2)}, {vr(vAcc+4*i,4)}')

    split = (rkO, rvO) != (rkE, rvE)
    if split:
        a(f's_getreg_b32 {sr(sOdd)}, hwreg(HW_REG_XCC_ID)')
        a(f's_and_b32 {sr(sOdd)}, {sr(sOdd)}, 1')
    def kloop(tag, rk):
        a(f'L_kloop{tag}:')
        kstep('K', rk)
        if kbar: a('s_barrier')
        a(f's_sub_u32 {sr(sCnt)}, {sr(sCnt)}, 1')
        a(f's_cmp_lg_u32 {sr(sCnt)}, 0')
        a(f's_cbranch_scc1 L_kloop{tag}')
    if split and rkO != rkE:
        a(f's_cmp_lg_u32 {sr(sOdd)}, 0'); a('s_cbranch_scc1 L_kloopO')
        kloop('E', rkE); a('s_branch L_kdone')
        kloop('O', rkO); a('L_kdone:')
    else:
        kloop('', rkE if split or rkE else None)
    kstep('V')
    if kbar: a('s_barrier')
    stamp(2)
    a(f'v_subrev_u32 {vr(vSa)}, {NT*256}, {vr(vSa)}')
    a(f'v_mov_b32 {vr(vT+1)}, {vr(vM)}')
    a(f'ds_read_b128 {vr(vS,4)}, {vr(vSa)}')
    a('s_nop 0')
    a(f'v_permlane16_swap_b32 {vr(vM)}, {vr(vT+1)}')
    a(f'v_max_f32 {vr(vM)}, {vr(vM)}, {vr(vT+1)}')
    a(f'v_mov_b32 {vr(vT+1)}, {vr(vM)}')
    a('s_nop 1')
    a(f'v_permlane32_swap_b32 {vr(vM)}, {vr(vT+1)}')
    a(f'v_max_f32 {vr(vM)}, {vr(vM)}, {vr(vT+1)}')
    nv = NT - 1 - (1 if pre0 else 0)
    a(f's_mov_b32 {sr(sCnt)}, {nv}')
    if pre0: vstep(1, 0, True)
    if vlate: a(f's_mov_b32 {sr(sCnt)}, {nv-vlate}')
    def vloop(tag, rv):
        a(f'L_vloop{tag}:')
        vstep(1, rv)
        if vbar: a('s_barrier')
        a(f's_sub_u32 {sr(sCnt)}, {sr(sCnt)}, 1')
        a(f's_cmp_lg_u32 {sr(sCnt)}, 0')
        a(f's_cbranch_scc1 L_vloop{tag}')
    if split and rvO != rvE:
        a(f's_cmp_lg_u32 {sr(sOdd)}, 0'); a('s_cbranch_scc1 L_vloopO')
        vloop('E', rvE); a('s_branch L_vdone')
        vloop('O', rvO); a('L_vdone:')
    else:
        vloop('', rvE if split or rvE else None)
    if vlate:
        a(f's_mov_b32 {sr(sCnt)}, {vlate}')
        a('L_vloop2:')
        vstep(1, 4)
        if vbar: a('s_barrier')
        a(f's_sub_u32 {sr(sCnt)}, {sr(sCnt)}, 1')
        a(f's_cmp_lg_u32 {sr(sCnt)}, 0')
        a('s_cbranch_scc1 L_vloop2')
    vstep(0)
    stamp(3)
    a(f's_lshl_b32 {sr(sT0)}, {sr(sWave)}, 11')
    a(f's_add_u32 {sr(sT0)}, {sr(sT0)}, {OB}')
    a(f'v_add_u32 {vr(vT)}, {sr(sT0)}, {vr(vKsOff)}')
    a(f'v_lshlrev_b32 {vr(vT+1)}, 2, v0')
    a(f'v_add_u32 {vr(vT+2)}, {OB}, {vr(vT+1)}')
    a('s_mov_b64 exec, 0xffff')
    a('s_nop 1')
    for i in range(8):
        a(f'ds_write_b128 {vr(vT)}, {vr(vAcc+4*i,4)} offset:{i*256}')
    a('s_mov_b64 exec, -1')
    a(f's_mul_i32 {sr(sT1)}, s2, {PSTRIDE}')
    a(f's_add_u32 {sr(srdT)}, {sr(ws_)}, {sr(sT1)}')
    a(f's_addc_u32 {sr(srdT+1)}, {sr(ws_+1)}, 0')
    a(f's_and_b32 {sr(srdT+1)}, {sr(srdT+1)}, 0xffff')
    a(f's_mov_b32 {sr(srdT+2)}, {PSTRIDE}')
    a(f's_mov_b32 {sr(srdT+3)}, 0x20000')
    a('s_waitcnt lgkmcnt(0)')
    a('s_barrier')
    vOw = vR
    vRes = vR + 16
    vPo = vSa
    for ch in range(nch):
        for w in range(nw):
            a(f'ds_read_b32 {vr(vOw+ch*nw+w)}, {vr(vT+2)} offset:{w*2048+ch*nthr*4}')
    for ch in range(nch):
        a(f's_waitcnt lgkmcnt({(nch-1-ch)*nw})')
        a(f'v_fma_f32 {vr(vRes+ch)}, {vr(vF)}, {vr(vOw+ch*nw)}, -{vr(vZs)}')
        for w in range(1, nw):
            a(f'v_fmac_f32 {vr(vRes+ch)}, {vr(vF+w)}, {vr(vOw+ch*nw+w)}')
    stamp(4)
    if nch == 1 or not x2:
        for ch in range(nch):
            a(f'buffer_store_dword {vr(vRes+ch)}, {vr(vT+1)}, {sr(srdT,4)}, 0 offen offset:{ch*nthr*4} sc1')
    else:
        a(f'v_lshlrev_b32 {vr(vPo)}, 3, v0')
        a(f'buffer_store_dwordx2 {vr(vRes,2)}, {vr(vPo)}, {sr(srdT,4)}, 0 offen sc1')
    a('v_cmp_gt_u32 vcc, 4, v0')
    a(f's_and_saveexec_b64 {sr(sEx,2)}, vcc')
    a('s_cbranch_execz L_nost')
    a(f'buffer_store_dword {vr(vMx)}, {vr(vT+1)}, {sr(srdT,4)}, 0 offen offset:2048 sc1')
    a(f'buffer_store_dword {vr(vLs)}, {vr(vT+1)}, {sr(srdT,4)}, 0 offen offset:2064 sc1')
    a('L_nost:')
    a(f's_mov_b64 exec, {sr(sEx,2)}')
    a(f's_mov_b32 {sr(srdKS)}, {sr(dbg_)}')
    a(f's_and_b32 {sr(srdKS+1)}, {sr(dbg_+1)}, 0xffff')
    a(f's_mov_b32 {sr(srdKS+2)}, 256')
    a(f's_lshl_b32 {sr(sOffG)}, {sr(sHk)}, {cshift}')
    if coff: a(f's_add_u32 {sr(sOffG)}, {sr(sOffG)}, {coff}')
    a(f's_mul_i32 {sr(sT1)}, {sr(sHk)}, {P*PSTRIDE}')
    a(f's_add_u32 {sr(srdV)}, {sr(ws_)}, {sr(sT1)}')
    a(f's_addc_u32 {sr(srdV+1)}, {sr(ws_+1)}, 0')
    a(f's_and_b32 {sr(srdV+1)}, {sr(srdV+1)}, 0xffff')
    a(f's_mov_b32 {sr(srdV+2)}, {P*PSTRIDE}')
    a(f's_lshl_b32 {sr(sT1)}, {sr(sHk)}, 10')
    a(f's_add_u32 {sr(srdK)}, {sr(o_)}, {sr(sT1)}')
    a(f's_addc_u32 {sr(srdK+1)}, {sr(o_+1)}, 0')
    a(f's_and_b32 {sr(srdK+1)}, {sr(srdK+1)}, 0xffff')
    a(f's_mov_b32 {sr(srdK+2)}, 1024')
    vML = vT + 2; vBp = vT + 3; vOa = vT + 4
    a(f'v_and_b32 {vr(vBp)}, 3, {vr(vLane)}')
    a(f'v_lshlrev_b32 {vr(vBp)}, 6, {vr(vBp)}')
    a(f'v_and_b32 {vr(vML)}, 15, {vr(vLane)}')
    a(f'v_lshlrev_b32 {vr(vML)}, 12, {vr(vML)}')
    a(f'v_lshrrev_b32 {vr(vT+6)}, 4, {vr(vLane)}')
    a(f'v_lshl_add_u32 {vr(vML)}, {vr(vT+6)}, 2, {vr(vML)}')
    for ch in range(nch):
        e, x, y = vT + 6, vOa + ch, vT + 7
        a(f'v_add_u32 {vr(e)}, {ch*nthr}, v0')
        a(f'v_and_b32 {vr(x)}, 3, {vr(e)}'); a(f'v_lshlrev_b32 {vr(x)}, 7, {vr(x)}')
        a(f'v_lshrrev_b32 {vr(y)}, 8, {vr(e)}'); a(f'v_lshl_add_u32 {vr(x)}, {vr(y)}, 6, {vr(x)}')
        a(f'v_bfe_u32 {vr(y)}, {vr(e)}, 2, 4'); a(f'v_lshl_add_u32 {vr(x)}, {vr(y)}, 2, {vr(x)}')
        a(f'v_bfe_u32 {vr(y)}, {vr(e)}, 6, 2'); a(f'v_add_u32 {vr(x)}, {vr(x)}, {vr(y)}')
        a(f'v_lshlrev_b32 {vr(x)}, 1, {vr(x)}')
    a(f'v_mov_b32 {vr(vT+6)}, {TK}')
    a('s_waitcnt vmcnt(0)')
    stamp(5)
    a('s_barrier')
    a(f's_cmp_lg_u32 {sr(sWave)}, 0')
    a('s_cbranch_scc1 L_noat')
    a('s_mov_b64 exec, 1')
    a(f'v_mov_b32 {vr(vT+7)}, 1')
    a(f'v_mov_b32 {vr(vT)}, 0')
    a(f'buffer_atomic_add {vr(vT+7)}, {vr(vT)}, {sr(srdKS,4)}, {sr(sOffG)} offen sc0')
    a('s_waitcnt vmcnt(0)')
    a(f'ds_write_b32 {vr(vT+6)}, {vr(vT+7)}')
    a('s_mov_b64 exec, -1')
    a('s_waitcnt lgkmcnt(0)')
    a('L_noat:')
    a('s_barrier')
    a(f'ds_read_b32 {vr(vT+7)}, {vr(vT+6)}')
    a('s_waitcnt lgkmcnt(0)')
    a(f'v_readfirstlane_b32 {sr(sT0)}, {vr(vT+7)}')
    a('s_nop 3')
    stamp(6)
    a(f's_cmp_lg_u32 {sr(sT0)}, {P-1}')
    a('s_cbranch_scc1 L_notlast')
    cM, cL, x, y = vQB, vQB + 1, vQB + 2, vQB + 3
    cW = vPK
    cO = vR if nch == 1 else vAcc
    a(f'buffer_load_dword {vr(cM)}, {vr(vML)}, {sr(srdV,4)}, 0 offen offset:2048 sc1')
    a(f'buffer_load_dword {vr(cL)}, {vr(vML)}, {sr(srdV,4)}, 0 offen offset:2064 sc1')
    for w in range(P):
        a(f's_mov_b32 {sr(sT1)}, {w*PSTRIDE}')
        if nch == 1: a(f'buffer_load_dword {vr(cO+w)}, {vr(vT+1)}, {sr(srdV,4)}, {sr(sT1)} offen sc1')
        elif not x2:
            for ch in range(nch): a(f'buffer_load_dword {vr(cO+2*w+ch)}, {vr(vT+1)}, {sr(srdV,4)}, {sr(sT1)} offen offset:{ch*nthr*4} sc1')
        else: a(f'buffer_load_dwordx2 {vr(cO+2*w,2)}, {vr(vPo)}, {sr(srdV,4)}, {sr(sT1)} offen sc1')
    a(f's_waitcnt vmcnt({P if (nch == 1 or x2) else nch*P})')
    def allreduce(reg, op):
        for k in (1, 2, 4, 8):
            a('s_nop 1')
            a(f'{op}_dpp {vr(reg)}, {vr(reg)}, {vr(reg)} row_ror:{k} row_mask:0xf bank_mask:0xf')
    a(f'v_mov_b32 {vr(x)}, {vr(cM)}')
    allreduce(x, 'v_max_f32')
    a(f'v_sub_f32 {vr(cM)}, {vr(cM)}, {vr(x)}')
    a(f'v_exp_f32 {vr(cM)}, {vr(cM)}')
    a('s_nop 0')
    a(f'v_mul_f32 {vr(x)}, {vr(cM)}, {vr(cL)}')
    allreduce(x, 'v_add_f32')
    a(f'v_rcp_f32 {vr(cL)}, {vr(x)}')
    a('s_nop 0')
    a(f'v_mul_f32 {vr(cM)}, {vr(cM)}, {vr(cL)}')
    for w in range(P):
        a(f'ds_bpermute_b32 {vr(cW+w)}, {vr(vBp)}, {vr(cM)} offset:{4*w}')
    a('s_waitcnt vmcnt(0) lgkmcnt(0)')
    for ch in range(nch):
        o = (lambda w: cO + w) if nch == 1 else (lambda w: cO + 2 * w + ch)
        a(f'v_mul_f32 {vr(x)}, {vr(cW)}, {vr(o(0))}')
        for w in range(1, P): a(f'v_fmac_f32 {vr(x)}, {vr(cW+w)}, {vr(o(w))}')
        a(f'v_cvt_pk_bf16_f32 {vr(x)}, {vr(x)}, {vr(x)}')
        a(f'buffer_store_short {vr(x)}, {vr(vOa+ch)}, {sr(srdK,4)}, 0 offen {opol}')
    if dbgprof:
        a('s_waitcnt vmcnt(0)')
        a(f's_cmp_lg_u32 {sr(sWave)}, 0')
        a('s_cbranch_scc1 L_end')
        stamp(7)
        a(f's_memtime {sr(sTm+2,2)}')
        a('s_waitcnt lgkmcnt(0)')
        a('s_mov_b64 exec, 1')
        a(f'v_mov_b32 {vr(vT)}, 0')
        for i in range(1, 8):
            a(f's_sub_u32 {sr(sT0)}, {sr(sSt+2*i)}, {sr(sSt)}')
            a(f'v_mov_b32 {vr(vR+i)}, {sr(sT0)}')
        for i in range(1, 8):
            a(f'buffer_atomic_umax {vr(vR+i)}, {vr(vT)}, {sr(srdKS,4)}, 0 offen offset:{4*i}')
    a('L_notlast:')
    if prof == 2:
        a('s_waitcnt vmcnt(0)')
        stamp(7)
        a(f's_memtime {sr(sTm+2,2)}')
        a('s_waitcnt lgkmcnt(0)')
        a(f's_cmp_lg_u32 {sr(sWave)}, 0')
        a('s_cbranch_scc1 L_end')
        a(f's_add_u32 {sr(srdT)}, {sr(ws_)}, 0x4000000')
        a(f's_addc_u32 {sr(srdT+1)}, {sr(ws_+1)}, 0')
        a(f's_and_b32 {sr(srdT+1)}, {sr(srdT+1)}, 0xffff')
        a(f's_mov_b32 {sr(srdT+2)}, 0x100000')
        a(f's_lshl_b32 {sr(sT1)}, s2, 6')
        for i in range(8): a(f'v_mov_b32 {vr(vR+i)}, {sr(sSt+2*i)}')
        a(f's_getreg_b32 {sr(sT0)}, hwreg(HW_REG_XCC_ID)')
        a(f'v_mov_b32 {vr(vR+8)}, {sr(sT0)}')
        a(f's_getreg_b32 {sr(sT0)}, hwreg(HW_REG_HW_ID)')
        a(f'v_mov_b32 {vr(vR+9)}, {sr(sT0)}')
        a(f's_sub_u32 {sr(sT0)}, {sr(sTm+2)}, {sr(sTm)}')
        a(f'v_mov_b32 {vr(vR+10)}, {sr(sT0)}')
        a(f'v_mov_b32 {vr(vT)}, 0')
        a('s_mov_b64 exec, 1')
        a(f'buffer_store_dwordx4 {vr(vR,4)}, {vr(vT)}, {sr(srdT,4)}, {sr(sT1)} offen')
        a(f'buffer_store_dwordx4 {vr(vR+4,4)}, {vr(vT)}, {sr(srdT,4)}, {sr(sT1)} offen offset:16')
        a(f'buffer_store_dwordx4 {vr(vR+8,4)}, {vr(vT)}, {sr(srdT,4)}, {sr(sT1)} offen offset:32')
    if padto:
        a('s_waitcnt vmcnt(0) lgkmcnt(0)')
        a('L_pad:')
        a(f's_memrealtime {sr(sTm+2,2)}')
        a('s_waitcnt lgkmcnt(0)')
        a(f's_sub_u32 {sr(sT0)}, {sr(sTm+2)}, {sr(sTm)}')
        a(f's_cmp_lt_u32 {sr(sT0)}, {padto}')
        a('s_cbranch_scc1 L_pad')
    a('L_end:')
    a('s_endpgm')
    main = '\n'.join(out)
    acc = (nvgpr + 3) // 4 * 4
    kd = f'''.amdhsa_kernel {KN}
  .amdhsa_next_free_vgpr {nvgpr}
  .amdhsa_next_free_sgpr {S.n}
  .amdhsa_accum_offset {acc}
  .amdhsa_group_segment_fixed_size 0
  .amdhsa_kernarg_size 80
  .amdhsa_user_sgpr_count 2
  .amdhsa_user_sgpr_kernarg_segment_ptr 1
  .amdhsa_system_sgpr_workgroup_id_x 1
  .amdhsa_float_denorm_mode_32 3
.end_amdhsa_kernel
'''
    src = HEADCOMMENT + f'; @launch grid=({nwg},1,1) block=({nthr},1,1) lds={lds_bytes}\n'
    src += '.amdgcn_target "amdgcn-amd-amdhsa--gfx950"\n.text\n'
    src += f'.globl {KN}\n.p2align 8\n.type {KN},@function\n{main}\n'
    src += '.section .rodata,"a"\n.p2align 6\n' + kd
    return src, [(KN, nwg, nthr, lds_bytes)]

if __name__ == '__main__':
    import argparse
    ap = argparse.ArgumentParser()
    ap.add_argument('-o', default='out.s')
    ap.add_argument('kv', nargs='*')
    args = ap.parse_args()
    kw = {}
    for x in args.kv:
        k, v = x.split('=')
        try: v = int(v)
        except ValueError: pass
        kw[k] = v
    src, l = gen(**kw)
    open(args.o, 'w').write(src)
    print(l)
```

```python
import struct
KN = 'standalone__kv_cache_quant_int4_int2_kv_with_per_channel_or_per_token_scales__decode_kernel'

HEADCOMMENT = '''; KIVI-style quantised KV-cache decode attention (B=2, Hq=32, Hkv=8, Skv=32768, Dh=128), one fused launch.
;
'''

class Alloc:
    def __init__(self, start, limit):
        self.n = start; self.limit = limit
    def get(self, cnt=1, align=1):
        self.n = (self.n + align - 1) // align * align
        r = self.n; self.n += cnt
        assert self.n <= self.limit, self.n
        return r

def vr(r, n=1): return f'v{r}' if n == 1 else f'v[{r}:{r+n-1}]'
def sr(r, n=1): return f's{r}' if n == 1 else f's[{r}:{r+n-1}]'
def f32hex(x): return '0x%08x' % struct.unpack('<I', struct.pack('<f', x))[0]

PSTRIDE = 4096
QROW = 288
WLDS = 1536
CEXP = 0.08838834764831845 * 1.4426950408889634

def gen(nw=8, bar=1, pol='nt', spol='nt', nB=2, prof=0, dbgprof=0, coff=0, cshift=2, opol='', padto=0,
        wrot=0, perm='tr', minvgpr=176, kbar=None, vbar=None, minlds=0, roll=0, x2=0, vlate=0, rkO=0, rvO=0, rkE=0, rvE=0, pre0=0):
    P = 16
    nwg = 16 * P
    NT = 32768 // (P * nw * 16)
    nthr = nw * 64
    nch = 512 // nthr
    if kbar is None: kbar = bar
    if vbar is None: vbar = bar
    out = []
    a = out.append
    V = Alloc(1, 256); S = Alloc(3, 102)
    sWave = S.get()
    sKA = S.get(16, 4); sKB = S.get(4, 4)
    srdK = S.get(4, 4); srdV = S.get(4, 4); srdKS = S.get(4, 4); srdKZ = S.get(4, 4)
    srdVS = S.get(4, 4); srdVZ = S.get(4, 4); srdT = S.get(4, 4)
    sHk = S.get(); sJ = S.get()
    sOffK = S.get(); sOffS = S.get(); sOffG = S.get(); sOffK2 = S.get(); sOff0 = S.get()
    sCnt = S.get(); sT0 = S.get(); sT1 = S.get()
    sMask = S.get(); sOdd = S.get(); sEx = S.get(2, 2); sQuad = S.get(2, 2)
    stamps = prof == 2 or dbgprof
    sSt = S.get(16, 2) if stamps else None
    sTm = S.get(4, 2) if (dbgprof or padto or prof == 2) else None
    def stamp(i):
        if stamps: a(f's_memrealtime {sr(sSt+2*i,2)}')
    vLane = V.get()
    vKoff = V.get(); vVoff = V.get(); vSoff = V.get(); vKsOff = V.get(); vKzOff = V.get()
    vKoffB = V.get(); vLqRB = V.get(); vLzRB = V.get()
    vLqW = V.get(); vLzW = V.get(); vLqR = V.get(); vLzR = V.get()
    vSa = V.get()
    vM = V.get(); vL = V.get()
    vT = V.get(8, 2)
    vQc = V.get(8, 4)
    vKs = V.get(4, 4); vKz = V.get(); vVs = V.get(2, 2); vVz = V.get(2, 2)
    vQw = V.get(4, 4); vP = V.get(2, 2); vS = V.get(4, 4); vAz = V.get(4, 4)
    vAcc = V.get(32, 4); vQB = V.get(16, 4); vPK = V.get(16, 4)
    vR = V.get(32, 4)
    vRB = V.get(32, 4) if pre0 else None
    vVs0 = V.get(2, 2) if pre0 else None; vVz0 = V.get(2, 2) if pre0 else None
    nvgpr = max(V.n, minvgpr)
    SB = nw * WLDS
    OB = SB + nw * NT * 256
    MB = OB + nw * 2048
    RS = nw * 4
    TK = MB + 12 * RS
    lds_bytes = max(TK + 16, minlds)

    a(f'{KN}:')
    a(f's_cmp_ge_u32 s2, {nwg}')
    a('s_cbranch_scc1 L_end')
    a(f's_load_dwordx16 {sr(sKA,16)}, s[0:1], 0')
    a(f's_load_dwordx4 {sr(sKB,4)}, s[0:1], 64')
    stamp(0)
    if dbgprof or prof == 2: a(f's_memtime {sr(sTm,2)}')
    if padto: a(f's_memrealtime {sr(sTm,2)}')
    a(f'v_lshrrev_b32 {vr(vT)}, 6, v0')
    a(f'v_and_b32 {vr(vLane)}, 63, v0')
    a(f's_lshr_b32 {sr(sHk)}, s2, 4')
    a(f'v_readfirstlane_b32 {sr(sWave)}, {vr(vT)}')
    a(f's_and_b32 {sr(sJ)}, s2, {P-1}')
    n15, g4 = vT + 1, vT + 2
    a(f'v_and_b32 {vr(n15)}, 15, {vr(vLane)}')
    a(f'v_lshrrev_b32 {vr(g4)}, 4, {vr(vLane)}')
    a(f'v_lshlrev_b32 {vr(vKsOff)}, 4, {vr(n15)}')
    a(f'v_lshlrev_b32 {vr(vT+3)}, 9, {vr(n15)}')
    a(f'v_lshl_add_u32 {vr(vKoff)}, {vr(g4)}, 4, {vr(vT+3)}')
    a(f'v_lshl_add_u32 {vr(vVoff)}, {vr(g4)}, 11, {vr(vKsOff)}')
    a(f'v_lshlrev_b32 {vr(vSoff)}, 3, {vr(g4)}')
    a(f'v_lshlrev_b32 {vr(vKzOff)}, 2, {vr(vLane)}')
    a(f'v_and_b32 {vr(vT+3)}, 7, {vr(vLane)}')
    a(f'v_lshlrev_b32 {vr(vT+3)}, 9, {vr(vT+3)}')
    a(f'v_lshrrev_b32 {vr(vT+4)}, 3, {vr(vLane)}')
    a(f'v_lshl_add_u32 {vr(vKoffB)}, {vr(vT+4)}, 4, {vr(vT+3)}')
    stride = nw * 16 * 512
    G = {'tr': 1, 'seq': P}.get(perm) or int(perm[2:])
    if G == 1: a(f's_lshl_b32 {sr(sOff0)}, {sr(sJ)}, 20')
    else:
        a(f's_lshr_b32 {sr(sT0)}, {sr(sJ)}, {G.bit_length()-1}'); a(f's_mul_i32 {sr(sOff0)}, {sr(sT0)}, {G << 20}')
        a(f's_and_b32 {sr(sT0)}, {sr(sJ)}, {G-1}'); a(f's_mul_i32 {sr(sT0)}, {sr(sT0)}, {stride}')
        a(f's_add_u32 {sr(sOff0)}, {sr(sOff0)}, {sr(sT0)}')
    if wrot == 0: a(f's_lshl_b32 {sr(sT0)}, {sr(sWave)}, 13')
    else:
        if wrot == 3: a(f's_lshr_b32 {sr(sT0)}, s2, 3'); a(f's_and_b32 {sr(sT0)}, {sr(sT0)}, 1'); a(f's_lshl_b32 {sr(sT0)}, {sr(sT0)}, {(nw//2).bit_length()-1}'); a(f's_xor_b32 {sr(sT0)}, {sr(sT0)}, {sr(sWave)}')
        elif wrot == 8: a(f's_lshr_b32 {sr(sT0)}, s2, 3'); a(f's_and_b32 {sr(sT0)}, {sr(sT0)}, 3'); a(f's_lshl_b32 {sr(sT0)}, {sr(sT0)}, 1'); a(f's_xor_b32 {sr(sT0)}, {sr(sT0)}, {sr(sWave)}')
        a(f's_and_b32 {sr(sT0)}, {sr(sT0)}, {nw-1}')
        a(f's_lshl_b32 {sr(sT0)}, {sr(sT0)}, 13')
    a(f's_add_u32 {sr(sOff0)}, {sr(sOff0)}, {sr(sT0)}')
    stride = stride * G
    a(f's_mov_b32 {sr(sOffK)}, {sr(sOff0)}')
    def offsK():
        a(f's_lshr_b32 {sr(sOffG)}, {sr(sOffK)}, 8')
        a(f's_and_b32 {sr(sOffG)}, {sr(sOffG)}, 0xffffff00')
        if nB: a(f's_add_u32 {sr(sOffK2)}, {sr(sOffK)}, 4096')
    def offsV():
        a(f's_lshr_b32 {sr(sOffS)}, {sr(sOffK)}, 8')
    offsK()
    a('s_waitcnt lgkmcnt(0)')
    def srd(dst, ptr, off_s, off_shift, nbytes):
        a(f's_lshl_b32 {sr(sT0)}, {sr(off_s)}, {off_shift}')
        a(f's_add_u32 {sr(dst)}, {sr(ptr)}, {sr(sT0)}')
        a(f's_addc_u32 {sr(dst+1)}, {sr(ptr+1)}, 0')
        a(f's_and_b32 {sr(dst+1)}, {sr(dst+1)}, 0xffff')
        a(f's_mov_b32 {sr(dst+2)}, {nbytes}')
        a(f's_mov_b32 {sr(dst+3)}, 0x20000')
    q_, qk_, qv_, ks_, kz_, vs_, vz_, o_ = [sKA + 2 * i for i in range(8)]
    dbg_, ws_ = sKB, sKB + 2
    def ld_ks():
        a(f'buffer_load_dwordx4 {vr(vKs,4)}, {vr(vKsOff)}, {sr(srdKS,4)}, {sr(sOffG)} offen {spol}')
        a(f'buffer_load_dword {vr(vKz)}, {vr(vKzOff)}, {sr(srdKZ,4)}, {sr(sOffG)} offen {spol}')
    def ld_K1(i):
        s = i // 2
        if s < 4 - nB:
            a(f'buffer_load_dwordx4 {vr(vR+4*i,4)}, {vr(vKoff)}, {sr(srdK,4)}, {sr(sOffK)} offen offset:{i*64} {pol}')
        else:
            a(f'buffer_load_dwordx4 {vr(vR+4*i,4)}, {vr(vKoffB)}, {sr(srdK,4)}, {sr(sOffK if i % 2 == 0 else sOffK2)} offen offset:{s*128} {pol}')
    def ld_K():
        for i in range(8): ld_K1(i)
    def ld_vs(rs=None, rz=None):
        rs = vVs if rs is None else rs; rz = vVz if rz is None else rz
        a(f'buffer_load_dwordx2 {vr(rs,2)}, {vr(vSoff)}, {sr(srdVS,4)}, {sr(sOffS)} offen {spol}')
        a(f'buffer_load_dwordx2 {vr(rz,2)}, {vr(vSoff)}, {sr(srdVZ,4)}, {sr(sOffS)} offen {spol}')
    VSEQ = [(0,0),(1,0),(0,1),(1,1),(2,0),(3,0),(2,1),(3,1)]
    def ld_V1(k, rb=None):
        j, h = VSEQ[k]
        rb = vR if rb is None else rb
        a(f'buffer_load_dwordx4 {vr(rb+4*k,4)}, {vr(vVoff)}, {sr(srdV,4)}, {sr(sOffK)} offen offset:{j*512+h*256} {pol}')
    def ld_V():
        for k in range(8): ld_V1(k)
    if pre0:
        srd(srdVS, vs_, sHk, 16, 1 << 16)
        srd(srdVZ, vz_, sHk, 16, 1 << 16)
        srd(srdV, qv_, sHk, 24, 1 << 24)
        offsV(); ld_vs(vVs0, vVz0)
        for k in range(8): ld_V1(k, vRB)
    srd(srdT, q_, sHk, 10, 1024)
    a(f'v_lshl_add_u32 {vr(vT+3)}, {vr(g4)}, 8, {vr(vKsOff)}')
    a(f'buffer_load_dwordx4 {vr(vQw,4)}, {vr(vT+3)}, {sr(srdT,4)}, 0 offen {spol}')
    srd(srdKS, ks_, sHk, 16, 1 << 16)
    srd(srdKZ, kz_, sHk, 16, 1 << 16)
    srd(srdK, qk_, sHk, 24, 1 << 24)
    ld_ks(); ld_K()
    if not pre0:
        srd(srdVS, vs_, sHk, 16, 1 << 16)
        srd(srdVZ, vz_, sHk, 16, 1 << 16)
        srd(srdV, qv_, sHk, 24, 1 << 24)
    a(f's_mul_i32 {sr(sT0)}, {sr(sWave)}, {WLDS}')
    a(f'v_mul_u32_u24 {vr(vT+3)}, {QROW}, {vr(g4)}')
    a(f'v_add3_u32 {vr(vLqW)}, {vr(vT+3)}, {vr(vKsOff)}, {sr(sT0)}')
    a(f'v_add_u32 {vr(vLzW)}, {sr(sT0)}, {vr(vKzOff)}')
    a(f'v_add_u32 {vr(vLzW)}, {4*QROW}, {vr(vLzW)}')
    a(f'v_and_b32 {vr(vT+4)}, 3, {vr(vLane)}')
    a(f'v_mul_u32_u24 {vr(vT+3)}, {QROW}, {vr(vT+4)}')
    a(f'v_add3_u32 {vr(vLqR)}, {vr(vT+3)}, {vr(vSoff)}, {sr(sT0)}')
    a(f'v_add_u32 {vr(vLzR)}, {sr(sT0)}, {vr(vSoff)}')
    a(f'v_add_u32 {vr(vLzR)}, {4*QROW}, {vr(vLzR)}')
    a(f'v_add_u32 {vr(vLqRB)}, {vr(vLqR)}, {vr(vSoff)}')
    a(f'v_add_u32 {vr(vLzRB)}, {vr(vLzR)}, {vr(vSoff)}')
    a(f's_mul_i32 {sr(sT0)}, {sr(sWave)}, {NT*256}')
    a(f's_add_u32 {sr(sT0)}, {sr(sT0)}, {SB}')
    a(f'v_lshlrev_b32 {vr(vT+4)}, 4, {vr(vT+4)}')
    a(f'v_lshl_add_u32 {vr(vSa)}, {vr(g4)}, 6, {vr(vT+4)}')
    a(f'v_add_u32 {vr(vSa)}, {sr(sT0)}, {vr(vSa)}')
    a(f's_mov_b32 {sr(sMask)}, 0xffff0000')
    a(f's_mov_b32 {sr(sQuad)}, 0x000f000f')
    a(f's_mov_b32 {sr(sQuad+1)}, 0x000f000f')
    a(f'v_mov_b32 {vr(vM)}, 0xff800000')
    a(f'v_mov_b32 {vr(vL)}, 0')
    for i in range(4): a(f'v_mov_b32 {vr(vAz+i)}, 0')
    for i in range(32): a(f'v_mov_b32 {vr(vAcc+i)}, 0')
    a(f's_mov_b32 {sr(sT1)}, {f32hex(CEXP)}')
    a(f's_mov_b32 {sr(sCnt)}, {NT-1}')
    a('s_waitcnt vmcnt(10)')
    stamp(1)
    for i in range(4):
        a(f'v_lshlrev_b32 {vr(vQc+2*i)}, 16, {vr(vQw+i)}')
        a(f'v_and_b32 {vr(vQc+2*i+1)}, {sr(sMask)}, {vr(vQw+i)}')
    for i in range(8):
        a(f'v_mul_f32 {vr(vQc+i)}, {sr(sT1)}, {vr(vQc+i)}')

    def kstep(nxt, rk=None):
        a('s_waitcnt vmcnt(8)')
        for i in range(4):
            a(f'v_lshlrev_b32 {vr(vT)}, 16, {vr(vKs+i)}')
            a(f'v_and_b32 {vr(vT+1)}, {sr(sMask)}, {vr(vKs+i)}')
            a(f'v_mul_f32 {vr(vT)}, {vr(vT)}, {vr(vQc+2*i)}')
            a(f'v_mul_f32 {vr(vT+1)}, {vr(vT+1)}, {vr(vQc+2*i+1)}')
            a(f'v_cvt_pk_bf16_f32 {vr(vQw+i)}, {vr(vT)}, {vr(vT+1)}')
        a(f'v_xor_b32 {vr(vT+2)}, 0x80008000, {vr(vKz)}')
        a(f'ds_write_b128 {vr(vLqW)}, {vr(vQw,4)}')
        a(f'ds_write_b32 {vr(vLzW)}, {vr(vT+2)}')
        if nxt == 'K':
            a(f's_add_u32 {sr(sOffK)}, {sr(sOffK)}, {stride}')
            offsK(); ld_ks()
        else:
            if pre0: a(f's_add_u32 {sr(sOffK)}, {sr(sOff0)}, {stride}')
            else: a(f's_mov_b32 {sr(sOffK)}, {sr(sOff0)}')
            offsV(); ld_vs()
        for s in range(4):
            if s < 4 - nB: a(f'ds_read2_b64 {vr(vQB+4*s,4)}, {vr(vLqR)} offset0:{8*s} offset1:{8*s+4}')
            else: a(f'ds_read_b128 {vr(vQB+4*s,4)}, {vr(vLqRB)} offset:{64*s}')
        for s in range(4):
            if s < 4 - nB: a(f'ds_read2_b64 {vr(vPK+4*s,4)}, {vr(vLzR)} offset0:{8*s} offset1:{8*s+4}')
            else: a(f'ds_read_b128 {vr(vPK+4*s,4)}, {vr(vLzRB)} offset:{64*s}')
        a('s_waitcnt lgkmcnt(0)')
        for s in range(4):
            c = '0' if s == 0 else vr(vS, 4)
            a(f'v_mfma_f32_16x16x32_bf16 {vr(vS,4)}, {vr(vPK+4*s,4)}, {vr(vQB+4*s,4)}, {c}')
        if rk is None: rk = 8 if roll in (1, 2) else 0
        def kcvt(i):
            for c in range(4):
                a(f'v_cvt_f32_i32 {vr(vR+4*i+c)}, {vr(vR+4*i+c)}')
            d = vPK + 4 * (i // 2) + 2 * (i % 2)
            a(f'v_cvt_pk_bf16_f32 {vr(d)}, {vr(vR+4*i)}, {vr(vR+4*i+1)}')
            a(f'v_cvt_pk_bf16_f32 {vr(d+1)}, {vr(vR+4*i+2)}, {vr(vR+4*i+3)}')
        nld = ld_K1 if nxt == 'K' else ld_V1
        for i in range(rk):
            a('s_waitcnt vmcnt(9)')
            kcvt(i); nld(i)
        if rk < 8:
            a(f's_waitcnt vmcnt({2+rk})')
            for i in range(rk, 8): kcvt(i)
            for i in range(rk, 8): nld(i)
        for s in range(4 - nB, 4):
            a(f'v_mov_b32 {vr(vT)}, {vr(vPK+4*s)}')
            a(f'v_mov_b32 {vr(vT+1)}, {vr(vPK+4*s+1)}')
            a('s_nop 0')
            a(f'v_mov_b32_dpp {vr(vPK+4*s)}, {vr(vPK+4*s+2)} row_ror:8 row_mask:0xf bank_mask:0xc')
            a(f'v_mov_b32_dpp {vr(vPK+4*s+1)}, {vr(vPK+4*s+3)} row_ror:8 row_mask:0xf bank_mask:0xc')
            a(f'v_mov_b32_dpp {vr(vPK+4*s+2)}, {vr(vT)} row_ror:8 row_mask:0xf bank_mask:0x3')
            a(f'v_mov_b32_dpp {vr(vPK+4*s+3)}, {vr(vT+1)} row_ror:8 row_mask:0xf bank_mask:0x3')
        a('s_nop 1')
        for s in range(4):
            a(f'v_mfma_f32_16x16x32_bf16 {vr(vS,4)}, {vr(vPK+4*s,4)}, {vr(vQB+4*s,4)}, {vr(vS,4)}')
        a('s_nop 7')
        a(f's_mov_b64 exec, {sr(sQuad,2)}')
        a(f'ds_write_b128 {vr(vSa)}, {vr(vS,4)}')
        a('s_mov_b64 exec, -1')
        a(f'v_max3_f32 {vr(vM)}, {vr(vS)}, {vr(vS+1)}, {vr(vM)}')
        a(f'v_max3_f32 {vr(vM)}, {vr(vS+2)}, {vr(vS+3)}, {vr(vM)}')
        a(f'v_add_u32 {vr(vSa)}, 256, {vr(vSa)}')

    vF = vQB
    vLw = vQB + 8
    vZw = vQc
    vMx, vLs, vZs = vKs, vKs + 1, vKs + 2
    def early_publish():
        a(f'v_mov_b32 {vr(vT+1)}, {vr(vL)}')
        a('s_nop 1')
        a(f'v_permlane16_swap_b32 {vr(vL)}, {vr(vT+1)}')
        a(f'v_add_f32 {vr(vL)}, {vr(vL)}, {vr(vT+1)}')
        a(f'v_mov_b32 {vr(vT+1)}, {vr(vL)}')
        a('s_nop 1')
        a(f'v_permlane32_swap_b32 {vr(vL)}, {vr(vT+1)}')
        a(f'v_add_f32 {vr(vL)}, {vr(vL)}, {vr(vT+1)}')
        a(f's_lshl_b32 {sr(sT1)}, {sr(sWave)}, 2')
        a(f's_add_u32 {sr(sT1)}, {sr(sT1)}, {MB}')
        a(f'v_mul_u32_u24 {vr(vT+2)}, {RS}, {vr(vLane)}')
        a(f'v_add_u32 {vr(vT+2)}, {sr(sT1)}, {vr(vT+2)}')
        a('s_mov_b64 exec, 0xf')
        a(f'ds_write_b32 {vr(vT+2)}, {vr(vM)}')
        a(f'ds_write_b32 {vr(vT+2)}, {vr(vL)} offset:{4*RS}')
        a('s_mov_b64 exec, 1')
        for r in range(4):
            a(f'ds_write_b32 {vr(vT+2)}, {vr(vAz+r)} offset:{8*RS+r*RS}')
        a('s_mov_b64 exec, -1')
        a(f'v_and_b32 {vr(vT)}, 3, v0')
        a(f'v_mul_u32_u24 {vr(vT)}, {RS}, {vr(vT)}')
        a(f'v_add_u32 {vr(vT)}, {MB}, {vr(vT)}')
        a('s_waitcnt lgkmcnt(0)')
        a('s_barrier')
        for k in range(nw // 4):
            a(f'ds_read_b128 {vr(vF+4*k,4)}, {vr(vT)} offset:{16*k}')
            a(f'ds_read_b128 {vr(vLw+4*k,4)}, {vr(vT)} offset:{4*RS+16*k}')
            a(f'ds_read_b128 {vr(vZw+4*k,4)}, {vr(vT)} offset:{8*RS+16*k}')
        a('s_waitcnt lgkmcnt(0)')
        a(f'v_max3_f32 {vr(vMx)}, {vr(vF)}, {vr(vF+1)}, {vr(vF+2)}')
        for w in range(3, nw): a(f'v_max_f32 {vr(vMx)}, {vr(vMx)}, {vr(vF+w)}')
        for w in range(nw): a(f'v_sub_f32 {vr(vF+w)}, {vr(vF+w)}, {vr(vMx)}')
        for w in range(nw): a(f'v_exp_f32 {vr(vF+w)}, {vr(vF+w)}')
        a('s_nop 0')
        a(f'v_mul_f32 {vr(vLs)}, {vr(vF)}, {vr(vLw)}')
        a(f'v_mul_f32 {vr(vZs)}, {vr(vF)}, {vr(vZw)}')
        for w in range(1, nw):
            a(f'v_fmac_f32 {vr(vLs)}, {vr(vF+w)}, {vr(vLw+w)}')
            a(f'v_fmac_f32 {vr(vZs)}, {vr(vF+w)}, {vr(vZw+w)}')

    def vstep(pf, rv=None, first=False):
        if rv is None: rv = 4 if roll in (1, 3) else 0
        vVs_, vVz_, vR_ = (vVs0, vVz0, vRB) if first else (vVs, vVz, vR)
        f = vT + 4
        a('s_waitcnt lgkmcnt(0)' if first else 's_waitcnt vmcnt(8) lgkmcnt(0)')
        a(f'v_lshlrev_b32 {vr(f)}, 16, {vr(vVs_)}')
        a(f'v_and_b32 {vr(f+1)}, {sr(sMask)}, {vr(vVs_)}')
        a(f'v_lshlrev_b32 {vr(f+2)}, 16, {vr(vVs_+1)}')
        a(f'v_and_b32 {vr(f+3)}, {sr(sMask)}, {vr(vVs_+1)}')
        for r in range(4): a(f'v_sub_f32 {vr(vS+r)}, {vr(vS+r)}, {vr(vM)}')
        for r in range(4): a(f'v_exp_f32 {vr(vS+r)}, {vr(vS+r)}')
        a('s_nop 0')
        a(f'v_add_f32 {vr(vT)}, {vr(vS)}, {vr(vS+1)}')
        a(f'v_add_f32 {vr(vT+1)}, {vr(vS+2)}, {vr(vS+3)}')
        for r in range(4): a(f'v_mul_f32 {vr(vS+r)}, {vr(vS+r)}, {vr(f+r)}')
        a(f'v_add_f32 {vr(vL)}, {vr(vL)}, {vr(vT)}')
        a(f'v_cvt_pk_bf16_f32 {vr(vP)}, {vr(vS)}, {vr(vS+1)}')
        a(f'v_cvt_pk_bf16_f32 {vr(vP+1)}, {vr(vS+2)}, {vr(vS+3)}')
        a(f'v_add_f32 {vr(vL)}, {vr(vL)}, {vr(vT+1)}')
        a('s_nop 0')
        a(f'v_mfma_f32_16x16x16_bf16 {vr(vAz,4)}, {vr(vP,2)}, {vr(vVz_,2)}, {vr(vAz,4)}')
        if first:
            a(f'v_add_u32 {vr(vSa)}, 256, {vr(vSa)}')
            a(f'ds_read_b128 {vr(vS,4)}, {vr(vSa)}')
        elif pf:
            a(f's_add_u32 {sr(sOffK)}, {sr(sOffK)}, {stride}')
            offsV(); ld_vs()
            a(f'v_add_u32 {vr(vSa)}, 256, {vr(vSa)}')
            a(f'ds_read_b128 {vr(vS,4)}, {vr(vSa)}')
        else:
            early_publish()
        def vpair(p):
            jp, h = p >> 1, p & 1
            for c in range(4):
                r0, r1 = vR_ + 8 * p + c, vR_ + 8 * p + 4 + c
                a(f'v_cvt_f32_i32 {vr(r0)}, {vr(r0)}')
                a(f'v_cvt_f32_i32 {vr(r1)}, {vr(r1)}')
                a(f'v_cvt_pk_bf16_f32 {vr(vPK+2*(4*h+c)+jp)}, {vr(r0)}, {vr(r1)}')
        if first:
            for p in range(4): vpair(p)
            a('s_nop 1')
        elif not pf:
            for p in range(4):
                a(f's_waitcnt vmcnt({6-2*p})'); vpair(p)
            a('s_nop 1')
        else:
            for p in range(rv):
                a('s_waitcnt vmcnt(8)')
                vpair(p); ld_V1(2*p); ld_V1(2*p+1)
            if rv < 4:
                if rv <= 1:
                    a(f's_waitcnt vmcnt({2+2*rv+4})')
                    for p in range(rv, 2): vpair(p)
                    a(f's_waitcnt vmcnt({2+2*rv})')
                    for p in range(2, 4): vpair(p)
                else:
                    a(f's_waitcnt vmcnt({2+2*rv})')
                    for p in range(rv, 4): vpair(p)
                for k in range(2*rv, 8): ld_V1(k)
        for i in range(8):
            a(f'v_mfma_f32_16x16x16_bf16 {vr(vAcc+4*i,4)}, {vr(vP,2)}, {vr(vPK+2*i,2)}, {vr(vAcc+4*i,4)}')

    split = (rkO, rvO) != (rkE, rvE)
    if split:
        a(f's_getreg_b32 {sr(sOdd)}, hwreg(HW_REG_XCC_ID)')
        a(f's_and_b32 {sr(sOdd)}, {sr(sOdd)}, 1')
    def kloop(tag, rk):
        a(f'L_kloop{tag}:')
        kstep('K', rk)
        if kbar: a('s_barrier')
        a(f's_sub_u32 {sr(sCnt)}, {sr(sCnt)}, 1')
        a(f's_cmp_lg_u32 {sr(sCnt)}, 0')
        a(f's_cbranch_scc1 L_kloop{tag}')
    if split and rkO != rkE:
        a(f's_cmp_lg_u32 {sr(sOdd)}, 0'); a('s_cbranch_scc1 L_kloopO')
        kloop('E', rkE); a('s_branch L_kdone')
        kloop('O', rkO); a('L_kdone:')
    else:
        kloop('', rkE if split or rkE else None)
    kstep('V')
    if kbar: a('s_barrier')
    stamp(2)
    a(f'v_subrev_u32 {vr(vSa)}, {NT*256}, {vr(vSa)}')
    a(f'v_mov_b32 {vr(vT+1)}, {vr(vM)}')
    a(f'ds_read_b128 {vr(vS,4)}, {vr(vSa)}')
    a('s_nop 0')
    a(f'v_permlane16_swap_b32 {vr(vM)}, {vr(vT+1)}')
    a(f'v_max_f32 {vr(vM)}, {vr(vM)}, {vr(vT+1)}')
    a(f'v_mov_b32 {vr(vT+1)}, {vr(vM)}')
    a('s_nop 1')
    a(f'v_permlane32_swap_b32 {vr(vM)}, {vr(vT+1)}')
    a(f'v_max_f32 {vr(vM)}, {vr(vM)}, {vr(vT+1)}')
    nv = NT - 1 - (1 if pre0 else 0)
    a(f's_mov_b32 {sr(sCnt)}, {nv}')
    if pre0: vstep(1, 0, True)
    if vlate: a(f's_mov_b32 {sr(sCnt)}, {nv-vlate}')
    def vloop(tag, rv):
        a(f'L_vloop{tag}:')
        vstep(1, rv)
        if vbar: a('s_barrier')
        a(f's_sub_u32 {sr(sCnt)}, {sr(sCnt)}, 1')
        a(f's_cmp_lg_u32 {sr(sCnt)}, 0')
        a(f's_cbranch_scc1 L_vloop{tag}')
    if split and rvO != rvE:
        a(f's_cmp_lg_u32 {sr(sOdd)}, 0'); a('s_cbranch_scc1 L_vloopO')
        vloop('E', rvE); a('s_branch L_vdone')
        vloop('O', rvO); a('L_vdone:')
    else:
        vloop('', rvE if split or rvE else None)
    if vlate:
        a(f's_mov_b32 {sr(sCnt)}, {vlate}')
        a('L_vloop2:')
        vstep(1, 4)
        if vbar: a('s_barrier')
        a(f's_sub_u32 {sr(sCnt)}, {sr(sCnt)}, 1')
        a(f's_cmp_lg_u32 {sr(sCnt)}, 0')
        a('s_cbranch_scc1 L_vloop2')
    vstep(0)
    stamp(3)
    a(f's_lshl_b32 {sr(sT0)}, {sr(sWave)}, 11')
    a(f's_add_u32 {sr(sT0)}, {sr(sT0)}, {OB}')
    a(f'v_add_u32 {vr(vT)}, {sr(sT0)}, {vr(vKsOff)}')
    a(f'v_lshlrev_b32 {vr(vT+1)}, 2, v0')
    a(f'v_add_u32 {vr(vT+2)}, {OB}, {vr(vT+1)}')
    a('s_mov_b64 exec, 0xffff')
    a('s_nop 1')
    for i in range(8):
        a(f'ds_write_b128 {vr(vT)}, {vr(vAcc+4*i,4)} offset:{i*256}')
    a('s_mov_b64 exec, -1')
    a(f's_mul_i32 {sr(sT1)}, s2, {PSTRIDE}')
    a(f's_add_u32 {sr(srdT)}, {sr(ws_)}, {sr(sT1)}')
    a(f's_addc_u32 {sr(srdT+1)}, {sr(ws_+1)}, 0')
    a(f's_and_b32 {sr(srdT+1)}, {sr(srdT+1)}, 0xffff')
    a(f's_mov_b32 {sr(srdT+2)}, {PSTRIDE}')
    a(f's_mov_b32 {sr(srdT+3)}, 0x20000')
    a('s_waitcnt lgkmcnt(0)')
    a('s_barrier')
    vOw = vR
    vRes = vR + 16
    vPo = vSa
    for ch in range(nch):
        for w in range(nw):
            a(f'ds_read_b32 {vr(vOw+ch*nw+w)}, {vr(vT+2)} offset:{w*2048+ch*nthr*4}')
    for ch in range(nch):
        a(f's_waitcnt lgkmcnt({(nch-1-ch)*nw})')
        a(f'v_fma_f32 {vr(vRes+ch)}, {vr(vF)}, {vr(vOw+ch*nw)}, -{vr(vZs)}')
        for w in range(1, nw):
            a(f'v_fmac_f32 {vr(vRes+ch)}, {vr(vF+w)}, {vr(vOw+ch*nw+w)}')
    stamp(4)
    if nch == 1 or not x2:
        for ch in range(nch):
            a(f'buffer_store_dword {vr(vRes+ch)}, {vr(vT+1)}, {sr(srdT,4)}, 0 offen offset:{ch*nthr*4} sc1')
    else:
        a(f'v_lshlrev_b32 {vr(vPo)}, 3, v0')
        a(f'buffer_store_dwordx2 {vr(vRes,2)}, {vr(vPo)}, {sr(srdT,4)}, 0 offen sc1')
    a('v_cmp_gt_u32 vcc, 4, v0')
    a(f's_and_saveexec_b64 {sr(sEx,2)}, vcc')
    a('s_cbranch_execz L_nost')
    a(f'buffer_store_dword {vr(vMx)}, {vr(vT+1)}, {sr(srdT,4)}, 0 offen offset:2048 sc1')
    a(f'buffer_store_dword {vr(vLs)}, {vr(vT+1)}, {sr(srdT,4)}, 0 offen offset:2064 sc1')
    a('L_nost:')
    a(f's_mov_b64 exec, {sr(sEx,2)}')
    a(f's_mov_b32 {sr(srdKS)}, {sr(dbg_)}')
    a(f's_and_b32 {sr(srdKS+1)}, {sr(dbg_+1)}, 0xffff')
    a(f's_mov_b32 {sr(srdKS+2)}, 256')
    a(f's_lshl_b32 {sr(sOffG)}, {sr(sHk)}, {cshift}')
    if coff: a(f's_add_u32 {sr(sOffG)}, {sr(sOffG)}, {coff}')
    a(f's_mul_i32 {sr(sT1)}, {sr(sHk)}, {P*PSTRIDE}')
    a(f's_add_u32 {sr(srdV)}, {sr(ws_)}, {sr(sT1)}')
    a(f's_addc_u32 {sr(srdV+1)}, {sr(ws_+1)}, 0')
    a(f's_and_b32 {sr(srdV+1)}, {sr(srdV+1)}, 0xffff')
    a(f's_mov_b32 {sr(srdV+2)}, {P*PSTRIDE}')
    a(f's_lshl_b32 {sr(sT1)}, {sr(sHk)}, 10')
    a(f's_add_u32 {sr(srdK)}, {sr(o_)}, {sr(sT1)}')
    a(f's_addc_u32 {sr(srdK+1)}, {sr(o_+1)}, 0')
    a(f's_and_b32 {sr(srdK+1)}, {sr(srdK+1)}, 0xffff')
    a(f's_mov_b32 {sr(srdK+2)}, 1024')
    vML = vT + 2; vBp = vT + 3; vOa = vT + 4
    a(f'v_and_b32 {vr(vBp)}, 3, {vr(vLane)}')
    a(f'v_lshlrev_b32 {vr(vBp)}, 6, {vr(vBp)}')
    a(f'v_and_b32 {vr(vML)}, 15, {vr(vLane)}')
    a(f'v_lshlrev_b32 {vr(vML)}, 12, {vr(vML)}')
    a(f'v_lshrrev_b32 {vr(vT+6)}, 4, {vr(vLane)}')
    a(f'v_lshl_add_u32 {vr(vML)}, {vr(vT+6)}, 2, {vr(vML)}')
    for ch in range(nch):
        e, x, y = vT + 6, vOa + ch, vT + 7
        a(f'v_add_u32 {vr(e)}, {ch*nthr}, v0')
        a(f'v_and_b32 {vr(x)}, 3, {vr(e)}'); a(f'v_lshlrev_b32 {vr(x)}, 7, {vr(x)}')
        a(f'v_lshrrev_b32 {vr(y)}, 8, {vr(e)}'); a(f'v_lshl_add_u32 {vr(x)}, {vr(y)}, 6, {vr(x)}')
        a(f'v_bfe_u32 {vr(y)}, {vr(e)}, 2, 4'); a(f'v_lshl_add_u32 {vr(x)}, {vr(y)}, 2, {vr(x)}')
        a(f'v_bfe_u32 {vr(y)}, {vr(e)}, 6, 2'); a(f'v_add_u32 {vr(x)}, {vr(x)}, {vr(y)}')
        a(f'v_lshlrev_b32 {vr(x)}, 1, {vr(x)}')
    a(f'v_mov_b32 {vr(vT+6)}, {TK}')
    a('s_waitcnt vmcnt(0)')
    stamp(5)
    a('s_barrier')
    a(f's_cmp_lg_u32 {sr(sWave)}, 0')
    a('s_cbranch_scc1 L_noat')
    a('s_mov_b64 exec, 1')
    a(f'v_mov_b32 {vr(vT+7)}, 1')
    a(f'v_mov_b32 {vr(vT)}, 0')
    a(f'buffer_atomic_add {vr(vT+7)}, {vr(vT)}, {sr(srdKS,4)}, {sr(sOffG)} offen sc0')
    a('s_waitcnt vmcnt(0)')
    a(f'ds_write_b32 {vr(vT+6)}, {vr(vT+7)}')
    a('s_mov_b64 exec, -1')
    a('s_waitcnt lgkmcnt(0)')
    a('L_noat:')
    a('s_barrier')
    a(f'ds_read_b32 {vr(vT+7)}, {vr(vT+6)}')
    a('s_waitcnt lgkmcnt(0)')
    a(f'v_readfirstlane_b32 {sr(sT0)}, {vr(vT+7)}')
    a('s_nop 3')
    stamp(6)
    a(f's_cmp_lg_u32 {sr(sT0)}, {P-1}')
    a('s_cbranch_scc1 L_notlast')
    cM, cL, x, y = vQB, vQB + 1, vQB + 2, vQB + 3
    cW = vPK
    cO = vR if nch == 1 else vAcc
    a(f'buffer_load_dword {vr(cM)}, {vr(vML)}, {sr(srdV,4)}, 0 offen offset:2048 sc1')
    a(f'buffer_load_dword {vr(cL)}, {vr(vML)}, {sr(srdV,4)}, 0 offen offset:2064 sc1')
    for w in range(P):
        a(f's_mov_b32 {sr(sT1)}, {w*PSTRIDE}')
        if nch == 1: a(f'buffer_load_dword {vr(cO+w)}, {vr(vT+1)}, {sr(srdV,4)}, {sr(sT1)} offen sc1')
        elif not x2:
            for ch in range(nch): a(f'buffer_load_dword {vr(cO+2*w+ch)}, {vr(vT+1)}, {sr(srdV,4)}, {sr(sT1)} offen offset:{ch*nthr*4} sc1')
        else: a(f'buffer_load_dwordx2 {vr(cO+2*w,2)}, {vr(vPo)}, {sr(srdV,4)}, {sr(sT1)} offen sc1')
    a(f's_waitcnt vmcnt({P if (nch == 1 or x2) else nch*P})')
    def allreduce(reg, op):
        for k in (1, 2, 4, 8):
            a('s_nop 1')
            a(f'{op}_dpp {vr(reg)}, {vr(reg)}, {vr(reg)} row_ror:{k} row_mask:0xf bank_mask:0xf')
    a(f'v_mov_b32 {vr(x)}, {vr(cM)}')
    allreduce(x, 'v_max_f32')
    a(f'v_sub_f32 {vr(cM)}, {vr(cM)}, {vr(x)}')
    a(f'v_exp_f32 {vr(cM)}, {vr(cM)}')
    a('s_nop 0')
    a(f'v_mul_f32 {vr(x)}, {vr(cM)}, {vr(cL)}')
    allreduce(x, 'v_add_f32')
    a(f'v_rcp_f32 {vr(cL)}, {vr(x)}')
    a('s_nop 0')
    a(f'v_mul_f32 {vr(cM)}, {vr(cM)}, {vr(cL)}')
    for w in range(P):
        a(f'ds_bpermute_b32 {vr(cW+w)}, {vr(vBp)}, {vr(cM)} offset:{4*w}')
    a('s_waitcnt vmcnt(0) lgkmcnt(0)')
    for ch in range(nch):
        o = (lambda w: cO + w) if nch == 1 else (lambda w: cO + 2 * w + ch)
        a(f'v_mul_f32 {vr(x)}, {vr(cW)}, {vr(o(0))}')
        for w in range(1, P): a(f'v_fmac_f32 {vr(x)}, {vr(cW+w)}, {vr(o(w))}')
        a(f'v_cvt_pk_bf16_f32 {vr(x)}, {vr(x)}, {vr(x)}')
        a(f'buffer_store_short {vr(x)}, {vr(vOa+ch)}, {sr(srdK,4)}, 0 offen {opol}')
    if dbgprof:
        a('s_waitcnt vmcnt(0)')
        a(f's_cmp_lg_u32 {sr(sWave)}, 0')
        a('s_cbranch_scc1 L_end')
        stamp(7)
        a(f's_memtime {sr(sTm+2,2)}')
        a('s_waitcnt lgkmcnt(0)')
        a('s_mov_b64 exec, 1')
        a(f'v_mov_b32 {vr(vT)}, 0')
        for i in range(1, 8):
            a(f's_sub_u32 {sr(sT0)}, {sr(sSt+2*i)}, {sr(sSt)}')
            a(f'v_mov_b32 {vr(vR+i)}, {sr(sT0)}')
        for i in range(1, 8):
            a(f'buffer_atomic_umax {vr(vR+i)}, {vr(vT)}, {sr(srdKS,4)}, 0 offen offset:{4*i}')
    a('L_notlast:')
    if prof == 2:
        a('s_waitcnt vmcnt(0)')
        stamp(7)
        a(f's_memtime {sr(sTm+2,2)}')
        a('s_waitcnt lgkmcnt(0)')
        a(f's_cmp_lg_u32 {sr(sWave)}, 0')
        a('s_cbranch_scc1 L_end')
        a(f's_add_u32 {sr(srdT)}, {sr(ws_)}, 0x4000000')
        a(f's_addc_u32 {sr(srdT+1)}, {sr(ws_+1)}, 0')
        a(f's_and_b32 {sr(srdT+1)}, {sr(srdT+1)}, 0xffff')
        a(f's_mov_b32 {sr(srdT+2)}, 0x100000')
        a(f's_lshl_b32 {sr(sT1)}, s2, 6')
        for i in range(8): a(f'v_mov_b32 {vr(vR+i)}, {sr(sSt+2*i)}')
        a(f's_getreg_b32 {sr(sT0)}, hwreg(HW_REG_XCC_ID)')
        a(f'v_mov_b32 {vr(vR+8)}, {sr(sT0)}')
        a(f's_getreg_b32 {sr(sT0)}, hwreg(HW_REG_HW_ID)')
        a(f'v_mov_b32 {vr(vR+9)}, {sr(sT0)}')
        a(f's_sub_u32 {sr(sT0)}, {sr(sTm+2)}, {sr(sTm)}')
        a(f'v_mov_b32 {vr(vR+10)}, {sr(sT0)}')
        a(f'v_mov_b32 {vr(vT)}, 0')
        a('s_mov_b64 exec, 1')
        a(f'buffer_store_dwordx4 {vr(vR,4)}, {vr(vT)}, {sr(srdT,4)}, {sr(sT1)} offen')
        a(f'buffer_store_dwordx4 {vr(vR+4,4)}, {vr(vT)}, {sr(srdT,4)}, {sr(sT1)} offen offset:16')
        a(f'buffer_store_dwordx4 {vr(vR+8,4)}, {vr(vT)}, {sr(srdT,4)}, {sr(sT1)} offen offset:32')
    if padto:
        a('s_waitcnt vmcnt(0) lgkmcnt(0)')
        a('L_pad:')
        a(f's_memrealtime {sr(sTm+2,2)}')
        a('s_waitcnt lgkmcnt(0)')
        a(f's_sub_u32 {sr(sT0)}, {sr(sTm+2)}, {sr(sTm)}')
        a(f's_cmp_lt_u32 {sr(sT0)}, {padto}')
        a('s_cbranch_scc1 L_pad')
    a('L_end:')
    a('s_endpgm')
    main = '\n'.join(out)
    acc = min(256, (nvgpr + 3) // 4 * 4)
    kd = f'''.amdhsa_kernel {KN}
  .amdhsa_next_free_vgpr {nvgpr}
  .amdhsa_next_free_sgpr {S.n}
  .amdhsa_accum_offset {acc}
  .amdhsa_group_segment_fixed_size 0
  .amdhsa_kernarg_size 80
  .amdhsa_user_sgpr_count 2
  .amdhsa_user_sgpr_kernarg_segment_ptr 1
  .amdhsa_system_sgpr_workgroup_id_x 1
  .amdhsa_float_denorm_mode_32 3
.end_amdhsa_kernel
'''
    src = HEADCOMMENT + f'; @launch grid=({nwg},1,1) block=({nthr},1,1) lds={lds_bytes}\n'
    src += '.amdgcn_target "amdgcn-amd-amdhsa--gfx950"\n.text\n'
    src += f'.globl {KN}\n.p2align 8\n.type {KN},@function\n{main}\n'
    src += '.section .rodata,"a"\n.p2align 6\n' + kd
    return src, [(KN, nwg, nthr, lds_bytes)]

if __name__ == '__main__':
    import argparse
    ap = argparse.ArgumentParser()
    ap.add_argument('-o', default='out.s')
    ap.add_argument('kv', nargs='*')
    args = ap.parse_args()
    kw = {}
    for x in args.kv:
        k, v = x.split('=')
        try: v = int(v)
        except ValueError: pass
        kw[k] = v
    src, l = gen(**kw)
    open(args.o, 'w').write(src)
    print(l)
```

```python
import struct
KN = 'standalone__kv_cache_quant_int4_int2_kv_with_per_channel_or_per_token_scales__decode_kernel'

HEADCOMMENT = '''; KIVI-style quantised KV-cache decode attention (B=2, Hq=32, Hkv=8, Skv=32768, Dh=128), one fused launch.
;
'''

class Alloc:
    def __init__(self, start, limit):
        self.n = start; self.limit = limit
    def get(self, cnt=1, align=1):
        self.n = (self.n + align - 1) // align * align
        r = self.n; self.n += cnt
        assert self.n <= self.limit, self.n
        return r

def vr(r, n=1): return f'v{r}' if n == 1 else f'v[{r}:{r+n-1}]'
def sr(r, n=1): return f's{r}' if n == 1 else f's[{r}:{r+n-1}]'
def f32hex(x): return '0x%08x' % struct.unpack('<I', struct.pack('<f', x))[0]

PSTRIDE = 4096
QROW = 288
WLDS = 1536
CEXP = 0.08838834764831845 * 1.4426950408889634

def gen(nw=8, bar=1, pol='nt', spol='nt', nB=2, prof=0, dbgprof=0, coff=0, cshift=2, opol='', padto=0,
        wrot=0, perm='tr', minvgpr=176, kbar=None, vbar=None, minlds=0, roll=0, x2=0, vlate=0, rkO=0, rvO=0, rkE=0, rvE=0, pre0=0, unify=0):
    P = 16
    nwg = 16 * P
    NT = 32768 // (P * nw * 16)
    nthr = nw * 64
    nch = 512 // nthr
    if kbar is None: kbar = bar
    if vbar is None: vbar = bar
    out = []
    a = out.append
    V = Alloc(1, 256); S = Alloc(3, 102)
    sWave = S.get()
    sKA = S.get(16, 4); sKB = S.get(4, 4)
    srdK = S.get(4, 4); srdV = S.get(4, 4); srdKS = S.get(4, 4); srdKZ = S.get(4, 4)
    srdVS = S.get(4, 4); srdVZ = S.get(4, 4); srdT = S.get(4, 4)
    sHk = S.get(); sJ = S.get()
    sOffK = S.get(); sOffS = S.get(); sOffG = S.get(); sOffK2 = S.get(); sOff0 = S.get()
    sCnt = S.get(); sT0 = S.get(); sT1 = S.get()
    sMask = S.get(); sOdd = S.get(); sEx = S.get(2, 2); sQuad = S.get(2, 2)
    stamps = prof == 2 or dbgprof
    sSt = S.get(16, 2) if stamps else None
    sTm = S.get(4, 2) if (dbgprof or padto or prof == 2) else None
    def stamp(i):
        if stamps: a(f's_memrealtime {sr(sSt+2*i,2)}')
    vLane = V.get()
    vKoff = V.get(); vVoff = V.get(); vSoff = V.get(); vKsOff = V.get(); vKzOff = V.get()
    vKoffB = V.get(); vLqRB = V.get(); vLzRB = V.get()
    vLqW = V.get(); vLzW = V.get(); vLqR = V.get(); vLzR = V.get()
    vSa = V.get()
    vM = V.get(); vL = V.get()
    vT = V.get(8, 2)
    vQc = V.get(8, 4)
    vKs = V.get(4, 4); vKz = V.get(); vVs = V.get(2, 2); vVz = V.get(2, 2)
    vQw = V.get(4, 4); vP = V.get(2, 2); vS = V.get(4, 4); vAz = V.get(4, 4)
    vAcc = V.get(32, 4); vQB = V.get(16, 4); vPK = V.get(16, 4)
    vR = V.get(32, 4)
    vRB = V.get(32, 4) if pre0 else None
    vVs0 = V.get(2, 2) if pre0 else None; vVz0 = V.get(2, 2) if pre0 else None
    nvgpr = max(V.n, minvgpr)
    SB = nw * WLDS
    OB = SB + nw * NT * 256
    MB = OB + nw * 2048
    RS = nw * 4
    TK = MB + 12 * RS
    lds_bytes = max(TK + 16, minlds)

    a(f'{KN}:')
    a(f's_cmp_ge_u32 s2, {nwg}')
    a('s_cbranch_scc1 L_end')
    a(f's_load_dwordx16 {sr(sKA,16)}, s[0:1], 0')
    a(f's_load_dwordx4 {sr(sKB,4)}, s[0:1], 64')
    stamp(0)
    if dbgprof or prof == 2: a(f's_memtime {sr(sTm,2)}')
    if padto: a(f's_memrealtime {sr(sTm,2)}')
    a(f'v_lshrrev_b32 {vr(vT)}, 6, v0')
    a(f'v_and_b32 {vr(vLane)}, 63, v0')
    a(f's_lshr_b32 {sr(sHk)}, s2, 4')
    a(f'v_readfirstlane_b32 {sr(sWave)}, {vr(vT)}')
    a(f's_and_b32 {sr(sJ)}, s2, {P-1}')
    n15, g4 = vT + 1, vT + 2
    a(f'v_and_b32 {vr(n15)}, 15, {vr(vLane)}')
    a(f'v_lshrrev_b32 {vr(g4)}, 4, {vr(vLane)}')
    a(f'v_lshlrev_b32 {vr(vKsOff)}, 4, {vr(n15)}')
    a(f'v_lshlrev_b32 {vr(vT+3)}, 9, {vr(n15)}')
    a(f'v_lshl_add_u32 {vr(vKoff)}, {vr(g4)}, 4, {vr(vT+3)}')
    a(f'v_lshl_add_u32 {vr(vVoff)}, {vr(g4)}, 11, {vr(vKsOff)}')
    a(f'v_lshlrev_b32 {vr(vSoff)}, 3, {vr(g4)}')
    a(f'v_lshlrev_b32 {vr(vKzOff)}, 2, {vr(vLane)}')
    a(f'v_and_b32 {vr(vT+3)}, 7, {vr(vLane)}')
    a(f'v_lshlrev_b32 {vr(vT+3)}, 9, {vr(vT+3)}')
    a(f'v_lshrrev_b32 {vr(vT+4)}, 3, {vr(vLane)}')
    a(f'v_lshl_add_u32 {vr(vKoffB)}, {vr(vT+4)}, 4, {vr(vT+3)}')
    stride = nw * 16 * 512
    G = {'tr': 1, 'seq': P}.get(perm) or int(perm[2:])
    if G == 1: a(f's_lshl_b32 {sr(sOff0)}, {sr(sJ)}, 20')
    else:
        a(f's_lshr_b32 {sr(sT0)}, {sr(sJ)}, {G.bit_length()-1}'); a(f's_mul_i32 {sr(sOff0)}, {sr(sT0)}, {G << 20}')
        a(f's_and_b32 {sr(sT0)}, {sr(sJ)}, {G-1}'); a(f's_mul_i32 {sr(sT0)}, {sr(sT0)}, {stride}')
        a(f's_add_u32 {sr(sOff0)}, {sr(sOff0)}, {sr(sT0)}')
    if wrot == 0: a(f's_lshl_b32 {sr(sT0)}, {sr(sWave)}, 13')
    else:
        if wrot == 3: a(f's_lshr_b32 {sr(sT0)}, s2, 3'); a(f's_and_b32 {sr(sT0)}, {sr(sT0)}, 1'); a(f's_lshl_b32 {sr(sT0)}, {sr(sT0)}, {(nw//2).bit_length()-1}'); a(f's_xor_b32 {sr(sT0)}, {sr(sT0)}, {sr(sWave)}')
        elif wrot == 8: a(f's_lshr_b32 {sr(sT0)}, s2, 3'); a(f's_and_b32 {sr(sT0)}, {sr(sT0)}, 3'); a(f's_lshl_b32 {sr(sT0)}, {sr(sT0)}, 1'); a(f's_xor_b32 {sr(sT0)}, {sr(sT0)}, {sr(sWave)}')
        a(f's_and_b32 {sr(sT0)}, {sr(sT0)}, {nw-1}')
        a(f's_lshl_b32 {sr(sT0)}, {sr(sT0)}, 13')
    a(f's_add_u32 {sr(sOff0)}, {sr(sOff0)}, {sr(sT0)}')
    stride = stride * G
    a(f's_mov_b32 {sr(sOffK)}, {sr(sOff0)}')
    def offsK():
        a(f's_lshr_b32 {sr(sOffG)}, {sr(sOffK)}, 8')
        a(f's_and_b32 {sr(sOffG)}, {sr(sOffG)}, 0xffffff00')
        if nB: a(f's_add_u32 {sr(sOffK2)}, {sr(sOffK)}, 4096')
    def offsV():
        a(f's_lshr_b32 {sr(sOffS)}, {sr(sOffK)}, 8')
    offsK()
    a('s_waitcnt lgkmcnt(0)')
    def srd(dst, ptr, off_s, off_shift, nbytes):
        a(f's_lshl_b32 {sr(sT0)}, {sr(off_s)}, {off_shift}')
        a(f's_add_u32 {sr(dst)}, {sr(ptr)}, {sr(sT0)}')
        a(f's_addc_u32 {sr(dst+1)}, {sr(ptr+1)}, 0')
        a(f's_and_b32 {sr(dst+1)}, {sr(dst+1)}, 0xffff')
        a(f's_mov_b32 {sr(dst+2)}, {nbytes}')
        a(f's_mov_b32 {sr(dst+3)}, 0x20000')
    q_, qk_, qv_, ks_, kz_, vs_, vz_, o_ = [sKA + 2 * i for i in range(8)]
    dbg_, ws_ = sKB, sKB + 2
    def ld_ks():
        a(f'buffer_load_dwordx4 {vr(vKs,4)}, {vr(vKsOff)}, {sr(srdKS,4)}, {sr(sOffG)} offen {spol}')
        a(f'buffer_load_dword {vr(vKz)}, {vr(vKzOff)}, {sr(srdKZ,4)}, {sr(sOffG)} offen {spol}')
    def ld_K1(i):
        s = i // 2
        if s < 4 - nB:
            a(f'buffer_load_dwordx4 {vr(vR+4*i,4)}, {vr(vKoff)}, {sr(srdK,4)}, {sr(sOffK)} offen offset:{i*64} {pol}')
        else:
            a(f'buffer_load_dwordx4 {vr(vR+4*i,4)}, {vr(vKoffB)}, {sr(srdK,4)}, {sr(sOffK if i % 2 == 0 else sOffK2)} offen offset:{s*128} {pol}')
    def ld_K():
        for i in range(8): ld_K1(i)
    def ld_vs(rs=None, rz=None):
        rs = vVs if rs is None else rs; rz = vVz if rz is None else rz
        a(f'buffer_load_dwordx2 {vr(rs,2)}, {vr(vSoff)}, {sr(srdVS,4)}, {sr(sOffS)} offen {spol}')
        a(f'buffer_load_dwordx2 {vr(rz,2)}, {vr(vSoff)}, {sr(srdVZ,4)}, {sr(sOffS)} offen {spol}')
    VSEQ = [(0,0),(1,0),(0,1),(1,1),(2,0),(3,0),(2,1),(3,1)]
    def ld_V1(k, rb=None):
        j, h = VSEQ[k]
        rb = vR if rb is None else rb
        a(f'buffer_load_dwordx4 {vr(rb+4*k,4)}, {vr(vVoff)}, {sr(srdV,4)}, {sr(sOffK)} offen offset:{j*512+h*256} {pol}')
    def ld_V():
        for k in range(8): ld_V1(k)
    if pre0:
        srd(srdVS, vs_, sHk, 16, 1 << 16)
        srd(srdVZ, vz_, sHk, 16, 1 << 16)
        srd(srdV, qv_, sHk, 24, 1 << 24)
        offsV(); ld_vs(vVs0, vVz0)
        for k in range(8): ld_V1(k, vRB)
    srd(srdT, q_, sHk, 10, 1024)
    a(f'v_lshl_add_u32 {vr(vT+3)}, {vr(g4)}, 8, {vr(vKsOff)}')
    a(f'buffer_load_dwordx4 {vr(vQw,4)}, {vr(vT+3)}, {sr(srdT,4)}, 0 offen {spol}')
    srd(srdKS, ks_, sHk, 16, 1 << 16)
    srd(srdKZ, kz_, sHk, 16, 1 << 16)
    srd(srdK, qk_, sHk, 24, 1 << 24)
    ld_ks(); ld_K()
    if not pre0:
        srd(srdVS, vs_, sHk, 16, 1 << 16)
        srd(srdVZ, vz_, sHk, 16, 1 << 16)
        srd(srdV, qv_, sHk, 24, 1 << 24)
    a(f's_mul_i32 {sr(sT0)}, {sr(sWave)}, {WLDS}')
    a(f'v_mul_u32_u24 {vr(vT+3)}, {QROW}, {vr(g4)}')
    a(f'v_add3_u32 {vr(vLqW)}, {vr(vT+3)}, {vr(vKsOff)}, {sr(sT0)}')
    a(f'v_add_u32 {vr(vLzW)}, {sr(sT0)}, {vr(vKzOff)}')
    a(f'v_add_u32 {vr(vLzW)}, {4*QROW}, {vr(vLzW)}')
    a(f'v_and_b32 {vr(vT+4)}, 3, {vr(vLane)}')
    a(f'v_mul_u32_u24 {vr(vT+3)}, {QROW}, {vr(vT+4)}')
    a(f'v_add3_u32 {vr(vLqR)}, {vr(vT+3)}, {vr(vSoff)}, {sr(sT0)}')
    a(f'v_add_u32 {vr(vLzR)}, {sr(sT0)}, {vr(vSoff)}')
    a(f'v_add_u32 {vr(vLzR)}, {4*QROW}, {vr(vLzR)}')
    a(f'v_add_u32 {vr(vLqRB)}, {vr(vLqR)}, {vr(vSoff)}')
    a(f'v_add_u32 {vr(vLzRB)}, {vr(vLzR)}, {vr(vSoff)}')
    a(f's_mul_i32 {sr(sT0)}, {sr(sWave)}, {NT*256}')
    a(f's_add_u32 {sr(sT0)}, {sr(sT0)}, {SB}')
    a(f'v_lshlrev_b32 {vr(vT+4)}, 4, {vr(vT+4)}')
    a(f'v_lshl_add_u32 {vr(vSa)}, {vr(g4)}, 6, {vr(vT+4)}')
    a(f'v_add_u32 {vr(vSa)}, {sr(sT0)}, {vr(vSa)}')
    a(f's_mov_b32 {sr(sMask)}, 0xffff0000')
    a(f's_mov_b32 {sr(sQuad)}, 0x000f000f')
    a(f's_mov_b32 {sr(sQuad+1)}, 0x000f000f')
    a(f'v_mov_b32 {vr(vM)}, 0xff800000')
    a(f'v_mov_b32 {vr(vL)}, 0')
    for i in range(4): a(f'v_mov_b32 {vr(vAz+i)}, 0')
    for i in range(32): a(f'v_mov_b32 {vr(vAcc+i)}, 0')
    a(f's_mov_b32 {sr(sT1)}, {f32hex(CEXP)}')
    a(f's_mov_b32 {sr(sCnt)}, {NT-1}')
    a('s_waitcnt vmcnt(10)')
    stamp(1)
    for i in range(4):
        a(f'v_lshlrev_b32 {vr(vQc+2*i)}, 16, {vr(vQw+i)}')
        a(f'v_and_b32 {vr(vQc+2*i+1)}, {sr(sMask)}, {vr(vQw+i)}')
    for i in range(8):
        a(f'v_mul_f32 {vr(vQc+i)}, {sr(sT1)}, {vr(vQc+i)}')

    def kstep(nxt, rk=None):
        a('s_waitcnt vmcnt(8)')
        for i in range(4):
            a(f'v_lshlrev_b32 {vr(vT)}, 16, {vr(vKs+i)}')
            a(f'v_and_b32 {vr(vT+1)}, {sr(sMask)}, {vr(vKs+i)}')
            a(f'v_mul_f32 {vr(vT)}, {vr(vT)}, {vr(vQc+2*i)}')
            a(f'v_mul_f32 {vr(vT+1)}, {vr(vT+1)}, {vr(vQc+2*i+1)}')
            a(f'v_cvt_pk_bf16_f32 {vr(vQw+i)}, {vr(vT)}, {vr(vT+1)}')
        a(f'v_xor_b32 {vr(vT+2)}, 0x80008000, {vr(vKz)}')
        a(f'ds_write_b128 {vr(vLqW)}, {vr(vQw,4)}')
        a(f'ds_write_b32 {vr(vLzW)}, {vr(vT+2)}')
        if nxt == 'U':
            a(f's_cmp_eq_u32 {sr(sCnt)}, 0')
            a('s_cbranch_scc1 L_k2v_small')
            a(f's_add_u32 {sr(sOffK)}, {sr(sOffK)}, {stride}')
            offsK(); ld_ks()
            a('L_k2v_small_back:')
        elif nxt == 'K':
            a(f's_add_u32 {sr(sOffK)}, {sr(sOffK)}, {stride}')
            offsK(); ld_ks()
        else:
            if pre0: a(f's_add_u32 {sr(sOffK)}, {sr(sOff0)}, {stride}')
            else: a(f's_mov_b32 {sr(sOffK)}, {sr(sOff0)}')
            offsV(); ld_vs()
        for s in range(4):
            if s < 4 - nB: a(f'ds_read2_b64 {vr(vQB+4*s,4)}, {vr(vLqR)} offset0:{8*s} offset1:{8*s+4}')
            else: a(f'ds_read_b128 {vr(vQB+4*s,4)}, {vr(vLqRB)} offset:{64*s}')
        for s in range(4):
            if s < 4 - nB: a(f'ds_read2_b64 {vr(vPK+4*s,4)}, {vr(vLzR)} offset0:{8*s} offset1:{8*s+4}')
            else: a(f'ds_read_b128 {vr(vPK+4*s,4)}, {vr(vLzRB)} offset:{64*s}')
        a('s_waitcnt lgkmcnt(0)')
        for s in range(4):
            c = '0' if s == 0 else vr(vS, 4)
            a(f'v_mfma_f32_16x16x32_bf16 {vr(vS,4)}, {vr(vPK+4*s,4)}, {vr(vQB+4*s,4)}, {c}')
        if rk is None: rk = 8 if roll in (1, 2) else 0
        def kcvt(i):
            for c in range(4):
                a(f'v_cvt_f32_i32 {vr(vR+4*i+c)}, {vr(vR+4*i+c)}')
            d = vPK + 4 * (i // 2) + 2 * (i % 2)
            a(f'v_cvt_pk_bf16_f32 {vr(d)}, {vr(vR+4*i)}, {vr(vR+4*i+1)}')
            a(f'v_cvt_pk_bf16_f32 {vr(d+1)}, {vr(vR+4*i+2)}, {vr(vR+4*i+3)}')
        if nxt == 'U':
            a('s_waitcnt vmcnt(2)')
            for i in range(8): kcvt(i)
            a(f's_cmp_eq_u32 {sr(sCnt)}, 0')
            a('s_cbranch_scc1 L_k2v_big')
            ld_K()
            a('L_k2v_big_back:')
        else:
            nld = ld_K1 if nxt == 'K' else ld_V1
            for i in range(rk):
                a('s_waitcnt vmcnt(9)')
                kcvt(i); nld(i)
            if rk < 8:
                a(f's_waitcnt vmcnt({2+rk})')
                for i in range(rk, 8): kcvt(i)
                for i in range(rk, 8): nld(i)
        for s in range(4 - nB, 4):
            a(f'v_mov_b32 {vr(vT)}, {vr(vPK+4*s)}')
            a(f'v_mov_b32 {vr(vT+1)}, {vr(vPK+4*s+1)}')
            a('s_nop 0')
            a(f'v_mov_b32_dpp {vr(vPK+4*s)}, {vr(vPK+4*s+2)} row_ror:8 row_mask:0xf bank_mask:0xc')
            a(f'v_mov_b32_dpp {vr(vPK+4*s+1)}, {vr(vPK+4*s+3)} row_ror:8 row_mask:0xf bank_mask:0xc')
            a(f'v_mov_b32_dpp {vr(vPK+4*s+2)}, {vr(vT)} row_ror:8 row_mask:0xf bank_mask:0x3')
            a(f'v_mov_b32_dpp {vr(vPK+4*s+3)}, {vr(vT+1)} row_ror:8 row_mask:0xf bank_mask:0x3')
        a('s_nop 1')
        for s in range(4):
            a(f'v_mfma_f32_16x16x32_bf16 {vr(vS,4)}, {vr(vPK+4*s,4)}, {vr(vQB+4*s,4)}, {vr(vS,4)}')
        a('s_nop 7')
        a(f's_mov_b64 exec, {sr(sQuad,2)}')
        a(f'ds_write_b128 {vr(vSa)}, {vr(vS,4)}')
        a('s_mov_b64 exec, -1')
        a(f'v_max3_f32 {vr(vM)}, {vr(vS)}, {vr(vS+1)}, {vr(vM)}')
        a(f'v_max3_f32 {vr(vM)}, {vr(vS+2)}, {vr(vS+3)}, {vr(vM)}')
        a(f'v_add_u32 {vr(vSa)}, 256, {vr(vSa)}')

    vF = vQB
    vLw = vQB + 8
    vZw = vQc
    vMx, vLs, vZs = vKs, vKs + 1, vKs + 2
    def early_publish():
        a(f'v_mov_b32 {vr(vT+1)}, {vr(vL)}')
        a('s_nop 1')
        a(f'v_permlane16_swap_b32 {vr(vL)}, {vr(vT+1)}')
        a(f'v_add_f32 {vr(vL)}, {vr(vL)}, {vr(vT+1)}')
        a(f'v_mov_b32 {vr(vT+1)}, {vr(vL)}')
        a('s_nop 1')
        a(f'v_permlane32_swap_b32 {vr(vL)}, {vr(vT+1)}')
        a(f'v_add_f32 {vr(vL)}, {vr(vL)}, {vr(vT+1)}')
        a(f's_lshl_b32 {sr(sT1)}, {sr(sWave)}, 2')
        a(f's_add_u32 {sr(sT1)}, {sr(sT1)}, {MB}')
        a(f'v_mul_u32_u24 {vr(vT+2)}, {RS}, {vr(vLane)}')
        a(f'v_add_u32 {vr(vT+2)}, {sr(sT1)}, {vr(vT+2)}')
        a('s_mov_b64 exec, 0xf')
        a(f'ds_write_b32 {vr(vT+2)}, {vr(vM)}')
        a(f'ds_write_b32 {vr(vT+2)}, {vr(vL)} offset:{4*RS}')
        a('s_mov_b64 exec, 1')
        for r in range(4):
            a(f'ds_write_b32 {vr(vT+2)}, {vr(vAz+r)} offset:{8*RS+r*RS}')
        a('s_mov_b64 exec, -1')
        a(f'v_and_b32 {vr(vT)}, 3, v0')
        a(f'v_mul_u32_u24 {vr(vT)}, {RS}, {vr(vT)}')
        a(f'v_add_u32 {vr(vT)}, {MB}, {vr(vT)}')
        a('s_waitcnt lgkmcnt(0)')
        a('s_barrier')
        for k in range(nw // 4):
            a(f'ds_read_b128 {vr(vF+4*k,4)}, {vr(vT)} offset:{16*k}')
            a(f'ds_read_b128 {vr(vLw+4*k,4)}, {vr(vT)} offset:{4*RS+16*k}')
            a(f'ds_read_b128 {vr(vZw+4*k,4)}, {vr(vT)} offset:{8*RS+16*k}')
        a('s_waitcnt lgkmcnt(0)')
        a(f'v_max3_f32 {vr(vMx)}, {vr(vF)}, {vr(vF+1)}, {vr(vF+2)}')
        for w in range(3, nw): a(f'v_max_f32 {vr(vMx)}, {vr(vMx)}, {vr(vF+w)}')
        for w in range(nw): a(f'v_sub_f32 {vr(vF+w)}, {vr(vF+w)}, {vr(vMx)}')
        for w in range(nw): a(f'v_exp_f32 {vr(vF+w)}, {vr(vF+w)}')
        a('s_nop 0')
        a(f'v_mul_f32 {vr(vLs)}, {vr(vF)}, {vr(vLw)}')
        a(f'v_mul_f32 {vr(vZs)}, {vr(vF)}, {vr(vZw)}')
        for w in range(1, nw):
            a(f'v_fmac_f32 {vr(vLs)}, {vr(vF+w)}, {vr(vLw+w)}')
            a(f'v_fmac_f32 {vr(vZs)}, {vr(vF+w)}, {vr(vZw+w)}')

    def vstep(pf, rv=None, first=False):
        if rv is None: rv = 4 if roll in (1, 3) else 0
        vVs_, vVz_, vR_ = (vVs0, vVz0, vRB) if first else (vVs, vVz, vR)
        f = vT + 4
        a('s_waitcnt lgkmcnt(0)' if first else 's_waitcnt vmcnt(8) lgkmcnt(0)')
        a(f'v_lshlrev_b32 {vr(f)}, 16, {vr(vVs_)}')
        a(f'v_and_b32 {vr(f+1)}, {sr(sMask)}, {vr(vVs_)}')
        a(f'v_lshlrev_b32 {vr(f+2)}, 16, {vr(vVs_+1)}')
        a(f'v_and_b32 {vr(f+3)}, {sr(sMask)}, {vr(vVs_+1)}')
        for r in range(4): a(f'v_sub_f32 {vr(vS+r)}, {vr(vS+r)}, {vr(vM)}')
        for r in range(4): a(f'v_exp_f32 {vr(vS+r)}, {vr(vS+r)}')
        a('s_nop 0')
        a(f'v_add_f32 {vr(vT)}, {vr(vS)}, {vr(vS+1)}')
        a(f'v_add_f32 {vr(vT+1)}, {vr(vS+2)}, {vr(vS+3)}')
        for r in range(4): a(f'v_mul_f32 {vr(vS+r)}, {vr(vS+r)}, {vr(f+r)}')
        a(f'v_add_f32 {vr(vL)}, {vr(vL)}, {vr(vT)}')
        a(f'v_cvt_pk_bf16_f32 {vr(vP)}, {vr(vS)}, {vr(vS+1)}')
        a(f'v_cvt_pk_bf16_f32 {vr(vP+1)}, {vr(vS+2)}, {vr(vS+3)}')
        a(f'v_add_f32 {vr(vL)}, {vr(vL)}, {vr(vT+1)}')
        a('s_nop 0')
        a(f'v_mfma_f32_16x16x16_bf16 {vr(vAz,4)}, {vr(vP,2)}, {vr(vVz_,2)}, {vr(vAz,4)}')
        if pf == 'U':
            a(f's_cmp_eq_u32 {sr(sCnt)}, 0')
            a('s_cbranch_scc1 L_vlast')
            a(f's_add_u32 {sr(sOffK)}, {sr(sOffK)}, {stride}')
            offsV(); ld_vs()
            a(f'v_add_u32 {vr(vSa)}, 256, {vr(vSa)}')
            a(f'ds_read_b128 {vr(vS,4)}, {vr(vSa)}')
            a('L_vlast_back:')
        elif first:
            a(f'v_add_u32 {vr(vSa)}, 256, {vr(vSa)}')
            a(f'ds_read_b128 {vr(vS,4)}, {vr(vSa)}')
        elif pf:
            a(f's_add_u32 {sr(sOffK)}, {sr(sOffK)}, {stride}')
            offsV(); ld_vs()
            a(f'v_add_u32 {vr(vSa)}, 256, {vr(vSa)}')
            a(f'ds_read_b128 {vr(vS,4)}, {vr(vSa)}')
        else:
            early_publish()
        def vpair(p):
            jp, h = p >> 1, p & 1
            for c in range(4):
                r0, r1 = vR_ + 8 * p + c, vR_ + 8 * p + 4 + c
                a(f'v_cvt_f32_i32 {vr(r0)}, {vr(r0)}')
                a(f'v_cvt_f32_i32 {vr(r1)}, {vr(r1)}')
                a(f'v_cvt_pk_bf16_f32 {vr(vPK+2*(4*h+c)+jp)}, {vr(r0)}, {vr(r1)}')
        if pf == 'U':
            a('s_waitcnt vmcnt(6)'); vpair(0); vpair(1)
            a('s_waitcnt vmcnt(2)'); vpair(2); vpair(3)
            a(f's_cmp_eq_u32 {sr(sCnt)}, 0')
            a('s_cbranch_scc1 L_vnoload')
            ld_V()
            a('L_vnoload:')
            a('s_nop 0')
        elif first:
            for p in range(4): vpair(p)
            a('s_nop 1')
        elif not pf:
            for p in range(4):
                a(f's_waitcnt vmcnt({6-2*p})'); vpair(p)
            a('s_nop 1')
        else:
            for p in range(rv):
                a('s_waitcnt vmcnt(8)')
                vpair(p); ld_V1(2*p); ld_V1(2*p+1)
            if rv < 4:
                if rv <= 1:
                    a(f's_waitcnt vmcnt({2+2*rv+4})')
                    for p in range(rv, 2): vpair(p)
                    a(f's_waitcnt vmcnt({2+2*rv})')
                    for p in range(2, 4): vpair(p)
                else:
                    a(f's_waitcnt vmcnt({2+2*rv})')
                    for p in range(rv, 4): vpair(p)
                for k in range(2*rv, 8): ld_V1(k)
        for i in range(8):
            a(f'v_mfma_f32_16x16x16_bf16 {vr(vAcc+4*i,4)}, {vr(vP,2)}, {vr(vPK+2*i,2)}, {vr(vAcc+4*i,4)}')

    if unify:
        assert not (pre0 or vlate or roll or rkO or rvO or rkE or rvE)
        a('L_kloop:')
        kstep('U', 0)
        if kbar: a('s_barrier')
        a(f's_sub_u32 {sr(sCnt)}, {sr(sCnt)}, 1')
        a('s_cbranch_scc0 L_kloop')
    else:
        split = (rkO, rvO) != (rkE, rvE)
        if split:
            a(f's_getreg_b32 {sr(sOdd)}, hwreg(HW_REG_XCC_ID)')
            a(f's_and_b32 {sr(sOdd)}, {sr(sOdd)}, 1')
        def kloop(tag, rk):
            a(f'L_kloop{tag}:')
            kstep('K', rk)
            if kbar: a('s_barrier')
            a(f's_sub_u32 {sr(sCnt)}, {sr(sCnt)}, 1')
            a(f's_cmp_lg_u32 {sr(sCnt)}, 0')
            a(f's_cbranch_scc1 L_kloop{tag}')
        if split and rkO != rkE:
            a(f's_cmp_lg_u32 {sr(sOdd)}, 0'); a('s_cbranch_scc1 L_kloopO')
            kloop('E', rkE); a('s_branch L_kdone')
            kloop('O', rkO); a('L_kdone:')
        else:
            kloop('', rkE if split or rkE else None)
        kstep('V')
        if kbar: a('s_barrier')
    stamp(2)
    a(f'v_subrev_u32 {vr(vSa)}, {NT*256}, {vr(vSa)}')
    a(f'v_mov_b32 {vr(vT+1)}, {vr(vM)}')
    a(f'ds_read_b128 {vr(vS,4)}, {vr(vSa)}')
    a('s_nop 0')
    a(f'v_permlane16_swap_b32 {vr(vM)}, {vr(vT+1)}')
    a(f'v_max_f32 {vr(vM)}, {vr(vM)}, {vr(vT+1)}')
    a(f'v_mov_b32 {vr(vT+1)}, {vr(vM)}')
    a('s_nop 1')
    a(f'v_permlane32_swap_b32 {vr(vM)}, {vr(vT+1)}')
    a(f'v_max_f32 {vr(vM)}, {vr(vM)}, {vr(vT+1)}')
    nv = NT - 1 - (1 if pre0 else 0)
    a(f's_mov_b32 {sr(sCnt)}, {nv}')
    if unify:
        a('L_vloop:')
        vstep('U', 0)
        if vbar: a('s_barrier')
        a(f's_sub_u32 {sr(sCnt)}, {sr(sCnt)}, 1')
        a('s_cbranch_scc0 L_vloop')
    else:
        if pre0: vstep(1, 0, True)
        if vlate: a(f's_mov_b32 {sr(sCnt)}, {nv-vlate}')
        def vloop(tag, rv):
            a(f'L_vloop{tag}:')
            vstep(1, rv)
            if vbar: a('s_barrier')
            a(f's_sub_u32 {sr(sCnt)}, {sr(sCnt)}, 1')
            a(f's_cmp_lg_u32 {sr(sCnt)}, 0')
            a(f's_cbranch_scc1 L_vloop{tag}')
        if split and rvO != rvE:
            a(f's_cmp_lg_u32 {sr(sOdd)}, 0'); a('s_cbranch_scc1 L_vloopO')
            vloop('E', rvE); a('s_branch L_vdone')
            vloop('O', rvO); a('L_vdone:')
        else:
            vloop('', rvE if split or rvE else None)
        if vlate:
            a(f's_mov_b32 {sr(sCnt)}, {vlate}')
            a('L_vloop2:')
            vstep(1, 4)
            if vbar: a('s_barrier')
            a(f's_sub_u32 {sr(sCnt)}, {sr(sCnt)}, 1')
            a(f's_cmp_lg_u32 {sr(sCnt)}, 0')
            a('s_cbranch_scc1 L_vloop2')
        vstep(0)
    stamp(3)
    a(f's_lshl_b32 {sr(sT0)}, {sr(sWave)}, 11')
    a(f's_add_u32 {sr(sT0)}, {sr(sT0)}, {OB}')
    a(f'v_add_u32 {vr(vT)}, {sr(sT0)}, {vr(vKsOff)}')
    a(f'v_lshlrev_b32 {vr(vT+1)}, 2, v0')
    a(f'v_add_u32 {vr(vT+2)}, {OB}, {vr(vT+1)}')
    a('s_mov_b64 exec, 0xffff')
    a('s_nop 1')
    for i in range(8):
        a(f'ds_write_b128 {vr(vT)}, {vr(vAcc+4*i,4)} offset:{i*256}')
    a('s_mov_b64 exec, -1')
    a(f's_mul_i32 {sr(sT1)}, s2, {PSTRIDE}')
    a(f's_add_u32 {sr(srdT)}, {sr(ws_)}, {sr(sT1)}')
    a(f's_addc_u32 {sr(srdT+1)}, {sr(ws_+1)}, 0')
    a(f's_and_b32 {sr(srdT+1)}, {sr(srdT+1)}, 0xffff')
    a(f's_mov_b32 {sr(srdT+2)}, {PSTRIDE}')
    a(f's_mov_b32 {sr(srdT+3)}, 0x20000')
    a('s_waitcnt lgkmcnt(0)')
    a('s_barrier')
    vOw = vR
    vRes = vR + 16
    vPo = vSa
    for ch in range(nch):
        for w in range(nw):
            a(f'ds_read_b32 {vr(vOw+ch*nw+w)}, {vr(vT+2)} offset:{w*2048+ch*nthr*4}')
    for ch in range(nch):
        a(f's_waitcnt lgkmcnt({(nch-1-ch)*nw})')
        a(f'v_fma_f32 {vr(vRes+ch)}, {vr(vF)}, {vr(vOw+ch*nw)}, -{vr(vZs)}')
        for w in range(1, nw):
            a(f'v_fmac_f32 {vr(vRes+ch)}, {vr(vF+w)}, {vr(vOw+ch*nw+w)}')
    stamp(4)
    if nch == 1 or not x2:
        for ch in range(nch):
            a(f'buffer_store_dword {vr(vRes+ch)}, {vr(vT+1)}, {sr(srdT,4)}, 0 offen offset:{ch*nthr*4} sc1')
    else:
        a(f'v_lshlrev_b32 {vr(vPo)}, 3, v0')
        a(f'buffer_store_dwordx2 {vr(vRes,2)}, {vr(vPo)}, {sr(srdT,4)}, 0 offen sc1')
    a('v_cmp_gt_u32 vcc, 4, v0')
    a(f's_and_saveexec_b64 {sr(sEx,2)}, vcc')
    a('s_cbranch_execz L_nost')
    a(f'buffer_store_dword {vr(vMx)}, {vr(vT+1)}, {sr(srdT,4)}, 0 offen offset:2048 sc1')
    a(f'buffer_store_dword {vr(vLs)}, {vr(vT+1)}, {sr(srdT,4)}, 0 offen offset:2064 sc1')
    a('L_nost:')
    a(f's_mov_b64 exec, {sr(sEx,2)}')
    a(f's_mov_b32 {sr(srdKS)}, {sr(dbg_)}')
    a(f's_and_b32 {sr(srdKS+1)}, {sr(dbg_+1)}, 0xffff')
    a(f's_mov_b32 {sr(srdKS+2)}, 256')
    a(f's_lshl_b32 {sr(sOffG)}, {sr(sHk)}, {cshift}')
    if coff: a(f's_add_u32 {sr(sOffG)}, {sr(sOffG)}, {coff}')
    a(f's_mul_i32 {sr(sT1)}, {sr(sHk)}, {P*PSTRIDE}')
    a(f's_add_u32 {sr(srdV)}, {sr(ws_)}, {sr(sT1)}')
    a(f's_addc_u32 {sr(srdV+1)}, {sr(ws_+1)}, 0')
    a(f's_and_b32 {sr(srdV+1)}, {sr(srdV+1)}, 0xffff')
    a(f's_mov_b32 {sr(srdV+2)}, {P*PSTRIDE}')
    a(f's_lshl_b32 {sr(sT1)}, {sr(sHk)}, 10')
    a(f's_add_u32 {sr(srdK)}, {sr(o_)}, {sr(sT1)}')
    a(f's_addc_u32 {sr(srdK+1)}, {sr(o_+1)}, 0')
    a(f's_and_b32 {sr(srdK+1)}, {sr(srdK+1)}, 0xffff')
    a(f's_mov_b32 {sr(srdK+2)}, 1024')
    vML = vT + 2; vBp = vT + 3; vOa = vT + 4
    a(f'v_and_b32 {vr(vBp)}, 3, {vr(vLane)}')
    a(f'v_lshlrev_b32 {vr(vBp)}, 6, {vr(vBp)}')
    a(f'v_and_b32 {vr(vML)}, 15, {vr(vLane)}')
    a(f'v_lshlrev_b32 {vr(vML)}, 12, {vr(vML)}')
    a(f'v_lshrrev_b32 {vr(vT+6)}, 4, {vr(vLane)}')
    a(f'v_lshl_add_u32 {vr(vML)}, {vr(vT+6)}, 2, {vr(vML)}')
    for ch in range(nch):
        e, x, y = vT + 6, vOa + ch, vT + 7
        a(f'v_add_u32 {vr(e)}, {ch*nthr}, v0')
        a(f'v_and_b32 {vr(x)}, 3, {vr(e)}'); a(f'v_lshlrev_b32 {vr(x)}, 7, {vr(x)}')
        a(f'v_lshrrev_b32 {vr(y)}, 8, {vr(e)}'); a(f'v_lshl_add_u32 {vr(x)}, {vr(y)}, 6, {vr(x)}')
        a(f'v_bfe_u32 {vr(y)}, {vr(e)}, 2, 4'); a(f'v_lshl_add_u32 {vr(x)}, {vr(y)}, 2, {vr(x)}')
        a(f'v_bfe_u32 {vr(y)}, {vr(e)}, 6, 2'); a(f'v_add_u32 {vr(x)}, {vr(x)}, {vr(y)}')
        a(f'v_lshlrev_b32 {vr(x)}, 1, {vr(x)}')
    a(f'v_mov_b32 {vr(vT+6)}, {TK}')
    a('s_waitcnt vmcnt(0)')
    stamp(5)
    a('s_barrier')
    a(f's_cmp_lg_u32 {sr(sWave)}, 0')
    a('s_cbranch_scc1 L_noat')
    a('s_mov_b64 exec, 1')
    a(f'v_mov_b32 {vr(vT+7)}, 1')
    a(f'v_mov_b32 {vr(vT)}, 0')
    a(f'buffer_atomic_add {vr(vT+7)}, {vr(vT)}, {sr(srdKS,4)}, {sr(sOffG)} offen sc0')
    a('s_waitcnt vmcnt(0)')
    a(f'ds_write_b32 {vr(vT+6)}, {vr(vT+7)}')
    a('s_mov_b64 exec, -1')
    a('s_waitcnt lgkmcnt(0)')
    a('L_noat:')
    a('s_barrier')
    a(f'ds_read_b32 {vr(vT+7)}, {vr(vT+6)}')
    a('s_waitcnt lgkmcnt(0)')
    a(f'v_readfirstlane_b32 {sr(sT0)}, {vr(vT+7)}')
    a('s_nop 3')
    stamp(6)
    a(f's_cmp_lg_u32 {sr(sT0)}, {P-1}')
    a('s_cbranch_scc1 L_notlast')
    cM, cL, x, y = vQB, vQB + 1, vQB + 2, vQB + 3
    cW = vPK
    cO = vR if nch == 1 else vAcc
    a(f'buffer_load_dword {vr(cM)}, {vr(vML)}, {sr(srdV,4)}, 0 offen offset:2048 sc1')
    a(f'buffer_load_dword {vr(cL)}, {vr(vML)}, {sr(srdV,4)}, 0 offen offset:2064 sc1')
    for w in range(P):
        a(f's_mov_b32 {sr(sT1)}, {w*PSTRIDE}')
        if nch == 1: a(f'buffer_load_dword {vr(cO+w)}, {vr(vT+1)}, {sr(srdV,4)}, {sr(sT1)} offen sc1')
        elif not x2:
            for ch in range(nch): a(f'buffer_load_dword {vr(cO+2*w+ch)}, {vr(vT+1)}, {sr(srdV,4)}, {sr(sT1)} offen offset:{ch*nthr*4} sc1')
        else: a(f'buffer_load_dwordx2 {vr(cO+2*w,2)}, {vr(vPo)}, {sr(srdV,4)}, {sr(sT1)} offen sc1')
    a(f's_waitcnt vmcnt({P if (nch == 1 or x2) else nch*P})')
    def allreduce(reg, op):
        for k in (1, 2, 4, 8):
            a('s_nop 1')
            a(f'{op}_dpp {vr(reg)}, {vr(reg)}, {vr(reg)} row_ror:{k} row_mask:0xf bank_mask:0xf')
    a(f'v_mov_b32 {vr(x)}, {vr(cM)}')
    allreduce(x, 'v_max_f32')
    a(f'v_sub_f32 {vr(cM)}, {vr(cM)}, {vr(x)}')
    a(f'v_exp_f32 {vr(cM)}, {vr(cM)}')
    a('s_nop 0')
    a(f'v_mul_f32 {vr(x)}, {vr(cM)}, {vr(cL)}')
    allreduce(x, 'v_add_f32')
    a(f'v_rcp_f32 {vr(cL)}, {vr(x)}')
    a('s_nop 0')
    a(f'v_mul_f32 {vr(cM)}, {vr(cM)}, {vr(cL)}')
    for w in range(P):
        a(f'ds_bpermute_b32 {vr(cW+w)}, {vr(vBp)}, {vr(cM)} offset:{4*w}')
    a('s_waitcnt vmcnt(0) lgkmcnt(0)')
    for ch in range(nch):
        o = (lambda w: cO + w) if nch == 1 else (lambda w: cO + 2 * w + ch)
        a(f'v_mul_f32 {vr(x)}, {vr(cW)}, {vr(o(0))}')
        for w in range(1, P): a(f'v_fmac_f32 {vr(x)}, {vr(cW+w)}, {vr(o(w))}')
        a(f'v_cvt_pk_bf16_f32 {vr(x)}, {vr(x)}, {vr(x)}')
        a(f'buffer_store_short {vr(x)}, {vr(vOa+ch)}, {sr(srdK,4)}, 0 offen {opol}')
    if dbgprof:
        a('s_waitcnt vmcnt(0)')
        a(f's_cmp_lg_u32 {sr(sWave)}, 0')
        a('s_cbranch_scc1 L_end')
        stamp(7)
        a(f's_memtime {sr(sTm+2,2)}')
        a('s_waitcnt lgkmcnt(0)')
        a('s_mov_b64 exec, 1')
        a(f'v_mov_b32 {vr(vT)}, 0')
        for i in range(1, 8):
            a(f's_sub_u32 {sr(sT0)}, {sr(sSt+2*i)}, {sr(sSt)}')
            a(f'v_mov_b32 {vr(vR+i)}, {sr(sT0)}')
        for i in range(1, 8):
            a(f'buffer_atomic_umax {vr(vR+i)}, {vr(vT)}, {sr(srdKS,4)}, 0 offen offset:{4*i}')
    a('L_notlast:')
    if prof == 2:
        a('s_waitcnt vmcnt(0)')
        stamp(7)
        a(f's_memtime {sr(sTm+2,2)}')
        a('s_waitcnt lgkmcnt(0)')
        a(f's_cmp_lg_u32 {sr(sWave)}, 0')
        a('s_cbranch_scc1 L_end')
        a(f's_add_u32 {sr(srdT)}, {sr(ws_)}, 0x4000000')
        a(f's_addc_u32 {sr(srdT+1)}, {sr(ws_+1)}, 0')
        a(f's_and_b32 {sr(srdT+1)}, {sr(srdT+1)}, 0xffff')
        a(f's_mov_b32 {sr(srdT+2)}, 0x100000')
        a(f's_lshl_b32 {sr(sT1)}, s2, 6')
        for i in range(8): a(f'v_mov_b32 {vr(vR+i)}, {sr(sSt+2*i)}')
        a(f's_getreg_b32 {sr(sT0)}, hwreg(HW_REG_XCC_ID)')
        a(f'v_mov_b32 {vr(vR+8)}, {sr(sT0)}')
        a(f's_getreg_b32 {sr(sT0)}, hwreg(HW_REG_HW_ID)')
        a(f'v_mov_b32 {vr(vR+9)}, {sr(sT0)}')
        a(f's_sub_u32 {sr(sT0)}, {sr(sTm+2)}, {sr(sTm)}')
        a(f'v_mov_b32 {vr(vR+10)}, {sr(sT0)}')
        a(f'v_mov_b32 {vr(vT)}, 0')
        a('s_mov_b64 exec, 1')
        a(f'buffer_store_dwordx4 {vr(vR,4)}, {vr(vT)}, {sr(srdT,4)}, {sr(sT1)} offen')
        a(f'buffer_store_dwordx4 {vr(vR+4,4)}, {vr(vT)}, {sr(srdT,4)}, {sr(sT1)} offen offset:16')
        a(f'buffer_store_dwordx4 {vr(vR+8,4)}, {vr(vT)}, {sr(srdT,4)}, {sr(sT1)} offen offset:32')
    if padto:
        a('s_waitcnt vmcnt(0) lgkmcnt(0)')
        a('L_pad:')
        a(f's_memrealtime {sr(sTm+2,2)}')
        a('s_waitcnt lgkmcnt(0)')
        a(f's_sub_u32 {sr(sT0)}, {sr(sTm+2)}, {sr(sTm)}')
        a(f's_cmp_lt_u32 {sr(sT0)}, {padto}')
        a('s_cbranch_scc1 L_pad')
    a('L_end:')
    a('s_endpgm')
    if unify:
        a('L_k2v_small:')
        a(f's_mov_b32 {sr(sOffK)}, {sr(sOff0)}')
        offsV(); ld_vs()
        a('s_branch L_k2v_small_back')
        a('L_k2v_big:')
        ld_V()
        a('s_branch L_k2v_big_back')
        a('L_vlast:')
        ld_vs()
        early_publish()
        a('s_branch L_vlast_back')
    main = '\n'.join(out)
    acc = min(256, (nvgpr + 3) // 4 * 4)
    kd = f'''.amdhsa_kernel {KN}
  .amdhsa_next_free_vgpr {nvgpr}
  .amdhsa_next_free_sgpr {S.n}
  .amdhsa_accum_offset {acc}
  .amdhsa_group_segment_fixed_size 0
  .amdhsa_kernarg_size 80
  .amdhsa_user_sgpr_count 2
  .amdhsa_user_sgpr_kernarg_segment_ptr 1
  .amdhsa_system_sgpr_workgroup_id_x 1
  .amdhsa_float_denorm_mode_32 3
.end_amdhsa_kernel
'''
    src = HEADCOMMENT + f'; @launch grid=({nwg},1,1) block=({nthr},1,1) lds={lds_bytes}\n'
    src += '.amdgcn_target "amdgcn-amd-amdhsa--gfx950"\n.text\n'
    src += f'.globl {KN}\n.p2align 8\n.type {KN},@function\n{main}\n'
    src += '.section .rodata,"a"\n.p2align 6\n' + kd
    return src, [(KN, nwg, nthr, lds_bytes)]

if __name__ == '__main__':
    import argparse
    ap = argparse.ArgumentParser()
    ap.add_argument('-o', default='out.s')
    ap.add_argument('kv', nargs='*')
    args = ap.parse_args()
    kw = {}
    for x in args.kv:
        k, v = x.split('=')
        try: v = int(v)
        except ValueError: pass
        kw[k] = v
    src, l = gen(**kw)
    open(args.o, 'w').write(src)
    print(l)
```

```python
import struct
KN = 'standalone__kv_cache_quant_int4_int2_kv_with_per_channel_or_per_token_scales__decode_kernel'

HEADCOMMENT = '''; KIVI-style quantised KV-cache decode attention (B=2, Hq=32, Hkv=8, Skv=32768, Dh=128), one fused launch.
;
'''

class Alloc:
    def __init__(self, start, limit):
        self.n = start; self.limit = limit
    def get(self, cnt=1, align=1):
        self.n = (self.n + align - 1) // align * align
        r = self.n; self.n += cnt
        assert self.n <= self.limit, self.n
        return r

def vr(r, n=1): return f'v{r}' if n == 1 else f'v[{r}:{r+n-1}]'
def sr(r, n=1): return f's{r}' if n == 1 else f's[{r}:{r+n-1}]'
def f32hex(x): return '0x%08x' % struct.unpack('<I', struct.pack('<f', x))[0]

PSTRIDE = 4096
QROW = 288
WLDS = 1536
CEXP = 0.08838834764831845 * 1.4426950408889634

def gen(nw=8, bar=1, pol='nt', spol='nt', nB=2, prof=0, dbgprof=0, coff=0, cshift=2, opol='', padto=0,
        wrot=0, perm='tr', minvgpr=176, kbar=None, vbar=None, minlds=0, roll=0, x2=0, vlate=0, rkO=0, rvO=0, rkE=0, rvE=0, pre0=0, unify=0, kfirst=0, idmap=0):
    P = 16
    nwg = 16 * P
    NT = 32768 // (P * nw * 16)
    nthr = nw * 64
    nch = 512 // nthr
    if kbar is None: kbar = bar
    if vbar is None: vbar = bar
    out = []
    a = out.append
    V = Alloc(1, 256); S = Alloc(3, 102)
    sWave = S.get()
    sKA = S.get(16, 4); sKB = S.get(4, 4)
    srdK = S.get(4, 4); srdV = S.get(4, 4); srdKS = S.get(4, 4); srdKZ = S.get(4, 4)
    srdVS = S.get(4, 4); srdVZ = S.get(4, 4); srdT = S.get(4, 4)
    sHk = S.get(); sJ = S.get()
    sOffK = S.get(); sOffS = S.get(); sOffG = S.get(); sOffK2 = S.get(); sOff0 = S.get()
    sCnt = S.get(); sT0 = S.get(); sT1 = S.get()
    sMask = S.get(); sOdd = S.get(); sEx = S.get(2, 2); sQuad = S.get(2, 2)
    stamps = prof == 2 or dbgprof
    sSt = S.get(16, 2) if stamps else None
    sTm = S.get(4, 2) if (dbgprof or padto or prof == 2) else None
    def stamp(i):
        if stamps: a(f's_memrealtime {sr(sSt+2*i,2)}')
    vLane = V.get()
    vKoff = V.get(); vVoff = V.get(); vSoff = V.get(); vKsOff = V.get(); vKzOff = V.get()
    vKoffB = V.get(); vLqRB = V.get(); vLzRB = V.get()
    vLqW = V.get(); vLzW = V.get(); vLqR = V.get(); vLzR = V.get()
    vSa = V.get()
    vM = V.get(); vL = V.get()
    vT = V.get(8, 2)
    vQc = V.get(8, 4)
    vKs = V.get(4, 4); vKz = V.get(); vVs = V.get(2, 2); vVz = V.get(2, 2)
    vQw = V.get(4, 4); vP = V.get(2, 2); vS = V.get(4, 4); vAz = V.get(4, 4)
    vAcc = V.get(32, 4); vQB = V.get(16, 4); vPK = V.get(16, 4)
    vR = V.get(32, 4)
    vRB = V.get(32, 4) if pre0 else None
    vVs0 = V.get(2, 2) if pre0 else None; vVz0 = V.get(2, 2) if pre0 else None
    nvgpr = max(V.n, minvgpr)
    SB = nw * WLDS
    OB = SB + nw * NT * 256
    MB = OB + nw * 2048
    RS = nw * 4
    TK = MB + 12 * RS
    lds_bytes = max(TK + 16, minlds)

    a(f'{KN}:')
    a(f's_cmp_ge_u32 s2, {nwg}')
    a('s_cbranch_scc1 L_end')
    a(f's_load_dwordx16 {sr(sKA,16)}, s[0:1], 0')
    a(f's_load_dwordx4 {sr(sKB,4)}, s[0:1], 64')
    stamp(0)
    if dbgprof or prof == 2: a(f's_memtime {sr(sTm,2)}')
    if padto: a(f's_memrealtime {sr(sTm,2)}')
    a(f'v_lshrrev_b32 {vr(vT)}, 6, v0')
    a(f'v_and_b32 {vr(vLane)}, 63, v0')
    if idmap == 0:
        a(f's_lshr_b32 {sr(sHk)}, s2, 4')
        a(f'v_readfirstlane_b32 {sr(sWave)}, {vr(vT)}')
        a(f's_and_b32 {sr(sJ)}, s2, {P-1}')
    else:
        a(f's_and_b32 {sr(sHk)}, s2, 7')
        a(f'v_readfirstlane_b32 {sr(sWave)}, {vr(vT)}')
        a(f's_lshl_b32 {sr(sHk)}, {sr(sHk)}, 1')
        a(f's_lshr_b32 {sr(sJ)}, s2, 3')
        a(f's_and_b32 {sr(sT0)}, {sr(sJ)}, 1')
        a(f's_add_u32 {sr(sHk)}, {sr(sHk)}, {sr(sT0)}')
        a(f's_lshr_b32 {sr(sJ)}, s2, 4')
    n15, g4 = vT + 1, vT + 2
    def lane_rest():
        a(f'v_lshlrev_b32 {vr(vKsOff)}, 4, {vr(n15)}')
        a(f'v_lshl_add_u32 {vr(vVoff)}, {vr(g4)}, 11, {vr(vKsOff)}')
        a(f'v_lshlrev_b32 {vr(vSoff)}, 3, {vr(g4)}')
        a(f'v_lshlrev_b32 {vr(vKzOff)}, 2, {vr(vLane)}')
    a(f'v_and_b32 {vr(n15)}, 15, {vr(vLane)}')
    a(f'v_lshrrev_b32 {vr(g4)}, 4, {vr(vLane)}')
    a(f'v_lshlrev_b32 {vr(vT+3)}, 9, {vr(n15)}')
    a(f'v_lshl_add_u32 {vr(vKoff)}, {vr(g4)}, 4, {vr(vT+3)}')
    a(f'v_and_b32 {vr(vT+3)}, 7, {vr(vLane)}')
    a(f'v_lshlrev_b32 {vr(vT+3)}, 9, {vr(vT+3)}')
    a(f'v_lshrrev_b32 {vr(vT+4)}, 3, {vr(vLane)}')
    a(f'v_lshl_add_u32 {vr(vKoffB)}, {vr(vT+4)}, 4, {vr(vT+3)}')
    if not kfirst: lane_rest()
    stride = nw * 16 * 512
    G = {'tr': 1, 'seq': P}.get(perm) or int(perm[2:])
    if G == 1: a(f's_lshl_b32 {sr(sOff0)}, {sr(sJ)}, 20')
    else:
        a(f's_lshr_b32 {sr(sT0)}, {sr(sJ)}, {G.bit_length()-1}'); a(f's_mul_i32 {sr(sOff0)}, {sr(sT0)}, {G << 20}')
        a(f's_and_b32 {sr(sT0)}, {sr(sJ)}, {G-1}'); a(f's_mul_i32 {sr(sT0)}, {sr(sT0)}, {stride}')
        a(f's_add_u32 {sr(sOff0)}, {sr(sOff0)}, {sr(sT0)}')
    if wrot == 0: a(f's_lshl_b32 {sr(sT0)}, {sr(sWave)}, 13')
    else:
        if wrot == 3: a(f's_lshr_b32 {sr(sT0)}, s2, 3'); a(f's_and_b32 {sr(sT0)}, {sr(sT0)}, 1'); a(f's_lshl_b32 {sr(sT0)}, {sr(sT0)}, {(nw//2).bit_length()-1}'); a(f's_xor_b32 {sr(sT0)}, {sr(sT0)}, {sr(sWave)}')
        elif wrot == 8: a(f's_lshr_b32 {sr(sT0)}, s2, 3'); a(f's_and_b32 {sr(sT0)}, {sr(sT0)}, 3'); a(f's_lshl_b32 {sr(sT0)}, {sr(sT0)}, 1'); a(f's_xor_b32 {sr(sT0)}, {sr(sT0)}, {sr(sWave)}')
        a(f's_and_b32 {sr(sT0)}, {sr(sT0)}, {nw-1}')
        a(f's_lshl_b32 {sr(sT0)}, {sr(sT0)}, 13')
    a(f's_add_u32 {sr(sOff0)}, {sr(sOff0)}, {sr(sT0)}')
    stride = stride * G
    a(f's_mov_b32 {sr(sOffK)}, {sr(sOff0)}')
    def offsK():
        a(f's_lshr_b32 {sr(sOffG)}, {sr(sOffK)}, 8')
        a(f's_and_b32 {sr(sOffG)}, {sr(sOffG)}, 0xffffff00')
        if nB: a(f's_add_u32 {sr(sOffK2)}, {sr(sOffK)}, 4096')
    def offsV():
        a(f's_lshr_b32 {sr(sOffS)}, {sr(sOffK)}, 8')
    offsK()
    a('s_waitcnt lgkmcnt(0)')
    def srd(dst, ptr, off_s, off_shift, nbytes):
        a(f's_lshl_b32 {sr(sT0)}, {sr(off_s)}, {off_shift}')
        a(f's_add_u32 {sr(dst)}, {sr(ptr)}, {sr(sT0)}')
        a(f's_addc_u32 {sr(dst+1)}, {sr(ptr+1)}, 0')
        a(f's_and_b32 {sr(dst+1)}, {sr(dst+1)}, 0xffff')
        a(f's_mov_b32 {sr(dst+2)}, {nbytes}')
        a(f's_mov_b32 {sr(dst+3)}, 0x20000')
    q_, qk_, qv_, ks_, kz_, vs_, vz_, o_ = [sKA + 2 * i for i in range(8)]
    dbg_, ws_ = sKB, sKB + 2
    def ld_ks():
        a(f'buffer_load_dwordx4 {vr(vKs,4)}, {vr(vKsOff)}, {sr(srdKS,4)}, {sr(sOffG)} offen {spol}')
        a(f'buffer_load_dword {vr(vKz)}, {vr(vKzOff)}, {sr(srdKZ,4)}, {sr(sOffG)} offen {spol}')
    def ld_K1(i):
        s = i // 2
        if s < 4 - nB:
            a(f'buffer_load_dwordx4 {vr(vR+4*i,4)}, {vr(vKoff)}, {sr(srdK,4)}, {sr(sOffK)} offen offset:{i*64} {pol}')
        else:
            a(f'buffer_load_dwordx4 {vr(vR+4*i,4)}, {vr(vKoffB)}, {sr(srdK,4)}, {sr(sOffK if i % 2 == 0 else sOffK2)} offen offset:{s*128} {pol}')
    def ld_K():
        for i in range(8): ld_K1(i)
    def ld_vs(rs=None, rz=None):
        rs = vVs if rs is None else rs; rz = vVz if rz is None else rz
        a(f'buffer_load_dwordx2 {vr(rs,2)}, {vr(vSoff)}, {sr(srdVS,4)}, {sr(sOffS)} offen {spol}')
        a(f'buffer_load_dwordx2 {vr(rz,2)}, {vr(vSoff)}, {sr(srdVZ,4)}, {sr(sOffS)} offen {spol}')
    VSEQ = [(0,0),(1,0),(0,1),(1,1),(2,0),(3,0),(2,1),(3,1)]
    def ld_V1(k, rb=None):
        j, h = VSEQ[k]
        rb = vR if rb is None else rb
        a(f'buffer_load_dwordx4 {vr(rb+4*k,4)}, {vr(vVoff)}, {sr(srdV,4)}, {sr(sOffK)} offen offset:{j*512+h*256} {pol}')
    def ld_V():
        for k in range(8): ld_V1(k)
    if pre0:
        srd(srdVS, vs_, sHk, 16, 1 << 16)
        srd(srdVZ, vz_, sHk, 16, 1 << 16)
        srd(srdV, qv_, sHk, 24, 1 << 24)
        offsV(); ld_vs(vVs0, vVz0)
        for k in range(8): ld_V1(k, vRB)
    if kfirst:
        srd(srdK, qk_, sHk, 24, 1 << 24)
        ld_K()
        lane_rest()
    srd(srdT, q_, sHk, 10, 1024)
    a(f'v_lshl_add_u32 {vr(vT+3)}, {vr(g4)}, 8, {vr(vKsOff)}')
    a(f'buffer_load_dwordx4 {vr(vQw,4)}, {vr(vT+3)}, {sr(srdT,4)}, 0 offen {spol}')
    srd(srdKS, ks_, sHk, 16, 1 << 16)
    srd(srdKZ, kz_, sHk, 16, 1 << 16)
    if kfirst:
        ld_ks()
    else:
        srd(srdK, qk_, sHk, 24, 1 << 24)
        ld_ks(); ld_K()
    if not pre0:
        srd(srdVS, vs_, sHk, 16, 1 << 16)
        srd(srdVZ, vz_, sHk, 16, 1 << 16)
        srd(srdV, qv_, sHk, 24, 1 << 24)
    a(f's_mul_i32 {sr(sT0)}, {sr(sWave)}, {WLDS}')
    a(f'v_mul_u32_u24 {vr(vT+3)}, {QROW}, {vr(g4)}')
    a(f'v_add3_u32 {vr(vLqW)}, {vr(vT+3)}, {vr(vKsOff)}, {sr(sT0)}')
    a(f'v_add_u32 {vr(vLzW)}, {sr(sT0)}, {vr(vKzOff)}')
    a(f'v_add_u32 {vr(vLzW)}, {4*QROW}, {vr(vLzW)}')
    a(f'v_and_b32 {vr(vT+4)}, 3, {vr(vLane)}')
    a(f'v_mul_u32_u24 {vr(vT+3)}, {QROW}, {vr(vT+4)}')
    a(f'v_add3_u32 {vr(vLqR)}, {vr(vT+3)}, {vr(vSoff)}, {sr(sT0)}')
    a(f'v_add_u32 {vr(vLzR)}, {sr(sT0)}, {vr(vSoff)}')
    a(f'v_add_u32 {vr(vLzR)}, {4*QROW}, {vr(vLzR)}')
    a(f'v_add_u32 {vr(vLqRB)}, {vr(vLqR)}, {vr(vSoff)}')
    a(f'v_add_u32 {vr(vLzRB)}, {vr(vLzR)}, {vr(vSoff)}')
    a(f's_mul_i32 {sr(sT0)}, {sr(sWave)}, {NT*256}')
    a(f's_add_u32 {sr(sT0)}, {sr(sT0)}, {SB}')
    a(f'v_lshlrev_b32 {vr(vT+4)}, 4, {vr(vT+4)}')
    a(f'v_lshl_add_u32 {vr(vSa)}, {vr(g4)}, 6, {vr(vT+4)}')
    a(f'v_add_u32 {vr(vSa)}, {sr(sT0)}, {vr(vSa)}')
    a(f's_mov_b32 {sr(sMask)}, 0xffff0000')
    a(f's_mov_b32 {sr(sQuad)}, 0x000f000f')
    a(f's_mov_b32 {sr(sQuad+1)}, 0x000f000f')
    a(f'v_mov_b32 {vr(vM)}, 0xff800000')
    a(f'v_mov_b32 {vr(vL)}, 0')
    for i in range(4): a(f'v_mov_b32 {vr(vAz+i)}, 0')
    for i in range(32): a(f'v_mov_b32 {vr(vAcc+i)}, 0')
    a(f's_mov_b32 {sr(sT1)}, {f32hex(CEXP)}')
    a(f's_mov_b32 {sr(sCnt)}, {NT-1}')
    a('s_waitcnt vmcnt(0)' if kfirst else 's_waitcnt vmcnt(10)')
    stamp(1)
    for i in range(4):
        a(f'v_lshlrev_b32 {vr(vQc+2*i)}, 16, {vr(vQw+i)}')
        a(f'v_and_b32 {vr(vQc+2*i+1)}, {sr(sMask)}, {vr(vQw+i)}')
    for i in range(8):
        a(f'v_mul_f32 {vr(vQc+i)}, {sr(sT1)}, {vr(vQc+i)}')

    def kstep(nxt, rk=None):
        a('s_waitcnt vmcnt(8)')
        for i in range(4):
            a(f'v_lshlrev_b32 {vr(vT)}, 16, {vr(vKs+i)}')
            a(f'v_and_b32 {vr(vT+1)}, {sr(sMask)}, {vr(vKs+i)}')
            a(f'v_mul_f32 {vr(vT)}, {vr(vT)}, {vr(vQc+2*i)}')
            a(f'v_mul_f32 {vr(vT+1)}, {vr(vT+1)}, {vr(vQc+2*i+1)}')
            a(f'v_cvt_pk_bf16_f32 {vr(vQw+i)}, {vr(vT)}, {vr(vT+1)}')
        a(f'v_xor_b32 {vr(vT+2)}, 0x80008000, {vr(vKz)}')
        a(f'ds_write_b128 {vr(vLqW)}, {vr(vQw,4)}')
        a(f'ds_write_b32 {vr(vLzW)}, {vr(vT+2)}')
        if nxt == 'U':
            a(f's_cmp_eq_u32 {sr(sCnt)}, 0')
            a('s_cbranch_scc1 L_k2v_small')
            a(f's_add_u32 {sr(sOffK)}, {sr(sOffK)}, {stride}')
            offsK(); ld_ks()
            a('L_k2v_small_back:')
        elif nxt == 'K':
            a(f's_add_u32 {sr(sOffK)}, {sr(sOffK)}, {stride}')
            offsK(); ld_ks()
        else:
            if pre0: a(f's_add_u32 {sr(sOffK)}, {sr(sOff0)}, {stride}')
            else: a(f's_mov_b32 {sr(sOffK)}, {sr(sOff0)}')
            offsV(); ld_vs()
        for s in range(4):
            if s < 4 - nB: a(f'ds_read2_b64 {vr(vQB+4*s,4)}, {vr(vLqR)} offset0:{8*s} offset1:{8*s+4}')
            else: a(f'ds_read_b128 {vr(vQB+4*s,4)}, {vr(vLqRB)} offset:{64*s}')
        for s in range(4):
            if s < 4 - nB: a(f'ds_read2_b64 {vr(vPK+4*s,4)}, {vr(vLzR)} offset0:{8*s} offset1:{8*s+4}')
            else: a(f'ds_read_b128 {vr(vPK+4*s,4)}, {vr(vLzRB)} offset:{64*s}')
        a('s_waitcnt lgkmcnt(0)')
        for s in range(4):
            c = '0' if s == 0 else vr(vS, 4)
            a(f'v_mfma_f32_16x16x32_bf16 {vr(vS,4)}, {vr(vPK+4*s,4)}, {vr(vQB+4*s,4)}, {c}')
        if rk is None: rk = 8 if roll in (1, 2) else 0
        def kcvt(i):
            for c in range(4):
                a(f'v_cvt_f32_i32 {vr(vR+4*i+c)}, {vr(vR+4*i+c)}')
            d = vPK + 4 * (i // 2) + 2 * (i % 2)
            a(f'v_cvt_pk_bf16_f32 {vr(d)}, {vr(vR+4*i)}, {vr(vR+4*i+1)}')
            a(f'v_cvt_pk_bf16_f32 {vr(d+1)}, {vr(vR+4*i+2)}, {vr(vR+4*i+3)}')
        if nxt == 'U':
            a('s_waitcnt vmcnt(2)')
            for i in range(8): kcvt(i)
            a(f's_cmp_eq_u32 {sr(sCnt)}, 0')
            a('s_cbranch_scc1 L_k2v_big')
            ld_K()
            a('L_k2v_big_back:')
        else:
            nld = ld_K1 if nxt == 'K' else ld_V1
            for i in range(rk):
                a('s_waitcnt vmcnt(9)')
                kcvt(i); nld(i)
            if rk < 8:
                a(f's_waitcnt vmcnt({2+rk})')
                for i in range(rk, 8): kcvt(i)
                for i in range(rk, 8): nld(i)
        for s in range(4 - nB, 4):
            a(f'v_mov_b32 {vr(vT)}, {vr(vPK+4*s)}')
            a(f'v_mov_b32 {vr(vT+1)}, {vr(vPK+4*s+1)}')
            a('s_nop 0')
            a(f'v_mov_b32_dpp {vr(vPK+4*s)}, {vr(vPK+4*s+2)} row_ror:8 row_mask:0xf bank_mask:0xc')
            a(f'v_mov_b32_dpp {vr(vPK+4*s+1)}, {vr(vPK+4*s+3)} row_ror:8 row_mask:0xf bank_mask:0xc')
            a(f'v_mov_b32_dpp {vr(vPK+4*s+2)}, {vr(vT)} row_ror:8 row_mask:0xf bank_mask:0x3')
            a(f'v_mov_b32_dpp {vr(vPK+4*s+3)}, {vr(vT+1)} row_ror:8 row_mask:0xf bank_mask:0x3')
        a('s_nop 1')
        for s in range(4):
            a(f'v_mfma_f32_16x16x32_bf16 {vr(vS,4)}, {vr(vPK+4*s,4)}, {vr(vQB+4*s,4)}, {vr(vS,4)}')
        a('s_nop 7')
        a(f's_mov_b64 exec, {sr(sQuad,2)}')
        a(f'ds_write_b128 {vr(vSa)}, {vr(vS,4)}')
        a('s_mov_b64 exec, -1')
        a(f'v_max3_f32 {vr(vM)}, {vr(vS)}, {vr(vS+1)}, {vr(vM)}')
        a(f'v_max3_f32 {vr(vM)}, {vr(vS+2)}, {vr(vS+3)}, {vr(vM)}')
        a(f'v_add_u32 {vr(vSa)}, 256, {vr(vSa)}')

    vF = vQB
    vLw = vQB + 8
    vZw = vQc
    vMx, vLs, vZs = vKs, vKs + 1, vKs + 2
    def early_publish():
        a(f'v_mov_b32 {vr(vT+1)}, {vr(vL)}')
        a('s_nop 1')
        a(f'v_permlane16_swap_b32 {vr(vL)}, {vr(vT+1)}')
        a(f'v_add_f32 {vr(vL)}, {vr(vL)}, {vr(vT+1)}')
        a(f'v_mov_b32 {vr(vT+1)}, {vr(vL)}')
        a('s_nop 1')
        a(f'v_permlane32_swap_b32 {vr(vL)}, {vr(vT+1)}')
        a(f'v_add_f32 {vr(vL)}, {vr(vL)}, {vr(vT+1)}')
        a(f's_lshl_b32 {sr(sT1)}, {sr(sWave)}, 2')
        a(f's_add_u32 {sr(sT1)}, {sr(sT1)}, {MB}')
        a(f'v_mul_u32_u24 {vr(vT+2)}, {RS}, {vr(vLane)}')
        a(f'v_add_u32 {vr(vT+2)}, {sr(sT1)}, {vr(vT+2)}')
        a('s_mov_b64 exec, 0xf')
        a(f'ds_write_b32 {vr(vT+2)}, {vr(vM)}')
        a(f'ds_write_b32 {vr(vT+2)}, {vr(vL)} offset:{4*RS}')
        a('s_mov_b64 exec, 1')
        for r in range(4):
            a(f'ds_write_b32 {vr(vT+2)}, {vr(vAz+r)} offset:{8*RS+r*RS}')
        a('s_mov_b64 exec, -1')
        a(f'v_and_b32 {vr(vT)}, 3, v0')
        a(f'v_mul_u32_u24 {vr(vT)}, {RS}, {vr(vT)}')
        a(f'v_add_u32 {vr(vT)}, {MB}, {vr(vT)}')
        a('s_waitcnt lgkmcnt(0)')
        a('s_barrier')
        for k in range(nw // 4):
            a(f'ds_read_b128 {vr(vF+4*k,4)}, {vr(vT)} offset:{16*k}')
            a(f'ds_read_b128 {vr(vLw+4*k,4)}, {vr(vT)} offset:{4*RS+16*k}')
            a(f'ds_read_b128 {vr(vZw+4*k,4)}, {vr(vT)} offset:{8*RS+16*k}')
        a('s_waitcnt lgkmcnt(0)')
        a(f'v_max3_f32 {vr(vMx)}, {vr(vF)}, {vr(vF+1)}, {vr(vF+2)}')
        for w in range(3, nw): a(f'v_max_f32 {vr(vMx)}, {vr(vMx)}, {vr(vF+w)}')
        for w in range(nw): a(f'v_sub_f32 {vr(vF+w)}, {vr(vF+w)}, {vr(vMx)}')
        for w in range(nw): a(f'v_exp_f32 {vr(vF+w)}, {vr(vF+w)}')
        a('s_nop 0')
        a(f'v_mul_f32 {vr(vLs)}, {vr(vF)}, {vr(vLw)}')
        a(f'v_mul_f32 {vr(vZs)}, {vr(vF)}, {vr(vZw)}')
        for w in range(1, nw):
            a(f'v_fmac_f32 {vr(vLs)}, {vr(vF+w)}, {vr(vLw+w)}')
            a(f'v_fmac_f32 {vr(vZs)}, {vr(vF+w)}, {vr(vZw+w)}')

    def vstep(pf, rv=None, first=False):
        if rv is None: rv = 4 if roll in (1, 3) else 0
        vVs_, vVz_, vR_ = (vVs0, vVz0, vRB) if first else (vVs, vVz, vR)
        f = vT + 4
        a('s_waitcnt lgkmcnt(0)' if first else 's_waitcnt vmcnt(8) lgkmcnt(0)')
        a(f'v_lshlrev_b32 {vr(f)}, 16, {vr(vVs_)}')
        a(f'v_and_b32 {vr(f+1)}, {sr(sMask)}, {vr(vVs_)}')
        a(f'v_lshlrev_b32 {vr(f+2)}, 16, {vr(vVs_+1)}')
        a(f'v_and_b32 {vr(f+3)}, {sr(sMask)}, {vr(vVs_+1)}')
        for r in range(4): a(f'v_sub_f32 {vr(vS+r)}, {vr(vS+r)}, {vr(vM)}')
        for r in range(4): a(f'v_exp_f32 {vr(vS+r)}, {vr(vS+r)}')
        a('s_nop 0')
        a(f'v_add_f32 {vr(vT)}, {vr(vS)}, {vr(vS+1)}')
        a(f'v_add_f32 {vr(vT+1)}, {vr(vS+2)}, {vr(vS+3)}')
        for r in range(4): a(f'v_mul_f32 {vr(vS+r)}, {vr(vS+r)}, {vr(f+r)}')
        a(f'v_add_f32 {vr(vL)}, {vr(vL)}, {vr(vT)}')
        a(f'v_cvt_pk_bf16_f32 {vr(vP)}, {vr(vS)}, {vr(vS+1)}')
        a(f'v_cvt_pk_bf16_f32 {vr(vP+1)}, {vr(vS+2)}, {vr(vS+3)}')
        a(f'v_add_f32 {vr(vL)}, {vr(vL)}, {vr(vT+1)}')
        a('s_nop 0')
        a(f'v_mfma_f32_16x16x16_bf16 {vr(vAz,4)}, {vr(vP,2)}, {vr(vVz_,2)}, {vr(vAz,4)}')
        if pf == 'U':
            a(f's_cmp_eq_u32 {sr(sCnt)}, 0')
            a('s_cbranch_scc1 L_vlast')
            a(f's_add_u32 {sr(sOffK)}, {sr(sOffK)}, {stride}')
            offsV(); ld_vs()
            a(f'v_add_u32 {vr(vSa)}, 256, {vr(vSa)}')
            a(f'ds_read_b128 {vr(vS,4)}, {vr(vSa)}')
            a('L_vlast_back:')
        elif first:
            a(f'v_add_u32 {vr(vSa)}, 256, {vr(vSa)}')
            a(f'ds_read_b128 {vr(vS,4)}, {vr(vSa)}')
        elif pf:
            a(f's_add_u32 {sr(sOffK)}, {sr(sOffK)}, {stride}')
            offsV(); ld_vs()
            a(f'v_add_u32 {vr(vSa)}, 256, {vr(vSa)}')
            a(f'ds_read_b128 {vr(vS,4)}, {vr(vSa)}')
        else:
            early_publish()
        def vpair(p):
            jp, h = p >> 1, p & 1
            for c in range(4):
                r0, r1 = vR_ + 8 * p + c, vR_ + 8 * p + 4 + c
                a(f'v_cvt_f32_i32 {vr(r0)}, {vr(r0)}')
                a(f'v_cvt_f32_i32 {vr(r1)}, {vr(r1)}')
                a(f'v_cvt_pk_bf16_f32 {vr(vPK+2*(4*h+c)+jp)}, {vr(r0)}, {vr(r1)}')
        if pf == 'U':
            a('s_waitcnt vmcnt(6)'); vpair(0); vpair(1)
            a('s_waitcnt vmcnt(2)'); vpair(2); vpair(3)
            a(f's_cmp_eq_u32 {sr(sCnt)}, 0')
            a('s_cbranch_scc1 L_vnoload')
            ld_V()
            a('L_vnoload:')
            a('s_nop 0')
        elif first:
            for p in range(4): vpair(p)
            a('s_nop 1')
        elif not pf:
            for p in range(4):
                a(f's_waitcnt vmcnt({6-2*p})'); vpair(p)
            a('s_nop 1')
        else:
            for p in range(rv):
                a('s_waitcnt vmcnt(8)')
                vpair(p); ld_V1(2*p); ld_V1(2*p+1)
            if rv < 4:
                if rv <= 1:
                    a(f's_waitcnt vmcnt({2+2*rv+4})')
                    for p in range(rv, 2): vpair(p)
                    a(f's_waitcnt vmcnt({2+2*rv})')
                    for p in range(2, 4): vpair(p)
                else:
                    a(f's_waitcnt vmcnt({2+2*rv})')
                    for p in range(rv, 4): vpair(p)
                for k in range(2*rv, 8): ld_V1(k)
        for i in range(8):
            a(f'v_mfma_f32_16x16x16_bf16 {vr(vAcc+4*i,4)}, {vr(vP,2)}, {vr(vPK+2*i,2)}, {vr(vAcc+4*i,4)}')

    if unify:
        assert not (pre0 or vlate or roll or rkO or rvO or rkE or rvE)
        a('L_kloop:')
        kstep('U', 0)
        if kbar: a('s_barrier')
        a(f's_sub_u32 {sr(sCnt)}, {sr(sCnt)}, 1')
        a('s_cbranch_scc0 L_kloop')
    else:
        split = (rkO, rvO) != (rkE, rvE)
        if split:
            a(f's_getreg_b32 {sr(sOdd)}, hwreg(HW_REG_XCC_ID)')
            a(f's_and_b32 {sr(sOdd)}, {sr(sOdd)}, 1')
        def kloop(tag, rk):
            a(f'L_kloop{tag}:')
            kstep('K', rk)
            if kbar: a('s_barrier')
            a(f's_sub_u32 {sr(sCnt)}, {sr(sCnt)}, 1')
            a(f's_cmp_lg_u32 {sr(sCnt)}, 0')
            a(f's_cbranch_scc1 L_kloop{tag}')
        if split and rkO != rkE:
            a(f's_cmp_lg_u32 {sr(sOdd)}, 0'); a('s_cbranch_scc1 L_kloopO')
            kloop('E', rkE); a('s_branch L_kdone')
            kloop('O', rkO); a('L_kdone:')
        else:
            kloop('', rkE if split or rkE else None)
        kstep('V')
        if kbar: a('s_barrier')
    stamp(2)
    a(f'v_subrev_u32 {vr(vSa)}, {NT*256}, {vr(vSa)}')
    a(f'v_mov_b32 {vr(vT+1)}, {vr(vM)}')
    a(f'ds_read_b128 {vr(vS,4)}, {vr(vSa)}')
    a('s_nop 0')
    a(f'v_permlane16_swap_b32 {vr(vM)}, {vr(vT+1)}')
    a(f'v_max_f32 {vr(vM)}, {vr(vM)}, {vr(vT+1)}')
    a(f'v_mov_b32 {vr(vT+1)}, {vr(vM)}')
    a('s_nop 1')
    a(f'v_permlane32_swap_b32 {vr(vM)}, {vr(vT+1)}')
    a(f'v_max_f32 {vr(vM)}, {vr(vM)}, {vr(vT+1)}')
    nv = NT - 1 - (1 if pre0 else 0)
    a(f's_mov_b32 {sr(sCnt)}, {nv}')
    if unify:
        a('L_vloop:')
        vstep('U', 0)
        if vbar: a('s_barrier')
        a(f's_sub_u32 {sr(sCnt)}, {sr(sCnt)}, 1')
        a('s_cbranch_scc0 L_vloop')
    else:
        if pre0: vstep(1, 0, True)
        if vlate: a(f's_mov_b32 {sr(sCnt)}, {nv-vlate}')
        def vloop(tag, rv):
            a(f'L_vloop{tag}:')
            vstep(1, rv)
            if vbar: a('s_barrier')
            a(f's_sub_u32 {sr(sCnt)}, {sr(sCnt)}, 1')
            a(f's_cmp_lg_u32 {sr(sCnt)}, 0')
            a(f's_cbranch_scc1 L_vloop{tag}')
        if split and rvO != rvE:
            a(f's_cmp_lg_u32 {sr(sOdd)}, 0'); a('s_cbranch_scc1 L_vloopO')
            vloop('E', rvE); a('s_branch L_vdone')
            vloop('O', rvO); a('L_vdone:')
        else:
            vloop('', rvE if split or rvE else None)
        if vlate:
            a(f's_mov_b32 {sr(sCnt)}, {vlate}')
            a('L_vloop2:')
            vstep(1, 4)
            if vbar: a('s_barrier')
            a(f's_sub_u32 {sr(sCnt)}, {sr(sCnt)}, 1')
            a(f's_cmp_lg_u32 {sr(sCnt)}, 0')
            a('s_cbranch_scc1 L_vloop2')
        vstep(0)
    stamp(3)
    a(f's_lshl_b32 {sr(sT0)}, {sr(sWave)}, 11')
    a(f's_add_u32 {sr(sT0)}, {sr(sT0)}, {OB}')
    a(f'v_add_u32 {vr(vT)}, {sr(sT0)}, {vr(vKsOff)}')
    a(f'v_lshlrev_b32 {vr(vT+1)}, 2, v0')
    a(f'v_add_u32 {vr(vT+2)}, {OB}, {vr(vT+1)}')
    a('s_mov_b64 exec, 0xffff')
    a('s_nop 1')
    for i in range(8):
        a(f'ds_write_b128 {vr(vT)}, {vr(vAcc+4*i,4)} offset:{i*256}')
    a('s_mov_b64 exec, -1')
    if idmap == 0: a(f's_mul_i32 {sr(sT1)}, s2, {PSTRIDE}')
    else:
        a(f's_lshl_b32 {sr(sT1)}, {sr(sHk)}, 4'); a(f's_add_u32 {sr(sT1)}, {sr(sT1)}, {sr(sJ)}'); a(f's_mul_i32 {sr(sT1)}, {sr(sT1)}, {PSTRIDE}')
    a(f's_add_u32 {sr(srdT)}, {sr(ws_)}, {sr(sT1)}')
    a(f's_addc_u32 {sr(srdT+1)}, {sr(ws_+1)}, 0')
    a(f's_and_b32 {sr(srdT+1)}, {sr(srdT+1)}, 0xffff')
    a(f's_mov_b32 {sr(srdT+2)}, {PSTRIDE}')
    a(f's_mov_b32 {sr(srdT+3)}, 0x20000')
    a('s_waitcnt lgkmcnt(0)')
    a('s_barrier')
    vOw = vR
    vRes = vR + 16
    vPo = vSa
    for ch in range(nch):
        for w in range(nw):
            a(f'ds_read_b32 {vr(vOw+ch*nw+w)}, {vr(vT+2)} offset:{w*2048+ch*nthr*4}')
    for ch in range(nch):
        a(f's_waitcnt lgkmcnt({(nch-1-ch)*nw})')
        a(f'v_fma_f32 {vr(vRes+ch)}, {vr(vF)}, {vr(vOw+ch*nw)}, -{vr(vZs)}')
        for w in range(1, nw):
            a(f'v_fmac_f32 {vr(vRes+ch)}, {vr(vF+w)}, {vr(vOw+ch*nw+w)}')
    stamp(4)
    if nch == 1 or not x2:
        for ch in range(nch):
            a(f'buffer_store_dword {vr(vRes+ch)}, {vr(vT+1)}, {sr(srdT,4)}, 0 offen offset:{ch*nthr*4} sc1')
    else:
        a(f'v_lshlrev_b32 {vr(vPo)}, 3, v0')
        a(f'buffer_store_dwordx2 {vr(vRes,2)}, {vr(vPo)}, {sr(srdT,4)}, 0 offen sc1')
    a('v_cmp_gt_u32 vcc, 4, v0')
    a(f's_and_saveexec_b64 {sr(sEx,2)}, vcc')
    a('s_cbranch_execz L_nost')
    a(f'buffer_store_dword {vr(vMx)}, {vr(vT+1)}, {sr(srdT,4)}, 0 offen offset:2048 sc1')
    a(f'buffer_store_dword {vr(vLs)}, {vr(vT+1)}, {sr(srdT,4)}, 0 offen offset:2064 sc1')
    a('L_nost:')
    a(f's_mov_b64 exec, {sr(sEx,2)}')
    a(f's_mov_b32 {sr(srdKS)}, {sr(dbg_)}')
    a(f's_and_b32 {sr(srdKS+1)}, {sr(dbg_+1)}, 0xffff')
    a(f's_mov_b32 {sr(srdKS+2)}, 256')
    a(f's_lshl_b32 {sr(sOffG)}, {sr(sHk)}, {cshift}')
    if coff: a(f's_add_u32 {sr(sOffG)}, {sr(sOffG)}, {coff}')
    a(f's_mul_i32 {sr(sT1)}, {sr(sHk)}, {P*PSTRIDE}')
    a(f's_add_u32 {sr(srdV)}, {sr(ws_)}, {sr(sT1)}')
    a(f's_addc_u32 {sr(srdV+1)}, {sr(ws_+1)}, 0')
    a(f's_and_b32 {sr(srdV+1)}, {sr(srdV+1)}, 0xffff')
    a(f's_mov_b32 {sr(srdV+2)}, {P*PSTRIDE}')
    a(f's_lshl_b32 {sr(sT1)}, {sr(sHk)}, 10')
    a(f's_add_u32 {sr(srdK)}, {sr(o_)}, {sr(sT1)}')
    a(f's_addc_u32 {sr(srdK+1)}, {sr(o_+1)}, 0')
    a(f's_and_b32 {sr(srdK+1)}, {sr(srdK+1)}, 0xffff')
    a(f's_mov_b32 {sr(srdK+2)}, 1024')
    vML = vT + 2; vBp = vT + 3; vOa = vT + 4
    a(f'v_and_b32 {vr(vBp)}, 3, {vr(vLane)}')
    a(f'v_lshlrev_b32 {vr(vBp)}, 6, {vr(vBp)}')
    a(f'v_and_b32 {vr(vML)}, 15, {vr(vLane)}')
    a(f'v_lshlrev_b32 {vr(vML)}, 12, {vr(vML)}')
    a(f'v_lshrrev_b32 {vr(vT+6)}, 4, {vr(vLane)}')
    a(f'v_lshl_add_u32 {vr(vML)}, {vr(vT+6)}, 2, {vr(vML)}')
    for ch in range(nch):
        e, x, y = vT + 6, vOa + ch, vT + 7
        a(f'v_add_u32 {vr(e)}, {ch*nthr}, v0')
        a(f'v_and_b32 {vr(x)}, 3, {vr(e)}'); a(f'v_lshlrev_b32 {vr(x)}, 7, {vr(x)}')
        a(f'v_lshrrev_b32 {vr(y)}, 8, {vr(e)}'); a(f'v_lshl_add_u32 {vr(x)}, {vr(y)}, 6, {vr(x)}')
        a(f'v_bfe_u32 {vr(y)}, {vr(e)}, 2, 4'); a(f'v_lshl_add_u32 {vr(x)}, {vr(y)}, 2, {vr(x)}')
        a(f'v_bfe_u32 {vr(y)}, {vr(e)}, 6, 2'); a(f'v_add_u32 {vr(x)}, {vr(x)}, {vr(y)}')
        a(f'v_lshlrev_b32 {vr(x)}, 1, {vr(x)}')
    a(f'v_mov_b32 {vr(vT+6)}, {TK}')
    a('s_waitcnt vmcnt(0)')
    stamp(5)
    a('s_barrier')
    a(f's_cmp_lg_u32 {sr(sWave)}, 0')
    a('s_cbranch_scc1 L_noat')
    a('s_mov_b64 exec, 1')
    a(f'v_mov_b32 {vr(vT+7)}, 1')
    a(f'v_mov_b32 {vr(vT)}, 0')
    a(f'buffer_atomic_add {vr(vT+7)}, {vr(vT)}, {sr(srdKS,4)}, {sr(sOffG)} offen sc0')
    a('s_waitcnt vmcnt(0)')
    a(f'ds_write_b32 {vr(vT+6)}, {vr(vT+7)}')
    a('s_mov_b64 exec, -1')
    a('s_waitcnt lgkmcnt(0)')
    a('L_noat:')
    a('s_barrier')
    a(f'ds_read_b32 {vr(vT+7)}, {vr(vT+6)}')
    a('s_waitcnt lgkmcnt(0)')
    a(f'v_readfirstlane_b32 {sr(sT0)}, {vr(vT+7)}')
    a('s_nop 3')
    stamp(6)
    a(f's_cmp_lg_u32 {sr(sT0)}, {P-1}')
    a('s_cbranch_scc1 L_notlast')
    cM, cL, x, y = vQB, vQB + 1, vQB + 2, vQB + 3
    cW = vPK
    cO = vR if nch == 1 else vAcc
    a(f'buffer_load_dword {vr(cM)}, {vr(vML)}, {sr(srdV,4)}, 0 offen offset:2048 sc1')
    a(f'buffer_load_dword {vr(cL)}, {vr(vML)}, {sr(srdV,4)}, 0 offen offset:2064 sc1')
    for w in range(P):
        a(f's_mov_b32 {sr(sT1)}, {w*PSTRIDE}')
        if nch == 1: a(f'buffer_load_dword {vr(cO+w)}, {vr(vT+1)}, {sr(srdV,4)}, {sr(sT1)} offen sc1')
        elif not x2:
            for ch in range(nch): a(f'buffer_load_dword {vr(cO+2*w+ch)}, {vr(vT+1)}, {sr(srdV,4)}, {sr(sT1)} offen offset:{ch*nthr*4} sc1')
        else: a(f'buffer_load_dwordx2 {vr(cO+2*w,2)}, {vr(vPo)}, {sr(srdV,4)}, {sr(sT1)} offen sc1')
    a(f's_waitcnt vmcnt({P if (nch == 1 or x2) else nch*P})')
    def allreduce(reg, op):
        for k in (1, 2, 4, 8):
            a('s_nop 1')
            a(f'{op}_dpp {vr(reg)}, {vr(reg)}, {vr(reg)} row_ror:{k} row_mask:0xf bank_mask:0xf')
    a(f'v_mov_b32 {vr(x)}, {vr(cM)}')
    allreduce(x, 'v_max_f32')
    a(f'v_sub_f32 {vr(cM)}, {vr(cM)}, {vr(x)}')
    a(f'v_exp_f32 {vr(cM)}, {vr(cM)}')
    a('s_nop 0')
    a(f'v_mul_f32 {vr(x)}, {vr(cM)}, {vr(cL)}')
    allreduce(x, 'v_add_f32')
    a(f'v_rcp_f32 {vr(cL)}, {vr(x)}')
    a('s_nop 0')
    a(f'v_mul_f32 {vr(cM)}, {vr(cM)}, {vr(cL)}')
    for w in range(P):
        a(f'ds_bpermute_b32 {vr(cW+w)}, {vr(vBp)}, {vr(cM)} offset:{4*w}')
    a('s_waitcnt vmcnt(0) lgkmcnt(0)')
    for ch in range(nch):
        o = (lambda w: cO + w) if nch == 1 else (lambda w: cO + 2 * w + ch)
        a(f'v_mul_f32 {vr(x)}, {vr(cW)}, {vr(o(0))}')
        for w in range(1, P): a(f'v_fmac_f32 {vr(x)}, {vr(cW+w)}, {vr(o(w))}')
        a(f'v_cvt_pk_bf16_f32 {vr(x)}, {vr(x)}, {vr(x)}')
        a(f'buffer_store_short {vr(x)}, {vr(vOa+ch)}, {sr(srdK,4)}, 0 offen {opol}')
    if dbgprof:
        a('s_waitcnt vmcnt(0)')
        a(f's_cmp_lg_u32 {sr(sWave)}, 0')
        a('s_cbranch_scc1 L_end')
        stamp(7)
        a(f's_memtime {sr(sTm+2,2)}')
        a('s_waitcnt lgkmcnt(0)')
        a('s_mov_b64 exec, 1')
        a(f'v_mov_b32 {vr(vT)}, 0')
        for i in range(1, 8):
            a(f's_sub_u32 {sr(sT0)}, {sr(sSt+2*i)}, {sr(sSt)}')
            a(f'v_mov_b32 {vr(vR+i)}, {sr(sT0)}')
        for i in range(1, 8):
            a(f'buffer_atomic_umax {vr(vR+i)}, {vr(vT)}, {sr(srdKS,4)}, 0 offen offset:{4*i}')
    a('L_notlast:')
    if prof == 2:
        a('s_waitcnt vmcnt(0)')
        stamp(7)
        a(f's_memtime {sr(sTm+2,2)}')
        a('s_waitcnt lgkmcnt(0)')
        a(f's_cmp_lg_u32 {sr(sWave)}, 0')
        a('s_cbranch_scc1 L_end')
        a(f's_add_u32 {sr(srdT)}, {sr(ws_)}, 0x4000000')
        a(f's_addc_u32 {sr(srdT+1)}, {sr(ws_+1)}, 0')
        a(f's_and_b32 {sr(srdT+1)}, {sr(srdT+1)}, 0xffff')
        a(f's_mov_b32 {sr(srdT+2)}, 0x100000')
        a(f's_lshl_b32 {sr(sT1)}, s2, 6')
        for i in range(8): a(f'v_mov_b32 {vr(vR+i)}, {sr(sSt+2*i)}')
        a(f's_getreg_b32 {sr(sT0)}, hwreg(HW_REG_XCC_ID)')
        a(f'v_mov_b32 {vr(vR+8)}, {sr(sT0)}')
        a(f's_getreg_b32 {sr(sT0)}, hwreg(HW_REG_HW_ID)')
        a(f'v_mov_b32 {vr(vR+9)}, {sr(sT0)}')
        a(f's_sub_u32 {sr(sT0)}, {sr(sTm+2)}, {sr(sTm)}')
        a(f'v_mov_b32 {vr(vR+10)}, {sr(sT0)}')
        a(f'v_mov_b32 {vr(vT)}, 0')
        a('s_mov_b64 exec, 1')
        a(f'buffer_store_dwordx4 {vr(vR,4)}, {vr(vT)}, {sr(srdT,4)}, {sr(sT1)} offen')
        a(f'buffer_store_dwordx4 {vr(vR+4,4)}, {vr(vT)}, {sr(srdT,4)}, {sr(sT1)} offen offset:16')
        a(f'buffer_store_dwordx4 {vr(vR+8,4)}, {vr(vT)}, {sr(srdT,4)}, {sr(sT1)} offen offset:32')
    if padto:
        a('s_waitcnt vmcnt(0) lgkmcnt(0)')
        a('L_pad:')
        a(f's_memrealtime {sr(sTm+2,2)}')
        a('s_waitcnt lgkmcnt(0)')
        a(f's_sub_u32 {sr(sT0)}, {sr(sTm+2)}, {sr(sTm)}')
        a(f's_cmp_lt_u32 {sr(sT0)}, {padto}')
        a('s_cbranch_scc1 L_pad')
    a('L_end:')
    a('s_endpgm')
    if unify:
        a('L_k2v_small:')
        a(f's_mov_b32 {sr(sOffK)}, {sr(sOff0)}')
        offsV(); ld_vs()
        a('s_branch L_k2v_small_back')
        a('L_k2v_big:')
        ld_V()
        a('s_branch L_k2v_big_back')
        a('L_vlast:')
        ld_vs()
        early_publish()
        a('s_branch L_vlast_back')
    main = '\n'.join(out)
    acc = min(256, (nvgpr + 3) // 4 * 4)
    kd = f'''.amdhsa_kernel {KN}
  .amdhsa_next_free_vgpr {nvgpr}
  .amdhsa_next_free_sgpr {S.n}
  .amdhsa_accum_offset {acc}
  .amdhsa_group_segment_fixed_size 0
  .amdhsa_kernarg_size 80
  .amdhsa_user_sgpr_count 2
  .amdhsa_user_sgpr_kernarg_segment_ptr 1
  .amdhsa_system_sgpr_workgroup_id_x 1
  .amdhsa_float_denorm_mode_32 3
.end_amdhsa_kernel
'''
    src = HEADCOMMENT + f'; @launch grid=({nwg},1,1) block=({nthr},1,1) lds={lds_bytes}\n'
    src += '.amdgcn_target "amdgcn-amd-amdhsa--gfx950"\n.text\n'
    src += f'.globl {KN}\n.p2align 8\n.type {KN},@function\n{main}\n'
    src += '.section .rodata,"a"\n.p2align 6\n' + kd
    return src, [(KN, nwg, nthr, lds_bytes)]

if __name__ == '__main__':
    import argparse
    ap = argparse.ArgumentParser()
    ap.add_argument('-o', default='out.s')
    ap.add_argument('kv', nargs='*')
    args = ap.parse_args()
    kw = {}
    for x in args.kv:
        k, v = x.split('=')
        try: v = int(v)
        except ValueError: pass
        kw[k] = v
    src, l = gen(**kw)
    open(args.o, 'w').write(src)
    print(l)
```

```python
import struct
KN = 'standalone__kv_cache_quant_int4_int2_kv_with_per_channel_or_per_token_scales__decode_kernel'

HEADCOMMENT = '''; KIVI-style quantised KV-cache decode attention (B=2, Hq=32, Hkv=8, Skv=32768, Dh=128), one fused launch.
;
'''

class Alloc:
    def __init__(self, start, limit):
        self.n = start; self.limit = limit
    def get(self, cnt=1, align=1):
        self.n = (self.n + align - 1) // align * align
        r = self.n; self.n += cnt
        assert self.n <= self.limit, self.n
        return r

def vr(r, n=1): return f'v{r}' if n == 1 else f'v[{r}:{r+n-1}]'
def sr(r, n=1): return f's{r}' if n == 1 else f's[{r}:{r+n-1}]'
def f32hex(x): return '0x%08x' % struct.unpack('<I', struct.pack('<f', x))[0]

PSTRIDE = 4096
QROW = 288
WLDS = 1536
CEXP = 0.08838834764831845 * 1.4426950408889634

def gen(nw=8, bar=1, pol='nt', spol='nt', nB=2, prof=0, dbgprof=0, coff=0, cshift=2, opol='', padto=0,
        wrot=0, perm='tr', minvgpr=176, kbar=None, vbar=None, minlds=0, roll=0, x2=0, vlate=0, rkO=0, rvO=0, rkE=0, rvE=0, pre0=0, unify=0, kfirst=0, idmap=0, tlbw=0):
    P = 16
    nwg = 16 * P
    NT = 32768 // (P * nw * 16)
    nthr = nw * 64
    nch = 512 // nthr
    if kbar is None: kbar = bar
    if vbar is None: vbar = bar
    out = []
    a = out.append
    V = Alloc(1, 256); S = Alloc(3, 102)
    sWave = S.get()
    sKA = S.get(16, 4); sKB = S.get(4, 4)
    srdK = S.get(4, 4); srdV = S.get(4, 4); srdKS = S.get(4, 4); srdKZ = S.get(4, 4)
    srdVS = S.get(4, 4); srdVZ = S.get(4, 4); srdT = S.get(4, 4)
    sHk = S.get(); sJ = S.get()
    sOffK = S.get(); sOffS = S.get(); sOffG = S.get(); sOffK2 = S.get(); sOff0 = S.get()
    sCnt = S.get(); sT0 = S.get(); sT1 = S.get()
    sWm = S.get(12, 2) if tlbw else None
    sMask = S.get(); sOdd = S.get(); sEx = S.get(2, 2); sQuad = S.get(2, 2)
    stamps = prof == 2 or dbgprof
    sSt = S.get(16, 2) if stamps else None
    sTm = S.get(4, 2) if (dbgprof or padto or prof == 2) else None
    def stamp(i):
        if stamps: a(f's_memrealtime {sr(sSt+2*i,2)}')
    vLane = V.get()
    vKoff = V.get(); vVoff = V.get(); vSoff = V.get(); vKsOff = V.get(); vKzOff = V.get()
    vKoffB = V.get(); vLqRB = V.get(); vLzRB = V.get()
    vLqW = V.get(); vLzW = V.get(); vLqR = V.get(); vLzR = V.get()
    vSa = V.get()
    vM = V.get(); vL = V.get()
    vT = V.get(8, 2)
    vQc = V.get(8, 4)
    vKs = V.get(4, 4); vKz = V.get(); vVs = V.get(2, 2); vVz = V.get(2, 2)
    vQw = V.get(4, 4); vP = V.get(2, 2); vS = V.get(4, 4); vAz = V.get(4, 4)
    vAcc = V.get(32, 4); vQB = V.get(16, 4); vPK = V.get(16, 4)
    vR = V.get(32, 4)
    vRB = V.get(32, 4) if pre0 else None
    vVs0 = V.get(2, 2) if pre0 else None; vVz0 = V.get(2, 2) if pre0 else None
    nvgpr = max(V.n, minvgpr)
    SB = nw * WLDS
    OB = SB + nw * NT * 256
    MB = OB + nw * 2048
    RS = nw * 4
    TK = MB + 12 * RS
    lds_bytes = max(TK + 16, minlds)

    a(f'{KN}:')
    a(f's_cmp_ge_u32 s2, {nwg}')
    a('s_cbranch_scc1 L_end')
    a(f's_load_dwordx16 {sr(sKA,16)}, s[0:1], 0')
    a(f's_load_dwordx4 {sr(sKB,4)}, s[0:1], 64')
    stamp(0)
    if dbgprof or prof == 2: a(f's_memtime {sr(sTm,2)}')
    if padto: a(f's_memrealtime {sr(sTm,2)}')
    a(f'v_lshrrev_b32 {vr(vT)}, 6, v0')
    a(f'v_and_b32 {vr(vLane)}, 63, v0')
    if idmap == 0:
        a(f's_lshr_b32 {sr(sHk)}, s2, 4')
        a(f'v_readfirstlane_b32 {sr(sWave)}, {vr(vT)}')
        a(f's_and_b32 {sr(sJ)}, s2, {P-1}')
    else:
        a(f's_and_b32 {sr(sHk)}, s2, 7')
        a(f'v_readfirstlane_b32 {sr(sWave)}, {vr(vT)}')
        a(f's_lshl_b32 {sr(sHk)}, {sr(sHk)}, 1')
        a(f's_lshr_b32 {sr(sJ)}, s2, 3')
        a(f's_and_b32 {sr(sT0)}, {sr(sJ)}, 1')
        a(f's_add_u32 {sr(sHk)}, {sr(sHk)}, {sr(sT0)}')
        a(f's_lshr_b32 {sr(sJ)}, s2, 4')
    n15, g4 = vT + 1, vT + 2
    def lane_rest():
        a(f'v_lshlrev_b32 {vr(vKsOff)}, 4, {vr(n15)}')
        a(f'v_lshl_add_u32 {vr(vVoff)}, {vr(g4)}, 11, {vr(vKsOff)}')
        a(f'v_lshlrev_b32 {vr(vSoff)}, 3, {vr(g4)}')
        a(f'v_lshlrev_b32 {vr(vKzOff)}, 2, {vr(vLane)}')
    a(f'v_and_b32 {vr(n15)}, 15, {vr(vLane)}')
    a(f'v_lshrrev_b32 {vr(g4)}, 4, {vr(vLane)}')
    a(f'v_lshlrev_b32 {vr(vT+3)}, 9, {vr(n15)}')
    a(f'v_lshl_add_u32 {vr(vKoff)}, {vr(g4)}, 4, {vr(vT+3)}')
    a(f'v_and_b32 {vr(vT+3)}, 7, {vr(vLane)}')
    a(f'v_lshlrev_b32 {vr(vT+3)}, 9, {vr(vT+3)}')
    a(f'v_lshrrev_b32 {vr(vT+4)}, 3, {vr(vLane)}')
    a(f'v_lshl_add_u32 {vr(vKoffB)}, {vr(vT+4)}, 4, {vr(vT+3)}')
    if not kfirst: lane_rest()
    stride = nw * 16 * 512
    G = {'tr': 1, 'seq': P}.get(perm) or int(perm[2:])
    if G == 1: a(f's_lshl_b32 {sr(sOff0)}, {sr(sJ)}, 20')
    else:
        a(f's_lshr_b32 {sr(sT0)}, {sr(sJ)}, {G.bit_length()-1}'); a(f's_mul_i32 {sr(sOff0)}, {sr(sT0)}, {G << 20}')
        a(f's_and_b32 {sr(sT0)}, {sr(sJ)}, {G-1}'); a(f's_mul_i32 {sr(sT0)}, {sr(sT0)}, {stride}')
        a(f's_add_u32 {sr(sOff0)}, {sr(sOff0)}, {sr(sT0)}')
    if wrot == 0: a(f's_lshl_b32 {sr(sT0)}, {sr(sWave)}, 13')
    else:
        if wrot == 3: a(f's_lshr_b32 {sr(sT0)}, s2, 3'); a(f's_and_b32 {sr(sT0)}, {sr(sT0)}, 1'); a(f's_lshl_b32 {sr(sT0)}, {sr(sT0)}, {(nw//2).bit_length()-1}'); a(f's_xor_b32 {sr(sT0)}, {sr(sT0)}, {sr(sWave)}')
        elif wrot == 8: a(f's_lshr_b32 {sr(sT0)}, s2, 3'); a(f's_and_b32 {sr(sT0)}, {sr(sT0)}, 3'); a(f's_lshl_b32 {sr(sT0)}, {sr(sT0)}, 1'); a(f's_xor_b32 {sr(sT0)}, {sr(sT0)}, {sr(sWave)}')
        a(f's_and_b32 {sr(sT0)}, {sr(sT0)}, {nw-1}')
        a(f's_lshl_b32 {sr(sT0)}, {sr(sT0)}, 13')
    a(f's_add_u32 {sr(sOff0)}, {sr(sOff0)}, {sr(sT0)}')
    stride = stride * G
    a(f's_mov_b32 {sr(sOffK)}, {sr(sOff0)}')
    def offsK():
        a(f's_lshr_b32 {sr(sOffG)}, {sr(sOffK)}, 8')
        a(f's_and_b32 {sr(sOffG)}, {sr(sOffG)}, 0xffffff00')
        if nB: a(f's_add_u32 {sr(sOffK2)}, {sr(sOffK)}, 4096')
    def offsV():
        a(f's_lshr_b32 {sr(sOffS)}, {sr(sOffK)}, 8')
    offsK()
    a('s_waitcnt lgkmcnt(0)')
    def srd(dst, ptr, off_s, off_shift, nbytes):
        a(f's_lshl_b32 {sr(sT0)}, {sr(off_s)}, {off_shift}')
        a(f's_add_u32 {sr(dst)}, {sr(ptr)}, {sr(sT0)}')
        a(f's_addc_u32 {sr(dst+1)}, {sr(ptr+1)}, 0')
        a(f's_and_b32 {sr(dst+1)}, {sr(dst+1)}, 0xffff')
        a(f's_mov_b32 {sr(dst+2)}, {nbytes}')
        a(f's_mov_b32 {sr(dst+3)}, 0x20000')
    q_, qk_, qv_, ks_, kz_, vs_, vz_, o_ = [sKA + 2 * i for i in range(8)]
    dbg_, ws_ = sKB, sKB + 2
    def ld_ks():
        a(f'buffer_load_dwordx4 {vr(vKs,4)}, {vr(vKsOff)}, {sr(srdKS,4)}, {sr(sOffG)} offen {spol}')
        a(f'buffer_load_dword {vr(vKz)}, {vr(vKzOff)}, {sr(srdKZ,4)}, {sr(sOffG)} offen {spol}')
    def ld_K1(i):
        s = i // 2
        if s < 4 - nB:
            a(f'buffer_load_dwordx4 {vr(vR+4*i,4)}, {vr(vKoff)}, {sr(srdK,4)}, {sr(sOffK)} offen offset:{i*64} {pol}')
        else:
            a(f'buffer_load_dwordx4 {vr(vR+4*i,4)}, {vr(vKoffB)}, {sr(srdK,4)}, {sr(sOffK if i % 2 == 0 else sOffK2)} offen offset:{s*128} {pol}')
    def ld_K():
        for i in range(8): ld_K1(i)
    def ld_vs(rs=None, rz=None):
        rs = vVs if rs is None else rs; rz = vVz if rz is None else rz
        a(f'buffer_load_dwordx2 {vr(rs,2)}, {vr(vSoff)}, {sr(srdVS,4)}, {sr(sOffS)} offen {spol}')
        a(f'buffer_load_dwordx2 {vr(rz,2)}, {vr(vSoff)}, {sr(srdVZ,4)}, {sr(sOffS)} offen {spol}')
    VSEQ = [(0,0),(1,0),(0,1),(1,1),(2,0),(3,0),(2,1),(3,1)]
    def ld_V1(k, rb=None):
        j, h = VSEQ[k]
        rb = vR if rb is None else rb
        a(f'buffer_load_dwordx4 {vr(rb+4*k,4)}, {vr(vVoff)}, {sr(srdV,4)}, {sr(sOffK)} offen offset:{j*512+h*256} {pol}')
    def ld_V():
        for k in range(8): ld_V1(k)
    if pre0:
        srd(srdVS, vs_, sHk, 16, 1 << 16)
        srd(srdVZ, vz_, sHk, 16, 1 << 16)
        srd(srdV, qv_, sHk, 24, 1 << 24)
        offsV(); ld_vs(vVs0, vVz0)
        for k in range(8): ld_V1(k, vRB)
    if kfirst:
        srd(srdK, qk_, sHk, 24, 1 << 24)
        ld_K()
        lane_rest()
    srd(srdT, q_, sHk, 10, 1024)
    a(f'v_lshl_add_u32 {vr(vT+3)}, {vr(g4)}, 8, {vr(vKsOff)}')
    a(f'buffer_load_dwordx4 {vr(vQw,4)}, {vr(vT+3)}, {sr(srdT,4)}, 0 offen {spol}')
    srd(srdKS, ks_, sHk, 16, 1 << 16)
    srd(srdKZ, kz_, sHk, 16, 1 << 16)
    if kfirst:
        ld_ks()
    else:
        srd(srdK, qk_, sHk, 24, 1 << 24)
        ld_ks(); ld_K()
    if not pre0:
        srd(srdVS, vs_, sHk, 16, 1 << 16)
        srd(srdVZ, vz_, sHk, 16, 1 << 16)
        srd(srdV, qv_, sHk, 24, 1 << 24)
    if tlbw:
        if tlbw & 8:
            a(f's_cmp_lg_u32 {sr(sWave)}, 0'); a('s_cbranch_scc1 L_nowarm')
        slot = [0]
        def touch(lo, hi, off_s):
            b = sWm + 2 * slot[0]; dst = sWm + 10 + (slot[0] & 1); slot[0] += 1
            a(f's_add_u32 {sr(b)}, {sr(lo)}, {sr(off_s)}')
            a(f's_addc_u32 {sr(b+1)}, {sr(hi)}, 0')
            a(f's_load_dword {sr(dst)}, {sr(b,2)}, 0')
        if tlbw & 1:
            a(f's_lshl_b32 {sr(sT0)}, {sr(sHk)}, 24'); a(f's_add_u32 {sr(sT0)}, {sr(sT0)}, {sr(sOff0)}')
            touch(qv_, qv_ + 1, sT0)
        if tlbw & 2:
            a(f's_lshl_b32 {sr(sT0)}, {sr(sHk)}, 16')
            touch(vs_, vs_ + 1, sT0)
            touch(vz_, vz_ + 1, sT0)
        if tlbw & 4:
            a(f's_lshl_b32 {sr(sT0)}, {sr(sHk)}, 16')
            touch(ws_, ws_ + 1, sT0)
            a(f's_lshl_b32 {sr(sT0)}, {sr(sHk)}, 10')
            touch(o_, o_ + 1, sT0)
        if tlbw & 8: a('L_nowarm:')
    a(f's_mul_i32 {sr(sT0)}, {sr(sWave)}, {WLDS}')
    a(f'v_mul_u32_u24 {vr(vT+3)}, {QROW}, {vr(g4)}')
    a(f'v_add3_u32 {vr(vLqW)}, {vr(vT+3)}, {vr(vKsOff)}, {sr(sT0)}')
    a(f'v_add_u32 {vr(vLzW)}, {sr(sT0)}, {vr(vKzOff)}')
    a(f'v_add_u32 {vr(vLzW)}, {4*QROW}, {vr(vLzW)}')
    a(f'v_and_b32 {vr(vT+4)}, 3, {vr(vLane)}')
    a(f'v_mul_u32_u24 {vr(vT+3)}, {QROW}, {vr(vT+4)}')
    a(f'v_add3_u32 {vr(vLqR)}, {vr(vT+3)}, {vr(vSoff)}, {sr(sT0)}')
    a(f'v_add_u32 {vr(vLzR)}, {sr(sT0)}, {vr(vSoff)}')
    a(f'v_add_u32 {vr(vLzR)}, {4*QROW}, {vr(vLzR)}')
    a(f'v_add_u32 {vr(vLqRB)}, {vr(vLqR)}, {vr(vSoff)}')
    a(f'v_add_u32 {vr(vLzRB)}, {vr(vLzR)}, {vr(vSoff)}')
    a(f's_mul_i32 {sr(sT0)}, {sr(sWave)}, {NT*256}')
    a(f's_add_u32 {sr(sT0)}, {sr(sT0)}, {SB}')
    a(f'v_lshlrev_b32 {vr(vT+4)}, 4, {vr(vT+4)}')
    a(f'v_lshl_add_u32 {vr(vSa)}, {vr(g4)}, 6, {vr(vT+4)}')
    a(f'v_add_u32 {vr(vSa)}, {sr(sT0)}, {vr(vSa)}')
    a(f's_mov_b32 {sr(sMask)}, 0xffff0000')
    a(f's_mov_b32 {sr(sQuad)}, 0x000f000f')
    a(f's_mov_b32 {sr(sQuad+1)}, 0x000f000f')
    a(f'v_mov_b32 {vr(vM)}, 0xff800000')
    a(f'v_mov_b32 {vr(vL)}, 0')
    for i in range(4): a(f'v_mov_b32 {vr(vAz+i)}, 0')
    for i in range(32): a(f'v_mov_b32 {vr(vAcc+i)}, 0')
    a(f's_mov_b32 {sr(sT1)}, {f32hex(CEXP)}')
    a(f's_mov_b32 {sr(sCnt)}, {NT-1}')
    a('s_waitcnt vmcnt(0)' if kfirst else 's_waitcnt vmcnt(10)')
    stamp(1)
    for i in range(4):
        a(f'v_lshlrev_b32 {vr(vQc+2*i)}, 16, {vr(vQw+i)}')
        a(f'v_and_b32 {vr(vQc+2*i+1)}, {sr(sMask)}, {vr(vQw+i)}')
    for i in range(8):
        a(f'v_mul_f32 {vr(vQc+i)}, {sr(sT1)}, {vr(vQc+i)}')

    def kstep(nxt, rk=None):
        a('s_waitcnt vmcnt(8)')
        for i in range(4):
            a(f'v_lshlrev_b32 {vr(vT)}, 16, {vr(vKs+i)}')
            a(f'v_and_b32 {vr(vT+1)}, {sr(sMask)}, {vr(vKs+i)}')
            a(f'v_mul_f32 {vr(vT)}, {vr(vT)}, {vr(vQc+2*i)}')
            a(f'v_mul_f32 {vr(vT+1)}, {vr(vT+1)}, {vr(vQc+2*i+1)}')
            a(f'v_cvt_pk_bf16_f32 {vr(vQw+i)}, {vr(vT)}, {vr(vT+1)}')
        a(f'v_xor_b32 {vr(vT+2)}, 0x80008000, {vr(vKz)}')
        a(f'ds_write_b128 {vr(vLqW)}, {vr(vQw,4)}')
        a(f'ds_write_b32 {vr(vLzW)}, {vr(vT+2)}')
        if nxt == 'U':
            a(f's_cmp_eq_u32 {sr(sCnt)}, 0')
            a('s_cbranch_scc1 L_k2v_small')
            a(f's_add_u32 {sr(sOffK)}, {sr(sOffK)}, {stride}')
            offsK(); ld_ks()
            a('L_k2v_small_back:')
        elif nxt == 'K':
            a(f's_add_u32 {sr(sOffK)}, {sr(sOffK)}, {stride}')
            offsK(); ld_ks()
        else:
            if pre0: a(f's_add_u32 {sr(sOffK)}, {sr(sOff0)}, {stride}')
            else: a(f's_mov_b32 {sr(sOffK)}, {sr(sOff0)}')
            offsV(); ld_vs()
        for s in range(4):
            if s < 4 - nB: a(f'ds_read2_b64 {vr(vQB+4*s,4)}, {vr(vLqR)} offset0:{8*s} offset1:{8*s+4}')
            else: a(f'ds_read_b128 {vr(vQB+4*s,4)}, {vr(vLqRB)} offset:{64*s}')
        for s in range(4):
            if s < 4 - nB: a(f'ds_read2_b64 {vr(vPK+4*s,4)}, {vr(vLzR)} offset0:{8*s} offset1:{8*s+4}')
            else: a(f'ds_read_b128 {vr(vPK+4*s,4)}, {vr(vLzRB)} offset:{64*s}')
        a('s_waitcnt lgkmcnt(0)')
        for s in range(4):
            c = '0' if s == 0 else vr(vS, 4)
            a(f'v_mfma_f32_16x16x32_bf16 {vr(vS,4)}, {vr(vPK+4*s,4)}, {vr(vQB+4*s,4)}, {c}')
        if rk is None: rk = 8 if roll in (1, 2) else 0
        def kcvt(i):
            for c in range(4):
                a(f'v_cvt_f32_i32 {vr(vR+4*i+c)}, {vr(vR+4*i+c)}')
            d = vPK + 4 * (i // 2) + 2 * (i % 2)
            a(f'v_cvt_pk_bf16_f32 {vr(d)}, {vr(vR+4*i)}, {vr(vR+4*i+1)}')
            a(f'v_cvt_pk_bf16_f32 {vr(d+1)}, {vr(vR+4*i+2)}, {vr(vR+4*i+3)}')
        if nxt == 'U':
            a('s_waitcnt vmcnt(2)')
            for i in range(8): kcvt(i)
            a(f's_cmp_eq_u32 {sr(sCnt)}, 0')
            a('s_cbranch_scc1 L_k2v_big')
            ld_K()
            a('L_k2v_big_back:')
        else:
            nld = ld_K1 if nxt == 'K' else ld_V1
            for i in range(rk):
                a('s_waitcnt vmcnt(9)')
                kcvt(i); nld(i)
            if rk < 8:
                a(f's_waitcnt vmcnt({2+rk})')
                for i in range(rk, 8): kcvt(i)
                for i in range(rk, 8): nld(i)
        for s in range(4 - nB, 4):
            a(f'v_mov_b32 {vr(vT)}, {vr(vPK+4*s)}')
            a(f'v_mov_b32 {vr(vT+1)}, {vr(vPK+4*s+1)}')
            a('s_nop 0')
            a(f'v_mov_b32_dpp {vr(vPK+4*s)}, {vr(vPK+4*s+2)} row_ror:8 row_mask:0xf bank_mask:0xc')
            a(f'v_mov_b32_dpp {vr(vPK+4*s+1)}, {vr(vPK+4*s+3)} row_ror:8 row_mask:0xf bank_mask:0xc')
            a(f'v_mov_b32_dpp {vr(vPK+4*s+2)}, {vr(vT)} row_ror:8 row_mask:0xf bank_mask:0x3')
            a(f'v_mov_b32_dpp {vr(vPK+4*s+3)}, {vr(vT+1)} row_ror:8 row_mask:0xf bank_mask:0x3')
        a('s_nop 1')
        for s in range(4):
            a(f'v_mfma_f32_16x16x32_bf16 {vr(vS,4)}, {vr(vPK+4*s,4)}, {vr(vQB+4*s,4)}, {vr(vS,4)}')
        a('s_nop 7')
        a(f's_mov_b64 exec, {sr(sQuad,2)}')
        a(f'ds_write_b128 {vr(vSa)}, {vr(vS,4)}')
        a('s_mov_b64 exec, -1')
        a(f'v_max3_f32 {vr(vM)}, {vr(vS)}, {vr(vS+1)}, {vr(vM)}')
        a(f'v_max3_f32 {vr(vM)}, {vr(vS+2)}, {vr(vS+3)}, {vr(vM)}')
        a(f'v_add_u32 {vr(vSa)}, 256, {vr(vSa)}')

    vF = vQB
    vLw = vQB + 8
    vZw = vQc
    vMx, vLs, vZs = vKs, vKs + 1, vKs + 2
    def early_publish():
        a(f'v_mov_b32 {vr(vT+1)}, {vr(vL)}')
        a('s_nop 1')
        a(f'v_permlane16_swap_b32 {vr(vL)}, {vr(vT+1)}')
        a(f'v_add_f32 {vr(vL)}, {vr(vL)}, {vr(vT+1)}')
        a(f'v_mov_b32 {vr(vT+1)}, {vr(vL)}')
        a('s_nop 1')
        a(f'v_permlane32_swap_b32 {vr(vL)}, {vr(vT+1)}')
        a(f'v_add_f32 {vr(vL)}, {vr(vL)}, {vr(vT+1)}')
        a(f's_lshl_b32 {sr(sT1)}, {sr(sWave)}, 2')
        a(f's_add_u32 {sr(sT1)}, {sr(sT1)}, {MB}')
        a(f'v_mul_u32_u24 {vr(vT+2)}, {RS}, {vr(vLane)}')
        a(f'v_add_u32 {vr(vT+2)}, {sr(sT1)}, {vr(vT+2)}')
        a('s_mov_b64 exec, 0xf')
        a(f'ds_write_b32 {vr(vT+2)}, {vr(vM)}')
        a(f'ds_write_b32 {vr(vT+2)}, {vr(vL)} offset:{4*RS}')
        a('s_mov_b64 exec, 1')
        for r in range(4):
            a(f'ds_write_b32 {vr(vT+2)}, {vr(vAz+r)} offset:{8*RS+r*RS}')
        a('s_mov_b64 exec, -1')
        a(f'v_and_b32 {vr(vT)}, 3, v0')
        a(f'v_mul_u32_u24 {vr(vT)}, {RS}, {vr(vT)}')
        a(f'v_add_u32 {vr(vT)}, {MB}, {vr(vT)}')
        a('s_waitcnt lgkmcnt(0)')
        a('s_barrier')
        for k in range(nw // 4):
            a(f'ds_read_b128 {vr(vF+4*k,4)}, {vr(vT)} offset:{16*k}')
            a(f'ds_read_b128 {vr(vLw+4*k,4)}, {vr(vT)} offset:{4*RS+16*k}')
            a(f'ds_read_b128 {vr(vZw+4*k,4)}, {vr(vT)} offset:{8*RS+16*k}')
        a('s_waitcnt lgkmcnt(0)')
        a(f'v_max3_f32 {vr(vMx)}, {vr(vF)}, {vr(vF+1)}, {vr(vF+2)}')
        for w in range(3, nw): a(f'v_max_f32 {vr(vMx)}, {vr(vMx)}, {vr(vF+w)}')
        for w in range(nw): a(f'v_sub_f32 {vr(vF+w)}, {vr(vF+w)}, {vr(vMx)}')
        for w in range(nw): a(f'v_exp_f32 {vr(vF+w)}, {vr(vF+w)}')
        a('s_nop 0')
        a(f'v_mul_f32 {vr(vLs)}, {vr(vF)}, {vr(vLw)}')
        a(f'v_mul_f32 {vr(vZs)}, {vr(vF)}, {vr(vZw)}')
        for w in range(1, nw):
            a(f'v_fmac_f32 {vr(vLs)}, {vr(vF+w)}, {vr(vLw+w)}')
            a(f'v_fmac_f32 {vr(vZs)}, {vr(vF+w)}, {vr(vZw+w)}')

    def vstep(pf, rv=None, first=False):
        if rv is None: rv = 4 if roll in (1, 3) else 0
        vVs_, vVz_, vR_ = (vVs0, vVz0, vRB) if first else (vVs, vVz, vR)
        f = vT + 4
        a('s_waitcnt lgkmcnt(0)' if first else 's_waitcnt vmcnt(8) lgkmcnt(0)')
        a(f'v_lshlrev_b32 {vr(f)}, 16, {vr(vVs_)}')
        a(f'v_and_b32 {vr(f+1)}, {sr(sMask)}, {vr(vVs_)}')
        a(f'v_lshlrev_b32 {vr(f+2)}, 16, {vr(vVs_+1)}')
        a(f'v_and_b32 {vr(f+3)}, {sr(sMask)}, {vr(vVs_+1)}')
        for r in range(4): a(f'v_sub_f32 {vr(vS+r)}, {vr(vS+r)}, {vr(vM)}')
        for r in range(4): a(f'v_exp_f32 {vr(vS+r)}, {vr(vS+r)}')
        a('s_nop 0')
        a(f'v_add_f32 {vr(vT)}, {vr(vS)}, {vr(vS+1)}')
        a(f'v_add_f32 {vr(vT+1)}, {vr(vS+2)}, {vr(vS+3)}')
        for r in range(4): a(f'v_mul_f32 {vr(vS+r)}, {vr(vS+r)}, {vr(f+r)}')
        a(f'v_add_f32 {vr(vL)}, {vr(vL)}, {vr(vT)}')
        a(f'v_cvt_pk_bf16_f32 {vr(vP)}, {vr(vS)}, {vr(vS+1)}')
        a(f'v_cvt_pk_bf16_f32 {vr(vP+1)}, {vr(vS+2)}, {vr(vS+3)}')
        a(f'v_add_f32 {vr(vL)}, {vr(vL)}, {vr(vT+1)}')
        a('s_nop 0')
        a(f'v_mfma_f32_16x16x16_bf16 {vr(vAz,4)}, {vr(vP,2)}, {vr(vVz_,2)}, {vr(vAz,4)}')
        if pf == 'U':
            a(f's_cmp_eq_u32 {sr(sCnt)}, 0')
            a('s_cbranch_scc1 L_vlast')
            a(f's_add_u32 {sr(sOffK)}, {sr(sOffK)}, {stride}')
            offsV(); ld_vs()
            a(f'v_add_u32 {vr(vSa)}, 256, {vr(vSa)}')
            a(f'ds_read_b128 {vr(vS,4)}, {vr(vSa)}')
            a('L_vlast_back:')
        elif first:
            a(f'v_add_u32 {vr(vSa)}, 256, {vr(vSa)}')
            a(f'ds_read_b128 {vr(vS,4)}, {vr(vSa)}')
        elif pf:
            a(f's_add_u32 {sr(sOffK)}, {sr(sOffK)}, {stride}')
            offsV(); ld_vs()
            a(f'v_add_u32 {vr(vSa)}, 256, {vr(vSa)}')
            a(f'ds_read_b128 {vr(vS,4)}, {vr(vSa)}')
        else:
            early_publish()
        def vpair(p):
            jp, h = p >> 1, p & 1
            for c in range(4):
                r0, r1 = vR_ + 8 * p + c, vR_ + 8 * p + 4 + c
                a(f'v_cvt_f32_i32 {vr(r0)}, {vr(r0)}')
                a(f'v_cvt_f32_i32 {vr(r1)}, {vr(r1)}')
                a(f'v_cvt_pk_bf16_f32 {vr(vPK+2*(4*h+c)+jp)}, {vr(r0)}, {vr(r1)}')
        if pf == 'U':
            a('s_waitcnt vmcnt(6)'); vpair(0); vpair(1)
            a('s_waitcnt vmcnt(2)'); vpair(2); vpair(3)
            a(f's_cmp_eq_u32 {sr(sCnt)}, 0')
            a('s_cbranch_scc1 L_vnoload')
            ld_V()
            a('L_vnoload:')
            a('s_nop 0')
        elif first:
            for p in range(4): vpair(p)
            a('s_nop 1')
        elif not pf:
            for p in range(4):
                a(f's_waitcnt vmcnt({6-2*p})'); vpair(p)
            a('s_nop 1')
        else:
            for p in range(rv):
                a('s_waitcnt vmcnt(8)')
                vpair(p); ld_V1(2*p); ld_V1(2*p+1)
            if rv < 4:
                if rv <= 1:
                    a(f's_waitcnt vmcnt({2+2*rv+4})')
                    for p in range(rv, 2): vpair(p)
                    a(f's_waitcnt vmcnt({2+2*rv})')
                    for p in range(2, 4): vpair(p)
                else:
                    a(f's_waitcnt vmcnt({2+2*rv})')
                    for p in range(rv, 4): vpair(p)
                for k in range(2*rv, 8): ld_V1(k)
        for i in range(8):
            a(f'v_mfma_f32_16x16x16_bf16 {vr(vAcc+4*i,4)}, {vr(vP,2)}, {vr(vPK+2*i,2)}, {vr(vAcc+4*i,4)}')

    if unify:
        assert not (pre0 or vlate or roll or rkO or rvO or rkE or rvE)
        a('L_kloop:')
        kstep('U', 0)
        if kbar: a('s_barrier')
        a(f's_sub_u32 {sr(sCnt)}, {sr(sCnt)}, 1')
        a('s_cbranch_scc0 L_kloop')
    else:
        split = (rkO, rvO) != (rkE, rvE)
        if split:
            a(f's_getreg_b32 {sr(sOdd)}, hwreg(HW_REG_XCC_ID)')
            a(f's_and_b32 {sr(sOdd)}, {sr(sOdd)}, 1')
        def kloop(tag, rk):
            a(f'L_kloop{tag}:')
            kstep('K', rk)
            if kbar: a('s_barrier')
            a(f's_sub_u32 {sr(sCnt)}, {sr(sCnt)}, 1')
            a(f's_cmp_lg_u32 {sr(sCnt)}, 0')
            a(f's_cbranch_scc1 L_kloop{tag}')
        if split and rkO != rkE:
            a(f's_cmp_lg_u32 {sr(sOdd)}, 0'); a('s_cbranch_scc1 L_kloopO')
            kloop('E', rkE); a('s_branch L_kdone')
            kloop('O', rkO); a('L_kdone:')
        else:
            kloop('', rkE if split or rkE else None)
        kstep('V')
        if kbar: a('s_barrier')
    stamp(2)
    a(f'v_subrev_u32 {vr(vSa)}, {NT*256}, {vr(vSa)}')
    a(f'v_mov_b32 {vr(vT+1)}, {vr(vM)}')
    a(f'ds_read_b128 {vr(vS,4)}, {vr(vSa)}')
    a('s_nop 0')
    a(f'v_permlane16_swap_b32 {vr(vM)}, {vr(vT+1)}')
    a(f'v_max_f32 {vr(vM)}, {vr(vM)}, {vr(vT+1)}')
    a(f'v_mov_b32 {vr(vT+1)}, {vr(vM)}')
    a('s_nop 1')
    a(f'v_permlane32_swap_b32 {vr(vM)}, {vr(vT+1)}')
    a(f'v_max_f32 {vr(vM)}, {vr(vM)}, {vr(vT+1)}')
    nv = NT - 1 - (1 if pre0 else 0)
    a(f's_mov_b32 {sr(sCnt)}, {nv}')
    if unify:
        a('L_vloop:')
        vstep('U', 0)
        if vbar: a('s_barrier')
        a(f's_sub_u32 {sr(sCnt)}, {sr(sCnt)}, 1')
        a('s_cbranch_scc0 L_vloop')
    else:
        if pre0: vstep(1, 0, True)
        if vlate: a(f's_mov_b32 {sr(sCnt)}, {nv-vlate}')
        def vloop(tag, rv):
            a(f'L_vloop{tag}:')
            vstep(1, rv)
            if vbar: a('s_barrier')
            a(f's_sub_u32 {sr(sCnt)}, {sr(sCnt)}, 1')
            a(f's_cmp_lg_u32 {sr(sCnt)}, 0')
            a(f's_cbranch_scc1 L_vloop{tag}')
        if split and rvO != rvE:
            a(f's_cmp_lg_u32 {sr(sOdd)}, 0'); a('s_cbranch_scc1 L_vloopO')
            vloop('E', rvE); a('s_branch L_vdone')
            vloop('O', rvO); a('L_vdone:')
        else:
            vloop('', rvE if split or rvE else None)
        if vlate:
            a(f's_mov_b32 {sr(sCnt)}, {vlate}')
            a('L_vloop2:')
            vstep(1, 4)
            if vbar: a('s_barrier')
            a(f's_sub_u32 {sr(sCnt)}, {sr(sCnt)}, 1')
            a(f's_cmp_lg_u32 {sr(sCnt)}, 0')
            a('s_cbranch_scc1 L_vloop2')
        vstep(0)
    stamp(3)
    a(f's_lshl_b32 {sr(sT0)}, {sr(sWave)}, 11')
    a(f's_add_u32 {sr(sT0)}, {sr(sT0)}, {OB}')
    a(f'v_add_u32 {vr(vT)}, {sr(sT0)}, {vr(vKsOff)}')
    a(f'v_lshlrev_b32 {vr(vT+1)}, 2, v0')
    a(f'v_add_u32 {vr(vT+2)}, {OB}, {vr(vT+1)}')
    a('s_mov_b64 exec, 0xffff')
    a('s_nop 1')
    for i in range(8):
        a(f'ds_write_b128 {vr(vT)}, {vr(vAcc+4*i,4)} offset:{i*256}')
    a('s_mov_b64 exec, -1')
    if idmap == 0: a(f's_mul_i32 {sr(sT1)}, s2, {PSTRIDE}')
    else:
        a(f's_lshl_b32 {sr(sT1)}, {sr(sHk)}, 4'); a(f's_add_u32 {sr(sT1)}, {sr(sT1)}, {sr(sJ)}'); a(f's_mul_i32 {sr(sT1)}, {sr(sT1)}, {PSTRIDE}')
    a(f's_add_u32 {sr(srdT)}, {sr(ws_)}, {sr(sT1)}')
    a(f's_addc_u32 {sr(srdT+1)}, {sr(ws_+1)}, 0')
    a(f's_and_b32 {sr(srdT+1)}, {sr(srdT+1)}, 0xffff')
    a(f's_mov_b32 {sr(srdT+2)}, {PSTRIDE}')
    a(f's_mov_b32 {sr(srdT+3)}, 0x20000')
    a('s_waitcnt lgkmcnt(0)')
    a('s_barrier')
    vOw = vR
    vRes = vR + 16
    vPo = vSa
    for ch in range(nch):
        for w in range(nw):
            a(f'ds_read_b32 {vr(vOw+ch*nw+w)}, {vr(vT+2)} offset:{w*2048+ch*nthr*4}')
    for ch in range(nch):
        a(f's_waitcnt lgkmcnt({(nch-1-ch)*nw})')
        a(f'v_fma_f32 {vr(vRes+ch)}, {vr(vF)}, {vr(vOw+ch*nw)}, -{vr(vZs)}')
        for w in range(1, nw):
            a(f'v_fmac_f32 {vr(vRes+ch)}, {vr(vF+w)}, {vr(vOw+ch*nw+w)}')
    stamp(4)
    if nch == 1 or not x2:
        for ch in range(nch):
            a(f'buffer_store_dword {vr(vRes+ch)}, {vr(vT+1)}, {sr(srdT,4)}, 0 offen offset:{ch*nthr*4} sc1')
    else:
        a(f'v_lshlrev_b32 {vr(vPo)}, 3, v0')
        a(f'buffer_store_dwordx2 {vr(vRes,2)}, {vr(vPo)}, {sr(srdT,4)}, 0 offen sc1')
    a('v_cmp_gt_u32 vcc, 4, v0')
    a(f's_and_saveexec_b64 {sr(sEx,2)}, vcc')
    a('s_cbranch_execz L_nost')
    a(f'buffer_store_dword {vr(vMx)}, {vr(vT+1)}, {sr(srdT,4)}, 0 offen offset:2048 sc1')
    a(f'buffer_store_dword {vr(vLs)}, {vr(vT+1)}, {sr(srdT,4)}, 0 offen offset:2064 sc1')
    a('L_nost:')
    a(f's_mov_b64 exec, {sr(sEx,2)}')
    a(f's_mov_b32 {sr(srdKS)}, {sr(dbg_)}')
    a(f's_and_b32 {sr(srdKS+1)}, {sr(dbg_+1)}, 0xffff')
    a(f's_mov_b32 {sr(srdKS+2)}, 256')
    a(f's_lshl_b32 {sr(sOffG)}, {sr(sHk)}, {cshift}')
    if coff: a(f's_add_u32 {sr(sOffG)}, {sr(sOffG)}, {coff}')
    a(f's_mul_i32 {sr(sT1)}, {sr(sHk)}, {P*PSTRIDE}')
    a(f's_add_u32 {sr(srdV)}, {sr(ws_)}, {sr(sT1)}')
    a(f's_addc_u32 {sr(srdV+1)}, {sr(ws_+1)}, 0')
    a(f's_and_b32 {sr(srdV+1)}, {sr(srdV+1)}, 0xffff')
    a(f's_mov_b32 {sr(srdV+2)}, {P*PSTRIDE}')
    a(f's_lshl_b32 {sr(sT1)}, {sr(sHk)}, 10')
    a(f's_add_u32 {sr(srdK)}, {sr(o_)}, {sr(sT1)}')
    a(f's_addc_u32 {sr(srdK+1)}, {sr(o_+1)}, 0')
    a(f's_and_b32 {sr(srdK+1)}, {sr(srdK+1)}, 0xffff')
    a(f's_mov_b32 {sr(srdK+2)}, 1024')
    vML = vT + 2; vBp = vT + 3; vOa = vT + 4
    a(f'v_and_b32 {vr(vBp)}, 3, {vr(vLane)}')
    a(f'v_lshlrev_b32 {vr(vBp)}, 6, {vr(vBp)}')
    a(f'v_and_b32 {vr(vML)}, 15, {vr(vLane)}')
    a(f'v_lshlrev_b32 {vr(vML)}, 12, {vr(vML)}')
    a(f'v_lshrrev_b32 {vr(vT+6)}, 4, {vr(vLane)}')
    a(f'v_lshl_add_u32 {vr(vML)}, {vr(vT+6)}, 2, {vr(vML)}')
    for ch in range(nch):
        e, x, y = vT + 6, vOa + ch, vT + 7
        a(f'v_add_u32 {vr(e)}, {ch*nthr}, v0')
        a(f'v_and_b32 {vr(x)}, 3, {vr(e)}'); a(f'v_lshlrev_b32 {vr(x)}, 7, {vr(x)}')
        a(f'v_lshrrev_b32 {vr(y)}, 8, {vr(e)}'); a(f'v_lshl_add_u32 {vr(x)}, {vr(y)}, 6, {vr(x)}')
        a(f'v_bfe_u32 {vr(y)}, {vr(e)}, 2, 4'); a(f'v_lshl_add_u32 {vr(x)}, {vr(y)}, 2, {vr(x)}')
        a(f'v_bfe_u32 {vr(y)}, {vr(e)}, 6, 2'); a(f'v_add_u32 {vr(x)}, {vr(x)}, {vr(y)}')
        a(f'v_lshlrev_b32 {vr(x)}, 1, {vr(x)}')
    a(f'v_mov_b32 {vr(vT+6)}, {TK}')
    a('s_waitcnt vmcnt(0)')
    stamp(5)
    a('s_barrier')
    a(f's_cmp_lg_u32 {sr(sWave)}, 0')
    a('s_cbranch_scc1 L_noat')
    a('s_mov_b64 exec, 1')
    a(f'v_mov_b32 {vr(vT+7)}, 1')
    a(f'v_mov_b32 {vr(vT)}, 0')
    a(f'buffer_atomic_add {vr(vT+7)}, {vr(vT)}, {sr(srdKS,4)}, {sr(sOffG)} offen sc0')
    a('s_waitcnt vmcnt(0)')
    a(f'ds_write_b32 {vr(vT+6)}, {vr(vT+7)}')
    a('s_mov_b64 exec, -1')
    a('s_waitcnt lgkmcnt(0)')
    a('L_noat:')
    a('s_barrier')
    a(f'ds_read_b32 {vr(vT+7)}, {vr(vT+6)}')
    a('s_waitcnt lgkmcnt(0)')
    a(f'v_readfirstlane_b32 {sr(sT0)}, {vr(vT+7)}')
    a('s_nop 3')
    stamp(6)
    a(f's_cmp_lg_u32 {sr(sT0)}, {P-1}')
    a('s_cbranch_scc1 L_notlast')
    cM, cL, x, y = vQB, vQB + 1, vQB + 2, vQB + 3
    cW = vPK
    cO = vR if nch == 1 else vAcc
    a(f'buffer_load_dword {vr(cM)}, {vr(vML)}, {sr(srdV,4)}, 0 offen offset:2048 sc1')
    a(f'buffer_load_dword {vr(cL)}, {vr(vML)}, {sr(srdV,4)}, 0 offen offset:2064 sc1')
    for w in range(P):
        a(f's_mov_b32 {sr(sT1)}, {w*PSTRIDE}')
        if nch == 1: a(f'buffer_load_dword {vr(cO+w)}, {vr(vT+1)}, {sr(srdV,4)}, {sr(sT1)} offen sc1')
        elif not x2:
            for ch in range(nch): a(f'buffer_load_dword {vr(cO+2*w+ch)}, {vr(vT+1)}, {sr(srdV,4)}, {sr(sT1)} offen offset:{ch*nthr*4} sc1')
        else: a(f'buffer_load_dwordx2 {vr(cO+2*w,2)}, {vr(vPo)}, {sr(srdV,4)}, {sr(sT1)} offen sc1')
    a(f's_waitcnt vmcnt({P if (nch == 1 or x2) else nch*P})')
    def allreduce(reg, op):
        for k in (1, 2, 4, 8):
            a('s_nop 1')
            a(f'{op}_dpp {vr(reg)}, {vr(reg)}, {vr(reg)} row_ror:{k} row_mask:0xf bank_mask:0xf')
    a(f'v_mov_b32 {vr(x)}, {vr(cM)}')
    allreduce(x, 'v_max_f32')
    a(f'v_sub_f32 {vr(cM)}, {vr(cM)}, {vr(x)}')
    a(f'v_exp_f32 {vr(cM)}, {vr(cM)}')
    a('s_nop 0')
    a(f'v_mul_f32 {vr(x)}, {vr(cM)}, {vr(cL)}')
    allreduce(x, 'v_add_f32')
    a(f'v_rcp_f32 {vr(cL)}, {vr(x)}')
    a('s_nop 0')
    a(f'v_mul_f32 {vr(cM)}, {vr(cM)}, {vr(cL)}')
    for w in range(P):
        a(f'ds_bpermute_b32 {vr(cW+w)}, {vr(vBp)}, {vr(cM)} offset:{4*w}')
    a('s_waitcnt vmcnt(0) lgkmcnt(0)')
    for ch in range(nch):
        o = (lambda w: cO + w) if nch == 1 else (lambda w: cO + 2 * w + ch)
        a(f'v_mul_f32 {vr(x)}, {vr(cW)}, {vr(o(0))}')
        for w in range(1, P): a(f'v_fmac_f32 {vr(x)}, {vr(cW+w)}, {vr(o(w))}')
        a(f'v_cvt_pk_bf16_f32 {vr(x)}, {vr(x)}, {vr(x)}')
        a(f'buffer_store_short {vr(x)}, {vr(vOa+ch)}, {sr(srdK,4)}, 0 offen {opol}')
    if dbgprof:
        a('s_waitcnt vmcnt(0)')
        a(f's_cmp_lg_u32 {sr(sWave)}, 0')
        a('s_cbranch_scc1 L_end')
        stamp(7)
        a(f's_memtime {sr(sTm+2,2)}')
        a('s_waitcnt lgkmcnt(0)')
        a('s_mov_b64 exec, 1')
        a(f'v_mov_b32 {vr(vT)}, 0')
        for i in range(1, 8):
            a(f's_sub_u32 {sr(sT0)}, {sr(sSt+2*i)}, {sr(sSt)}')
            a(f'v_mov_b32 {vr(vR+i)}, {sr(sT0)}')
        for i in range(1, 8):
            a(f'buffer_atomic_umax {vr(vR+i)}, {vr(vT)}, {sr(srdKS,4)}, 0 offen offset:{4*i}')
    a('L_notlast:')
    if prof == 2:
        a('s_waitcnt vmcnt(0)')
        stamp(7)
        a(f's_memtime {sr(sTm+2,2)}')
        a('s_waitcnt lgkmcnt(0)')
        a(f's_cmp_lg_u32 {sr(sWave)}, 0')
        a('s_cbranch_scc1 L_end')
        a(f's_add_u32 {sr(srdT)}, {sr(ws_)}, 0x4000000')
        a(f's_addc_u32 {sr(srdT+1)}, {sr(ws_+1)}, 0')
        a(f's_and_b32 {sr(srdT+1)}, {sr(srdT+1)}, 0xffff')
        a(f's_mov_b32 {sr(srdT+2)}, 0x100000')
        a(f's_lshl_b32 {sr(sT1)}, s2, 6')
        for i in range(8): a(f'v_mov_b32 {vr(vR+i)}, {sr(sSt+2*i)}')
        a(f's_getreg_b32 {sr(sT0)}, hwreg(HW_REG_XCC_ID)')
        a(f'v_mov_b32 {vr(vR+8)}, {sr(sT0)}')
        a(f's_getreg_b32 {sr(sT0)}, hwreg(HW_REG_HW_ID)')
        a(f'v_mov_b32 {vr(vR+9)}, {sr(sT0)}')
        a(f's_sub_u32 {sr(sT0)}, {sr(sTm+2)}, {sr(sTm)}')
        a(f'v_mov_b32 {vr(vR+10)}, {sr(sT0)}')
        a(f'v_mov_b32 {vr(vT)}, 0')
        a('s_mov_b64 exec, 1')
        a(f'buffer_store_dwordx4 {vr(vR,4)}, {vr(vT)}, {sr(srdT,4)}, {sr(sT1)} offen')
        a(f'buffer_store_dwordx4 {vr(vR+4,4)}, {vr(vT)}, {sr(srdT,4)}, {sr(sT1)} offen offset:16')
        a(f'buffer_store_dwordx4 {vr(vR+8,4)}, {vr(vT)}, {sr(srdT,4)}, {sr(sT1)} offen offset:32')
    if padto:
        a('s_waitcnt vmcnt(0) lgkmcnt(0)')
        a('L_pad:')
        a(f's_memrealtime {sr(sTm+2,2)}')
        a('s_waitcnt lgkmcnt(0)')
        a(f's_sub_u32 {sr(sT0)}, {sr(sTm+2)}, {sr(sTm)}')
        a(f's_cmp_lt_u32 {sr(sT0)}, {padto}')
        a('s_cbranch_scc1 L_pad')
    a('L_end:')
    a('s_endpgm')
    if unify:
        a('L_k2v_small:')
        a(f's_mov_b32 {sr(sOffK)}, {sr(sOff0)}')
        offsV(); ld_vs()
        a('s_branch L_k2v_small_back')
        a('L_k2v_big:')
        ld_V()
        a('s_branch L_k2v_big_back')
        a('L_vlast:')
        ld_vs()
        early_publish()
        a('s_branch L_vlast_back')
    main = '\n'.join(out)
    acc = min(256, (nvgpr + 3) // 4 * 4)
    kd = f'''.amdhsa_kernel {KN}
  .amdhsa_next_free_vgpr {nvgpr}
  .amdhsa_next_free_sgpr {S.n}
  .amdhsa_accum_offset {acc}
  .amdhsa_group_segment_fixed_size 0
  .amdhsa_kernarg_size 80
  .amdhsa_user_sgpr_count 2
  .amdhsa_user_sgpr_kernarg_segment_ptr 1
  .amdhsa_system_sgpr_workgroup_id_x 1
  .amdhsa_float_denorm_mode_32 3
.end_amdhsa_kernel
'''
    src = HEADCOMMENT + f'; @launch grid=({nwg},1,1) block=({nthr},1,1) lds={lds_bytes}\n'
    src += '.amdgcn_target "amdgcn-amd-amdhsa--gfx950"\n.text\n'
    src += f'.globl {KN}\n.p2align 8\n.type {KN},@function\n{main}\n'
    src += '.section .rodata,"a"\n.p2align 6\n' + kd
    return src, [(KN, nwg, nthr, lds_bytes)]

if __name__ == '__main__':
    import argparse
    ap = argparse.ArgumentParser()
    ap.add_argument('-o', default='out.s')
    ap.add_argument('kv', nargs='*')
    args = ap.parse_args()
    kw = {}
    for x in args.kv:
        k, v = x.split('=')
        try: v = int(v)
        except ValueError: pass
        kw[k] = v
    src, l = gen(**kw)
    open(args.o, 'w').write(src)
    print(l)
```

```python
import struct
KN = 'standalone__kv_cache_quant_int4_int2_kv_with_per_channel_or_per_token_scales__decode_kernel'

HEADCOMMENT = '''; KIVI-style quantised KV-cache decode attention (B=2, Hq=32, Hkv=8, Skv=32768, Dh=128), one fused launch.
;
'''

class Alloc:
    def __init__(self, start, limit):
        self.n = start; self.limit = limit
    def get(self, cnt=1, align=1):
        self.n = (self.n + align - 1) // align * align
        r = self.n; self.n += cnt
        assert self.n <= self.limit, self.n
        return r

def vr(r, n=1): return f'v{r}' if n == 1 else f'v[{r}:{r+n-1}]'
def sr(r, n=1): return f's{r}' if n == 1 else f's[{r}:{r+n-1}]'
def f32hex(x): return '0x%08x' % struct.unpack('<I', struct.pack('<f', x))[0]

PSTRIDE = 4096
QROW = 288
WLDS = 1536
CEXP = 0.08838834764831845 * 1.4426950408889634

def gen(nw=8, bar=1, pol='nt', spol='nt', nB=2, prof=0, dbgprof=0, coff=0, cshift=2, opol='', padto=0,
        wrot=0, perm='tr', minvgpr=176, kbar=None, vbar=None, minlds=0, roll=0, x2=0, vlate=0, rkO=0, rvO=0, rkE=0, rvE=0, pre0=0, unify=0, kfirst=0, idmap=0, tlbw=0):
    P = 16
    nwg = 16 * P
    NT = 32768 // (P * nw * 16)
    nthr = nw * 64
    nch = 512 // nthr
    if kbar is None: kbar = bar
    if vbar is None: vbar = bar
    out = []
    a = out.append
    V = Alloc(1, 256); S = Alloc(3, 102)
    sWave = S.get()
    sKA = S.get(16, 4); sKB = S.get(4, 4)
    srdK = S.get(4, 4); srdV = S.get(4, 4); srdKS = S.get(4, 4); srdKZ = S.get(4, 4)
    srdVS = S.get(4, 4); srdVZ = S.get(4, 4); srdT = S.get(4, 4)
    sHk = S.get(); sJ = S.get()
    sOffK = S.get(); sOffS = S.get(); sOffG = S.get(); sOffK2 = S.get(); sOff0 = S.get()
    sCnt = S.get(); sT0 = S.get(); sT1 = S.get()
    sWm = S.get(12, 2) if tlbw else None
    sMask = S.get(); sOdd = S.get(); sEx = S.get(2, 2); sQuad = S.get(2, 2)
    stamps = prof == 2 or dbgprof
    sSt = S.get(16, 2) if stamps else None
    sTm = S.get(4, 2) if (dbgprof or padto or prof == 2) else None
    def stamp(i):
        if stamps: a(f's_memrealtime {sr(sSt+2*i,2)}')
    vLane = V.get()
    vKoff = V.get(); vVoff = V.get(); vSoff = V.get(); vKsOff = V.get(); vKzOff = V.get()
    vKoffB = V.get(); vLqRB = V.get(); vLzRB = V.get()
    vLqW = V.get(); vLzW = V.get(); vLqR = V.get(); vLzR = V.get()
    vSa = V.get()
    vM = V.get(); vL = V.get()
    vT = V.get(8, 2)
    vQc = V.get(8, 4)
    vKs = V.get(4, 4); vKz = V.get(); vVs = V.get(2, 2); vVz = V.get(2, 2)
    vQw = V.get(4, 4); vP = V.get(2, 2); vS = V.get(4, 4); vAz = V.get(4, 4)
    vAcc = V.get(32, 4); vQB = V.get(16, 4); vPK = V.get(16, 4)
    vR = V.get(32, 4)
    vRB = V.get(32, 4) if pre0 else None
    vVs0 = V.get(2, 2) if pre0 else None; vVz0 = V.get(2, 2) if pre0 else None
    nvgpr = max(V.n, minvgpr)
    SB = nw * WLDS
    OB = SB + nw * NT * 256
    MB = OB + nw * 2048
    RS = nw * 4
    TK = MB + 12 * RS
    lds_bytes = max(TK + 16, minlds)

    a(f'{KN}:')
    a(f's_cmp_ge_u32 s2, {nwg}')
    a('s_cbranch_scc1 L_end')
    a(f's_load_dwordx16 {sr(sKA,16)}, s[0:1], 0')
    a(f's_load_dwordx4 {sr(sKB,4)}, s[0:1], 64')
    stamp(0)
    if dbgprof or prof == 2: a(f's_memtime {sr(sTm,2)}')
    if padto: a(f's_memrealtime {sr(sTm,2)}')
    a(f'v_lshrrev_b32 {vr(vT)}, 6, v0')
    a(f'v_and_b32 {vr(vLane)}, 63, v0')
    if idmap == 0:
        a(f's_lshr_b32 {sr(sHk)}, s2, 4')
        a(f'v_readfirstlane_b32 {sr(sWave)}, {vr(vT)}')
        a(f's_and_b32 {sr(sJ)}, s2, {P-1}')
    else:
        a(f's_and_b32 {sr(sHk)}, s2, 7')
        a(f'v_readfirstlane_b32 {sr(sWave)}, {vr(vT)}')
        a(f's_lshl_b32 {sr(sHk)}, {sr(sHk)}, 1')
        a(f's_lshr_b32 {sr(sJ)}, s2, 3')
        a(f's_and_b32 {sr(sT0)}, {sr(sJ)}, 1')
        a(f's_add_u32 {sr(sHk)}, {sr(sHk)}, {sr(sT0)}')
        a(f's_lshr_b32 {sr(sJ)}, s2, 4')
    n15, g4 = vT + 1, vT + 2
    def lane_rest():
        a(f'v_lshlrev_b32 {vr(vKsOff)}, 4, {vr(n15)}')
        a(f'v_lshl_add_u32 {vr(vVoff)}, {vr(g4)}, 11, {vr(vKsOff)}')
        a(f'v_lshlrev_b32 {vr(vSoff)}, 3, {vr(g4)}')
        a(f'v_lshlrev_b32 {vr(vKzOff)}, 2, {vr(vLane)}')
    a(f'v_and_b32 {vr(n15)}, 15, {vr(vLane)}')
    a(f'v_lshrrev_b32 {vr(g4)}, 4, {vr(vLane)}')
    a(f'v_lshlrev_b32 {vr(vT+3)}, 9, {vr(n15)}')
    a(f'v_lshl_add_u32 {vr(vKoff)}, {vr(g4)}, 4, {vr(vT+3)}')
    a(f'v_and_b32 {vr(vT+3)}, 7, {vr(vLane)}')
    a(f'v_lshlrev_b32 {vr(vT+3)}, 9, {vr(vT+3)}')
    a(f'v_lshrrev_b32 {vr(vT+4)}, 3, {vr(vLane)}')
    a(f'v_lshl_add_u32 {vr(vKoffB)}, {vr(vT+4)}, 4, {vr(vT+3)}')
    if not kfirst: lane_rest()
    stride = nw * 16 * 512
    G = {'tr': 1, 'seq': P}.get(perm) or int(perm[2:])
    if G == 1: a(f's_lshl_b32 {sr(sOff0)}, {sr(sJ)}, 20')
    else:
        a(f's_lshr_b32 {sr(sT0)}, {sr(sJ)}, {G.bit_length()-1}'); a(f's_mul_i32 {sr(sOff0)}, {sr(sT0)}, {G << 20}')
        a(f's_and_b32 {sr(sT0)}, {sr(sJ)}, {G-1}'); a(f's_mul_i32 {sr(sT0)}, {sr(sT0)}, {stride}')
        a(f's_add_u32 {sr(sOff0)}, {sr(sOff0)}, {sr(sT0)}')
    if wrot == 0: a(f's_lshl_b32 {sr(sT0)}, {sr(sWave)}, 13')
    else:
        if wrot == 3: a(f's_lshr_b32 {sr(sT0)}, s2, 3'); a(f's_and_b32 {sr(sT0)}, {sr(sT0)}, 1'); a(f's_lshl_b32 {sr(sT0)}, {sr(sT0)}, {(nw//2).bit_length()-1}'); a(f's_xor_b32 {sr(sT0)}, {sr(sT0)}, {sr(sWave)}')
        elif wrot == 8: a(f's_lshr_b32 {sr(sT0)}, s2, 3'); a(f's_and_b32 {sr(sT0)}, {sr(sT0)}, 3'); a(f's_lshl_b32 {sr(sT0)}, {sr(sT0)}, 1'); a(f's_xor_b32 {sr(sT0)}, {sr(sT0)}, {sr(sWave)}')
        elif wrot == 6: a(f's_lshr_b32 {sr(sT0)}, s2, 3'); a(f's_xor_b32 {sr(sT0)}, {sr(sT0)}, {sr(sWave)}')
        elif wrot == 13: a(f's_lshr_b32 {sr(sT0)}, s2, 4'); a(f's_and_b32 {sr(sT0)}, {sr(sT0)}, 1'); a(f's_lshl_b32 {sr(sT0)}, {sr(sT0)}, 1'); a(f's_xor_b32 {sr(sT0)}, {sr(sT0)}, {sr(sWave)}')
        elif wrot == 14: a(f's_lshr_b32 {sr(sT0)}, s2, 5'); a(f's_xor_b32 {sr(sT0)}, {sr(sT0)}, {sr(sWave)}')
        elif wrot == 15: a(f's_xor_b32 {sr(sT0)}, s2, {sr(sWave)}')
        elif wrot == 16: a(f's_and_b32 {sr(sT0)}, s2, 1'); a(f's_lshl_b32 {sr(sT0)}, {sr(sT0)}, 1'); a(f's_xor_b32 {sr(sT0)}, {sr(sT0)}, {sr(sWave)}')
        elif wrot == 17: a(f's_lshr_b32 {sr(sT0)}, s2, 3'); a(f's_xor_b32 {sr(sT0)}, {sr(sT0)}, s2'); a(f's_and_b32 {sr(sT0)}, {sr(sT0)}, 1'); a(f's_lshl_b32 {sr(sT0)}, {sr(sT0)}, 1'); a(f's_xor_b32 {sr(sT0)}, {sr(sT0)}, {sr(sWave)}')
        elif wrot == 18: a(f's_lshr_b32 {sr(sT0)}, s2, 5'); a(f's_and_b32 {sr(sT0)}, {sr(sT0)}, 1'); a(f's_lshl_b32 {sr(sT0)}, {sr(sT0)}, 1'); a(f's_xor_b32 {sr(sT0)}, {sr(sT0)}, {sr(sWave)}')
        a(f's_and_b32 {sr(sT0)}, {sr(sT0)}, {nw-1}')
        a(f's_lshl_b32 {sr(sT0)}, {sr(sT0)}, 13')
    a(f's_add_u32 {sr(sOff0)}, {sr(sOff0)}, {sr(sT0)}')
    stride = stride * G
    a(f's_mov_b32 {sr(sOffK)}, {sr(sOff0)}')
    def offsK():
        a(f's_lshr_b32 {sr(sOffG)}, {sr(sOffK)}, 8')
        a(f's_and_b32 {sr(sOffG)}, {sr(sOffG)}, 0xffffff00')
        if nB: a(f's_add_u32 {sr(sOffK2)}, {sr(sOffK)}, 4096')
    def offsV():
        a(f's_lshr_b32 {sr(sOffS)}, {sr(sOffK)}, 8')
    offsK()
    a('s_waitcnt lgkmcnt(0)')
    def srd(dst, ptr, off_s, off_shift, nbytes):
        a(f's_lshl_b32 {sr(sT0)}, {sr(off_s)}, {off_shift}')
        a(f's_add_u32 {sr(dst)}, {sr(ptr)}, {sr(sT0)}')
        a(f's_addc_u32 {sr(dst+1)}, {sr(ptr+1)}, 0')
        a(f's_and_b32 {sr(dst+1)}, {sr(dst+1)}, 0xffff')
        a(f's_mov_b32 {sr(dst+2)}, {nbytes}')
        a(f's_mov_b32 {sr(dst+3)}, 0x20000')
    q_, qk_, qv_, ks_, kz_, vs_, vz_, o_ = [sKA + 2 * i for i in range(8)]
    dbg_, ws_ = sKB, sKB + 2
    def ld_ks():
        a(f'buffer_load_dwordx4 {vr(vKs,4)}, {vr(vKsOff)}, {sr(srdKS,4)}, {sr(sOffG)} offen {spol}')
        a(f'buffer_load_dword {vr(vKz)}, {vr(vKzOff)}, {sr(srdKZ,4)}, {sr(sOffG)} offen {spol}')
    def ld_K1(i):
        s = i // 2
        if s < 4 - nB:
            a(f'buffer_load_dwordx4 {vr(vR+4*i,4)}, {vr(vKoff)}, {sr(srdK,4)}, {sr(sOffK)} offen offset:{i*64} {pol}')
        else:
            a(f'buffer_load_dwordx4 {vr(vR+4*i,4)}, {vr(vKoffB)}, {sr(srdK,4)}, {sr(sOffK if i % 2 == 0 else sOffK2)} offen offset:{s*128} {pol}')
    def ld_K():
        for i in range(8): ld_K1(i)
    def ld_vs(rs=None, rz=None):
        rs = vVs if rs is None else rs; rz = vVz if rz is None else rz
        a(f'buffer_load_dwordx2 {vr(rs,2)}, {vr(vSoff)}, {sr(srdVS,4)}, {sr(sOffS)} offen {spol}')
        a(f'buffer_load_dwordx2 {vr(rz,2)}, {vr(vSoff)}, {sr(srdVZ,4)}, {sr(sOffS)} offen {spol}')
    VSEQ = [(0,0),(1,0),(0,1),(1,1),(2,0),(3,0),(2,1),(3,1)]
    def ld_V1(k, rb=None):
        j, h = VSEQ[k]
        rb = vR if rb is None else rb
        a(f'buffer_load_dwordx4 {vr(rb+4*k,4)}, {vr(vVoff)}, {sr(srdV,4)}, {sr(sOffK)} offen offset:{j*512+h*256} {pol}')
    def ld_V():
        for k in range(8): ld_V1(k)
    if pre0:
        srd(srdVS, vs_, sHk, 16, 1 << 16)
        srd(srdVZ, vz_, sHk, 16, 1 << 16)
        srd(srdV, qv_, sHk, 24, 1 << 24)
        offsV(); ld_vs(vVs0, vVz0)
        for k in range(8): ld_V1(k, vRB)
    if kfirst:
        srd(srdK, qk_, sHk, 24, 1 << 24)
        ld_K()
        lane_rest()
    srd(srdT, q_, sHk, 10, 1024)
    a(f'v_lshl_add_u32 {vr(vT+3)}, {vr(g4)}, 8, {vr(vKsOff)}')
    a(f'buffer_load_dwordx4 {vr(vQw,4)}, {vr(vT+3)}, {sr(srdT,4)}, 0 offen {spol}')
    srd(srdKS, ks_, sHk, 16, 1 << 16)
    srd(srdKZ, kz_, sHk, 16, 1 << 16)
    if kfirst:
        ld_ks()
    else:
        srd(srdK, qk_, sHk, 24, 1 << 24)
        ld_ks(); ld_K()
    if not pre0:
        srd(srdVS, vs_, sHk, 16, 1 << 16)
        srd(srdVZ, vz_, sHk, 16, 1 << 16)
        srd(srdV, qv_, sHk, 24, 1 << 24)
    if tlbw:
        if tlbw & 8:
            a(f's_cmp_lg_u32 {sr(sWave)}, 0'); a('s_cbranch_scc1 L_nowarm')
        slot = [0]
        def touch(lo, hi, off_s):
            b = sWm + 2 * slot[0]; dst = sWm + 10 + (slot[0] & 1); slot[0] += 1
            a(f's_add_u32 {sr(b)}, {sr(lo)}, {sr(off_s)}')
            a(f's_addc_u32 {sr(b+1)}, {sr(hi)}, 0')
            a(f's_load_dword {sr(dst)}, {sr(b,2)}, 0')
        if tlbw & 1:
            a(f's_lshl_b32 {sr(sT0)}, {sr(sHk)}, 24'); a(f's_add_u32 {sr(sT0)}, {sr(sT0)}, {sr(sOff0)}')
            touch(qv_, qv_ + 1, sT0)
        if tlbw & 2:
            a(f's_lshl_b32 {sr(sT0)}, {sr(sHk)}, 16')
            touch(vs_, vs_ + 1, sT0)
            touch(vz_, vz_ + 1, sT0)
        if tlbw & 4:
            a(f's_lshl_b32 {sr(sT0)}, {sr(sHk)}, 16')
            touch(ws_, ws_ + 1, sT0)
            a(f's_lshl_b32 {sr(sT0)}, {sr(sHk)}, 10')
            touch(o_, o_ + 1, sT0)
        if tlbw & 8: a('L_nowarm:')
    a(f's_mul_i32 {sr(sT0)}, {sr(sWave)}, {WLDS}')
    a(f'v_mul_u32_u24 {vr(vT+3)}, {QROW}, {vr(g4)}')
    a(f'v_add3_u32 {vr(vLqW)}, {vr(vT+3)}, {vr(vKsOff)}, {sr(sT0)}')
    a(f'v_add_u32 {vr(vLzW)}, {sr(sT0)}, {vr(vKzOff)}')
    a(f'v_add_u32 {vr(vLzW)}, {4*QROW}, {vr(vLzW)}')
    a(f'v_and_b32 {vr(vT+4)}, 3, {vr(vLane)}')
    a(f'v_mul_u32_u24 {vr(vT+3)}, {QROW}, {vr(vT+4)}')
    a(f'v_add3_u32 {vr(vLqR)}, {vr(vT+3)}, {vr(vSoff)}, {sr(sT0)}')
    a(f'v_add_u32 {vr(vLzR)}, {sr(sT0)}, {vr(vSoff)}')
    a(f'v_add_u32 {vr(vLzR)}, {4*QROW}, {vr(vLzR)}')
    a(f'v_add_u32 {vr(vLqRB)}, {vr(vLqR)}, {vr(vSoff)}')
    a(f'v_add_u32 {vr(vLzRB)}, {vr(vLzR)}, {vr(vSoff)}')
    a(f's_mul_i32 {sr(sT0)}, {sr(sWave)}, {NT*256}')
    a(f's_add_u32 {sr(sT0)}, {sr(sT0)}, {SB}')
    a(f'v_lshlrev_b32 {vr(vT+4)}, 4, {vr(vT+4)}')
    a(f'v_lshl_add_u32 {vr(vSa)}, {vr(g4)}, 6, {vr(vT+4)}')
    a(f'v_add_u32 {vr(vSa)}, {sr(sT0)}, {vr(vSa)}')
    a(f's_mov_b32 {sr(sMask)}, 0xffff0000')
    a(f's_mov_b32 {sr(sQuad)}, 0x000f000f')
    a(f's_mov_b32 {sr(sQuad+1)}, 0x000f000f')
    a(f'v_mov_b32 {vr(vM)}, 0xff800000')
    a(f'v_mov_b32 {vr(vL)}, 0')
    for i in range(4): a(f'v_mov_b32 {vr(vAz+i)}, 0')
    for i in range(32): a(f'v_mov_b32 {vr(vAcc+i)}, 0')
    a(f's_mov_b32 {sr(sT1)}, {f32hex(CEXP)}')
    a(f's_mov_b32 {sr(sCnt)}, {NT-1}')
    a('s_waitcnt vmcnt(0)' if kfirst else 's_waitcnt vmcnt(10)')
    stamp(1)
    for i in range(4):
        a(f'v_lshlrev_b32 {vr(vQc+2*i)}, 16, {vr(vQw+i)}')
        a(f'v_and_b32 {vr(vQc+2*i+1)}, {sr(sMask)}, {vr(vQw+i)}')
    for i in range(8):
        a(f'v_mul_f32 {vr(vQc+i)}, {sr(sT1)}, {vr(vQc+i)}')

    def kstep(nxt, rk=None):
        a('s_waitcnt vmcnt(8)')
        for i in range(4):
            a(f'v_lshlrev_b32 {vr(vT)}, 16, {vr(vKs+i)}')
            a(f'v_and_b32 {vr(vT+1)}, {sr(sMask)}, {vr(vKs+i)}')
            a(f'v_mul_f32 {vr(vT)}, {vr(vT)}, {vr(vQc+2*i)}')
            a(f'v_mul_f32 {vr(vT+1)}, {vr(vT+1)}, {vr(vQc+2*i+1)}')
            a(f'v_cvt_pk_bf16_f32 {vr(vQw+i)}, {vr(vT)}, {vr(vT+1)}')
        a(f'v_xor_b32 {vr(vT+2)}, 0x80008000, {vr(vKz)}')
        a(f'ds_write_b128 {vr(vLqW)}, {vr(vQw,4)}')
        a(f'ds_write_b32 {vr(vLzW)}, {vr(vT+2)}')
        if nxt == 'U':
            a(f's_cmp_eq_u32 {sr(sCnt)}, 0')
            a('s_cbranch_scc1 L_k2v_small')
            a(f's_add_u32 {sr(sOffK)}, {sr(sOffK)}, {stride}')
            offsK(); ld_ks()
            a('L_k2v_small_back:')
        elif nxt == 'K':
            a(f's_add_u32 {sr(sOffK)}, {sr(sOffK)}, {stride}')
            offsK(); ld_ks()
        else:
            if pre0: a(f's_add_u32 {sr(sOffK)}, {sr(sOff0)}, {stride}')
            else: a(f's_mov_b32 {sr(sOffK)}, {sr(sOff0)}')
            offsV(); ld_vs()
        for s in range(4):
            if s < 4 - nB: a(f'ds_read2_b64 {vr(vQB+4*s,4)}, {vr(vLqR)} offset0:{8*s} offset1:{8*s+4}')
            else: a(f'ds_read_b128 {vr(vQB+4*s,4)}, {vr(vLqRB)} offset:{64*s}')
        for s in range(4):
            if s < 4 - nB: a(f'ds_read2_b64 {vr(vPK+4*s,4)}, {vr(vLzR)} offset0:{8*s} offset1:{8*s+4}')
            else: a(f'ds_read_b128 {vr(vPK+4*s,4)}, {vr(vLzRB)} offset:{64*s}')
        a('s_waitcnt lgkmcnt(0)')
        for s in range(4):
            c = '0' if s == 0 else vr(vS, 4)
            a(f'v_mfma_f32_16x16x32_bf16 {vr(vS,4)}, {vr(vPK+4*s,4)}, {vr(vQB+4*s,4)}, {c}')
        if rk is None: rk = 8 if roll in (1, 2) else 0
        def kcvt(i):
            for c in range(4):
                a(f'v_cvt_f32_i32 {vr(vR+4*i+c)}, {vr(vR+4*i+c)}')
            d = vPK + 4 * (i // 2) + 2 * (i % 2)
            a(f'v_cvt_pk_bf16_f32 {vr(d)}, {vr(vR+4*i)}, {vr(vR+4*i+1)}')
            a(f'v_cvt_pk_bf16_f32 {vr(d+1)}, {vr(vR+4*i+2)}, {vr(vR+4*i+3)}')
        if nxt == 'U':
            a('s_waitcnt vmcnt(2)')
            for i in range(8): kcvt(i)
            a(f's_cmp_eq_u32 {sr(sCnt)}, 0')
            a('s_cbranch_scc1 L_k2v_big')
            ld_K()
            a('L_k2v_big_back:')
        else:
            nld = ld_K1 if nxt == 'K' else ld_V1
            for i in range(rk):
                a('s_waitcnt vmcnt(9)')
                kcvt(i); nld(i)
            if rk < 8:
                a(f's_waitcnt vmcnt({2+rk})')
                for i in range(rk, 8): kcvt(i)
                for i in range(rk, 8): nld(i)
        for s in range(4 - nB, 4):
            a(f'v_mov_b32 {vr(vT)}, {vr(vPK+4*s)}')
            a(f'v_mov_b32 {vr(vT+1)}, {vr(vPK+4*s+1)}')
            a('s_nop 0')
            a(f'v_mov_b32_dpp {vr(vPK+4*s)}, {vr(vPK+4*s+2)} row_ror:8 row_mask:0xf bank_mask:0xc')
            a(f'v_mov_b32_dpp {vr(vPK+4*s+1)}, {vr(vPK+4*s+3)} row_ror:8 row_mask:0xf bank_mask:0xc')
            a(f'v_mov_b32_dpp {vr(vPK+4*s+2)}, {vr(vT)} row_ror:8 row_mask:0xf bank_mask:0x3')
            a(f'v_mov_b32_dpp {vr(vPK+4*s+3)}, {vr(vT+1)} row_ror:8 row_mask:0xf bank_mask:0x3')
        a('s_nop 1')
        for s in range(4):
            a(f'v_mfma_f32_16x16x32_bf16 {vr(vS,4)}, {vr(vPK+4*s,4)}, {vr(vQB+4*s,4)}, {vr(vS,4)}')
        a('s_nop 7')
        a(f's_mov_b64 exec, {sr(sQuad,2)}')
        a(f'ds_write_b128 {vr(vSa)}, {vr(vS,4)}')
        a('s_mov_b64 exec, -1')
        a(f'v_max3_f32 {vr(vM)}, {vr(vS)}, {vr(vS+1)}, {vr(vM)}')
        a(f'v_max3_f32 {vr(vM)}, {vr(vS+2)}, {vr(vS+3)}, {vr(vM)}')
        a(f'v_add_u32 {vr(vSa)}, 256, {vr(vSa)}')

    vF = vQB
    vLw = vQB + 8
    vZw = vQc
    vMx, vLs, vZs = vKs, vKs + 1, vKs + 2
    def early_publish():
        a(f'v_mov_b32 {vr(vT+1)}, {vr(vL)}')
        a('s_nop 1')
        a(f'v_permlane16_swap_b32 {vr(vL)}, {vr(vT+1)}')
        a(f'v_add_f32 {vr(vL)}, {vr(vL)}, {vr(vT+1)}')
        a(f'v_mov_b32 {vr(vT+1)}, {vr(vL)}')
        a('s_nop 1')
        a(f'v_permlane32_swap_b32 {vr(vL)}, {vr(vT+1)}')
        a(f'v_add_f32 {vr(vL)}, {vr(vL)}, {vr(vT+1)}')
        a(f's_lshl_b32 {sr(sT1)}, {sr(sWave)}, 2')
        a(f's_add_u32 {sr(sT1)}, {sr(sT1)}, {MB}')
        a(f'v_mul_u32_u24 {vr(vT+2)}, {RS}, {vr(vLane)}')
        a(f'v_add_u32 {vr(vT+2)}, {sr(sT1)}, {vr(vT+2)}')
        a('s_mov_b64 exec, 0xf')
        a(f'ds_write_b32 {vr(vT+2)}, {vr(vM)}')
        a(f'ds_write_b32 {vr(vT+2)}, {vr(vL)} offset:{4*RS}')
        a('s_mov_b64 exec, 1')
        for r in range(4):
            a(f'ds_write_b32 {vr(vT+2)}, {vr(vAz+r)} offset:{8*RS+r*RS}')
        a('s_mov_b64 exec, -1')
        a(f'v_and_b32 {vr(vT)}, 3, v0')
        a(f'v_mul_u32_u24 {vr(vT)}, {RS}, {vr(vT)}')
        a(f'v_add_u32 {vr(vT)}, {MB}, {vr(vT)}')
        a('s_waitcnt lgkmcnt(0)')
        a('s_barrier')
        for k in range(nw // 4):
            a(f'ds_read_b128 {vr(vF+4*k,4)}, {vr(vT)} offset:{16*k}')
            a(f'ds_read_b128 {vr(vLw+4*k,4)}, {vr(vT)} offset:{4*RS+16*k}')
            a(f'ds_read_b128 {vr(vZw+4*k,4)}, {vr(vT)} offset:{8*RS+16*k}')
        a('s_waitcnt lgkmcnt(0)')
        a(f'v_max3_f32 {vr(vMx)}, {vr(vF)}, {vr(vF+1)}, {vr(vF+2)}')
        for w in range(3, nw): a(f'v_max_f32 {vr(vMx)}, {vr(vMx)}, {vr(vF+w)}')
        for w in range(nw): a(f'v_sub_f32 {vr(vF+w)}, {vr(vF+w)}, {vr(vMx)}')
        for w in range(nw): a(f'v_exp_f32 {vr(vF+w)}, {vr(vF+w)}')
        a('s_nop 0')
        a(f'v_mul_f32 {vr(vLs)}, {vr(vF)}, {vr(vLw)}')
        a(f'v_mul_f32 {vr(vZs)}, {vr(vF)}, {vr(vZw)}')
        for w in range(1, nw):
            a(f'v_fmac_f32 {vr(vLs)}, {vr(vF+w)}, {vr(vLw+w)}')
            a(f'v_fmac_f32 {vr(vZs)}, {vr(vF+w)}, {vr(vZw+w)}')

    def vstep(pf, rv=None, first=False):
        if rv is None: rv = 4 if roll in (1, 3) else 0
        vVs_, vVz_, vR_ = (vVs0, vVz0, vRB) if first else (vVs, vVz, vR)
        f = vT + 4
        a('s_waitcnt lgkmcnt(0)' if first else 's_waitcnt vmcnt(8) lgkmcnt(0)')
        a(f'v_lshlrev_b32 {vr(f)}, 16, {vr(vVs_)}')
        a(f'v_and_b32 {vr(f+1)}, {sr(sMask)}, {vr(vVs_)}')
        a(f'v_lshlrev_b32 {vr(f+2)}, 16, {vr(vVs_+1)}')
        a(f'v_and_b32 {vr(f+3)}, {sr(sMask)}, {vr(vVs_+1)}')
        for r in range(4): a(f'v_sub_f32 {vr(vS+r)}, {vr(vS+r)}, {vr(vM)}')
        for r in range(4): a(f'v_exp_f32 {vr(vS+r)}, {vr(vS+r)}')
        a('s_nop 0')
        a(f'v_add_f32 {vr(vT)}, {vr(vS)}, {vr(vS+1)}')
        a(f'v_add_f32 {vr(vT+1)}, {vr(vS+2)}, {vr(vS+3)}')
        for r in range(4): a(f'v_mul_f32 {vr(vS+r)}, {vr(vS+r)}, {vr(f+r)}')
        a(f'v_add_f32 {vr(vL)}, {vr(vL)}, {vr(vT)}')
        a(f'v_cvt_pk_bf16_f32 {vr(vP)}, {vr(vS)}, {vr(vS+1)}')
        a(f'v_cvt_pk_bf16_f32 {vr(vP+1)}, {vr(vS+2)}, {vr(vS+3)}')
        a(f'v_add_f32 {vr(vL)}, {vr(vL)}, {vr(vT+1)}')
        a('s_nop 0')
        a(f'v_mfma_f32_16x16x16_bf16 {vr(vAz,4)}, {vr(vP,2)}, {vr(vVz_,2)}, {vr(vAz,4)}')
        if pf == 'U':
            a(f's_cmp_eq_u32 {sr(sCnt)}, 0')
            a('s_cbranch_scc1 L_vlast')
            a(f's_add_u32 {sr(sOffK)}, {sr(sOffK)}, {stride}')
            offsV(); ld_vs()
            a(f'v_add_u32 {vr(vSa)}, 256, {vr(vSa)}')
            a(f'ds_read_b128 {vr(vS,4)}, {vr(vSa)}')
            a('L_vlast_back:')
        elif first:
            a(f'v_add_u32 {vr(vSa)}, 256, {vr(vSa)}')
            a(f'ds_read_b128 {vr(vS,4)}, {vr(vSa)}')
        elif pf:
            a(f's_add_u32 {sr(sOffK)}, {sr(sOffK)}, {stride}')
            offsV(); ld_vs()
            a(f'v_add_u32 {vr(vSa)}, 256, {vr(vSa)}')
            a(f'ds_read_b128 {vr(vS,4)}, {vr(vSa)}')
        else:
            early_publish()
        def vpair(p):
            jp, h = p >> 1, p & 1
            for c in range(4):
                r0, r1 = vR_ + 8 * p + c, vR_ + 8 * p + 4 + c
                a(f'v_cvt_f32_i32 {vr(r0)}, {vr(r0)}')
                a(f'v_cvt_f32_i32 {vr(r1)}, {vr(r1)}')
                a(f'v_cvt_pk_bf16_f32 {vr(vPK+2*(4*h+c)+jp)}, {vr(r0)}, {vr(r1)}')
        if pf == 'U':
            a('s_waitcnt vmcnt(6)'); vpair(0); vpair(1)
            a('s_waitcnt vmcnt(2)'); vpair(2); vpair(3)
            a(f's_cmp_eq_u32 {sr(sCnt)}, 0')
            a('s_cbranch_scc1 L_vnoload')
            ld_V()
            a('L_vnoload:')
            a('s_nop 0')
        elif first:
            for p in range(4): vpair(p)
            a('s_nop 1')
        elif not pf:
            for p in range(4):
                a(f's_waitcnt vmcnt({6-2*p})'); vpair(p)
            a('s_nop 1')
        else:
            for p in range(rv):
                a('s_waitcnt vmcnt(8)')
                vpair(p); ld_V1(2*p); ld_V1(2*p+1)
            if rv < 4:
                if rv <= 1:
                    a(f's_waitcnt vmcnt({2+2*rv+4})')
                    for p in range(rv, 2): vpair(p)
                    a(f's_waitcnt vmcnt({2+2*rv})')
                    for p in range(2, 4): vpair(p)
                else:
                    a(f's_waitcnt vmcnt({2+2*rv})')
                    for p in range(rv, 4): vpair(p)
                for k in range(2*rv, 8): ld_V1(k)
        for i in range(8):
            a(f'v_mfma_f32_16x16x16_bf16 {vr(vAcc+4*i,4)}, {vr(vP,2)}, {vr(vPK+2*i,2)}, {vr(vAcc+4*i,4)}')

    if unify:
        assert not (pre0 or vlate or roll or rkO or rvO or rkE or rvE)
        a('L_kloop:')
        kstep('U', 0)
        if kbar: a('s_barrier')
        a(f's_sub_u32 {sr(sCnt)}, {sr(sCnt)}, 1')
        a('s_cbranch_scc0 L_kloop')
    else:
        split = (rkO, rvO) != (rkE, rvE)
        if split:
            a(f's_getreg_b32 {sr(sOdd)}, hwreg(HW_REG_XCC_ID)')
            a(f's_and_b32 {sr(sOdd)}, {sr(sOdd)}, 1')
        def kloop(tag, rk):
            a(f'L_kloop{tag}:')
            kstep('K', rk)
            if kbar: a('s_barrier')
            a(f's_sub_u32 {sr(sCnt)}, {sr(sCnt)}, 1')
            a(f's_cmp_lg_u32 {sr(sCnt)}, 0')
            a(f's_cbranch_scc1 L_kloop{tag}')
        if split and rkO != rkE:
            a(f's_cmp_lg_u32 {sr(sOdd)}, 0'); a('s_cbranch_scc1 L_kloopO')
            kloop('E', rkE); a('s_branch L_kdone')
            kloop('O', rkO); a('L_kdone:')
        else:
            kloop('', rkE if split or rkE else None)
        kstep('V')
        if kbar: a('s_barrier')
    stamp(2)
    a(f'v_subrev_u32 {vr(vSa)}, {NT*256}, {vr(vSa)}')
    a(f'v_mov_b32 {vr(vT+1)}, {vr(vM)}')
    a(f'ds_read_b128 {vr(vS,4)}, {vr(vSa)}')
    a('s_nop 0')
    a(f'v_permlane16_swap_b32 {vr(vM)}, {vr(vT+1)}')
    a(f'v_max_f32 {vr(vM)}, {vr(vM)}, {vr(vT+1)}')
    a(f'v_mov_b32 {vr(vT+1)}, {vr(vM)}')
    a('s_nop 1')
    a(f'v_permlane32_swap_b32 {vr(vM)}, {vr(vT+1)}')
    a(f'v_max_f32 {vr(vM)}, {vr(vM)}, {vr(vT+1)}')
    nv = NT - 1 - (1 if pre0 else 0)
    a(f's_mov_b32 {sr(sCnt)}, {nv}')
    if unify:
        a('L_vloop:')
        vstep('U', 0)
        if vbar: a('s_barrier')
        a(f's_sub_u32 {sr(sCnt)}, {sr(sCnt)}, 1')
        a('s_cbranch_scc0 L_vloop')
    else:
        if pre0: vstep(1, 0, True)
        if vlate: a(f's_mov_b32 {sr(sCnt)}, {nv-vlate}')
        def vloop(tag, rv):
            a(f'L_vloop{tag}:')
            vstep(1, rv)
            if vbar: a('s_barrier')
            a(f's_sub_u32 {sr(sCnt)}, {sr(sCnt)}, 1')
            a(f's_cmp_lg_u32 {sr(sCnt)}, 0')
            a(f's_cbranch_scc1 L_vloop{tag}')
        if split and rvO != rvE:
            a(f's_cmp_lg_u32 {sr(sOdd)}, 0'); a('s_cbranch_scc1 L_vloopO')
            vloop('E', rvE); a('s_branch L_vdone')
            vloop('O', rvO); a('L_vdone:')
        else:
            vloop('', rvE if split or rvE else None)
        if vlate:
            a(f's_mov_b32 {sr(sCnt)}, {vlate}')
            a('L_vloop2:')
            vstep(1, 4)
            if vbar: a('s_barrier')
            a(f's_sub_u32 {sr(sCnt)}, {sr(sCnt)}, 1')
            a(f's_cmp_lg_u32 {sr(sCnt)}, 0')
            a('s_cbranch_scc1 L_vloop2')
        vstep(0)
    stamp(3)
    a(f's_lshl_b32 {sr(sT0)}, {sr(sWave)}, 11')
    a(f's_add_u32 {sr(sT0)}, {sr(sT0)}, {OB}')
    a(f'v_add_u32 {vr(vT)}, {sr(sT0)}, {vr(vKsOff)}')
    a(f'v_lshlrev_b32 {vr(vT+1)}, 2, v0')
    a(f'v_add_u32 {vr(vT+2)}, {OB}, {vr(vT+1)}')
    a('s_mov_b64 exec, 0xffff')
    a('s_nop 1')
    for i in range(8):
        a(f'ds_write_b128 {vr(vT)}, {vr(vAcc+4*i,4)} offset:{i*256}')
    a('s_mov_b64 exec, -1')
    if idmap == 0: a(f's_mul_i32 {sr(sT1)}, s2, {PSTRIDE}')
    else:
        a(f's_lshl_b32 {sr(sT1)}, {sr(sHk)}, 4'); a(f's_add_u32 {sr(sT1)}, {sr(sT1)}, {sr(sJ)}'); a(f's_mul_i32 {sr(sT1)}, {sr(sT1)}, {PSTRIDE}')
    a(f's_add_u32 {sr(srdT)}, {sr(ws_)}, {sr(sT1)}')
    a(f's_addc_u32 {sr(srdT+1)}, {sr(ws_+1)}, 0')
    a(f's_and_b32 {sr(srdT+1)}, {sr(srdT+1)}, 0xffff')
    a(f's_mov_b32 {sr(srdT+2)}, {PSTRIDE}')
    a(f's_mov_b32 {sr(srdT+3)}, 0x20000')
    a('s_waitcnt lgkmcnt(0)')
    a('s_barrier')
    vOw = vR
    vRes = vR + 16
    vPo = vSa
    for ch in range(nch):
        for w in range(nw):
            a(f'ds_read_b32 {vr(vOw+ch*nw+w)}, {vr(vT+2)} offset:{w*2048+ch*nthr*4}')
    for ch in range(nch):
        a(f's_waitcnt lgkmcnt({(nch-1-ch)*nw})')
        a(f'v_fma_f32 {vr(vRes+ch)}, {vr(vF)}, {vr(vOw+ch*nw)}, -{vr(vZs)}')
        for w in range(1, nw):
            a(f'v_fmac_f32 {vr(vRes+ch)}, {vr(vF+w)}, {vr(vOw+ch*nw+w)}')
    stamp(4)
    if nch == 1 or not x2:
        for ch in range(nch):
            a(f'buffer_store_dword {vr(vRes+ch)}, {vr(vT+1)}, {sr(srdT,4)}, 0 offen offset:{ch*nthr*4} sc1')
    else:
        a(f'v_lshlrev_b32 {vr(vPo)}, 3, v0')
        a(f'buffer_store_dwordx2 {vr(vRes,2)}, {vr(vPo)}, {sr(srdT,4)}, 0 offen sc1')
    a('v_cmp_gt_u32 vcc, 4, v0')
    a(f's_and_saveexec_b64 {sr(sEx,2)}, vcc')
    a('s_cbranch_execz L_nost')
    a(f'buffer_store_dword {vr(vMx)}, {vr(vT+1)}, {sr(srdT,4)}, 0 offen offset:2048 sc1')
    a(f'buffer_store_dword {vr(vLs)}, {vr(vT+1)}, {sr(srdT,4)}, 0 offen offset:2064 sc1')
    a('L_nost:')
    a(f's_mov_b64 exec, {sr(sEx,2)}')
    a(f's_mov_b32 {sr(srdKS)}, {sr(dbg_)}')
    a(f's_and_b32 {sr(srdKS+1)}, {sr(dbg_+1)}, 0xffff')
    a(f's_mov_b32 {sr(srdKS+2)}, 256')
    a(f's_lshl_b32 {sr(sOffG)}, {sr(sHk)}, {cshift}')
    if coff: a(f's_add_u32 {sr(sOffG)}, {sr(sOffG)}, {coff}')
    a(f's_mul_i32 {sr(sT1)}, {sr(sHk)}, {P*PSTRIDE}')
    a(f's_add_u32 {sr(srdV)}, {sr(ws_)}, {sr(sT1)}')
    a(f's_addc_u32 {sr(srdV+1)}, {sr(ws_+1)}, 0')
    a(f's_and_b32 {sr(srdV+1)}, {sr(srdV+1)}, 0xffff')
    a(f's_mov_b32 {sr(srdV+2)}, {P*PSTRIDE}')
    a(f's_lshl_b32 {sr(sT1)}, {sr(sHk)}, 10')
    a(f's_add_u32 {sr(srdK)}, {sr(o_)}, {sr(sT1)}')
    a(f's_addc_u32 {sr(srdK+1)}, {sr(o_+1)}, 0')
    a(f's_and_b32 {sr(srdK+1)}, {sr(srdK+1)}, 0xffff')
    a(f's_mov_b32 {sr(srdK+2)}, 1024')
    vML = vT + 2; vBp = vT + 3; vOa = vT + 4
    a(f'v_and_b32 {vr(vBp)}, 3, {vr(vLane)}')
    a(f'v_lshlrev_b32 {vr(vBp)}, 6, {vr(vBp)}')
    a(f'v_and_b32 {vr(vML)}, 15, {vr(vLane)}')
    a(f'v_lshlrev_b32 {vr(vML)}, 12, {vr(vML)}')
    a(f'v_lshrrev_b32 {vr(vT+6)}, 4, {vr(vLane)}')
    a(f'v_lshl_add_u32 {vr(vML)}, {vr(vT+6)}, 2, {vr(vML)}')
    for ch in range(nch):
        e, x, y = vT + 6, vOa + ch, vT + 7
        a(f'v_add_u32 {vr(e)}, {ch*nthr}, v0')
        a(f'v_and_b32 {vr(x)}, 3, {vr(e)}'); a(f'v_lshlrev_b32 {vr(x)}, 7, {vr(x)}')
        a(f'v_lshrrev_b32 {vr(y)}, 8, {vr(e)}'); a(f'v_lshl_add_u32 {vr(x)}, {vr(y)}, 6, {vr(x)}')
        a(f'v_bfe_u32 {vr(y)}, {vr(e)}, 2, 4'); a(f'v_lshl_add_u32 {vr(x)}, {vr(y)}, 2, {vr(x)}')
        a(f'v_bfe_u32 {vr(y)}, {vr(e)}, 6, 2'); a(f'v_add_u32 {vr(x)}, {vr(x)}, {vr(y)}')
        a(f'v_lshlrev_b32 {vr(x)}, 1, {vr(x)}')
    a(f'v_mov_b32 {vr(vT+6)}, {TK}')
    a('s_waitcnt vmcnt(0)')
    stamp(5)
    a('s_barrier')
    a(f's_cmp_lg_u32 {sr(sWave)}, 0')
    a('s_cbranch_scc1 L_noat')
    a('s_mov_b64 exec, 1')
    a(f'v_mov_b32 {vr(vT+7)}, 1')
    a(f'v_mov_b32 {vr(vT)}, 0')
    a(f'buffer_atomic_add {vr(vT+7)}, {vr(vT)}, {sr(srdKS,4)}, {sr(sOffG)} offen sc0')
    a('s_waitcnt vmcnt(0)')
    a(f'ds_write_b32 {vr(vT+6)}, {vr(vT+7)}')
    a('s_mov_b64 exec, -1')
    a('s_waitcnt lgkmcnt(0)')
    a('L_noat:')
    a('s_barrier')
    a(f'ds_read_b32 {vr(vT+7)}, {vr(vT+6)}')
    a('s_waitcnt lgkmcnt(0)')
    a(f'v_readfirstlane_b32 {sr(sT0)}, {vr(vT+7)}')
    a('s_nop 3')
    stamp(6)
    a(f's_cmp_lg_u32 {sr(sT0)}, {P-1}')
    a('s_cbranch_scc1 L_notlast')
    cM, cL, x, y = vQB, vQB + 1, vQB + 2, vQB + 3
    cW = vPK
    cO = vR if nch == 1 else vAcc
    a(f'buffer_load_dword {vr(cM)}, {vr(vML)}, {sr(srdV,4)}, 0 offen offset:2048 sc1')
    a(f'buffer_load_dword {vr(cL)}, {vr(vML)}, {sr(srdV,4)}, 0 offen offset:2064 sc1')
    for w in range(P):
        a(f's_mov_b32 {sr(sT1)}, {w*PSTRIDE}')
        if nch == 1: a(f'buffer_load_dword {vr(cO+w)}, {vr(vT+1)}, {sr(srdV,4)}, {sr(sT1)} offen sc1')
        elif not x2:
            for ch in range(nch): a(f'buffer_load_dword {vr(cO+2*w+ch)}, {vr(vT+1)}, {sr(srdV,4)}, {sr(sT1)} offen offset:{ch*nthr*4} sc1')
        else: a(f'buffer_load_dwordx2 {vr(cO+2*w,2)}, {vr(vPo)}, {sr(srdV,4)}, {sr(sT1)} offen sc1')
    a(f's_waitcnt vmcnt({P if (nch == 1 or x2) else nch*P})')
    def allreduce(reg, op):
        for k in (1, 2, 4, 8):
            a('s_nop 1')
            a(f'{op}_dpp {vr(reg)}, {vr(reg)}, {vr(reg)} row_ror:{k} row_mask:0xf bank_mask:0xf')
    a(f'v_mov_b32 {vr(x)}, {vr(cM)}')
    allreduce(x, 'v_max_f32')
    a(f'v_sub_f32 {vr(cM)}, {vr(cM)}, {vr(x)}')
    a(f'v_exp_f32 {vr(cM)}, {vr(cM)}')
    a('s_nop 0')
    a(f'v_mul_f32 {vr(x)}, {vr(cM)}, {vr(cL)}')
    allreduce(x, 'v_add_f32')
    a(f'v_rcp_f32 {vr(cL)}, {vr(x)}')
    a('s_nop 0')
    a(f'v_mul_f32 {vr(cM)}, {vr(cM)}, {vr(cL)}')
    for w in range(P):
        a(f'ds_bpermute_b32 {vr(cW+w)}, {vr(vBp)}, {vr(cM)} offset:{4*w}')
    a('s_waitcnt vmcnt(0) lgkmcnt(0)')
    for ch in range(nch):
        o = (lambda w: cO + w) if nch == 1 else (lambda w: cO + 2 * w + ch)
        a(f'v_mul_f32 {vr(x)}, {vr(cW)}, {vr(o(0))}')
        for w in range(1, P): a(f'v_fmac_f32 {vr(x)}, {vr(cW+w)}, {vr(o(w))}')
        a(f'v_cvt_pk_bf16_f32 {vr(x)}, {vr(x)}, {vr(x)}')
        a(f'buffer_store_short {vr(x)}, {vr(vOa+ch)}, {sr(srdK,4)}, 0 offen {opol}')
    if dbgprof:
        a('s_waitcnt vmcnt(0)')
        a(f's_cmp_lg_u32 {sr(sWave)}, 0')
        a('s_cbranch_scc1 L_end')
        stamp(7)
        a(f's_memtime {sr(sTm+2,2)}')
        a('s_waitcnt lgkmcnt(0)')
        a('s_mov_b64 exec, 1')
        a(f'v_mov_b32 {vr(vT)}, 0')
        for i in range(1, 8):
            a(f's_sub_u32 {sr(sT0)}, {sr(sSt+2*i)}, {sr(sSt)}')
            a(f'v_mov_b32 {vr(vR+i)}, {sr(sT0)}')
        for i in range(1, 8):
            a(f'buffer_atomic_umax {vr(vR+i)}, {vr(vT)}, {sr(srdKS,4)}, 0 offen offset:{4*i}')
    a('L_notlast:')
    if prof == 2:
        a('s_waitcnt vmcnt(0)')
        stamp(7)
        a(f's_memtime {sr(sTm+2,2)}')
        a('s_waitcnt lgkmcnt(0)')
        a(f's_cmp_lg_u32 {sr(sWave)}, 0')
        a('s_cbranch_scc1 L_end')
        a(f's_add_u32 {sr(srdT)}, {sr(ws_)}, 0x4000000')
        a(f's_addc_u32 {sr(srdT+1)}, {sr(ws_+1)}, 0')
        a(f's_and_b32 {sr(srdT+1)}, {sr(srdT+1)}, 0xffff')
        a(f's_mov_b32 {sr(srdT+2)}, 0x100000')
        a(f's_lshl_b32 {sr(sT1)}, s2, 6')
        for i in range(8): a(f'v_mov_b32 {vr(vR+i)}, {sr(sSt+2*i)}')
        a(f's_getreg_b32 {sr(sT0)}, hwreg(HW_REG_XCC_ID)')
        a(f'v_mov_b32 {vr(vR+8)}, {sr(sT0)}')
        a(f's_getreg_b32 {sr(sT0)}, hwreg(HW_REG_HW_ID)')
        a(f'v_mov_b32 {vr(vR+9)}, {sr(sT0)}')
        a(f's_sub_u32 {sr(sT0)}, {sr(sTm+2)}, {sr(sTm)}')
        a(f'v_mov_b32 {vr(vR+10)}, {sr(sT0)}')
        a(f'v_mov_b32 {vr(vT)}, 0')
        a('s_mov_b64 exec, 1')
        a(f'buffer_store_dwordx4 {vr(vR,4)}, {vr(vT)}, {sr(srdT,4)}, {sr(sT1)} offen')
        a(f'buffer_store_dwordx4 {vr(vR+4,4)}, {vr(vT)}, {sr(srdT,4)}, {sr(sT1)} offen offset:16')
        a(f'buffer_store_dwordx4 {vr(vR+8,4)}, {vr(vT)}, {sr(srdT,4)}, {sr(sT1)} offen offset:32')
    if padto:
        a('s_waitcnt vmcnt(0) lgkmcnt(0)')
        a('L_pad:')
        a(f's_memrealtime {sr(sTm+2,2)}')
        a('s_waitcnt lgkmcnt(0)')
        a(f's_sub_u32 {sr(sT0)}, {sr(sTm+2)}, {sr(sTm)}')
        a(f's_cmp_lt_u32 {sr(sT0)}, {padto}')
        a('s_cbranch_scc1 L_pad')
    a('L_end:')
    a('s_endpgm')
    if unify:
        a('L_k2v_small:')
        a(f's_mov_b32 {sr(sOffK)}, {sr(sOff0)}')
        offsV(); ld_vs()
        a('s_branch L_k2v_small_back')
        a('L_k2v_big:')
        ld_V()
        a('s_branch L_k2v_big_back')
        a('L_vlast:')
        ld_vs()
        early_publish()
        a('s_branch L_vlast_back')
    main = '\n'.join(out)
    acc = min(256, (nvgpr + 3) // 4 * 4)
    kd = f'''.amdhsa_kernel {KN}
  .amdhsa_next_free_vgpr {nvgpr}
  .amdhsa_next_free_sgpr {S.n}
  .amdhsa_accum_offset {acc}
  .amdhsa_group_segment_fixed_size 0
  .amdhsa_kernarg_size 80
  .amdhsa_user_sgpr_count 2
  .amdhsa_user_sgpr_kernarg_segment_ptr 1
  .amdhsa_system_sgpr_workgroup_id_x 1
  .amdhsa_float_denorm_mode_32 3
.end_amdhsa_kernel
'''
    src = HEADCOMMENT + f'; @launch grid=({nwg},1,1) block=({nthr},1,1) lds={lds_bytes}\n'
    src += '.amdgcn_target "amdgcn-amd-amdhsa--gfx950"\n.text\n'
    src += f'.globl {KN}\n.p2align 8\n.type {KN},@function\n{main}\n'
    src += '.section .rodata,"a"\n.p2align 6\n' + kd
    return src, [(KN, nwg, nthr, lds_bytes)]

if __name__ == '__main__':
    import argparse
    ap = argparse.ArgumentParser()
    ap.add_argument('-o', default='out.s')
    ap.add_argument('kv', nargs='*')
    args = ap.parse_args()
    kw = {}
    for x in args.kv:
        k, v = x.split('=')
        try: v = int(v)
        except ValueError: pass
        kw[k] = v
    src, l = gen(**kw)
    open(args.o, 'w').write(src)
    print(l)
```

```python
import struct
KN = 'standalone__kv_cache_quant_int4_int2_kv_with_per_channel_or_per_token_scales__decode_kernel'

HEADCOMMENT = '''; KIVI-style quantised KV-cache decode attention (B=2, Hq=32, Hkv=8, Skv=32768, Dh=128), one fused launch.
;
'''

class Alloc:
    def __init__(self, start, limit):
        self.n = start; self.limit = limit
    def get(self, cnt=1, align=1):
        self.n = (self.n + align - 1) // align * align
        r = self.n; self.n += cnt
        assert self.n <= self.limit, self.n
        return r

def vr(r, n=1): return f'v{r}' if n == 1 else f'v[{r}:{r+n-1}]'
def sr(r, n=1): return f's{r}' if n == 1 else f's[{r}:{r+n-1}]'
def f32hex(x): return '0x%08x' % struct.unpack('<I', struct.pack('<f', x))[0]

PSTRIDE = 4096
QROW = 288
WLDS = 1536
CEXP = 0.08838834764831845 * 1.4426950408889634

def gen(nw=8, bar=1, pol='nt', spol='nt', nB=2, prof=0, dbgprof=0, coff=0, cshift=2, opol='', padto=0,
        wrot=0, perm='tr', minvgpr=176, kbar=None, vbar=None, minlds=0, roll=0, x2=0, vlate=0, rkO=0, rvO=0, rkE=0, rvE=0, pre0=0, unify=0, kfirst=0, idmap=0, tlbw=0, rot=0):
    P = 16
    nwg = 16 * P
    NT = 32768 // (P * nw * 16)
    nthr = nw * 64
    nch = 512 // nthr
    if kbar is None: kbar = bar
    if vbar is None: vbar = bar
    out = []
    a = out.append
    V = Alloc(1, 256); S = Alloc(3, 102)
    sWave = S.get()
    sKA = S.get(16, 4); sKB = S.get(4, 4)
    srdK = S.get(4, 4); srdV = S.get(4, 4); srdKS = S.get(4, 4); srdKZ = S.get(4, 4)
    srdVS = S.get(4, 4); srdVZ = S.get(4, 4); srdT = S.get(4, 4)
    sHk = S.get(); sJ = S.get()
    sOffK = S.get(); sOffS = S.get(); sOffG = S.get(); sOffK2 = S.get(); sOff0 = S.get()
    sCnt = S.get(); sT0 = S.get(); sT1 = S.get()
    sWm = S.get(12, 2) if tlbw else None
    sPh = S.get(); sPh0 = S.get()
    sMask = S.get(); sOdd = S.get(); sEx = S.get(2, 2); sQuad = S.get(2, 2)
    stamps = prof == 2 or dbgprof
    sSt = S.get(16, 2) if stamps else None
    sTm = S.get(4, 2) if (dbgprof or padto or prof == 2) else None
    def stamp(i):
        if stamps: a(f's_memrealtime {sr(sSt+2*i,2)}')
    vLane = V.get()
    vKoff = V.get(); vVoff = V.get(); vSoff = V.get(); vKsOff = V.get(); vKzOff = V.get()
    vKoffB = V.get(); vLqRB = V.get(); vLzRB = V.get()
    vLqW = V.get(); vLzW = V.get(); vLqR = V.get(); vLzR = V.get()
    vSa = V.get()
    vM = V.get(); vL = V.get()
    vT = V.get(8, 2)
    vQc = V.get(8, 4)
    vKs = V.get(4, 4); vKz = V.get(); vVs = V.get(2, 2); vVz = V.get(2, 2)
    vQw = V.get(4, 4); vP = V.get(2, 2); vS = V.get(4, 4); vAz = V.get(4, 4)
    vAcc = V.get(32, 4); vQB = V.get(16, 4); vPK = V.get(16, 4)
    vR = V.get(32, 4)
    vRB = V.get(32, 4) if pre0 else None
    vVs0 = V.get(2, 2) if pre0 else None; vVz0 = V.get(2, 2) if pre0 else None
    nvgpr = max(V.n, minvgpr)
    SB = nw * WLDS
    OB = SB + nw * NT * 256
    MB = OB + nw * 2048
    RS = nw * 4
    TK = MB + 12 * RS
    lds_bytes = max(TK + 16, minlds)

    a(f'{KN}:')
    a(f's_cmp_ge_u32 s2, {nwg}')
    a('s_cbranch_scc1 L_end')
    a(f's_load_dwordx16 {sr(sKA,16)}, s[0:1], 0')
    a(f's_load_dwordx4 {sr(sKB,4)}, s[0:1], 64')
    stamp(0)
    if dbgprof or prof == 2: a(f's_memtime {sr(sTm,2)}')
    if padto: a(f's_memrealtime {sr(sTm,2)}')
    a(f'v_lshrrev_b32 {vr(vT)}, 6, v0')
    a(f'v_and_b32 {vr(vLane)}, 63, v0')
    if idmap == 0:
        a(f's_lshr_b32 {sr(sHk)}, s2, 4')
        a(f'v_readfirstlane_b32 {sr(sWave)}, {vr(vT)}')
        a(f's_and_b32 {sr(sJ)}, s2, {P-1}')
    else:
        a(f's_and_b32 {sr(sHk)}, s2, 7')
        a(f'v_readfirstlane_b32 {sr(sWave)}, {vr(vT)}')
        a(f's_lshl_b32 {sr(sHk)}, {sr(sHk)}, 1')
        a(f's_lshr_b32 {sr(sJ)}, s2, 3')
        a(f's_and_b32 {sr(sT0)}, {sr(sJ)}, 1')
        a(f's_add_u32 {sr(sHk)}, {sr(sHk)}, {sr(sT0)}')
        a(f's_lshr_b32 {sr(sJ)}, s2, 4')
    n15, g4 = vT + 1, vT + 2
    def lane_rest():
        a(f'v_lshlrev_b32 {vr(vKsOff)}, 4, {vr(n15)}')
        a(f'v_lshl_add_u32 {vr(vVoff)}, {vr(g4)}, 11, {vr(vKsOff)}')
        a(f'v_lshlrev_b32 {vr(vSoff)}, 3, {vr(g4)}')
        a(f'v_lshlrev_b32 {vr(vKzOff)}, 2, {vr(vLane)}')
    a(f'v_and_b32 {vr(n15)}, 15, {vr(vLane)}')
    a(f'v_lshrrev_b32 {vr(g4)}, 4, {vr(vLane)}')
    a(f'v_lshlrev_b32 {vr(vT+3)}, 9, {vr(n15)}')
    a(f'v_lshl_add_u32 {vr(vKoff)}, {vr(g4)}, 4, {vr(vT+3)}')
    a(f'v_and_b32 {vr(vT+3)}, 7, {vr(vLane)}')
    a(f'v_lshlrev_b32 {vr(vT+3)}, 9, {vr(vT+3)}')
    a(f'v_lshrrev_b32 {vr(vT+4)}, 3, {vr(vLane)}')
    a(f'v_lshl_add_u32 {vr(vKoffB)}, {vr(vT+4)}, 4, {vr(vT+3)}')
    if not kfirst: lane_rest()
    stride = nw * 16 * 512
    G = {'tr': 1, 'seq': P}.get(perm) or int(perm[2:])
    if G == 1: a(f's_lshl_b32 {sr(sOff0)}, {sr(sJ)}, 20')
    else:
        a(f's_lshr_b32 {sr(sT0)}, {sr(sJ)}, {G.bit_length()-1}'); a(f's_mul_i32 {sr(sOff0)}, {sr(sT0)}, {G << 20}')
        a(f's_and_b32 {sr(sT0)}, {sr(sJ)}, {G-1}'); a(f's_mul_i32 {sr(sT0)}, {sr(sT0)}, {stride}')
        a(f's_add_u32 {sr(sOff0)}, {sr(sOff0)}, {sr(sT0)}')
    if wrot == 0: a(f's_lshl_b32 {sr(sT0)}, {sr(sWave)}, 13')
    else:
        if wrot == 3: a(f's_lshr_b32 {sr(sT0)}, s2, 3'); a(f's_and_b32 {sr(sT0)}, {sr(sT0)}, 1'); a(f's_lshl_b32 {sr(sT0)}, {sr(sT0)}, {(nw//2).bit_length()-1}'); a(f's_xor_b32 {sr(sT0)}, {sr(sT0)}, {sr(sWave)}')
        elif wrot == 8: a(f's_lshr_b32 {sr(sT0)}, s2, 3'); a(f's_and_b32 {sr(sT0)}, {sr(sT0)}, 3'); a(f's_lshl_b32 {sr(sT0)}, {sr(sT0)}, 1'); a(f's_xor_b32 {sr(sT0)}, {sr(sT0)}, {sr(sWave)}')
        elif wrot == 6: a(f's_lshr_b32 {sr(sT0)}, s2, 3'); a(f's_xor_b32 {sr(sT0)}, {sr(sT0)}, {sr(sWave)}')
        elif wrot == 13: a(f's_lshr_b32 {sr(sT0)}, s2, 4'); a(f's_and_b32 {sr(sT0)}, {sr(sT0)}, 1'); a(f's_lshl_b32 {sr(sT0)}, {sr(sT0)}, 1'); a(f's_xor_b32 {sr(sT0)}, {sr(sT0)}, {sr(sWave)}')
        elif wrot == 14: a(f's_lshr_b32 {sr(sT0)}, s2, 5'); a(f's_xor_b32 {sr(sT0)}, {sr(sT0)}, {sr(sWave)}')
        elif wrot == 15: a(f's_xor_b32 {sr(sT0)}, s2, {sr(sWave)}')
        elif wrot == 16: a(f's_and_b32 {sr(sT0)}, s2, 1'); a(f's_lshl_b32 {sr(sT0)}, {sr(sT0)}, 1'); a(f's_xor_b32 {sr(sT0)}, {sr(sT0)}, {sr(sWave)}')
        elif wrot == 17: a(f's_lshr_b32 {sr(sT0)}, s2, 3'); a(f's_xor_b32 {sr(sT0)}, {sr(sT0)}, s2'); a(f's_and_b32 {sr(sT0)}, {sr(sT0)}, 1'); a(f's_lshl_b32 {sr(sT0)}, {sr(sT0)}, 1'); a(f's_xor_b32 {sr(sT0)}, {sr(sT0)}, {sr(sWave)}')
        elif wrot == 18: a(f's_lshr_b32 {sr(sT0)}, s2, 5'); a(f's_and_b32 {sr(sT0)}, {sr(sT0)}, 1'); a(f's_lshl_b32 {sr(sT0)}, {sr(sT0)}, 1'); a(f's_xor_b32 {sr(sT0)}, {sr(sT0)}, {sr(sWave)}')
        a(f's_and_b32 {sr(sT0)}, {sr(sT0)}, {nw-1}')
        a(f's_lshl_b32 {sr(sT0)}, {sr(sT0)}, 13')
    a(f's_add_u32 {sr(sOff0)}, {sr(sOff0)}, {sr(sT0)}')
    stride = stride * G
    region = G << 20
    def first_off():
        if rot:
            a(f's_mov_b32 {sr(sPh)}, {sr(sPh0)}')
            a(f's_add_u32 {sr(sOffK)}, {sr(sOff0)}, {sr(sPh)}')
        else:
            a(f's_mov_b32 {sr(sOffK)}, {sr(sOff0)}')
    def next_off():
        if rot:
            a(f's_add_u32 {sr(sPh)}, {sr(sPh)}, {stride}')
            a(f's_and_b32 {sr(sPh)}, {sr(sPh)}, {region-1}')
            a(f's_add_u32 {sr(sOffK)}, {sr(sOff0)}, {sr(sPh)}')
        else:
            a(f's_add_u32 {sr(sOffK)}, {sr(sOffK)}, {stride}')
    if rot:
        nst = region // stride
        if rot == 1: a(f's_lshr_b32 {sr(sPh0)}, s2, 3'); a(f's_and_b32 {sr(sPh0)}, {sr(sPh0)}, 1'); a(f's_mul_i32 {sr(sPh0)}, {sr(sPh0)}, {nst//2}')
        elif rot == 2: a(f's_and_b32 {sr(sPh0)}, s2, 7'); a(f's_mul_i32 {sr(sPh0)}, {sr(sPh0)}, {nst//8}')
        elif rot == 3: a(f's_lshr_b32 {sr(sPh0)}, {sr(sJ)}, 1'); a(f's_mul_i32 {sr(sPh0)}, {sr(sPh0)}, {nst//8}')
        elif rot == 4: a(f's_and_b32 {sr(sPh0)}, s2, 1'); a(f's_mul_i32 {sr(sPh0)}, {sr(sPh0)}, {nst//2}')
        elif rot == 5: a(f's_lshr_b32 {sr(sPh0)}, s2, 3'); a(f's_and_b32 {sr(sPh0)}, {sr(sPh0)}, 1')
        elif rot == 6: a(f's_and_b32 {sr(sPh0)}, s2, 7')
        a(f's_mul_i32 {sr(sPh0)}, {sr(sPh0)}, {stride}')
        a(f's_and_b32 {sr(sPh0)}, {sr(sPh0)}, {region-1}')
    first_off()
    def offsK():
        a(f's_lshr_b32 {sr(sOffG)}, {sr(sOffK)}, 8')
        a(f's_and_b32 {sr(sOffG)}, {sr(sOffG)}, 0xffffff00')
        if nB: a(f's_add_u32 {sr(sOffK2)}, {sr(sOffK)}, 4096')
    def offsV():
        a(f's_lshr_b32 {sr(sOffS)}, {sr(sOffK)}, 8')
    offsK()
    a('s_waitcnt lgkmcnt(0)')
    def srd(dst, ptr, off_s, off_shift, nbytes):
        a(f's_lshl_b32 {sr(sT0)}, {sr(off_s)}, {off_shift}')
        a(f's_add_u32 {sr(dst)}, {sr(ptr)}, {sr(sT0)}')
        a(f's_addc_u32 {sr(dst+1)}, {sr(ptr+1)}, 0')
        a(f's_and_b32 {sr(dst+1)}, {sr(dst+1)}, 0xffff')
        a(f's_mov_b32 {sr(dst+2)}, {nbytes}')
        a(f's_mov_b32 {sr(dst+3)}, 0x20000')
    q_, qk_, qv_, ks_, kz_, vs_, vz_, o_ = [sKA + 2 * i for i in range(8)]
    dbg_, ws_ = sKB, sKB + 2
    def ld_ks():
        a(f'buffer_load_dwordx4 {vr(vKs,4)}, {vr(vKsOff)}, {sr(srdKS,4)}, {sr(sOffG)} offen {spol}')
        a(f'buffer_load_dword {vr(vKz)}, {vr(vKzOff)}, {sr(srdKZ,4)}, {sr(sOffG)} offen {spol}')
    def ld_K1(i):
        s = i // 2
        if s < 4 - nB:
            a(f'buffer_load_dwordx4 {vr(vR+4*i,4)}, {vr(vKoff)}, {sr(srdK,4)}, {sr(sOffK)} offen offset:{i*64} {pol}')
        else:
            a(f'buffer_load_dwordx4 {vr(vR+4*i,4)}, {vr(vKoffB)}, {sr(srdK,4)}, {sr(sOffK if i % 2 == 0 else sOffK2)} offen offset:{s*128} {pol}')
    def ld_K():
        for i in range(8): ld_K1(i)
    def ld_vs(rs=None, rz=None):
        rs = vVs if rs is None else rs; rz = vVz if rz is None else rz
        a(f'buffer_load_dwordx2 {vr(rs,2)}, {vr(vSoff)}, {sr(srdVS,4)}, {sr(sOffS)} offen {spol}')
        a(f'buffer_load_dwordx2 {vr(rz,2)}, {vr(vSoff)}, {sr(srdVZ,4)}, {sr(sOffS)} offen {spol}')
    VSEQ = [(0,0),(1,0),(0,1),(1,1),(2,0),(3,0),(2,1),(3,1)]
    def ld_V1(k, rb=None):
        j, h = VSEQ[k]
        rb = vR if rb is None else rb
        a(f'buffer_load_dwordx4 {vr(rb+4*k,4)}, {vr(vVoff)}, {sr(srdV,4)}, {sr(sOffK)} offen offset:{j*512+h*256} {pol}')
    def ld_V():
        for k in range(8): ld_V1(k)
    if pre0:
        srd(srdVS, vs_, sHk, 16, 1 << 16)
        srd(srdVZ, vz_, sHk, 16, 1 << 16)
        srd(srdV, qv_, sHk, 24, 1 << 24)
        offsV(); ld_vs(vVs0, vVz0)
        for k in range(8): ld_V1(k, vRB)
    if kfirst:
        srd(srdK, qk_, sHk, 24, 1 << 24)
        ld_K()
        lane_rest()
    srd(srdT, q_, sHk, 10, 1024)
    a(f'v_lshl_add_u32 {vr(vT+3)}, {vr(g4)}, 8, {vr(vKsOff)}')
    a(f'buffer_load_dwordx4 {vr(vQw,4)}, {vr(vT+3)}, {sr(srdT,4)}, 0 offen {spol}')
    srd(srdKS, ks_, sHk, 16, 1 << 16)
    srd(srdKZ, kz_, sHk, 16, 1 << 16)
    if kfirst:
        ld_ks()
    else:
        srd(srdK, qk_, sHk, 24, 1 << 24)
        ld_ks(); ld_K()
    if not pre0:
        srd(srdVS, vs_, sHk, 16, 1 << 16)
        srd(srdVZ, vz_, sHk, 16, 1 << 16)
        srd(srdV, qv_, sHk, 24, 1 << 24)
    if tlbw:
        if tlbw & 8:
            a(f's_cmp_lg_u32 {sr(sWave)}, 0'); a('s_cbranch_scc1 L_nowarm')
        slot = [0]
        def touch(lo, hi, off_s):
            b = sWm + 2 * slot[0]; dst = sWm + 10 + (slot[0] & 1); slot[0] += 1
            a(f's_add_u32 {sr(b)}, {sr(lo)}, {sr(off_s)}')
            a(f's_addc_u32 {sr(b+1)}, {sr(hi)}, 0')
            a(f's_load_dword {sr(dst)}, {sr(b,2)}, 0')
        if tlbw & 1:
            a(f's_lshl_b32 {sr(sT0)}, {sr(sHk)}, 24'); a(f's_add_u32 {sr(sT0)}, {sr(sT0)}, {sr(sOff0)}')
            touch(qv_, qv_ + 1, sT0)
        if tlbw & 2:
            a(f's_lshl_b32 {sr(sT0)}, {sr(sHk)}, 16')
            touch(vs_, vs_ + 1, sT0)
            touch(vz_, vz_ + 1, sT0)
        if tlbw & 4:
            a(f's_lshl_b32 {sr(sT0)}, {sr(sHk)}, 16')
            touch(ws_, ws_ + 1, sT0)
            a(f's_lshl_b32 {sr(sT0)}, {sr(sHk)}, 10')
            touch(o_, o_ + 1, sT0)
        if tlbw & 8: a('L_nowarm:')
    a(f's_mul_i32 {sr(sT0)}, {sr(sWave)}, {WLDS}')
    a(f'v_mul_u32_u24 {vr(vT+3)}, {QROW}, {vr(g4)}')
    a(f'v_add3_u32 {vr(vLqW)}, {vr(vT+3)}, {vr(vKsOff)}, {sr(sT0)}')
    a(f'v_add_u32 {vr(vLzW)}, {sr(sT0)}, {vr(vKzOff)}')
    a(f'v_add_u32 {vr(vLzW)}, {4*QROW}, {vr(vLzW)}')
    a(f'v_and_b32 {vr(vT+4)}, 3, {vr(vLane)}')
    a(f'v_mul_u32_u24 {vr(vT+3)}, {QROW}, {vr(vT+4)}')
    a(f'v_add3_u32 {vr(vLqR)}, {vr(vT+3)}, {vr(vSoff)}, {sr(sT0)}')
    a(f'v_add_u32 {vr(vLzR)}, {sr(sT0)}, {vr(vSoff)}')
    a(f'v_add_u32 {vr(vLzR)}, {4*QROW}, {vr(vLzR)}')
    a(f'v_add_u32 {vr(vLqRB)}, {vr(vLqR)}, {vr(vSoff)}')
    a(f'v_add_u32 {vr(vLzRB)}, {vr(vLzR)}, {vr(vSoff)}')
    a(f's_mul_i32 {sr(sT0)}, {sr(sWave)}, {NT*256}')
    a(f's_add_u32 {sr(sT0)}, {sr(sT0)}, {SB}')
    a(f'v_lshlrev_b32 {vr(vT+4)}, 4, {vr(vT+4)}')
    a(f'v_lshl_add_u32 {vr(vSa)}, {vr(g4)}, 6, {vr(vT+4)}')
    a(f'v_add_u32 {vr(vSa)}, {sr(sT0)}, {vr(vSa)}')
    a(f's_mov_b32 {sr(sMask)}, 0xffff0000')
    a(f's_mov_b32 {sr(sQuad)}, 0x000f000f')
    a(f's_mov_b32 {sr(sQuad+1)}, 0x000f000f')
    a(f'v_mov_b32 {vr(vM)}, 0xff800000')
    a(f'v_mov_b32 {vr(vL)}, 0')
    for i in range(4): a(f'v_mov_b32 {vr(vAz+i)}, 0')
    for i in range(32): a(f'v_mov_b32 {vr(vAcc+i)}, 0')
    a(f's_mov_b32 {sr(sT1)}, {f32hex(CEXP)}')
    a(f's_mov_b32 {sr(sCnt)}, {NT-1}')
    a('s_waitcnt vmcnt(0)' if kfirst else 's_waitcnt vmcnt(10)')
    stamp(1)
    for i in range(4):
        a(f'v_lshlrev_b32 {vr(vQc+2*i)}, 16, {vr(vQw+i)}')
        a(f'v_and_b32 {vr(vQc+2*i+1)}, {sr(sMask)}, {vr(vQw+i)}')
    for i in range(8):
        a(f'v_mul_f32 {vr(vQc+i)}, {sr(sT1)}, {vr(vQc+i)}')

    def kstep(nxt, rk=None):
        a('s_waitcnt vmcnt(8)')
        for i in range(4):
            a(f'v_lshlrev_b32 {vr(vT)}, 16, {vr(vKs+i)}')
            a(f'v_and_b32 {vr(vT+1)}, {sr(sMask)}, {vr(vKs+i)}')
            a(f'v_mul_f32 {vr(vT)}, {vr(vT)}, {vr(vQc+2*i)}')
            a(f'v_mul_f32 {vr(vT+1)}, {vr(vT+1)}, {vr(vQc+2*i+1)}')
            a(f'v_cvt_pk_bf16_f32 {vr(vQw+i)}, {vr(vT)}, {vr(vT+1)}')
        a(f'v_xor_b32 {vr(vT+2)}, 0x80008000, {vr(vKz)}')
        a(f'ds_write_b128 {vr(vLqW)}, {vr(vQw,4)}')
        a(f'ds_write_b32 {vr(vLzW)}, {vr(vT+2)}')
        if nxt == 'U':
            a(f's_cmp_eq_u32 {sr(sCnt)}, 0')
            a('s_cbranch_scc1 L_k2v_small')
            next_off()
            offsK(); ld_ks()
            a('L_k2v_small_back:')
        elif nxt == 'K':
            next_off()
            offsK(); ld_ks()
        else:
            if pre0: a(f's_add_u32 {sr(sOffK)}, {sr(sOff0)}, {stride}')
            else: first_off()
            offsV(); ld_vs()
        for s in range(4):
            if s < 4 - nB: a(f'ds_read2_b64 {vr(vQB+4*s,4)}, {vr(vLqR)} offset0:{8*s} offset1:{8*s+4}')
            else: a(f'ds_read_b128 {vr(vQB+4*s,4)}, {vr(vLqRB)} offset:{64*s}')
        for s in range(4):
            if s < 4 - nB: a(f'ds_read2_b64 {vr(vPK+4*s,4)}, {vr(vLzR)} offset0:{8*s} offset1:{8*s+4}')
            else: a(f'ds_read_b128 {vr(vPK+4*s,4)}, {vr(vLzRB)} offset:{64*s}')
        a('s_waitcnt lgkmcnt(0)')
        for s in range(4):
            c = '0' if s == 0 else vr(vS, 4)
            a(f'v_mfma_f32_16x16x32_bf16 {vr(vS,4)}, {vr(vPK+4*s,4)}, {vr(vQB+4*s,4)}, {c}')
        if rk is None: rk = 8 if roll in (1, 2) else 0
        def kcvt(i):
            for c in range(4):
                a(f'v_cvt_f32_i32 {vr(vR+4*i+c)}, {vr(vR+4*i+c)}')
            d = vPK + 4 * (i // 2) + 2 * (i % 2)
            a(f'v_cvt_pk_bf16_f32 {vr(d)}, {vr(vR+4*i)}, {vr(vR+4*i+1)}')
            a(f'v_cvt_pk_bf16_f32 {vr(d+1)}, {vr(vR+4*i+2)}, {vr(vR+4*i+3)}')
        if nxt == 'U':
            a('s_waitcnt vmcnt(2)')
            for i in range(8): kcvt(i)
            a(f's_cmp_eq_u32 {sr(sCnt)}, 0')
            a('s_cbranch_scc1 L_k2v_big')
            ld_K()
            a('L_k2v_big_back:')
        else:
            nld = ld_K1 if nxt == 'K' else ld_V1
            for i in range(rk):
                a('s_waitcnt vmcnt(9)')
                kcvt(i); nld(i)
            if rk < 8:
                a(f's_waitcnt vmcnt({2+rk})')
                for i in range(rk, 8): kcvt(i)
                for i in range(rk, 8): nld(i)
        for s in range(4 - nB, 4):
            a(f'v_mov_b32 {vr(vT)}, {vr(vPK+4*s)}')
            a(f'v_mov_b32 {vr(vT+1)}, {vr(vPK+4*s+1)}')
            a('s_nop 0')
            a(f'v_mov_b32_dpp {vr(vPK+4*s)}, {vr(vPK+4*s+2)} row_ror:8 row_mask:0xf bank_mask:0xc')
            a(f'v_mov_b32_dpp {vr(vPK+4*s+1)}, {vr(vPK+4*s+3)} row_ror:8 row_mask:0xf bank_mask:0xc')
            a(f'v_mov_b32_dpp {vr(vPK+4*s+2)}, {vr(vT)} row_ror:8 row_mask:0xf bank_mask:0x3')
            a(f'v_mov_b32_dpp {vr(vPK+4*s+3)}, {vr(vT+1)} row_ror:8 row_mask:0xf bank_mask:0x3')
        a('s_nop 1')
        for s in range(4):
            a(f'v_mfma_f32_16x16x32_bf16 {vr(vS,4)}, {vr(vPK+4*s,4)}, {vr(vQB+4*s,4)}, {vr(vS,4)}')
        a('s_nop 7')
        a(f's_mov_b64 exec, {sr(sQuad,2)}')
        a(f'ds_write_b128 {vr(vSa)}, {vr(vS,4)}')
        a('s_mov_b64 exec, -1')
        a(f'v_max3_f32 {vr(vM)}, {vr(vS)}, {vr(vS+1)}, {vr(vM)}')
        a(f'v_max3_f32 {vr(vM)}, {vr(vS+2)}, {vr(vS+3)}, {vr(vM)}')
        a(f'v_add_u32 {vr(vSa)}, 256, {vr(vSa)}')

    vF = vQB
    vLw = vQB + 8
    vZw = vQc
    vMx, vLs, vZs = vKs, vKs + 1, vKs + 2
    def early_publish():
        a(f'v_mov_b32 {vr(vT+1)}, {vr(vL)}')
        a('s_nop 1')
        a(f'v_permlane16_swap_b32 {vr(vL)}, {vr(vT+1)}')
        a(f'v_add_f32 {vr(vL)}, {vr(vL)}, {vr(vT+1)}')
        a(f'v_mov_b32 {vr(vT+1)}, {vr(vL)}')
        a('s_nop 1')
        a(f'v_permlane32_swap_b32 {vr(vL)}, {vr(vT+1)}')
        a(f'v_add_f32 {vr(vL)}, {vr(vL)}, {vr(vT+1)}')
        a(f's_lshl_b32 {sr(sT1)}, {sr(sWave)}, 2')
        a(f's_add_u32 {sr(sT1)}, {sr(sT1)}, {MB}')
        a(f'v_mul_u32_u24 {vr(vT+2)}, {RS}, {vr(vLane)}')
        a(f'v_add_u32 {vr(vT+2)}, {sr(sT1)}, {vr(vT+2)}')
        a('s_mov_b64 exec, 0xf')
        a(f'ds_write_b32 {vr(vT+2)}, {vr(vM)}')
        a(f'ds_write_b32 {vr(vT+2)}, {vr(vL)} offset:{4*RS}')
        a('s_mov_b64 exec, 1')
        for r in range(4):
            a(f'ds_write_b32 {vr(vT+2)}, {vr(vAz+r)} offset:{8*RS+r*RS}')
        a('s_mov_b64 exec, -1')
        a(f'v_and_b32 {vr(vT)}, 3, v0')
        a(f'v_mul_u32_u24 {vr(vT)}, {RS}, {vr(vT)}')
        a(f'v_add_u32 {vr(vT)}, {MB}, {vr(vT)}')
        a('s_waitcnt lgkmcnt(0)')
        a('s_barrier')
        for k in range(nw // 4):
            a(f'ds_read_b128 {vr(vF+4*k,4)}, {vr(vT)} offset:{16*k}')
            a(f'ds_read_b128 {vr(vLw+4*k,4)}, {vr(vT)} offset:{4*RS+16*k}')
            a(f'ds_read_b128 {vr(vZw+4*k,4)}, {vr(vT)} offset:{8*RS+16*k}')
        a('s_waitcnt lgkmcnt(0)')
        a(f'v_max3_f32 {vr(vMx)}, {vr(vF)}, {vr(vF+1)}, {vr(vF+2)}')
        for w in range(3, nw): a(f'v_max_f32 {vr(vMx)}, {vr(vMx)}, {vr(vF+w)}')
        for w in range(nw): a(f'v_sub_f32 {vr(vF+w)}, {vr(vF+w)}, {vr(vMx)}')
        for w in range(nw): a(f'v_exp_f32 {vr(vF+w)}, {vr(vF+w)}')
        a('s_nop 0')
        a(f'v_mul_f32 {vr(vLs)}, {vr(vF)}, {vr(vLw)}')
        a(f'v_mul_f32 {vr(vZs)}, {vr(vF)}, {vr(vZw)}')
        for w in range(1, nw):
            a(f'v_fmac_f32 {vr(vLs)}, {vr(vF+w)}, {vr(vLw+w)}')
            a(f'v_fmac_f32 {vr(vZs)}, {vr(vF+w)}, {vr(vZw+w)}')

    def vstep(pf, rv=None, first=False):
        if rv is None: rv = 4 if roll in (1, 3) else 0
        vVs_, vVz_, vR_ = (vVs0, vVz0, vRB) if first else (vVs, vVz, vR)
        f = vT + 4
        a('s_waitcnt lgkmcnt(0)' if first else 's_waitcnt vmcnt(8) lgkmcnt(0)')
        a(f'v_lshlrev_b32 {vr(f)}, 16, {vr(vVs_)}')
        a(f'v_and_b32 {vr(f+1)}, {sr(sMask)}, {vr(vVs_)}')
        a(f'v_lshlrev_b32 {vr(f+2)}, 16, {vr(vVs_+1)}')
        a(f'v_and_b32 {vr(f+3)}, {sr(sMask)}, {vr(vVs_+1)}')
        for r in range(4): a(f'v_sub_f32 {vr(vS+r)}, {vr(vS+r)}, {vr(vM)}')
        for r in range(4): a(f'v_exp_f32 {vr(vS+r)}, {vr(vS+r)}')
        a('s_nop 0')
        a(f'v_add_f32 {vr(vT)}, {vr(vS)}, {vr(vS+1)}')
        a(f'v_add_f32 {vr(vT+1)}, {vr(vS+2)}, {vr(vS+3)}')
        for r in range(4): a(f'v_mul_f32 {vr(vS+r)}, {vr(vS+r)}, {vr(f+r)}')
        a(f'v_add_f32 {vr(vL)}, {vr(vL)}, {vr(vT)}')
        a(f'v_cvt_pk_bf16_f32 {vr(vP)}, {vr(vS)}, {vr(vS+1)}')
        a(f'v_cvt_pk_bf16_f32 {vr(vP+1)}, {vr(vS+2)}, {vr(vS+3)}')
        a(f'v_add_f32 {vr(vL)}, {vr(vL)}, {vr(vT+1)}')
        a('s_nop 0')
        a(f'v_mfma_f32_16x16x16_bf16 {vr(vAz,4)}, {vr(vP,2)}, {vr(vVz_,2)}, {vr(vAz,4)}')
        if pf == 'U':
            a(f's_cmp_eq_u32 {sr(sCnt)}, 0')
            a('s_cbranch_scc1 L_vlast')
            next_off()
            offsV(); ld_vs()
            a(f'v_add_u32 {vr(vSa)}, 256, {vr(vSa)}')
            a(f'ds_read_b128 {vr(vS,4)}, {vr(vSa)}')
            a('L_vlast_back:')
        elif first:
            a(f'v_add_u32 {vr(vSa)}, 256, {vr(vSa)}')
            a(f'ds_read_b128 {vr(vS,4)}, {vr(vSa)}')
        elif pf:
            next_off()
            offsV(); ld_vs()
            a(f'v_add_u32 {vr(vSa)}, 256, {vr(vSa)}')
            a(f'ds_read_b128 {vr(vS,4)}, {vr(vSa)}')
        else:
            early_publish()
        def vpair(p):
            jp, h = p >> 1, p & 1
            for c in range(4):
                r0, r1 = vR_ + 8 * p + c, vR_ + 8 * p + 4 + c
                a(f'v_cvt_f32_i32 {vr(r0)}, {vr(r0)}')
                a(f'v_cvt_f32_i32 {vr(r1)}, {vr(r1)}')
                a(f'v_cvt_pk_bf16_f32 {vr(vPK+2*(4*h+c)+jp)}, {vr(r0)}, {vr(r1)}')
        if pf == 'U':
            a('s_waitcnt vmcnt(6)'); vpair(0); vpair(1)
            a('s_waitcnt vmcnt(2)'); vpair(2); vpair(3)
            a(f's_cmp_eq_u32 {sr(sCnt)}, 0')
            a('s_cbranch_scc1 L_vnoload')
            ld_V()
            a('L_vnoload:')
            a('s_nop 0')
        elif first:
            for p in range(4): vpair(p)
            a('s_nop 1')
        elif not pf:
            for p in range(4):
                a(f's_waitcnt vmcnt({6-2*p})'); vpair(p)
            a('s_nop 1')
        else:
            for p in range(rv):
                a('s_waitcnt vmcnt(8)')
                vpair(p); ld_V1(2*p); ld_V1(2*p+1)
            if rv < 4:
                if rv <= 1:
                    a(f's_waitcnt vmcnt({2+2*rv+4})')
                    for p in range(rv, 2): vpair(p)
                    a(f's_waitcnt vmcnt({2+2*rv})')
                    for p in range(2, 4): vpair(p)
                else:
                    a(f's_waitcnt vmcnt({2+2*rv})')
                    for p in range(rv, 4): vpair(p)
                for k in range(2*rv, 8): ld_V1(k)
        for i in range(8):
            a(f'v_mfma_f32_16x16x16_bf16 {vr(vAcc+4*i,4)}, {vr(vP,2)}, {vr(vPK+2*i,2)}, {vr(vAcc+4*i,4)}')

    if unify:
        assert not (pre0 or vlate or roll or rkO or rvO or rkE or rvE)
        a('L_kloop:')
        kstep('U', 0)
        if kbar: a('s_barrier')
        a(f's_sub_u32 {sr(sCnt)}, {sr(sCnt)}, 1')
        a('s_cbranch_scc0 L_kloop')
    else:
        split = (rkO, rvO) != (rkE, rvE)
        if split:
            a(f's_getreg_b32 {sr(sOdd)}, hwreg(HW_REG_XCC_ID)')
            a(f's_and_b32 {sr(sOdd)}, {sr(sOdd)}, 1')
        def kloop(tag, rk):
            a(f'L_kloop{tag}:')
            kstep('K', rk)
            if kbar: a('s_barrier')
            a(f's_sub_u32 {sr(sCnt)}, {sr(sCnt)}, 1')
            a(f's_cmp_lg_u32 {sr(sCnt)}, 0')
            a(f's_cbranch_scc1 L_kloop{tag}')
        if split and rkO != rkE:
            a(f's_cmp_lg_u32 {sr(sOdd)}, 0'); a('s_cbranch_scc1 L_kloopO')
            kloop('E', rkE); a('s_branch L_kdone')
            kloop('O', rkO); a('L_kdone:')
        else:
            kloop('', rkE if split or rkE else None)
        kstep('V')
        if kbar: a('s_barrier')
    stamp(2)
    a(f'v_subrev_u32 {vr(vSa)}, {NT*256}, {vr(vSa)}')
    a(f'v_mov_b32 {vr(vT+1)}, {vr(vM)}')
    a(f'ds_read_b128 {vr(vS,4)}, {vr(vSa)}')
    a('s_nop 0')
    a(f'v_permlane16_swap_b32 {vr(vM)}, {vr(vT+1)}')
    a(f'v_max_f32 {vr(vM)}, {vr(vM)}, {vr(vT+1)}')
    a(f'v_mov_b32 {vr(vT+1)}, {vr(vM)}')
    a('s_nop 1')
    a(f'v_permlane32_swap_b32 {vr(vM)}, {vr(vT+1)}')
    a(f'v_max_f32 {vr(vM)}, {vr(vM)}, {vr(vT+1)}')
    nv = NT - 1 - (1 if pre0 else 0)
    a(f's_mov_b32 {sr(sCnt)}, {nv}')
    if unify:
        a('L_vloop:')
        vstep('U', 0)
        if vbar: a('s_barrier')
        a(f's_sub_u32 {sr(sCnt)}, {sr(sCnt)}, 1')
        a('s_cbranch_scc0 L_vloop')
    else:
        if pre0: vstep(1, 0, True)
        if vlate: a(f's_mov_b32 {sr(sCnt)}, {nv-vlate}')
        def vloop(tag, rv):
            a(f'L_vloop{tag}:')
            vstep(1, rv)
            if vbar: a('s_barrier')
            a(f's_sub_u32 {sr(sCnt)}, {sr(sCnt)}, 1')
            a(f's_cmp_lg_u32 {sr(sCnt)}, 0')
            a(f's_cbranch_scc1 L_vloop{tag}')
        if split and rvO != rvE:
            a(f's_cmp_lg_u32 {sr(sOdd)}, 0'); a('s_cbranch_scc1 L_vloopO')
            vloop('E', rvE); a('s_branch L_vdone')
            vloop('O', rvO); a('L_vdone:')
        else:
            vloop('', rvE if split or rvE else None)
        if vlate:
            a(f's_mov_b32 {sr(sCnt)}, {vlate}')
            a('L_vloop2:')
            vstep(1, 4)
            if vbar: a('s_barrier')
            a(f's_sub_u32 {sr(sCnt)}, {sr(sCnt)}, 1')
            a(f's_cmp_lg_u32 {sr(sCnt)}, 0')
            a('s_cbranch_scc1 L_vloop2')
        vstep(0)
    stamp(3)
    a(f's_lshl_b32 {sr(sT0)}, {sr(sWave)}, 11')
    a(f's_add_u32 {sr(sT0)}, {sr(sT0)}, {OB}')
    a(f'v_add_u32 {vr(vT)}, {sr(sT0)}, {vr(vKsOff)}')
    a(f'v_lshlrev_b32 {vr(vT+1)}, 2, v0')
    a(f'v_add_u32 {vr(vT+2)}, {OB}, {vr(vT+1)}')
    a('s_mov_b64 exec, 0xffff')
    a('s_nop 1')
    for i in range(8):
        a(f'ds_write_b128 {vr(vT)}, {vr(vAcc+4*i,4)} offset:{i*256}')
    a('s_mov_b64 exec, -1')
    if idmap == 0: a(f's_mul_i32 {sr(sT1)}, s2, {PSTRIDE}')
    else:
        a(f's_lshl_b32 {sr(sT1)}, {sr(sHk)}, 4'); a(f's_add_u32 {sr(sT1)}, {sr(sT1)}, {sr(sJ)}'); a(f's_mul_i32 {sr(sT1)}, {sr(sT1)}, {PSTRIDE}')
    a(f's_add_u32 {sr(srdT)}, {sr(ws_)}, {sr(sT1)}')
    a(f's_addc_u32 {sr(srdT+1)}, {sr(ws_+1)}, 0')
    a(f's_and_b32 {sr(srdT+1)}, {sr(srdT+1)}, 0xffff')
    a(f's_mov_b32 {sr(srdT+2)}, {PSTRIDE}')
    a(f's_mov_b32 {sr(srdT+3)}, 0x20000')
    a('s_waitcnt lgkmcnt(0)')
    a('s_barrier')
    vOw = vR
    vRes = vR + 16
    vPo = vSa
    for ch in range(nch):
        for w in range(nw):
            a(f'ds_read_b32 {vr(vOw+ch*nw+w)}, {vr(vT+2)} offset:{w*2048+ch*nthr*4}')
    for ch in range(nch):
        a(f's_waitcnt lgkmcnt({(nch-1-ch)*nw})')
        a(f'v_fma_f32 {vr(vRes+ch)}, {vr(vF)}, {vr(vOw+ch*nw)}, -{vr(vZs)}')
        for w in range(1, nw):
            a(f'v_fmac_f32 {vr(vRes+ch)}, {vr(vF+w)}, {vr(vOw+ch*nw+w)}')
    stamp(4)
    if nch == 1 or not x2:
        for ch in range(nch):
            a(f'buffer_store_dword {vr(vRes+ch)}, {vr(vT+1)}, {sr(srdT,4)}, 0 offen offset:{ch*nthr*4} sc1')
    else:
        a(f'v_lshlrev_b32 {vr(vPo)}, 3, v0')
        a(f'buffer_store_dwordx2 {vr(vRes,2)}, {vr(vPo)}, {sr(srdT,4)}, 0 offen sc1')
    a('v_cmp_gt_u32 vcc, 4, v0')
    a(f's_and_saveexec_b64 {sr(sEx,2)}, vcc')
    a('s_cbranch_execz L_nost')
    a(f'buffer_store_dword {vr(vMx)}, {vr(vT+1)}, {sr(srdT,4)}, 0 offen offset:2048 sc1')
    a(f'buffer_store_dword {vr(vLs)}, {vr(vT+1)}, {sr(srdT,4)}, 0 offen offset:2064 sc1')
    a('L_nost:')
    a(f's_mov_b64 exec, {sr(sEx,2)}')
    a(f's_mov_b32 {sr(srdKS)}, {sr(dbg_)}')
    a(f's_and_b32 {sr(srdKS+1)}, {sr(dbg_+1)}, 0xffff')
    a(f's_mov_b32 {sr(srdKS+2)}, 256')
    a(f's_lshl_b32 {sr(sOffG)}, {sr(sHk)}, {cshift}')
    if coff: a(f's_add_u32 {sr(sOffG)}, {sr(sOffG)}, {coff}')
    a(f's_mul_i32 {sr(sT1)}, {sr(sHk)}, {P*PSTRIDE}')
    a(f's_add_u32 {sr(srdV)}, {sr(ws_)}, {sr(sT1)}')
    a(f's_addc_u32 {sr(srdV+1)}, {sr(ws_+1)}, 0')
    a(f's_and_b32 {sr(srdV+1)}, {sr(srdV+1)}, 0xffff')
    a(f's_mov_b32 {sr(srdV+2)}, {P*PSTRIDE}')
    a(f's_lshl_b32 {sr(sT1)}, {sr(sHk)}, 10')
    a(f's_add_u32 {sr(srdK)}, {sr(o_)}, {sr(sT1)}')
    a(f's_addc_u32 {sr(srdK+1)}, {sr(o_+1)}, 0')
    a(f's_and_b32 {sr(srdK+1)}, {sr(srdK+1)}, 0xffff')
    a(f's_mov_b32 {sr(srdK+2)}, 1024')
    vML = vT + 2; vBp = vT + 3; vOa = vT + 4
    a(f'v_and_b32 {vr(vBp)}, 3, {vr(vLane)}')
    a(f'v_lshlrev_b32 {vr(vBp)}, 6, {vr(vBp)}')
    a(f'v_and_b32 {vr(vML)}, 15, {vr(vLane)}')
    a(f'v_lshlrev_b32 {vr(vML)}, 12, {vr(vML)}')
    a(f'v_lshrrev_b32 {vr(vT+6)}, 4, {vr(vLane)}')
    a(f'v_lshl_add_u32 {vr(vML)}, {vr(vT+6)}, 2, {vr(vML)}')
    for ch in range(nch):
        e, x, y = vT + 6, vOa + ch, vT + 7
        a(f'v_add_u32 {vr(e)}, {ch*nthr}, v0')
        a(f'v_and_b32 {vr(x)}, 3, {vr(e)}'); a(f'v_lshlrev_b32 {vr(x)}, 7, {vr(x)}')
        a(f'v_lshrrev_b32 {vr(y)}, 8, {vr(e)}'); a(f'v_lshl_add_u32 {vr(x)}, {vr(y)}, 6, {vr(x)}')
        a(f'v_bfe_u32 {vr(y)}, {vr(e)}, 2, 4'); a(f'v_lshl_add_u32 {vr(x)}, {vr(y)}, 2, {vr(x)}')
        a(f'v_bfe_u32 {vr(y)}, {vr(e)}, 6, 2'); a(f'v_add_u32 {vr(x)}, {vr(x)}, {vr(y)}')
        a(f'v_lshlrev_b32 {vr(x)}, 1, {vr(x)}')
    a(f'v_mov_b32 {vr(vT+6)}, {TK}')
    a('s_waitcnt vmcnt(0)')
    stamp(5)
    a('s_barrier')
    a(f's_cmp_lg_u32 {sr(sWave)}, 0')
    a('s_cbranch_scc1 L_noat')
    a('s_mov_b64 exec, 1')
    a(f'v_mov_b32 {vr(vT+7)}, 1')
    a(f'v_mov_b32 {vr(vT)}, 0')
    a(f'buffer_atomic_add {vr(vT+7)}, {vr(vT)}, {sr(srdKS,4)}, {sr(sOffG)} offen sc0')
    a('s_waitcnt vmcnt(0)')
    a(f'ds_write_b32 {vr(vT+6)}, {vr(vT+7)}')
    a('s_mov_b64 exec, -1')
    a('s_waitcnt lgkmcnt(0)')
    a('L_noat:')
    a('s_barrier')
    a(f'ds_read_b32 {vr(vT+7)}, {vr(vT+6)}')
    a('s_waitcnt lgkmcnt(0)')
    a(f'v_readfirstlane_b32 {sr(sT0)}, {vr(vT+7)}')
    a('s_nop 3')
    stamp(6)
    a(f's_cmp_lg_u32 {sr(sT0)}, {P-1}')
    a('s_cbranch_scc1 L_notlast')
    cM, cL, x, y = vQB, vQB + 1, vQB + 2, vQB + 3
    cW = vPK
    cO = vR if nch == 1 else vAcc
    a(f'buffer_load_dword {vr(cM)}, {vr(vML)}, {sr(srdV,4)}, 0 offen offset:2048 sc1')
    a(f'buffer_load_dword {vr(cL)}, {vr(vML)}, {sr(srdV,4)}, 0 offen offset:2064 sc1')
    for w in range(P):
        a(f's_mov_b32 {sr(sT1)}, {w*PSTRIDE}')
        if nch == 1: a(f'buffer_load_dword {vr(cO+w)}, {vr(vT+1)}, {sr(srdV,4)}, {sr(sT1)} offen sc1')
        elif not x2:
            for ch in range(nch): a(f'buffer_load_dword {vr(cO+2*w+ch)}, {vr(vT+1)}, {sr(srdV,4)}, {sr(sT1)} offen offset:{ch*nthr*4} sc1')
        else: a(f'buffer_load_dwordx2 {vr(cO+2*w,2)}, {vr(vPo)}, {sr(srdV,4)}, {sr(sT1)} offen sc1')
    a(f's_waitcnt vmcnt({P if (nch == 1 or x2) else nch*P})')
    def allreduce(reg, op):
        for k in (1, 2, 4, 8):
            a('s_nop 1')
            a(f'{op}_dpp {vr(reg)}, {vr(reg)}, {vr(reg)} row_ror:{k} row_mask:0xf bank_mask:0xf')
    a(f'v_mov_b32 {vr(x)}, {vr(cM)}')
    allreduce(x, 'v_max_f32')
    a(f'v_sub_f32 {vr(cM)}, {vr(cM)}, {vr(x)}')
    a(f'v_exp_f32 {vr(cM)}, {vr(cM)}')
    a('s_nop 0')
    a(f'v_mul_f32 {vr(x)}, {vr(cM)}, {vr(cL)}')
    allreduce(x, 'v_add_f32')
    a(f'v_rcp_f32 {vr(cL)}, {vr(x)}')
    a('s_nop 0')
    a(f'v_mul_f32 {vr(cM)}, {vr(cM)}, {vr(cL)}')
    for w in range(P):
        a(f'ds_bpermute_b32 {vr(cW+w)}, {vr(vBp)}, {vr(cM)} offset:{4*w}')
    a('s_waitcnt vmcnt(0) lgkmcnt(0)')
    for ch in range(nch):
        o = (lambda w: cO + w) if nch == 1 else (lambda w: cO + 2 * w + ch)
        a(f'v_mul_f32 {vr(x)}, {vr(cW)}, {vr(o(0))}')
        for w in range(1, P): a(f'v_fmac_f32 {vr(x)}, {vr(cW+w)}, {vr(o(w))}')
        a(f'v_cvt_pk_bf16_f32 {vr(x)}, {vr(x)}, {vr(x)}')
        a(f'buffer_store_short {vr(x)}, {vr(vOa+ch)}, {sr(srdK,4)}, 0 offen {opol}')
    if dbgprof:
        a('s_waitcnt vmcnt(0)')
        a(f's_cmp_lg_u32 {sr(sWave)}, 0')
        a('s_cbranch_scc1 L_end')
        stamp(7)
        a(f's_memtime {sr(sTm+2,2)}')
        a('s_waitcnt lgkmcnt(0)')
        a('s_mov_b64 exec, 1')
        a(f'v_mov_b32 {vr(vT)}, 0')
        for i in range(1, 8):
            a(f's_sub_u32 {sr(sT0)}, {sr(sSt+2*i)}, {sr(sSt)}')
            a(f'v_mov_b32 {vr(vR+i)}, {sr(sT0)}')
        for i in range(1, 8):
            a(f'buffer_atomic_umax {vr(vR+i)}, {vr(vT)}, {sr(srdKS,4)}, 0 offen offset:{4*i}')
    a('L_notlast:')
    if prof == 2:
        a('s_waitcnt vmcnt(0)')
        stamp(7)
        a(f's_memtime {sr(sTm+2,2)}')
        a('s_waitcnt lgkmcnt(0)')
        a(f's_cmp_lg_u32 {sr(sWave)}, 0')
        a('s_cbranch_scc1 L_end')
        a(f's_add_u32 {sr(srdT)}, {sr(ws_)}, 0x4000000')
        a(f's_addc_u32 {sr(srdT+1)}, {sr(ws_+1)}, 0')
        a(f's_and_b32 {sr(srdT+1)}, {sr(srdT+1)}, 0xffff')
        a(f's_mov_b32 {sr(srdT+2)}, 0x100000')
        a(f's_lshl_b32 {sr(sT1)}, s2, 6')
        for i in range(8): a(f'v_mov_b32 {vr(vR+i)}, {sr(sSt+2*i)}')
        a(f's_getreg_b32 {sr(sT0)}, hwreg(HW_REG_XCC_ID)')
        a(f'v_mov_b32 {vr(vR+8)}, {sr(sT0)}')
        a(f's_getreg_b32 {sr(sT0)}, hwreg(HW_REG_HW_ID)')
        a(f'v_mov_b32 {vr(vR+9)}, {sr(sT0)}')
        a(f's_sub_u32 {sr(sT0)}, {sr(sTm+2)}, {sr(sTm)}')
        a(f'v_mov_b32 {vr(vR+10)}, {sr(sT0)}')
        a(f'v_mov_b32 {vr(vT)}, 0')
        a('s_mov_b64 exec, 1')
        a(f'buffer_store_dwordx4 {vr(vR,4)}, {vr(vT)}, {sr(srdT,4)}, {sr(sT1)} offen')
        a(f'buffer_store_dwordx4 {vr(vR+4,4)}, {vr(vT)}, {sr(srdT,4)}, {sr(sT1)} offen offset:16')
        a(f'buffer_store_dwordx4 {vr(vR+8,4)}, {vr(vT)}, {sr(srdT,4)}, {sr(sT1)} offen offset:32')
    if padto:
        a('s_waitcnt vmcnt(0) lgkmcnt(0)')
        a('L_pad:')
        a(f's_memrealtime {sr(sTm+2,2)}')
        a('s_waitcnt lgkmcnt(0)')
        a(f's_sub_u32 {sr(sT0)}, {sr(sTm+2)}, {sr(sTm)}')
        a(f's_cmp_lt_u32 {sr(sT0)}, {padto}')
        a('s_cbranch_scc1 L_pad')
    a('L_end:')
    a('s_endpgm')
    if unify:
        a('L_k2v_small:')
        first_off()
        offsV(); ld_vs()
        a('s_branch L_k2v_small_back')
        a('L_k2v_big:')
        ld_V()
        a('s_branch L_k2v_big_back')
        a('L_vlast:')
        ld_vs()
        early_publish()
        a('s_branch L_vlast_back')
    main = '\n'.join(out)
    acc = min(256, (nvgpr + 3) // 4 * 4)
    kd = f'''.amdhsa_kernel {KN}
  .amdhsa_next_free_vgpr {nvgpr}
  .amdhsa_next_free_sgpr {S.n}
  .amdhsa_accum_offset {acc}
  .amdhsa_group_segment_fixed_size 0
  .amdhsa_kernarg_size 80
  .amdhsa_user_sgpr_count 2
  .amdhsa_user_sgpr_kernarg_segment_ptr 1
  .amdhsa_system_sgpr_workgroup_id_x 1
  .amdhsa_float_denorm_mode_32 3
.end_amdhsa_kernel
'''
    src = HEADCOMMENT + f'; @launch grid=({nwg},1,1) block=({nthr},1,1) lds={lds_bytes}\n'
    src += '.amdgcn_target "amdgcn-amd-amdhsa--gfx950"\n.text\n'
    src += f'.globl {KN}\n.p2align 8\n.type {KN},@function\n{main}\n'
    src += '.section .rodata,"a"\n.p2align 6\n' + kd
    return src, [(KN, nwg, nthr, lds_bytes)]

if __name__ == '__main__':
    import argparse
    ap = argparse.ArgumentParser()
    ap.add_argument('-o', default='out.s')
    ap.add_argument('kv', nargs='*')
    args = ap.parse_args()
    kw = {}
    for x in args.kv:
        k, v = x.split('=')
        try: v = int(v)
        except ValueError: pass
        kw[k] = v
    src, l = gen(**kw)
    open(args.o, 'w').write(src)
    print(l)
```

```python
import struct
KN = 'standalone__kv_cache_quant_int4_int2_kv_with_per_channel_or_per_token_scales__decode_kernel'

HEADCOMMENT = '''; KIVI-style quantised KV-cache decode attention (B=2, Hq=32, Hkv=8, Skv=32768, Dh=128), one fused launch.
;
'''

class Alloc:
    def __init__(self, start, limit):
        self.n = start; self.limit = limit
    def get(self, cnt=1, align=1):
        self.n = (self.n + align - 1) // align * align
        r = self.n; self.n += cnt
        assert self.n <= self.limit, self.n
        return r

def vr(r, n=1): return f'v{r}' if n == 1 else f'v[{r}:{r+n-1}]'
def sr(r, n=1): return f's{r}' if n == 1 else f's[{r}:{r+n-1}]'
def f32hex(x): return '0x%08x' % struct.unpack('<I', struct.pack('<f', x))[0]

PSTRIDE = 4096
QROW = 288
WLDS = 1536
CEXP = 0.08838834764831845 * 1.4426950408889634

def gen(nw=8, bar=1, pol='nt', spol='nt', nB=2, prof=0, dbgprof=0, coff=0, cshift=2, opol='', padto=0,
        wrot=0, perm='tr', minvgpr=176, kbar=None, vbar=None, minlds=0, roll=0, x2=0, vlate=0, rkO=0, rvO=0, rkE=0, rvE=0, pre0=0, unify=0, kfirst=0, idmap=0, tlbw=0, rot=0):
    P = 16
    nwg = 16 * P
    NT = 32768 // (P * nw * 16)
    nthr = nw * 64
    nch = 512 // nthr
    if kbar is None: kbar = bar
    if vbar is None: vbar = bar
    out = []
    a = out.append
    V = Alloc(1, 256); S = Alloc(3, 102)
    sWave = S.get()
    sKA = S.get(16, 4); sKB = S.get(4, 4)
    srdK = S.get(4, 4); srdV = S.get(4, 4); srdKS = S.get(4, 4); srdKZ = S.get(4, 4)
    srdVS = S.get(4, 4); srdVZ = S.get(4, 4); srdT = S.get(4, 4)
    sHk = S.get(); sJ = S.get()
    sOffK = S.get(); sOffS = S.get(); sOffG = S.get(); sOffK2 = S.get(); sOff0 = S.get()
    sCnt = S.get(); sT0 = S.get(); sT1 = S.get()
    sWm = S.get(12, 2) if tlbw else None
    sPh = S.get(); sPh0 = S.get()
    sMask = S.get(); sOdd = S.get(); sEx = S.get(2, 2); sQuad = S.get(2, 2)
    stamps = prof == 2 or dbgprof
    sSt = S.get(16, 2) if stamps else None
    sTm = S.get(4, 2) if (dbgprof or padto or prof == 2) else None
    def stamp(i):
        if stamps: a(f's_memrealtime {sr(sSt+2*i,2)}')
    vLane = V.get()
    vKoff = V.get(); vVoff = V.get(); vSoff = V.get(); vKsOff = V.get(); vKzOff = V.get()
    vKoffB = V.get(); vLqRB = V.get(); vLzRB = V.get()
    vLqW = V.get(); vLzW = V.get(); vLqR = V.get(); vLzR = V.get()
    vSa = V.get()
    vM = V.get(); vL = V.get()
    vT = V.get(8, 2)
    vQc = V.get(8, 4)
    vKs = V.get(4, 4); vKz = V.get(); vVs = V.get(2, 2); vVz = V.get(2, 2)
    vQw = V.get(4, 4); vP = V.get(2, 2); vS = V.get(4, 4); vAz = V.get(4, 4)
    vAcc = V.get(32, 4); vQB = V.get(16, 4); vPK = V.get(16, 4)
    vR = V.get(32, 4)
    vRB = V.get(32, 4) if pre0 else None
    vVs0 = V.get(2, 2) if pre0 else None; vVz0 = V.get(2, 2) if pre0 else None
    nvgpr = max(V.n, minvgpr)
    SB = nw * WLDS
    OB = SB + nw * NT * 256
    MB = OB + nw * 2048
    RS = nw * 4
    TK = MB + 12 * RS
    lds_bytes = max(TK + 16, minlds)

    a(f'{KN}:')
    a(f's_cmp_ge_u32 s2, {nwg}')
    a('s_cbranch_scc1 L_end')
    a(f's_load_dwordx16 {sr(sKA,16)}, s[0:1], 0')
    a(f's_load_dwordx4 {sr(sKB,4)}, s[0:1], 64')
    stamp(0)
    if dbgprof or prof == 2: a(f's_memtime {sr(sTm,2)}')
    if padto: a(f's_memrealtime {sr(sTm,2)}')
    a(f'v_lshrrev_b32 {vr(vT)}, 6, v0')
    a(f'v_and_b32 {vr(vLane)}, 63, v0')
    if idmap == 0:
        a(f's_lshr_b32 {sr(sHk)}, s2, 4')
        a(f'v_readfirstlane_b32 {sr(sWave)}, {vr(vT)}')
        a(f's_and_b32 {sr(sJ)}, s2, {P-1}')
    else:
        a(f's_and_b32 {sr(sHk)}, s2, 7')
        a(f'v_readfirstlane_b32 {sr(sWave)}, {vr(vT)}')
        a(f's_lshl_b32 {sr(sHk)}, {sr(sHk)}, 1')
        a(f's_lshr_b32 {sr(sJ)}, s2, 3')
        a(f's_and_b32 {sr(sT0)}, {sr(sJ)}, 1')
        a(f's_add_u32 {sr(sHk)}, {sr(sHk)}, {sr(sT0)}')
        a(f's_lshr_b32 {sr(sJ)}, s2, 4')
    n15, g4 = vT + 1, vT + 2
    def lane_rest():
        a(f'v_lshlrev_b32 {vr(vKsOff)}, 4, {vr(n15)}')
        a(f'v_lshl_add_u32 {vr(vVoff)}, {vr(g4)}, 11, {vr(vKsOff)}')
        a(f'v_lshlrev_b32 {vr(vSoff)}, 3, {vr(g4)}')
        a(f'v_lshlrev_b32 {vr(vKzOff)}, 2, {vr(vLane)}')
    a(f'v_and_b32 {vr(n15)}, 15, {vr(vLane)}')
    a(f'v_lshrrev_b32 {vr(g4)}, 4, {vr(vLane)}')
    a(f'v_lshlrev_b32 {vr(vT+3)}, 9, {vr(n15)}')
    a(f'v_lshl_add_u32 {vr(vKoff)}, {vr(g4)}, 4, {vr(vT+3)}')
    a(f'v_and_b32 {vr(vT+3)}, 7, {vr(vLane)}')
    a(f'v_lshlrev_b32 {vr(vT+3)}, 9, {vr(vT+3)}')
    a(f'v_lshrrev_b32 {vr(vT+4)}, 3, {vr(vLane)}')
    a(f'v_lshl_add_u32 {vr(vKoffB)}, {vr(vT+4)}, 4, {vr(vT+3)}')
    if not kfirst: lane_rest()
    stride = nw * 16 * 512
    G = {'tr': 1, 'seq': P}.get(perm) or int(perm[2:])
    if G == 1: a(f's_lshl_b32 {sr(sOff0)}, {sr(sJ)}, 20')
    else:
        a(f's_lshr_b32 {sr(sT0)}, {sr(sJ)}, {G.bit_length()-1}'); a(f's_mul_i32 {sr(sOff0)}, {sr(sT0)}, {G << 20}')
        a(f's_and_b32 {sr(sT0)}, {sr(sJ)}, {G-1}'); a(f's_mul_i32 {sr(sT0)}, {sr(sT0)}, {stride}')
        a(f's_add_u32 {sr(sOff0)}, {sr(sOff0)}, {sr(sT0)}')
    if wrot == 0: a(f's_lshl_b32 {sr(sT0)}, {sr(sWave)}, 13')
    else:
        if wrot == 3: a(f's_lshr_b32 {sr(sT0)}, s2, 3'); a(f's_and_b32 {sr(sT0)}, {sr(sT0)}, 1'); a(f's_lshl_b32 {sr(sT0)}, {sr(sT0)}, {(nw//2).bit_length()-1}'); a(f's_xor_b32 {sr(sT0)}, {sr(sT0)}, {sr(sWave)}')
        elif wrot == 8: a(f's_lshr_b32 {sr(sT0)}, s2, 3'); a(f's_and_b32 {sr(sT0)}, {sr(sT0)}, 3'); a(f's_lshl_b32 {sr(sT0)}, {sr(sT0)}, 1'); a(f's_xor_b32 {sr(sT0)}, {sr(sT0)}, {sr(sWave)}')
        elif wrot == 6: a(f's_lshr_b32 {sr(sT0)}, s2, 3'); a(f's_xor_b32 {sr(sT0)}, {sr(sT0)}, {sr(sWave)}')
        elif wrot == 13: a(f's_lshr_b32 {sr(sT0)}, s2, 4'); a(f's_and_b32 {sr(sT0)}, {sr(sT0)}, 1'); a(f's_lshl_b32 {sr(sT0)}, {sr(sT0)}, 1'); a(f's_xor_b32 {sr(sT0)}, {sr(sT0)}, {sr(sWave)}')
        elif wrot == 14: a(f's_lshr_b32 {sr(sT0)}, s2, 5'); a(f's_xor_b32 {sr(sT0)}, {sr(sT0)}, {sr(sWave)}')
        elif wrot == 15: a(f's_xor_b32 {sr(sT0)}, s2, {sr(sWave)}')
        elif wrot == 16: a(f's_and_b32 {sr(sT0)}, s2, 1'); a(f's_lshl_b32 {sr(sT0)}, {sr(sT0)}, 1'); a(f's_xor_b32 {sr(sT0)}, {sr(sT0)}, {sr(sWave)}')
        elif wrot == 17: a(f's_lshr_b32 {sr(sT0)}, s2, 3'); a(f's_xor_b32 {sr(sT0)}, {sr(sT0)}, s2'); a(f's_and_b32 {sr(sT0)}, {sr(sT0)}, 1'); a(f's_lshl_b32 {sr(sT0)}, {sr(sT0)}, 1'); a(f's_xor_b32 {sr(sT0)}, {sr(sT0)}, {sr(sWave)}')
        elif wrot == 18: a(f's_lshr_b32 {sr(sT0)}, s2, 5'); a(f's_and_b32 {sr(sT0)}, {sr(sT0)}, 1'); a(f's_lshl_b32 {sr(sT0)}, {sr(sT0)}, 1'); a(f's_xor_b32 {sr(sT0)}, {sr(sT0)}, {sr(sWave)}')
        a(f's_and_b32 {sr(sT0)}, {sr(sT0)}, {nw-1}')
        a(f's_lshl_b32 {sr(sT0)}, {sr(sT0)}, 13')
    a(f's_add_u32 {sr(sOff0)}, {sr(sOff0)}, {sr(sT0)}')
    stride = stride * G
    region = G << 20
    def first_off():
        if rot:
            a(f's_mov_b32 {sr(sPh)}, {sr(sPh0)}')
            a(f's_add_u32 {sr(sOffK)}, {sr(sOff0)}, {sr(sPh)}')
        else:
            a(f's_mov_b32 {sr(sOffK)}, {sr(sOff0)}')
    def next_off():
        if rot:
            a(f's_add_u32 {sr(sPh)}, {sr(sPh)}, {stride}')
            a(f's_and_b32 {sr(sPh)}, {sr(sPh)}, {region-1}')
            a(f's_add_u32 {sr(sOffK)}, {sr(sOff0)}, {sr(sPh)}')
        else:
            a(f's_add_u32 {sr(sOffK)}, {sr(sOffK)}, {stride}')
    if rot:
        nst = region // stride
        if rot == 1: a(f's_lshr_b32 {sr(sPh0)}, s2, 3'); a(f's_and_b32 {sr(sPh0)}, {sr(sPh0)}, 1'); a(f's_mul_i32 {sr(sPh0)}, {sr(sPh0)}, {nst//2}')
        elif rot == 2: a(f's_and_b32 {sr(sPh0)}, s2, 7'); a(f's_mul_i32 {sr(sPh0)}, {sr(sPh0)}, {nst//8}')
        elif rot == 3: a(f's_lshr_b32 {sr(sPh0)}, {sr(sJ)}, 1'); a(f's_mul_i32 {sr(sPh0)}, {sr(sPh0)}, {nst//8}')
        elif rot == 4: a(f's_and_b32 {sr(sPh0)}, s2, 1'); a(f's_mul_i32 {sr(sPh0)}, {sr(sPh0)}, {nst//2}')
        elif rot == 5: a(f's_lshr_b32 {sr(sPh0)}, s2, 3'); a(f's_and_b32 {sr(sPh0)}, {sr(sPh0)}, 1')
        elif rot == 6: a(f's_and_b32 {sr(sPh0)}, s2, 7')
        elif rot == 7: a(f's_lshr_b32 {sr(sPh0)}, {sr(sJ)}, 1'); a(f's_and_b32 {sr(sPh0)}, {sr(sPh0)}, 1'); a(f's_mul_i32 {sr(sPh0)}, {sr(sPh0)}, {nst//2}')
        elif rot == 8: a(f's_lshr_b32 {sr(sPh0)}, s2, 3'); a(f's_xor_b32 {sr(sPh0)}, {sr(sPh0)}, s2'); a(f's_and_b32 {sr(sPh0)}, {sr(sPh0)}, 1'); a(f's_mul_i32 {sr(sPh0)}, {sr(sPh0)}, {nst//2}')
        elif rot == 9: a(f's_and_b32 {sr(sPh0)}, {sr(sHk)}, 3'); a(f's_mul_i32 {sr(sPh0)}, {sr(sPh0)}, {nst//4}')
        elif rot == 10: a(f's_and_b32 {sr(sPh0)}, {sr(sHk)}, 1'); a(f's_mul_i32 {sr(sPh0)}, {sr(sPh0)}, {nst//4}')
        elif rot == 11: a(f's_and_b32 {sr(sPh0)}, {sr(sHk)}, 1'); a(f's_mul_i32 {sr(sPh0)}, {sr(sPh0)}, {nst//2}'); a(f's_and_b32 {sr(sT0)}, s2, 7'); a(f's_add_u32 {sr(sPh0)}, {sr(sPh0)}, {sr(sT0)}')
        elif rot == 12: a(f's_mov_b32 {sr(sPh0)}, {sr(sHk)}')
        elif rot == 13: a(f's_lshr_b32 {sr(sPh0)}, {sr(sHk)}, 1'); a(f's_and_b32 {sr(sPh0)}, {sr(sPh0)}, 1'); a(f's_mul_i32 {sr(sPh0)}, {sr(sPh0)}, {nst//2}')
        a(f's_mul_i32 {sr(sPh0)}, {sr(sPh0)}, {stride}')
        a(f's_and_b32 {sr(sPh0)}, {sr(sPh0)}, {region-1}')
    first_off()
    def offsK():
        a(f's_lshr_b32 {sr(sOffG)}, {sr(sOffK)}, 8')
        a(f's_and_b32 {sr(sOffG)}, {sr(sOffG)}, 0xffffff00')
        if nB: a(f's_add_u32 {sr(sOffK2)}, {sr(sOffK)}, 4096')
    def offsV():
        a(f's_lshr_b32 {sr(sOffS)}, {sr(sOffK)}, 8')
    offsK()
    a('s_waitcnt lgkmcnt(0)')
    def srd(dst, ptr, off_s, off_shift, nbytes):
        a(f's_lshl_b32 {sr(sT0)}, {sr(off_s)}, {off_shift}')
        a(f's_add_u32 {sr(dst)}, {sr(ptr)}, {sr(sT0)}')
        a(f's_addc_u32 {sr(dst+1)}, {sr(ptr+1)}, 0')
        a(f's_and_b32 {sr(dst+1)}, {sr(dst+1)}, 0xffff')
        a(f's_mov_b32 {sr(dst+2)}, {nbytes}')
        a(f's_mov_b32 {sr(dst+3)}, 0x20000')
    q_, qk_, qv_, ks_, kz_, vs_, vz_, o_ = [sKA + 2 * i for i in range(8)]
    dbg_, ws_ = sKB, sKB + 2
    def ld_ks():
        a(f'buffer_load_dwordx4 {vr(vKs,4)}, {vr(vKsOff)}, {sr(srdKS,4)}, {sr(sOffG)} offen {spol}')
        a(f'buffer_load_dword {vr(vKz)}, {vr(vKzOff)}, {sr(srdKZ,4)}, {sr(sOffG)} offen {spol}')
    def ld_K1(i):
        s = i // 2
        if s < 4 - nB:
            a(f'buffer_load_dwordx4 {vr(vR+4*i,4)}, {vr(vKoff)}, {sr(srdK,4)}, {sr(sOffK)} offen offset:{i*64} {pol}')
        else:
            a(f'buffer_load_dwordx4 {vr(vR+4*i,4)}, {vr(vKoffB)}, {sr(srdK,4)}, {sr(sOffK if i % 2 == 0 else sOffK2)} offen offset:{s*128} {pol}')
    def ld_K():
        for i in range(8): ld_K1(i)
    def ld_vs(rs=None, rz=None):
        rs = vVs if rs is None else rs; rz = vVz if rz is None else rz
        a(f'buffer_load_dwordx2 {vr(rs,2)}, {vr(vSoff)}, {sr(srdVS,4)}, {sr(sOffS)} offen {spol}')
        a(f'buffer_load_dwordx2 {vr(rz,2)}, {vr(vSoff)}, {sr(srdVZ,4)}, {sr(sOffS)} offen {spol}')
    VSEQ = [(0,0),(1,0),(0,1),(1,1),(2,0),(3,0),(2,1),(3,1)]
    def ld_V1(k, rb=None):
        j, h = VSEQ[k]
        rb = vR if rb is None else rb
        a(f'buffer_load_dwordx4 {vr(rb+4*k,4)}, {vr(vVoff)}, {sr(srdV,4)}, {sr(sOffK)} offen offset:{j*512+h*256} {pol}')
    def ld_V():
        for k in range(8): ld_V1(k)
    if pre0:
        srd(srdVS, vs_, sHk, 16, 1 << 16)
        srd(srdVZ, vz_, sHk, 16, 1 << 16)
        srd(srdV, qv_, sHk, 24, 1 << 24)
        offsV(); ld_vs(vVs0, vVz0)
        for k in range(8): ld_V1(k, vRB)
    if kfirst:
        srd(srdK, qk_, sHk, 24, 1 << 24)
        ld_K()
        lane_rest()
    srd(srdT, q_, sHk, 10, 1024)
    a(f'v_lshl_add_u32 {vr(vT+3)}, {vr(g4)}, 8, {vr(vKsOff)}')
    a(f'buffer_load_dwordx4 {vr(vQw,4)}, {vr(vT+3)}, {sr(srdT,4)}, 0 offen {spol}')
    srd(srdKS, ks_, sHk, 16, 1 << 16)
    srd(srdKZ, kz_, sHk, 16, 1 << 16)
    if kfirst:
        ld_ks()
    else:
        srd(srdK, qk_, sHk, 24, 1 << 24)
        ld_ks(); ld_K()
    if not pre0:
        srd(srdVS, vs_, sHk, 16, 1 << 16)
        srd(srdVZ, vz_, sHk, 16, 1 << 16)
        srd(srdV, qv_, sHk, 24, 1 << 24)
    if tlbw:
        if tlbw & 8:
            a(f's_cmp_lg_u32 {sr(sWave)}, 0'); a('s_cbranch_scc1 L_nowarm')
        slot = [0]
        def touch(lo, hi, off_s):
            b = sWm + 2 * slot[0]; dst = sWm + 10 + (slot[0] & 1); slot[0] += 1
            a(f's_add_u32 {sr(b)}, {sr(lo)}, {sr(off_s)}')
            a(f's_addc_u32 {sr(b+1)}, {sr(hi)}, 0')
            a(f's_load_dword {sr(dst)}, {sr(b,2)}, 0')
        if tlbw & 1:
            a(f's_lshl_b32 {sr(sT0)}, {sr(sHk)}, 24'); a(f's_add_u32 {sr(sT0)}, {sr(sT0)}, {sr(sOff0)}')
            touch(qv_, qv_ + 1, sT0)
        if tlbw & 2:
            a(f's_lshl_b32 {sr(sT0)}, {sr(sHk)}, 16')
            touch(vs_, vs_ + 1, sT0)
            touch(vz_, vz_ + 1, sT0)
        if tlbw & 4:
            a(f's_lshl_b32 {sr(sT0)}, {sr(sHk)}, 16')
            touch(ws_, ws_ + 1, sT0)
            a(f's_lshl_b32 {sr(sT0)}, {sr(sHk)}, 10')
            touch(o_, o_ + 1, sT0)
        if tlbw & 8: a('L_nowarm:')
    a(f's_mul_i32 {sr(sT0)}, {sr(sWave)}, {WLDS}')
    a(f'v_mul_u32_u24 {vr(vT+3)}, {QROW}, {vr(g4)}')
    a(f'v_add3_u32 {vr(vLqW)}, {vr(vT+3)}, {vr(vKsOff)}, {sr(sT0)}')
    a(f'v_add_u32 {vr(vLzW)}, {sr(sT0)}, {vr(vKzOff)}')
    a(f'v_add_u32 {vr(vLzW)}, {4*QROW}, {vr(vLzW)}')
    a(f'v_and_b32 {vr(vT+4)}, 3, {vr(vLane)}')
    a(f'v_mul_u32_u24 {vr(vT+3)}, {QROW}, {vr(vT+4)}')
    a(f'v_add3_u32 {vr(vLqR)}, {vr(vT+3)}, {vr(vSoff)}, {sr(sT0)}')
    a(f'v_add_u32 {vr(vLzR)}, {sr(sT0)}, {vr(vSoff)}')
    a(f'v_add_u32 {vr(vLzR)}, {4*QROW}, {vr(vLzR)}')
    a(f'v_add_u32 {vr(vLqRB)}, {vr(vLqR)}, {vr(vSoff)}')
    a(f'v_add_u32 {vr(vLzRB)}, {vr(vLzR)}, {vr(vSoff)}')
    a(f's_mul_i32 {sr(sT0)}, {sr(sWave)}, {NT*256}')
    a(f's_add_u32 {sr(sT0)}, {sr(sT0)}, {SB}')
    a(f'v_lshlrev_b32 {vr(vT+4)}, 4, {vr(vT+4)}')
    a(f'v_lshl_add_u32 {vr(vSa)}, {vr(g4)}, 6, {vr(vT+4)}')
    a(f'v_add_u32 {vr(vSa)}, {sr(sT0)}, {vr(vSa)}')
    a(f's_mov_b32 {sr(sMask)}, 0xffff0000')
    a(f's_mov_b32 {sr(sQuad)}, 0x000f000f')
    a(f's_mov_b32 {sr(sQuad+1)}, 0x000f000f')
    a(f'v_mov_b32 {vr(vM)}, 0xff800000')
    a(f'v_mov_b32 {vr(vL)}, 0')
    for i in range(4): a(f'v_mov_b32 {vr(vAz+i)}, 0')
    for i in range(32): a(f'v_mov_b32 {vr(vAcc+i)}, 0')
    a(f's_mov_b32 {sr(sT1)}, {f32hex(CEXP)}')
    a(f's_mov_b32 {sr(sCnt)}, {NT-1}')
    a('s_waitcnt vmcnt(0)' if kfirst else 's_waitcnt vmcnt(10)')
    stamp(1)
    for i in range(4):
        a(f'v_lshlrev_b32 {vr(vQc+2*i)}, 16, {vr(vQw+i)}')
        a(f'v_and_b32 {vr(vQc+2*i+1)}, {sr(sMask)}, {vr(vQw+i)}')
    for i in range(8):
        a(f'v_mul_f32 {vr(vQc+i)}, {sr(sT1)}, {vr(vQc+i)}')

    def kstep(nxt, rk=None):
        a('s_waitcnt vmcnt(8)')
        for i in range(4):
            a(f'v_lshlrev_b32 {vr(vT)}, 16, {vr(vKs+i)}')
            a(f'v_and_b32 {vr(vT+1)}, {sr(sMask)}, {vr(vKs+i)}')
            a(f'v_mul_f32 {vr(vT)}, {vr(vT)}, {vr(vQc+2*i)}')
            a(f'v_mul_f32 {vr(vT+1)}, {vr(vT+1)}, {vr(vQc+2*i+1)}')
            a(f'v_cvt_pk_bf16_f32 {vr(vQw+i)}, {vr(vT)}, {vr(vT+1)}')
        a(f'v_xor_b32 {vr(vT+2)}, 0x80008000, {vr(vKz)}')
        a(f'ds_write_b128 {vr(vLqW)}, {vr(vQw,4)}')
        a(f'ds_write_b32 {vr(vLzW)}, {vr(vT+2)}')
        if nxt == 'U':
            a(f's_cmp_eq_u32 {sr(sCnt)}, 0')
            a('s_cbranch_scc1 L_k2v_small')
            next_off()
            offsK(); ld_ks()
            a('L_k2v_small_back:')
        elif nxt == 'K':
            next_off()
            offsK(); ld_ks()
        else:
            if pre0: a(f's_add_u32 {sr(sOffK)}, {sr(sOff0)}, {stride}')
            else: first_off()
            offsV(); ld_vs()
        for s in range(4):
            if s < 4 - nB: a(f'ds_read2_b64 {vr(vQB+4*s,4)}, {vr(vLqR)} offset0:{8*s} offset1:{8*s+4}')
            else: a(f'ds_read_b128 {vr(vQB+4*s,4)}, {vr(vLqRB)} offset:{64*s}')
        for s in range(4):
            if s < 4 - nB: a(f'ds_read2_b64 {vr(vPK+4*s,4)}, {vr(vLzR)} offset0:{8*s} offset1:{8*s+4}')
            else: a(f'ds_read_b128 {vr(vPK+4*s,4)}, {vr(vLzRB)} offset:{64*s}')
        a('s_waitcnt lgkmcnt(0)')
        for s in range(4):
            c = '0' if s == 0 else vr(vS, 4)
            a(f'v_mfma_f32_16x16x32_bf16 {vr(vS,4)}, {vr(vPK+4*s,4)}, {vr(vQB+4*s,4)}, {c}')
        if rk is None: rk = 8 if roll in (1, 2) else 0
        def kcvt(i):
            for c in range(4):
                a(f'v_cvt_f32_i32 {vr(vR+4*i+c)}, {vr(vR+4*i+c)}')
            d = vPK + 4 * (i // 2) + 2 * (i % 2)
            a(f'v_cvt_pk_bf16_f32 {vr(d)}, {vr(vR+4*i)}, {vr(vR+4*i+1)}')
            a(f'v_cvt_pk_bf16_f32 {vr(d+1)}, {vr(vR+4*i+2)}, {vr(vR+4*i+3)}')
        if nxt == 'U':
            a('s_waitcnt vmcnt(2)')
            for i in range(8): kcvt(i)
            a(f's_cmp_eq_u32 {sr(sCnt)}, 0')
            a('s_cbranch_scc1 L_k2v_big')
            ld_K()
            a('L_k2v_big_back:')
        else:
            nld = ld_K1 if nxt == 'K' else ld_V1
            for i in range(rk):
                a('s_waitcnt vmcnt(9)')
                kcvt(i); nld(i)
            if rk < 8:
                a(f's_waitcnt vmcnt({2+rk})')
                for i in range(rk, 8): kcvt(i)
                for i in range(rk, 8): nld(i)
        for s in range(4 - nB, 4):
            a(f'v_mov_b32 {vr(vT)}, {vr(vPK+4*s)}')
            a(f'v_mov_b32 {vr(vT+1)}, {vr(vPK+4*s+1)}')
            a('s_nop 0')
            a(f'v_mov_b32_dpp {vr(vPK+4*s)}, {vr(vPK+4*s+2)} row_ror:8 row_mask:0xf bank_mask:0xc')
            a(f'v_mov_b32_dpp {vr(vPK+4*s+1)}, {vr(vPK+4*s+3)} row_ror:8 row_mask:0xf bank_mask:0xc')
            a(f'v_mov_b32_dpp {vr(vPK+4*s+2)}, {vr(vT)} row_ror:8 row_mask:0xf bank_mask:0x3')
            a(f'v_mov_b32_dpp {vr(vPK+4*s+3)}, {vr(vT+1)} row_ror:8 row_mask:0xf bank_mask:0x3')
        a('s_nop 1')
        for s in range(4):
            a(f'v_mfma_f32_16x16x32_bf16 {vr(vS,4)}, {vr(vPK+4*s,4)}, {vr(vQB+4*s,4)}, {vr(vS,4)}')
        a('s_nop 7')
        a(f's_mov_b64 exec, {sr(sQuad,2)}')
        a(f'ds_write_b128 {vr(vSa)}, {vr(vS,4)}')
        a('s_mov_b64 exec, -1')
        a(f'v_max3_f32 {vr(vM)}, {vr(vS)}, {vr(vS+1)}, {vr(vM)}')
        a(f'v_max3_f32 {vr(vM)}, {vr(vS+2)}, {vr(vS+3)}, {vr(vM)}')
        a(f'v_add_u32 {vr(vSa)}, 256, {vr(vSa)}')

    vF = vQB
    vLw = vQB + 8
    vZw = vQc
    vMx, vLs, vZs = vKs, vKs + 1, vKs + 2
    def early_publish():
        a(f'v_mov_b32 {vr(vT+1)}, {vr(vL)}')
        a('s_nop 1')
        a(f'v_permlane16_swap_b32 {vr(vL)}, {vr(vT+1)}')
        a(f'v_add_f32 {vr(vL)}, {vr(vL)}, {vr(vT+1)}')
        a(f'v_mov_b32 {vr(vT+1)}, {vr(vL)}')
        a('s_nop 1')
        a(f'v_permlane32_swap_b32 {vr(vL)}, {vr(vT+1)}')
        a(f'v_add_f32 {vr(vL)}, {vr(vL)}, {vr(vT+1)}')
        a(f's_lshl_b32 {sr(sT1)}, {sr(sWave)}, 2')
        a(f's_add_u32 {sr(sT1)}, {sr(sT1)}, {MB}')
        a(f'v_mul_u32_u24 {vr(vT+2)}, {RS}, {vr(vLane)}')
        a(f'v_add_u32 {vr(vT+2)}, {sr(sT1)}, {vr(vT+2)}')
        a('s_mov_b64 exec, 0xf')
        a(f'ds_write_b32 {vr(vT+2)}, {vr(vM)}')
        a(f'ds_write_b32 {vr(vT+2)}, {vr(vL)} offset:{4*RS}')
        a('s_mov_b64 exec, 1')
        for r in range(4):
            a(f'ds_write_b32 {vr(vT+2)}, {vr(vAz+r)} offset:{8*RS+r*RS}')
        a('s_mov_b64 exec, -1')
        a(f'v_and_b32 {vr(vT)}, 3, v0')
        a(f'v_mul_u32_u24 {vr(vT)}, {RS}, {vr(vT)}')
        a(f'v_add_u32 {vr(vT)}, {MB}, {vr(vT)}')
        a('s_waitcnt lgkmcnt(0)')
        a('s_barrier')
        for k in range(nw // 4):
            a(f'ds_read_b128 {vr(vF+4*k,4)}, {vr(vT)} offset:{16*k}')
            a(f'ds_read_b128 {vr(vLw+4*k,4)}, {vr(vT)} offset:{4*RS+16*k}')
            a(f'ds_read_b128 {vr(vZw+4*k,4)}, {vr(vT)} offset:{8*RS+16*k}')
        a('s_waitcnt lgkmcnt(0)')
        a(f'v_max3_f32 {vr(vMx)}, {vr(vF)}, {vr(vF+1)}, {vr(vF+2)}')
        for w in range(3, nw): a(f'v_max_f32 {vr(vMx)}, {vr(vMx)}, {vr(vF+w)}')
        for w in range(nw): a(f'v_sub_f32 {vr(vF+w)}, {vr(vF+w)}, {vr(vMx)}')
        for w in range(nw): a(f'v_exp_f32 {vr(vF+w)}, {vr(vF+w)}')
        a('s_nop 0')
        a(f'v_mul_f32 {vr(vLs)}, {vr(vF)}, {vr(vLw)}')
        a(f'v_mul_f32 {vr(vZs)}, {vr(vF)}, {vr(vZw)}')
        for w in range(1, nw):
            a(f'v_fmac_f32 {vr(vLs)}, {vr(vF+w)}, {vr(vLw+w)}')
            a(f'v_fmac_f32 {vr(vZs)}, {vr(vF+w)}, {vr(vZw+w)}')

    def vstep(pf, rv=None, first=False):
        if rv is None: rv = 4 if roll in (1, 3) else 0
        vVs_, vVz_, vR_ = (vVs0, vVz0, vRB) if first else (vVs, vVz, vR)
        f = vT + 4
        a('s_waitcnt lgkmcnt(0)' if first else 's_waitcnt vmcnt(8) lgkmcnt(0)')
        a(f'v_lshlrev_b32 {vr(f)}, 16, {vr(vVs_)}')
        a(f'v_and_b32 {vr(f+1)}, {sr(sMask)}, {vr(vVs_)}')
        a(f'v_lshlrev_b32 {vr(f+2)}, 16, {vr(vVs_+1)}')
        a(f'v_and_b32 {vr(f+3)}, {sr(sMask)}, {vr(vVs_+1)}')
        for r in range(4): a(f'v_sub_f32 {vr(vS+r)}, {vr(vS+r)}, {vr(vM)}')
        for r in range(4): a(f'v_exp_f32 {vr(vS+r)}, {vr(vS+r)}')
        a('s_nop 0')
        a(f'v_add_f32 {vr(vT)}, {vr(vS)}, {vr(vS+1)}')
        a(f'v_add_f32 {vr(vT+1)}, {vr(vS+2)}, {vr(vS+3)}')
        for r in range(4): a(f'v_mul_f32 {vr(vS+r)}, {vr(vS+r)}, {vr(f+r)}')
        a(f'v_add_f32 {vr(vL)}, {vr(vL)}, {vr(vT)}')
        a(f'v_cvt_pk_bf16_f32 {vr(vP)}, {vr(vS)}, {vr(vS+1)}')
        a(f'v_cvt_pk_bf16_f32 {vr(vP+1)}, {vr(vS+2)}, {vr(vS+3)}')
        a(f'v_add_f32 {vr(vL)}, {vr(vL)}, {vr(vT+1)}')
        a('s_nop 0')
        a(f'v_mfma_f32_16x16x16_bf16 {vr(vAz,4)}, {vr(vP,2)}, {vr(vVz_,2)}, {vr(vAz,4)}')
        if pf == 'U':
            a(f's_cmp_eq_u32 {sr(sCnt)}, 0')
            a('s_cbranch_scc1 L_vlast')
            next_off()
            offsV(); ld_vs()
            a(f'v_add_u32 {vr(vSa)}, 256, {vr(vSa)}')
            a(f'ds_read_b128 {vr(vS,4)}, {vr(vSa)}')
            a('L_vlast_back:')
        elif first:
            a(f'v_add_u32 {vr(vSa)}, 256, {vr(vSa)}')
            a(f'ds_read_b128 {vr(vS,4)}, {vr(vSa)}')
        elif pf:
            next_off()
            offsV(); ld_vs()
            a(f'v_add_u32 {vr(vSa)}, 256, {vr(vSa)}')
            a(f'ds_read_b128 {vr(vS,4)}, {vr(vSa)}')
        else:
            early_publish()
        def vpair(p):
            jp, h = p >> 1, p & 1
            for c in range(4):
                r0, r1 = vR_ + 8 * p + c, vR_ + 8 * p + 4 + c
                a(f'v_cvt_f32_i32 {vr(r0)}, {vr(r0)}')
                a(f'v_cvt_f32_i32 {vr(r1)}, {vr(r1)}')
                a(f'v_cvt_pk_bf16_f32 {vr(vPK+2*(4*h+c)+jp)}, {vr(r0)}, {vr(r1)}')
        if pf == 'U':
            a('s_waitcnt vmcnt(6)'); vpair(0); vpair(1)
            a('s_waitcnt vmcnt(2)'); vpair(2); vpair(3)
            a(f's_cmp_eq_u32 {sr(sCnt)}, 0')
            a('s_cbranch_scc1 L_vnoload')
            ld_V()
            a('L_vnoload:')
            a('s_nop 0')
        elif first:
            for p in range(4): vpair(p)
            a('s_nop 1')
        elif not pf:
            for p in range(4):
                a(f's_waitcnt vmcnt({6-2*p})'); vpair(p)
            a('s_nop 1')
        else:
            for p in range(rv):
                a('s_waitcnt vmcnt(8)')
                vpair(p); ld_V1(2*p); ld_V1(2*p+1)
            if rv < 4:
                if rv <= 1:
                    a(f's_waitcnt vmcnt({2+2*rv+4})')
                    for p in range(rv, 2): vpair(p)
                    a(f's_waitcnt vmcnt({2+2*rv})')
                    for p in range(2, 4): vpair(p)
                else:
                    a(f's_waitcnt vmcnt({2+2*rv})')
                    for p in range(rv, 4): vpair(p)
                for k in range(2*rv, 8): ld_V1(k)
        for i in range(8):
            a(f'v_mfma_f32_16x16x16_bf16 {vr(vAcc+4*i,4)}, {vr(vP,2)}, {vr(vPK+2*i,2)}, {vr(vAcc+4*i,4)}')

    if unify:
        assert not (pre0 or vlate or roll or rkO or rvO or rkE or rvE)
        a('L_kloop:')
        kstep('U', 0)
        if kbar: a('s_barrier')
        a(f's_sub_u32 {sr(sCnt)}, {sr(sCnt)}, 1')
        a('s_cbranch_scc0 L_kloop')
    else:
        split = (rkO, rvO) != (rkE, rvE)
        if split:
            a(f's_getreg_b32 {sr(sOdd)}, hwreg(HW_REG_XCC_ID)')
            a(f's_and_b32 {sr(sOdd)}, {sr(sOdd)}, 1')
        def kloop(tag, rk):
            a(f'L_kloop{tag}:')
            kstep('K', rk)
            if kbar: a('s_barrier')
            a(f's_sub_u32 {sr(sCnt)}, {sr(sCnt)}, 1')
            a(f's_cmp_lg_u32 {sr(sCnt)}, 0')
            a(f's_cbranch_scc1 L_kloop{tag}')
        if split and rkO != rkE:
            a(f's_cmp_lg_u32 {sr(sOdd)}, 0'); a('s_cbranch_scc1 L_kloopO')
            kloop('E', rkE); a('s_branch L_kdone')
            kloop('O', rkO); a('L_kdone:')
        else:
            kloop('', rkE if split or rkE else None)
        kstep('V')
        if kbar: a('s_barrier')
    stamp(2)
    a(f'v_subrev_u32 {vr(vSa)}, {NT*256}, {vr(vSa)}')
    a(f'v_mov_b32 {vr(vT+1)}, {vr(vM)}')
    a(f'ds_read_b128 {vr(vS,4)}, {vr(vSa)}')
    a('s_nop 0')
    a(f'v_permlane16_swap_b32 {vr(vM)}, {vr(vT+1)}')
    a(f'v_max_f32 {vr(vM)}, {vr(vM)}, {vr(vT+1)}')
    a(f'v_mov_b32 {vr(vT+1)}, {vr(vM)}')
    a('s_nop 1')
    a(f'v_permlane32_swap_b32 {vr(vM)}, {vr(vT+1)}')
    a(f'v_max_f32 {vr(vM)}, {vr(vM)}, {vr(vT+1)}')
    nv = NT - 1 - (1 if pre0 else 0)
    a(f's_mov_b32 {sr(sCnt)}, {nv}')
    if unify:
        a('L_vloop:')
        vstep('U', 0)
        if vbar: a('s_barrier')
        a(f's_sub_u32 {sr(sCnt)}, {sr(sCnt)}, 1')
        a('s_cbranch_scc0 L_vloop')
    else:
        if pre0: vstep(1, 0, True)
        if vlate: a(f's_mov_b32 {sr(sCnt)}, {nv-vlate}')
        def vloop(tag, rv):
            a(f'L_vloop{tag}:')
            vstep(1, rv)
            if vbar: a('s_barrier')
            a(f's_sub_u32 {sr(sCnt)}, {sr(sCnt)}, 1')
            a(f's_cmp_lg_u32 {sr(sCnt)}, 0')
            a(f's_cbranch_scc1 L_vloop{tag}')
        if split and rvO != rvE:
            a(f's_cmp_lg_u32 {sr(sOdd)}, 0'); a('s_cbranch_scc1 L_vloopO')
            vloop('E', rvE); a('s_branch L_vdone')
            vloop('O', rvO); a('L_vdone:')
        else:
            vloop('', rvE if split or rvE else None)
        if vlate:
            a(f's_mov_b32 {sr(sCnt)}, {vlate}')
            a('L_vloop2:')
            vstep(1, 4)
            if vbar: a('s_barrier')
            a(f's_sub_u32 {sr(sCnt)}, {sr(sCnt)}, 1')
            a(f's_cmp_lg_u32 {sr(sCnt)}, 0')
            a('s_cbranch_scc1 L_vloop2')
        vstep(0)
    stamp(3)
    a(f's_lshl_b32 {sr(sT0)}, {sr(sWave)}, 11')
    a(f's_add_u32 {sr(sT0)}, {sr(sT0)}, {OB}')
    a(f'v_add_u32 {vr(vT)}, {sr(sT0)}, {vr(vKsOff)}')
    a(f'v_lshlrev_b32 {vr(vT+1)}, 2, v0')
    a(f'v_add_u32 {vr(vT+2)}, {OB}, {vr(vT+1)}')
    a('s_mov_b64 exec, 0xffff')
    a('s_nop 1')
    for i in range(8):
        a(f'ds_write_b128 {vr(vT)}, {vr(vAcc+4*i,4)} offset:{i*256}')
    a('s_mov_b64 exec, -1')
    if idmap == 0: a(f's_mul_i32 {sr(sT1)}, s2, {PSTRIDE}')
    else:
        a(f's_lshl_b32 {sr(sT1)}, {sr(sHk)}, 4'); a(f's_add_u32 {sr(sT1)}, {sr(sT1)}, {sr(sJ)}'); a(f's_mul_i32 {sr(sT1)}, {sr(sT1)}, {PSTRIDE}')
    a(f's_add_u32 {sr(srdT)}, {sr(ws_)}, {sr(sT1)}')
    a(f's_addc_u32 {sr(srdT+1)}, {sr(ws_+1)}, 0')
    a(f's_and_b32 {sr(srdT+1)}, {sr(srdT+1)}, 0xffff')
    a(f's_mov_b32 {sr(srdT+2)}, {PSTRIDE}')
    a(f's_mov_b32 {sr(srdT+3)}, 0x20000')
    a('s_waitcnt lgkmcnt(0)')
    a('s_barrier')
    vOw = vR
    vRes = vR + 16
    vPo = vSa
    for ch in range(nch):
        for w in range(nw):
            a(f'ds_read_b32 {vr(vOw+ch*nw+w)}, {vr(vT+2)} offset:{w*2048+ch*nthr*4}')
    for ch in range(nch):
        a(f's_waitcnt lgkmcnt({(nch-1-ch)*nw})')
        a(f'v_fma_f32 {vr(vRes+ch)}, {vr(vF)}, {vr(vOw+ch*nw)}, -{vr(vZs)}')
        for w in range(1, nw):
            a(f'v_fmac_f32 {vr(vRes+ch)}, {vr(vF+w)}, {vr(vOw+ch*nw+w)}')
    stamp(4)
    if nch == 1 or not x2:
        for ch in range(nch):
            a(f'buffer_store_dword {vr(vRes+ch)}, {vr(vT+1)}, {sr(srdT,4)}, 0 offen offset:{ch*nthr*4} sc1')
    else:
        a(f'v_lshlrev_b32 {vr(vPo)}, 3, v0')
        a(f'buffer_store_dwordx2 {vr(vRes,2)}, {vr(vPo)}, {sr(srdT,4)}, 0 offen sc1')
    a('v_cmp_gt_u32 vcc, 4, v0')
    a(f's_and_saveexec_b64 {sr(sEx,2)}, vcc')
    a('s_cbranch_execz L_nost')
    a(f'buffer_store_dword {vr(vMx)}, {vr(vT+1)}, {sr(srdT,4)}, 0 offen offset:2048 sc1')
    a(f'buffer_store_dword {vr(vLs)}, {vr(vT+1)}, {sr(srdT,4)}, 0 offen offset:2064 sc1')
    a('L_nost:')
    a(f's_mov_b64 exec, {sr(sEx,2)}')
    a(f's_mov_b32 {sr(srdKS)}, {sr(dbg_)}')
    a(f's_and_b32 {sr(srdKS+1)}, {sr(dbg_+1)}, 0xffff')
    a(f's_mov_b32 {sr(srdKS+2)}, 256')
    a(f's_lshl_b32 {sr(sOffG)}, {sr(sHk)}, {cshift}')
    if coff: a(f's_add_u32 {sr(sOffG)}, {sr(sOffG)}, {coff}')
    a(f's_mul_i32 {sr(sT1)}, {sr(sHk)}, {P*PSTRIDE}')
    a(f's_add_u32 {sr(srdV)}, {sr(ws_)}, {sr(sT1)}')
    a(f's_addc_u32 {sr(srdV+1)}, {sr(ws_+1)}, 0')
    a(f's_and_b32 {sr(srdV+1)}, {sr(srdV+1)}, 0xffff')
    a(f's_mov_b32 {sr(srdV+2)}, {P*PSTRIDE}')
    a(f's_lshl_b32 {sr(sT1)}, {sr(sHk)}, 10')
    a(f's_add_u32 {sr(srdK)}, {sr(o_)}, {sr(sT1)}')
    a(f's_addc_u32 {sr(srdK+1)}, {sr(o_+1)}, 0')
    a(f's_and_b32 {sr(srdK+1)}, {sr(srdK+1)}, 0xffff')
    a(f's_mov_b32 {sr(srdK+2)}, 1024')
    vML = vT + 2; vBp = vT + 3; vOa = vT + 4
    a(f'v_and_b32 {vr(vBp)}, 3, {vr(vLane)}')
    a(f'v_lshlrev_b32 {vr(vBp)}, 6, {vr(vBp)}')
    a(f'v_and_b32 {vr(vML)}, 15, {vr(vLane)}')
    a(f'v_lshlrev_b32 {vr(vML)}, 12, {vr(vML)}')
    a(f'v_lshrrev_b32 {vr(vT+6)}, 4, {vr(vLane)}')
    a(f'v_lshl_add_u32 {vr(vML)}, {vr(vT+6)}, 2, {vr(vML)}')
    for ch in range(nch):
        e, x, y = vT + 6, vOa + ch, vT + 7
        a(f'v_add_u32 {vr(e)}, {ch*nthr}, v0')
        a(f'v_and_b32 {vr(x)}, 3, {vr(e)}'); a(f'v_lshlrev_b32 {vr(x)}, 7, {vr(x)}')
        a(f'v_lshrrev_b32 {vr(y)}, 8, {vr(e)}'); a(f'v_lshl_add_u32 {vr(x)}, {vr(y)}, 6, {vr(x)}')
        a(f'v_bfe_u32 {vr(y)}, {vr(e)}, 2, 4'); a(f'v_lshl_add_u32 {vr(x)}, {vr(y)}, 2, {vr(x)}')
        a(f'v_bfe_u32 {vr(y)}, {vr(e)}, 6, 2'); a(f'v_add_u32 {vr(x)}, {vr(x)}, {vr(y)}')
        a(f'v_lshlrev_b32 {vr(x)}, 1, {vr(x)}')
    a(f'v_mov_b32 {vr(vT+6)}, {TK}')
    a('s_waitcnt vmcnt(0)')
    stamp(5)
    a('s_barrier')
    a(f's_cmp_lg_u32 {sr(sWave)}, 0')
    a('s_cbranch_scc1 L_noat')
    a('s_mov_b64 exec, 1')
    a(f'v_mov_b32 {vr(vT+7)}, 1')
    a(f'v_mov_b32 {vr(vT)}, 0')
    a(f'buffer_atomic_add {vr(vT+7)}, {vr(vT)}, {sr(srdKS,4)}, {sr(sOffG)} offen sc0')
    a('s_waitcnt vmcnt(0)')
    a(f'ds_write_b32 {vr(vT+6)}, {vr(vT+7)}')
    a('s_mov_b64 exec, -1')
    a('s_waitcnt lgkmcnt(0)')
    a('L_noat:')
    a('s_barrier')
    a(f'ds_read_b32 {vr(vT+7)}, {vr(vT+6)}')
    a('s_waitcnt lgkmcnt(0)')
    a(f'v_readfirstlane_b32 {sr(sT0)}, {vr(vT+7)}')
    a('s_nop 3')
    stamp(6)
    a(f's_cmp_lg_u32 {sr(sT0)}, {P-1}')
    a('s_cbranch_scc1 L_notlast')
    cM, cL, x, y = vQB, vQB + 1, vQB + 2, vQB + 3
    cW = vPK
    cO = vR if nch == 1 else vAcc
    a(f'buffer_load_dword {vr(cM)}, {vr(vML)}, {sr(srdV,4)}, 0 offen offset:2048 sc1')
    a(f'buffer_load_dword {vr(cL)}, {vr(vML)}, {sr(srdV,4)}, 0 offen offset:2064 sc1')
    for w in range(P):
        a(f's_mov_b32 {sr(sT1)}, {w*PSTRIDE}')
        if nch == 1: a(f'buffer_load_dword {vr(cO+w)}, {vr(vT+1)}, {sr(srdV,4)}, {sr(sT1)} offen sc1')
        elif not x2:
            for ch in range(nch): a(f'buffer_load_dword {vr(cO+2*w+ch)}, {vr(vT+1)}, {sr(srdV,4)}, {sr(sT1)} offen offset:{ch*nthr*4} sc1')
        else: a(f'buffer_load_dwordx2 {vr(cO+2*w,2)}, {vr(vPo)}, {sr(srdV,4)}, {sr(sT1)} offen sc1')
    a(f's_waitcnt vmcnt({P if (nch == 1 or x2) else nch*P})')
    def allreduce(reg, op):
        for k in (1, 2, 4, 8):
            a('s_nop 1')
            a(f'{op}_dpp {vr(reg)}, {vr(reg)}, {vr(reg)} row_ror:{k} row_mask:0xf bank_mask:0xf')
    a(f'v_mov_b32 {vr(x)}, {vr(cM)}')
    allreduce(x, 'v_max_f32')
    a(f'v_sub_f32 {vr(cM)}, {vr(cM)}, {vr(x)}')
    a(f'v_exp_f32 {vr(cM)}, {vr(cM)}')
    a('s_nop 0')
    a(f'v_mul_f32 {vr(x)}, {vr(cM)}, {vr(cL)}')
    allreduce(x, 'v_add_f32')
    a(f'v_rcp_f32 {vr(cL)}, {vr(x)}')
    a('s_nop 0')
    a(f'v_mul_f32 {vr(cM)}, {vr(cM)}, {vr(cL)}')
    for w in range(P):
        a(f'ds_bpermute_b32 {vr(cW+w)}, {vr(vBp)}, {vr(cM)} offset:{4*w}')
    a('s_waitcnt vmcnt(0) lgkmcnt(0)')
    for ch in range(nch):
        o = (lambda w: cO + w) if nch == 1 else (lambda w: cO + 2 * w + ch)
        a(f'v_mul_f32 {vr(x)}, {vr(cW)}, {vr(o(0))}')
        for w in range(1, P): a(f'v_fmac_f32 {vr(x)}, {vr(cW+w)}, {vr(o(w))}')
        a(f'v_cvt_pk_bf16_f32 {vr(x)}, {vr(x)}, {vr(x)}')
        a(f'buffer_store_short {vr(x)}, {vr(vOa+ch)}, {sr(srdK,4)}, 0 offen {opol}')
    if dbgprof:
        a('s_waitcnt vmcnt(0)')
        a(f's_cmp_lg_u32 {sr(sWave)}, 0')
        a('s_cbranch_scc1 L_end')
        stamp(7)
        a(f's_memtime {sr(sTm+2,2)}')
        a('s_waitcnt lgkmcnt(0)')
        a('s_mov_b64 exec, 1')
        a(f'v_mov_b32 {vr(vT)}, 0')
        for i in range(1, 8):
            a(f's_sub_u32 {sr(sT0)}, {sr(sSt+2*i)}, {sr(sSt)}')
            a(f'v_mov_b32 {vr(vR+i)}, {sr(sT0)}')
        for i in range(1, 8):
            a(f'buffer_atomic_umax {vr(vR+i)}, {vr(vT)}, {sr(srdKS,4)}, 0 offen offset:{4*i}')
    a('L_notlast:')
    if prof == 2:
        a('s_waitcnt vmcnt(0)')
        stamp(7)
        a(f's_memtime {sr(sTm+2,2)}')
        a('s_waitcnt lgkmcnt(0)')
        a(f's_cmp_lg_u32 {sr(sWave)}, 0')
        a('s_cbranch_scc1 L_end')
        a(f's_add_u32 {sr(srdT)}, {sr(ws_)}, 0x4000000')
        a(f's_addc_u32 {sr(srdT+1)}, {sr(ws_+1)}, 0')
        a(f's_and_b32 {sr(srdT+1)}, {sr(srdT+1)}, 0xffff')
        a(f's_mov_b32 {sr(srdT+2)}, 0x100000')
        a(f's_lshl_b32 {sr(sT1)}, s2, 6')
        for i in range(8): a(f'v_mov_b32 {vr(vR+i)}, {sr(sSt+2*i)}')
        a(f's_getreg_b32 {sr(sT0)}, hwreg(HW_REG_XCC_ID)')
        a(f'v_mov_b32 {vr(vR+8)}, {sr(sT0)}')
        a(f's_getreg_b32 {sr(sT0)}, hwreg(HW_REG_HW_ID)')
        a(f'v_mov_b32 {vr(vR+9)}, {sr(sT0)}')
        a(f's_sub_u32 {sr(sT0)}, {sr(sTm+2)}, {sr(sTm)}')
        a(f'v_mov_b32 {vr(vR+10)}, {sr(sT0)}')
        a(f'v_mov_b32 {vr(vT)}, 0')
        a('s_mov_b64 exec, 1')
        a(f'buffer_store_dwordx4 {vr(vR,4)}, {vr(vT)}, {sr(srdT,4)}, {sr(sT1)} offen')
        a(f'buffer_store_dwordx4 {vr(vR+4,4)}, {vr(vT)}, {sr(srdT,4)}, {sr(sT1)} offen offset:16')
        a(f'buffer_store_dwordx4 {vr(vR+8,4)}, {vr(vT)}, {sr(srdT,4)}, {sr(sT1)} offen offset:32')
    if padto:
        a('s_waitcnt vmcnt(0) lgkmcnt(0)')
        a('L_pad:')
        a(f's_memrealtime {sr(sTm+2,2)}')
        a('s_waitcnt lgkmcnt(0)')
        a(f's_sub_u32 {sr(sT0)}, {sr(sTm+2)}, {sr(sTm)}')
        a(f's_cmp_lt_u32 {sr(sT0)}, {padto}')
        a('s_cbranch_scc1 L_pad')
    a('L_end:')
    a('s_endpgm')
    if unify:
        a('L_k2v_small:')
        first_off()
        offsV(); ld_vs()
        a('s_branch L_k2v_small_back')
        a('L_k2v_big:')
        ld_V()
        a('s_branch L_k2v_big_back')
        a('L_vlast:')
        ld_vs()
        early_publish()
        a('s_branch L_vlast_back')
    main = '\n'.join(out)
    acc = min(256, (nvgpr + 3) // 4 * 4)
    kd = f'''.amdhsa_kernel {KN}
  .amdhsa_next_free_vgpr {nvgpr}
  .amdhsa_next_free_sgpr {S.n}
  .amdhsa_accum_offset {acc}
  .amdhsa_group_segment_fixed_size 0
  .amdhsa_kernarg_size 80
  .amdhsa_user_sgpr_count 2
  .amdhsa_user_sgpr_kernarg_segment_ptr 1
  .amdhsa_system_sgpr_workgroup_id_x 1
  .amdhsa_float_denorm_mode_32 3
.end_amdhsa_kernel
'''
    src = HEADCOMMENT + f'; @launch grid=({nwg},1,1) block=({nthr},1,1) lds={lds_bytes}\n'
    src += '.amdgcn_target "amdgcn-amd-amdhsa--gfx950"\n.text\n'
    src += f'.globl {KN}\n.p2align 8\n.type {KN},@function\n{main}\n'
    src += '.section .rodata,"a"\n.p2align 6\n' + kd
    return src, [(KN, nwg, nthr, lds_bytes)]

if __name__ == '__main__':
    import argparse
    ap = argparse.ArgumentParser()
    ap.add_argument('-o', default='out.s')
    ap.add_argument('kv', nargs='*')
    args = ap.parse_args()
    kw = {}
    for x in args.kv:
        k, v = x.split('=')
        try: v = int(v)
        except ValueError: pass
        kw[k] = v
    src, l = gen(**kw)
    open(args.o, 'w').write(src)
    print(l)
```

```python
import struct
KN = 'standalone__kv_cache_quant_int4_int2_kv_with_per_channel_or_per_token_scales__decode_kernel'

HEADCOMMENT = '''; KIVI-style quantised KV-cache decode attention (B=2, Hq=32, Hkv=8, Skv=32768, Dh=128), one fused launch.
;
;   Workgroups with equal id % 8 share two heads; two of them interleave their 64-token steps inside a 4096-token range,
'''

class Alloc:
    def __init__(self, start, limit):
        self.n = start; self.limit = limit
    def get(self, cnt=1, align=1):
        self.n = (self.n + align - 1) // align * align
        r = self.n; self.n += cnt
        assert self.n <= self.limit, self.n
        return r

def vr(r, n=1): return f'v{r}' if n == 1 else f'v[{r}:{r+n-1}]'
def sr(r, n=1): return f's{r}' if n == 1 else f's[{r}:{r+n-1}]'
def f32hex(x): return '0x%08x' % struct.unpack('<I', struct.pack('<f', x))[0]

PSTRIDE = 4096
QROW = 288
WLDS = 1536
CEXP = 0.08838834764831845 * 1.4426950408889634

def gen(nw=8, bar=1, pol='nt', spol='nt', nB=2, prof=0, dbgprof=0, coff=0, cshift=2, opol='', padto=0,
        wrot=0, perm='tr', minvgpr=176, kbar=None, vbar=None, minlds=0, roll=0, x2=0, vlate=0, rkO=0, rvO=0, rkE=0, rvE=0, pre0=0, unify=0, kfirst=0, idmap=0, tlbw=0, rot=0):
    P = 16
    nwg = 16 * P
    NT = 32768 // (P * nw * 16)
    nthr = nw * 64
    nch = 512 // nthr
    if kbar is None: kbar = bar
    if vbar is None: vbar = bar
    out = []
    a = out.append
    V = Alloc(1, 256); S = Alloc(3, 102)
    sWave = S.get()
    sKA = S.get(16, 4); sKB = S.get(4, 4)
    srdK = S.get(4, 4); srdV = S.get(4, 4); srdKS = S.get(4, 4); srdKZ = S.get(4, 4)
    srdVS = S.get(4, 4); srdVZ = S.get(4, 4); srdT = S.get(4, 4)
    sHk = S.get(); sJ = S.get()
    sOffK = S.get(); sOffS = S.get(); sOffG = S.get(); sOffK2 = S.get(); sOff0 = S.get()
    sCnt = S.get(); sT0 = S.get(); sT1 = S.get()
    sWm = S.get(12, 2) if tlbw else None
    sPh = S.get(); sPh0 = S.get()
    sMask = S.get(); sOdd = S.get(); sEx = S.get(2, 2); sQuad = S.get(2, 2)
    stamps = prof == 2 or dbgprof
    sSt = S.get(16, 2) if stamps else None
    sTm = S.get(4, 2) if (dbgprof or padto or prof == 2) else None
    def stamp(i):
        if stamps: a(f's_memrealtime {sr(sSt+2*i,2)}')
    vLane = V.get()
    vKoff = V.get(); vVoff = V.get(); vSoff = V.get(); vKsOff = V.get(); vKzOff = V.get()
    vKoffB = V.get(); vLqRB = V.get(); vLzRB = V.get()
    vLqW = V.get(); vLzW = V.get(); vLqR = V.get(); vLzR = V.get()
    vSa = V.get()
    vM = V.get(); vL = V.get()
    vT = V.get(8, 2)
    vQc = V.get(8, 4)
    vKs = V.get(4, 4); vKz = V.get(); vVs = V.get(2, 2); vVz = V.get(2, 2)
    vQw = V.get(4, 4); vP = V.get(2, 2); vS = V.get(4, 4); vAz = V.get(4, 4)
    vAcc = V.get(32, 4); vQB = V.get(16, 4); vPK = V.get(16, 4)
    vR = V.get(32, 4)
    vRB = V.get(32, 4) if pre0 else None
    vVs0 = V.get(2, 2) if pre0 else None; vVz0 = V.get(2, 2) if pre0 else None
    nvgpr = max(V.n, minvgpr)
    SB = nw * WLDS
    OB = SB + nw * NT * 256
    MB = OB + nw * 2048
    RS = nw * 4
    TK = MB + 12 * RS
    lds_bytes = max(TK + 16, minlds)

    a(f'{KN}:')
    a(f's_cmp_ge_u32 s2, {nwg}')
    a('s_cbranch_scc1 L_end')
    a(f's_load_dwordx16 {sr(sKA,16)}, s[0:1], 0')
    a(f's_load_dwordx4 {sr(sKB,4)}, s[0:1], 64')
    stamp(0)
    if dbgprof or prof == 2: a(f's_memtime {sr(sTm,2)}')
    if padto: a(f's_memrealtime {sr(sTm,2)}')
    a(f'v_lshrrev_b32 {vr(vT)}, 6, v0')
    a(f'v_and_b32 {vr(vLane)}, 63, v0')
    if idmap == 0:
        a(f's_lshr_b32 {sr(sHk)}, s2, 4')
        a(f'v_readfirstlane_b32 {sr(sWave)}, {vr(vT)}')
        a(f's_and_b32 {sr(sJ)}, s2, {P-1}')
    else:
        a(f's_and_b32 {sr(sHk)}, s2, 7')
        a(f'v_readfirstlane_b32 {sr(sWave)}, {vr(vT)}')
        a(f's_lshl_b32 {sr(sHk)}, {sr(sHk)}, 1')
        a(f's_lshr_b32 {sr(sJ)}, s2, 3')
        a(f's_and_b32 {sr(sT0)}, {sr(sJ)}, 1')
        a(f's_add_u32 {sr(sHk)}, {sr(sHk)}, {sr(sT0)}')
        a(f's_lshr_b32 {sr(sJ)}, s2, 4')
    n15, g4 = vT + 1, vT + 2
    def lane_rest():
        a(f'v_lshlrev_b32 {vr(vKsOff)}, 4, {vr(n15)}')
        a(f'v_lshl_add_u32 {vr(vVoff)}, {vr(g4)}, 11, {vr(vKsOff)}')
        a(f'v_lshlrev_b32 {vr(vSoff)}, 3, {vr(g4)}')
        a(f'v_lshlrev_b32 {vr(vKzOff)}, 2, {vr(vLane)}')
    a(f'v_and_b32 {vr(n15)}, 15, {vr(vLane)}')
    a(f'v_lshrrev_b32 {vr(g4)}, 4, {vr(vLane)}')
    a(f'v_lshlrev_b32 {vr(vT+3)}, 9, {vr(n15)}')
    a(f'v_lshl_add_u32 {vr(vKoff)}, {vr(g4)}, 4, {vr(vT+3)}')
    a(f'v_and_b32 {vr(vT+3)}, 7, {vr(vLane)}')
    a(f'v_lshlrev_b32 {vr(vT+3)}, 9, {vr(vT+3)}')
    a(f'v_lshrrev_b32 {vr(vT+4)}, 3, {vr(vLane)}')
    a(f'v_lshl_add_u32 {vr(vKoffB)}, {vr(vT+4)}, 4, {vr(vT+3)}')
    if not kfirst: lane_rest()
    stride = nw * 16 * 512
    G = {'tr': 1, 'seq': P}.get(perm) or int(perm[2:])
    if G == 1: a(f's_lshl_b32 {sr(sOff0)}, {sr(sJ)}, 20')
    else:
        a(f's_lshr_b32 {sr(sT0)}, {sr(sJ)}, {G.bit_length()-1}'); a(f's_mul_i32 {sr(sOff0)}, {sr(sT0)}, {G << 20}')
        a(f's_and_b32 {sr(sT0)}, {sr(sJ)}, {G-1}'); a(f's_mul_i32 {sr(sT0)}, {sr(sT0)}, {stride}')
        a(f's_add_u32 {sr(sOff0)}, {sr(sOff0)}, {sr(sT0)}')
    if wrot == 0: a(f's_lshl_b32 {sr(sT0)}, {sr(sWave)}, 13')
    else:
        if wrot == 3: a(f's_lshr_b32 {sr(sT0)}, s2, 3'); a(f's_and_b32 {sr(sT0)}, {sr(sT0)}, 1'); a(f's_lshl_b32 {sr(sT0)}, {sr(sT0)}, {(nw//2).bit_length()-1}'); a(f's_xor_b32 {sr(sT0)}, {sr(sT0)}, {sr(sWave)}')
        elif wrot == 8: a(f's_lshr_b32 {sr(sT0)}, s2, 3'); a(f's_and_b32 {sr(sT0)}, {sr(sT0)}, 3'); a(f's_lshl_b32 {sr(sT0)}, {sr(sT0)}, 1'); a(f's_xor_b32 {sr(sT0)}, {sr(sT0)}, {sr(sWave)}')
        elif wrot == 6: a(f's_lshr_b32 {sr(sT0)}, s2, 3'); a(f's_xor_b32 {sr(sT0)}, {sr(sT0)}, {sr(sWave)}')
        elif wrot == 13: a(f's_lshr_b32 {sr(sT0)}, s2, 4'); a(f's_and_b32 {sr(sT0)}, {sr(sT0)}, 1'); a(f's_lshl_b32 {sr(sT0)}, {sr(sT0)}, 1'); a(f's_xor_b32 {sr(sT0)}, {sr(sT0)}, {sr(sWave)}')
        elif wrot == 14: a(f's_lshr_b32 {sr(sT0)}, s2, 5'); a(f's_xor_b32 {sr(sT0)}, {sr(sT0)}, {sr(sWave)}')
        elif wrot == 15: a(f's_xor_b32 {sr(sT0)}, s2, {sr(sWave)}')
        elif wrot == 16: a(f's_and_b32 {sr(sT0)}, s2, 1'); a(f's_lshl_b32 {sr(sT0)}, {sr(sT0)}, 1'); a(f's_xor_b32 {sr(sT0)}, {sr(sT0)}, {sr(sWave)}')
        elif wrot == 17: a(f's_lshr_b32 {sr(sT0)}, s2, 3'); a(f's_xor_b32 {sr(sT0)}, {sr(sT0)}, s2'); a(f's_and_b32 {sr(sT0)}, {sr(sT0)}, 1'); a(f's_lshl_b32 {sr(sT0)}, {sr(sT0)}, 1'); a(f's_xor_b32 {sr(sT0)}, {sr(sT0)}, {sr(sWave)}')
        elif wrot == 18: a(f's_lshr_b32 {sr(sT0)}, s2, 5'); a(f's_and_b32 {sr(sT0)}, {sr(sT0)}, 1'); a(f's_lshl_b32 {sr(sT0)}, {sr(sT0)}, 1'); a(f's_xor_b32 {sr(sT0)}, {sr(sT0)}, {sr(sWave)}')
        a(f's_and_b32 {sr(sT0)}, {sr(sT0)}, {nw-1}')
        a(f's_lshl_b32 {sr(sT0)}, {sr(sT0)}, 13')
    a(f's_add_u32 {sr(sOff0)}, {sr(sOff0)}, {sr(sT0)}')
    stride = stride * G
    region = G << 20
    def first_off():
        if rot:
            a(f's_mov_b32 {sr(sPh)}, {sr(sPh0)}')
            a(f's_add_u32 {sr(sOffK)}, {sr(sOff0)}, {sr(sPh)}')
        else:
            a(f's_mov_b32 {sr(sOffK)}, {sr(sOff0)}')
    def next_off():
        if rot:
            a(f's_add_u32 {sr(sPh)}, {sr(sPh)}, {stride}')
            a(f's_and_b32 {sr(sPh)}, {sr(sPh)}, {region-1}')
            a(f's_add_u32 {sr(sOffK)}, {sr(sOff0)}, {sr(sPh)}')
        else:
            a(f's_add_u32 {sr(sOffK)}, {sr(sOffK)}, {stride}')
    if rot:
        nst = region // stride
        if rot == 1: a(f's_lshr_b32 {sr(sPh0)}, s2, 3'); a(f's_and_b32 {sr(sPh0)}, {sr(sPh0)}, 1'); a(f's_mul_i32 {sr(sPh0)}, {sr(sPh0)}, {nst//2}')
        elif rot == 2: a(f's_and_b32 {sr(sPh0)}, s2, 7'); a(f's_mul_i32 {sr(sPh0)}, {sr(sPh0)}, {nst//8}')
        elif rot == 3: a(f's_lshr_b32 {sr(sPh0)}, {sr(sJ)}, 1'); a(f's_mul_i32 {sr(sPh0)}, {sr(sPh0)}, {nst//8}')
        elif rot == 4: a(f's_and_b32 {sr(sPh0)}, s2, 1'); a(f's_mul_i32 {sr(sPh0)}, {sr(sPh0)}, {nst//2}')
        elif rot == 5: a(f's_lshr_b32 {sr(sPh0)}, s2, 3'); a(f's_and_b32 {sr(sPh0)}, {sr(sPh0)}, 1')
        elif rot == 6: a(f's_and_b32 {sr(sPh0)}, s2, 7')
        elif rot == 7: a(f's_lshr_b32 {sr(sPh0)}, {sr(sJ)}, 1'); a(f's_and_b32 {sr(sPh0)}, {sr(sPh0)}, 1'); a(f's_mul_i32 {sr(sPh0)}, {sr(sPh0)}, {nst//2}')
        elif rot == 8: a(f's_lshr_b32 {sr(sPh0)}, s2, 3'); a(f's_xor_b32 {sr(sPh0)}, {sr(sPh0)}, s2'); a(f's_and_b32 {sr(sPh0)}, {sr(sPh0)}, 1'); a(f's_mul_i32 {sr(sPh0)}, {sr(sPh0)}, {nst//2}')
        elif rot == 9: a(f's_and_b32 {sr(sPh0)}, {sr(sHk)}, 3'); a(f's_mul_i32 {sr(sPh0)}, {sr(sPh0)}, {nst//4}')
        elif rot == 10: a(f's_and_b32 {sr(sPh0)}, {sr(sHk)}, 1'); a(f's_mul_i32 {sr(sPh0)}, {sr(sPh0)}, {nst//4}')
        elif rot == 11: a(f's_and_b32 {sr(sPh0)}, {sr(sHk)}, 1'); a(f's_mul_i32 {sr(sPh0)}, {sr(sPh0)}, {nst//2}'); a(f's_and_b32 {sr(sT0)}, s2, 7'); a(f's_add_u32 {sr(sPh0)}, {sr(sPh0)}, {sr(sT0)}')
        elif rot == 12: a(f's_mov_b32 {sr(sPh0)}, {sr(sHk)}')
        elif rot == 13: a(f's_lshr_b32 {sr(sPh0)}, {sr(sHk)}, 1'); a(f's_and_b32 {sr(sPh0)}, {sr(sPh0)}, 1'); a(f's_mul_i32 {sr(sPh0)}, {sr(sPh0)}, {nst//2}')
        elif rot == 14:
            a(f's_and_b32 {sr(sPh0)}, {sr(sHk)}, 1'); a(f's_mul_i32 {sr(sPh0)}, {sr(sPh0)}, {nst//2}'); a(f's_and_b32 {sr(sT0)}, s2, 7'); a(f's_add_u32 {sr(sPh0)}, {sr(sPh0)}, {sr(sT0)}')
            a(f's_lshr_b32 {sr(sT0)}, {sr(sJ)}, 1'); a(f's_and_b32 {sr(sT0)}, {sr(sT0)}, 1'); a(f's_lshl_b32 {sr(sT0)}, {sr(sT0)}, 3'); a(f's_add_u32 {sr(sPh0)}, {sr(sPh0)}, {sr(sT0)}')
        elif rot == 15:
            a(f's_and_b32 {sr(sPh0)}, {sr(sHk)}, 1'); a(f's_mul_i32 {sr(sPh0)}, {sr(sPh0)}, {nst//2}'); a(f's_and_b32 {sr(sT0)}, s2, 7'); a(f's_lshl_b32 {sr(sT0)}, {sr(sT0)}, 1'); a(f's_add_u32 {sr(sPh0)}, {sr(sPh0)}, {sr(sT0)}')
        elif rot == 16:
            a(f's_and_b32 {sr(sPh0)}, {sr(sHk)}, 1'); a(f's_mul_i32 {sr(sPh0)}, {sr(sPh0)}, {nst//4}'); a(f's_and_b32 {sr(sT0)}, s2, 7'); a(f's_add_u32 {sr(sPh0)}, {sr(sPh0)}, {sr(sT0)}')
        elif rot == 17:
            a(f's_lshr_b32 {sr(sT0)}, {sr(sJ)}, 1'); a(f's_add_u32 {sr(sPh0)}, {sr(sHk)}, {sr(sT0)}')
        elif rot == 18:
            a(f's_lshl_b32 {sr(sPh0)}, {sr(sHk)}, 1')
        elif rot == 19:
            a(f's_lshr_b32 {sr(sPh0)}, {sr(sJ)}, 1')
        elif rot == 20:
            a(f's_and_b32 {sr(sPh0)}, {sr(sHk)}, 1'); a(f's_mul_i32 {sr(sPh0)}, {sr(sPh0)}, {nst//2}'); a(f's_and_b32 {sr(sT0)}, s2, 7'); a(f's_add_u32 {sr(sPh0)}, {sr(sPh0)}, {sr(sT0)}')
            a(f's_lshr_b32 {sr(sT0)}, {sr(sJ)}, 1'); a(f's_add_u32 {sr(sPh0)}, {sr(sPh0)}, {sr(sT0)}')
        a(f's_mul_i32 {sr(sPh0)}, {sr(sPh0)}, {stride}')
        a(f's_and_b32 {sr(sPh0)}, {sr(sPh0)}, {region-1}')
    first_off()
    def offsK():
        a(f's_lshr_b32 {sr(sOffG)}, {sr(sOffK)}, 8')
        a(f's_and_b32 {sr(sOffG)}, {sr(sOffG)}, 0xffffff00')
        if nB: a(f's_add_u32 {sr(sOffK2)}, {sr(sOffK)}, 4096')
    def offsV():
        a(f's_lshr_b32 {sr(sOffS)}, {sr(sOffK)}, 8')
    offsK()
    a('s_waitcnt lgkmcnt(0)')
    def srd(dst, ptr, off_s, off_shift, nbytes):
        a(f's_lshl_b32 {sr(sT0)}, {sr(off_s)}, {off_shift}')
        a(f's_add_u32 {sr(dst)}, {sr(ptr)}, {sr(sT0)}')
        a(f's_addc_u32 {sr(dst+1)}, {sr(ptr+1)}, 0')
        a(f's_and_b32 {sr(dst+1)}, {sr(dst+1)}, 0xffff')
        a(f's_mov_b32 {sr(dst+2)}, {nbytes}')
        a(f's_mov_b32 {sr(dst+3)}, 0x20000')
    q_, qk_, qv_, ks_, kz_, vs_, vz_, o_ = [sKA + 2 * i for i in range(8)]
    dbg_, ws_ = sKB, sKB + 2
    def ld_ks():
        a(f'buffer_load_dwordx4 {vr(vKs,4)}, {vr(vKsOff)}, {sr(srdKS,4)}, {sr(sOffG)} offen {spol}')
        a(f'buffer_load_dword {vr(vKz)}, {vr(vKzOff)}, {sr(srdKZ,4)}, {sr(sOffG)} offen {spol}')
    def ld_K1(i):
        s = i // 2
        if s < 4 - nB:
            a(f'buffer_load_dwordx4 {vr(vR+4*i,4)}, {vr(vKoff)}, {sr(srdK,4)}, {sr(sOffK)} offen offset:{i*64} {pol}')
        else:
            a(f'buffer_load_dwordx4 {vr(vR+4*i,4)}, {vr(vKoffB)}, {sr(srdK,4)}, {sr(sOffK if i % 2 == 0 else sOffK2)} offen offset:{s*128} {pol}')
    def ld_K():
        for i in range(8): ld_K1(i)
    def ld_vs(rs=None, rz=None):
        rs = vVs if rs is None else rs; rz = vVz if rz is None else rz
        a(f'buffer_load_dwordx2 {vr(rs,2)}, {vr(vSoff)}, {sr(srdVS,4)}, {sr(sOffS)} offen {spol}')
        a(f'buffer_load_dwordx2 {vr(rz,2)}, {vr(vSoff)}, {sr(srdVZ,4)}, {sr(sOffS)} offen {spol}')
    VSEQ = [(0,0),(1,0),(0,1),(1,1),(2,0),(3,0),(2,1),(3,1)]
    def ld_V1(k, rb=None):
        j, h = VSEQ[k]
        rb = vR if rb is None else rb
        a(f'buffer_load_dwordx4 {vr(rb+4*k,4)}, {vr(vVoff)}, {sr(srdV,4)}, {sr(sOffK)} offen offset:{j*512+h*256} {pol}')
    def ld_V():
        for k in range(8): ld_V1(k)
    if pre0:
        srd(srdVS, vs_, sHk, 16, 1 << 16)
        srd(srdVZ, vz_, sHk, 16, 1 << 16)
        srd(srdV, qv_, sHk, 24, 1 << 24)
        offsV(); ld_vs(vVs0, vVz0)
        for k in range(8): ld_V1(k, vRB)
    if kfirst:
        srd(srdK, qk_, sHk, 24, 1 << 24)
        ld_K()
        lane_rest()
    srd(srdT, q_, sHk, 10, 1024)
    a(f'v_lshl_add_u32 {vr(vT+3)}, {vr(g4)}, 8, {vr(vKsOff)}')
    a(f'buffer_load_dwordx4 {vr(vQw,4)}, {vr(vT+3)}, {sr(srdT,4)}, 0 offen {spol}')
    srd(srdKS, ks_, sHk, 16, 1 << 16)
    srd(srdKZ, kz_, sHk, 16, 1 << 16)
    if kfirst:
        ld_ks()
    else:
        srd(srdK, qk_, sHk, 24, 1 << 24)
        ld_ks(); ld_K()
    if not pre0:
        srd(srdVS, vs_, sHk, 16, 1 << 16)
        srd(srdVZ, vz_, sHk, 16, 1 << 16)
        srd(srdV, qv_, sHk, 24, 1 << 24)
    if tlbw:
        if tlbw & 8:
            a(f's_cmp_lg_u32 {sr(sWave)}, 0'); a('s_cbranch_scc1 L_nowarm')
        slot = [0]
        def touch(lo, hi, off_s):
            b = sWm + 2 * slot[0]; dst = sWm + 10 + (slot[0] & 1); slot[0] += 1
            a(f's_add_u32 {sr(b)}, {sr(lo)}, {sr(off_s)}')
            a(f's_addc_u32 {sr(b+1)}, {sr(hi)}, 0')
            a(f's_load_dword {sr(dst)}, {sr(b,2)}, 0')
        if tlbw & 1:
            a(f's_lshl_b32 {sr(sT0)}, {sr(sHk)}, 24'); a(f's_add_u32 {sr(sT0)}, {sr(sT0)}, {sr(sOff0)}')
            touch(qv_, qv_ + 1, sT0)
        if tlbw & 2:
            a(f's_lshl_b32 {sr(sT0)}, {sr(sHk)}, 16')
            touch(vs_, vs_ + 1, sT0)
            touch(vz_, vz_ + 1, sT0)
        if tlbw & 4:
            a(f's_lshl_b32 {sr(sT0)}, {sr(sHk)}, 16')
            touch(ws_, ws_ + 1, sT0)
            a(f's_lshl_b32 {sr(sT0)}, {sr(sHk)}, 10')
            touch(o_, o_ + 1, sT0)
        if tlbw & 8: a('L_nowarm:')
    a(f's_mul_i32 {sr(sT0)}, {sr(sWave)}, {WLDS}')
    a(f'v_mul_u32_u24 {vr(vT+3)}, {QROW}, {vr(g4)}')
    a(f'v_add3_u32 {vr(vLqW)}, {vr(vT+3)}, {vr(vKsOff)}, {sr(sT0)}')
    a(f'v_add_u32 {vr(vLzW)}, {sr(sT0)}, {vr(vKzOff)}')
    a(f'v_add_u32 {vr(vLzW)}, {4*QROW}, {vr(vLzW)}')
    a(f'v_and_b32 {vr(vT+4)}, 3, {vr(vLane)}')
    a(f'v_mul_u32_u24 {vr(vT+3)}, {QROW}, {vr(vT+4)}')
    a(f'v_add3_u32 {vr(vLqR)}, {vr(vT+3)}, {vr(vSoff)}, {sr(sT0)}')
    a(f'v_add_u32 {vr(vLzR)}, {sr(sT0)}, {vr(vSoff)}')
    a(f'v_add_u32 {vr(vLzR)}, {4*QROW}, {vr(vLzR)}')
    a(f'v_add_u32 {vr(vLqRB)}, {vr(vLqR)}, {vr(vSoff)}')
    a(f'v_add_u32 {vr(vLzRB)}, {vr(vLzR)}, {vr(vSoff)}')
    a(f's_mul_i32 {sr(sT0)}, {sr(sWave)}, {NT*256}')
    a(f's_add_u32 {sr(sT0)}, {sr(sT0)}, {SB}')
    a(f'v_lshlrev_b32 {vr(vT+4)}, 4, {vr(vT+4)}')
    a(f'v_lshl_add_u32 {vr(vSa)}, {vr(g4)}, 6, {vr(vT+4)}')
    a(f'v_add_u32 {vr(vSa)}, {sr(sT0)}, {vr(vSa)}')
    a(f's_mov_b32 {sr(sMask)}, 0xffff0000')
    a(f's_mov_b32 {sr(sQuad)}, 0x000f000f')
    a(f's_mov_b32 {sr(sQuad+1)}, 0x000f000f')
    a(f'v_mov_b32 {vr(vM)}, 0xff800000')
    a(f'v_mov_b32 {vr(vL)}, 0')
    for i in range(4): a(f'v_mov_b32 {vr(vAz+i)}, 0')
    for i in range(32): a(f'v_mov_b32 {vr(vAcc+i)}, 0')
    a(f's_mov_b32 {sr(sT1)}, {f32hex(CEXP)}')
    a(f's_mov_b32 {sr(sCnt)}, {NT-1}')
    a('s_waitcnt vmcnt(0)' if kfirst else 's_waitcnt vmcnt(10)')
    stamp(1)
    for i in range(4):
        a(f'v_lshlrev_b32 {vr(vQc+2*i)}, 16, {vr(vQw+i)}')
        a(f'v_and_b32 {vr(vQc+2*i+1)}, {sr(sMask)}, {vr(vQw+i)}')
    for i in range(8):
        a(f'v_mul_f32 {vr(vQc+i)}, {sr(sT1)}, {vr(vQc+i)}')

    def kstep(nxt, rk=None):
        a('s_waitcnt vmcnt(8)')
        for i in range(4):
            a(f'v_lshlrev_b32 {vr(vT)}, 16, {vr(vKs+i)}')
            a(f'v_and_b32 {vr(vT+1)}, {sr(sMask)}, {vr(vKs+i)}')
            a(f'v_mul_f32 {vr(vT)}, {vr(vT)}, {vr(vQc+2*i)}')
            a(f'v_mul_f32 {vr(vT+1)}, {vr(vT+1)}, {vr(vQc+2*i+1)}')
            a(f'v_cvt_pk_bf16_f32 {vr(vQw+i)}, {vr(vT)}, {vr(vT+1)}')
        a(f'v_xor_b32 {vr(vT+2)}, 0x80008000, {vr(vKz)}')
        a(f'ds_write_b128 {vr(vLqW)}, {vr(vQw,4)}')
        a(f'ds_write_b32 {vr(vLzW)}, {vr(vT+2)}')
        if nxt == 'U':
            a(f's_cmp_eq_u32 {sr(sCnt)}, 0')
            a('s_cbranch_scc1 L_k2v_small')
            next_off()
            offsK(); ld_ks()
            a('L_k2v_small_back:')
        elif nxt == 'K':
            next_off()
            offsK(); ld_ks()
        else:
            if pre0: a(f's_add_u32 {sr(sOffK)}, {sr(sOff0)}, {stride}')
            else: first_off()
            offsV(); ld_vs()
        for s in range(4):
            if s < 4 - nB: a(f'ds_read2_b64 {vr(vQB+4*s,4)}, {vr(vLqR)} offset0:{8*s} offset1:{8*s+4}')
            else: a(f'ds_read_b128 {vr(vQB+4*s,4)}, {vr(vLqRB)} offset:{64*s}')
        for s in range(4):
            if s < 4 - nB: a(f'ds_read2_b64 {vr(vPK+4*s,4)}, {vr(vLzR)} offset0:{8*s} offset1:{8*s+4}')
            else: a(f'ds_read_b128 {vr(vPK+4*s,4)}, {vr(vLzRB)} offset:{64*s}')
        a('s_waitcnt lgkmcnt(0)')
        for s in range(4):
            c = '0' if s == 0 else vr(vS, 4)
            a(f'v_mfma_f32_16x16x32_bf16 {vr(vS,4)}, {vr(vPK+4*s,4)}, {vr(vQB+4*s,4)}, {c}')
        if rk is None: rk = 8 if roll in (1, 2) else 0
        def kcvt(i):
            for c in range(4):
                a(f'v_cvt_f32_i32 {vr(vR+4*i+c)}, {vr(vR+4*i+c)}')
            d = vPK + 4 * (i // 2) + 2 * (i % 2)
            a(f'v_cvt_pk_bf16_f32 {vr(d)}, {vr(vR+4*i)}, {vr(vR+4*i+1)}')
            a(f'v_cvt_pk_bf16_f32 {vr(d+1)}, {vr(vR+4*i+2)}, {vr(vR+4*i+3)}')
        if nxt == 'U':
            a('s_waitcnt vmcnt(2)')
            for i in range(8): kcvt(i)
            a(f's_cmp_eq_u32 {sr(sCnt)}, 0')
            a('s_cbranch_scc1 L_k2v_big')
            ld_K()
            a('L_k2v_big_back:')
        else:
            nld = ld_K1 if nxt == 'K' else ld_V1
            for i in range(rk):
                a('s_waitcnt vmcnt(9)')
                kcvt(i); nld(i)
            if rk < 8:
                a(f's_waitcnt vmcnt({2+rk})')
                for i in range(rk, 8): kcvt(i)
                for i in range(rk, 8): nld(i)
        for s in range(4 - nB, 4):
            a(f'v_mov_b32 {vr(vT)}, {vr(vPK+4*s)}')
            a(f'v_mov_b32 {vr(vT+1)}, {vr(vPK+4*s+1)}')
            a('s_nop 0')
            a(f'v_mov_b32_dpp {vr(vPK+4*s)}, {vr(vPK+4*s+2)} row_ror:8 row_mask:0xf bank_mask:0xc')
            a(f'v_mov_b32_dpp {vr(vPK+4*s+1)}, {vr(vPK+4*s+3)} row_ror:8 row_mask:0xf bank_mask:0xc')
            a(f'v_mov_b32_dpp {vr(vPK+4*s+2)}, {vr(vT)} row_ror:8 row_mask:0xf bank_mask:0x3')
            a(f'v_mov_b32_dpp {vr(vPK+4*s+3)}, {vr(vT+1)} row_ror:8 row_mask:0xf bank_mask:0x3')
        a('s_nop 1')
        for s in range(4):
            a(f'v_mfma_f32_16x16x32_bf16 {vr(vS,4)}, {vr(vPK+4*s,4)}, {vr(vQB+4*s,4)}, {vr(vS,4)}')
        a('s_nop 7')
        a(f's_mov_b64 exec, {sr(sQuad,2)}')
        a(f'ds_write_b128 {vr(vSa)}, {vr(vS,4)}')
        a('s_mov_b64 exec, -1')
        a(f'v_max3_f32 {vr(vM)}, {vr(vS)}, {vr(vS+1)}, {vr(vM)}')
        a(f'v_max3_f32 {vr(vM)}, {vr(vS+2)}, {vr(vS+3)}, {vr(vM)}')
        a(f'v_add_u32 {vr(vSa)}, 256, {vr(vSa)}')

    vF = vQB
    vLw = vQB + 8
    vZw = vQc
    vMx, vLs, vZs = vKs, vKs + 1, vKs + 2
    def early_publish():
        a(f'v_mov_b32 {vr(vT+1)}, {vr(vL)}')
        a('s_nop 1')
        a(f'v_permlane16_swap_b32 {vr(vL)}, {vr(vT+1)}')
        a(f'v_add_f32 {vr(vL)}, {vr(vL)}, {vr(vT+1)}')
        a(f'v_mov_b32 {vr(vT+1)}, {vr(vL)}')
        a('s_nop 1')
        a(f'v_permlane32_swap_b32 {vr(vL)}, {vr(vT+1)}')
        a(f'v_add_f32 {vr(vL)}, {vr(vL)}, {vr(vT+1)}')
        a(f's_lshl_b32 {sr(sT1)}, {sr(sWave)}, 2')
        a(f's_add_u32 {sr(sT1)}, {sr(sT1)}, {MB}')
        a(f'v_mul_u32_u24 {vr(vT+2)}, {RS}, {vr(vLane)}')
        a(f'v_add_u32 {vr(vT+2)}, {sr(sT1)}, {vr(vT+2)}')
        a('s_mov_b64 exec, 0xf')
        a(f'ds_write_b32 {vr(vT+2)}, {vr(vM)}')
        a(f'ds_write_b32 {vr(vT+2)}, {vr(vL)} offset:{4*RS}')
        a('s_mov_b64 exec, 1')
        for r in range(4):
            a(f'ds_write_b32 {vr(vT+2)}, {vr(vAz+r)} offset:{8*RS+r*RS}')
        a('s_mov_b64 exec, -1')
        a(f'v_and_b32 {vr(vT)}, 3, v0')
        a(f'v_mul_u32_u24 {vr(vT)}, {RS}, {vr(vT)}')
        a(f'v_add_u32 {vr(vT)}, {MB}, {vr(vT)}')
        a('s_waitcnt lgkmcnt(0)')
        a('s_barrier')
        for k in range(nw // 4):
            a(f'ds_read_b128 {vr(vF+4*k,4)}, {vr(vT)} offset:{16*k}')
            a(f'ds_read_b128 {vr(vLw+4*k,4)}, {vr(vT)} offset:{4*RS+16*k}')
            a(f'ds_read_b128 {vr(vZw+4*k,4)}, {vr(vT)} offset:{8*RS+16*k}')
        a('s_waitcnt lgkmcnt(0)')
        a(f'v_max3_f32 {vr(vMx)}, {vr(vF)}, {vr(vF+1)}, {vr(vF+2)}')
        for w in range(3, nw): a(f'v_max_f32 {vr(vMx)}, {vr(vMx)}, {vr(vF+w)}')
        for w in range(nw): a(f'v_sub_f32 {vr(vF+w)}, {vr(vF+w)}, {vr(vMx)}')
        for w in range(nw): a(f'v_exp_f32 {vr(vF+w)}, {vr(vF+w)}')
        a('s_nop 0')
        a(f'v_mul_f32 {vr(vLs)}, {vr(vF)}, {vr(vLw)}')
        a(f'v_mul_f32 {vr(vZs)}, {vr(vF)}, {vr(vZw)}')
        for w in range(1, nw):
            a(f'v_fmac_f32 {vr(vLs)}, {vr(vF+w)}, {vr(vLw+w)}')
            a(f'v_fmac_f32 {vr(vZs)}, {vr(vF+w)}, {vr(vZw+w)}')

    def vstep(pf, rv=None, first=False):
        if rv is None: rv = 4 if roll in (1, 3) else 0
        vVs_, vVz_, vR_ = (vVs0, vVz0, vRB) if first else (vVs, vVz, vR)
        f = vT + 4
        a('s_waitcnt lgkmcnt(0)' if first else 's_waitcnt vmcnt(8) lgkmcnt(0)')
        a(f'v_lshlrev_b32 {vr(f)}, 16, {vr(vVs_)}')
        a(f'v_and_b32 {vr(f+1)}, {sr(sMask)}, {vr(vVs_)}')
        a(f'v_lshlrev_b32 {vr(f+2)}, 16, {vr(vVs_+1)}')
        a(f'v_and_b32 {vr(f+3)}, {sr(sMask)}, {vr(vVs_+1)}')
        for r in range(4): a(f'v_sub_f32 {vr(vS+r)}, {vr(vS+r)}, {vr(vM)}')
        for r in range(4): a(f'v_exp_f32 {vr(vS+r)}, {vr(vS+r)}')
        a('s_nop 0')
        a(f'v_add_f32 {vr(vT)}, {vr(vS)}, {vr(vS+1)}')
        a(f'v_add_f32 {vr(vT+1)}, {vr(vS+2)}, {vr(vS+3)}')
        for r in range(4): a(f'v_mul_f32 {vr(vS+r)}, {vr(vS+r)}, {vr(f+r)}')
        a(f'v_add_f32 {vr(vL)}, {vr(vL)}, {vr(vT)}')
        a(f'v_cvt_pk_bf16_f32 {vr(vP)}, {vr(vS)}, {vr(vS+1)}')
        a(f'v_cvt_pk_bf16_f32 {vr(vP+1)}, {vr(vS+2)}, {vr(vS+3)}')
        a(f'v_add_f32 {vr(vL)}, {vr(vL)}, {vr(vT+1)}')
        a('s_nop 0')
        a(f'v_mfma_f32_16x16x16_bf16 {vr(vAz,4)}, {vr(vP,2)}, {vr(vVz_,2)}, {vr(vAz,4)}')
        if pf == 'U':
            a(f's_cmp_eq_u32 {sr(sCnt)}, 0')
            a('s_cbranch_scc1 L_vlast')
            next_off()
            offsV(); ld_vs()
            a(f'v_add_u32 {vr(vSa)}, 256, {vr(vSa)}')
            a(f'ds_read_b128 {vr(vS,4)}, {vr(vSa)}')
            a('L_vlast_back:')
        elif first:
            a(f'v_add_u32 {vr(vSa)}, 256, {vr(vSa)}')
            a(f'ds_read_b128 {vr(vS,4)}, {vr(vSa)}')
        elif pf:
            next_off()
            offsV(); ld_vs()
            a(f'v_add_u32 {vr(vSa)}, 256, {vr(vSa)}')
            a(f'ds_read_b128 {vr(vS,4)}, {vr(vSa)}')
        else:
            early_publish()
        def vpair(p):
            jp, h = p >> 1, p & 1
            for c in range(4):
                r0, r1 = vR_ + 8 * p + c, vR_ + 8 * p + 4 + c
                a(f'v_cvt_f32_i32 {vr(r0)}, {vr(r0)}')
                a(f'v_cvt_f32_i32 {vr(r1)}, {vr(r1)}')
                a(f'v_cvt_pk_bf16_f32 {vr(vPK+2*(4*h+c)+jp)}, {vr(r0)}, {vr(r1)}')
        if pf == 'U':
            a('s_waitcnt vmcnt(6)'); vpair(0); vpair(1)
            a('s_waitcnt vmcnt(2)'); vpair(2); vpair(3)
            a(f's_cmp_eq_u32 {sr(sCnt)}, 0')
            a('s_cbranch_scc1 L_vnoload')
            ld_V()
            a('L_vnoload:')
            a('s_nop 0')
        elif first:
            for p in range(4): vpair(p)
            a('s_nop 1')
        elif not pf:
            for p in range(4):
                a(f's_waitcnt vmcnt({6-2*p})'); vpair(p)
            a('s_nop 1')
        else:
            for p in range(rv):
                a('s_waitcnt vmcnt(8)')
                vpair(p); ld_V1(2*p); ld_V1(2*p+1)
            if rv < 4:
                if rv <= 1:
                    a(f's_waitcnt vmcnt({2+2*rv+4})')
                    for p in range(rv, 2): vpair(p)
                    a(f's_waitcnt vmcnt({2+2*rv})')
                    for p in range(2, 4): vpair(p)
                else:
                    a(f's_waitcnt vmcnt({2+2*rv})')
                    for p in range(rv, 4): vpair(p)
                for k in range(2*rv, 8): ld_V1(k)
        for i in range(8):
            a(f'v_mfma_f32_16x16x16_bf16 {vr(vAcc+4*i,4)}, {vr(vP,2)}, {vr(vPK+2*i,2)}, {vr(vAcc+4*i,4)}')

    if unify:
        assert not (pre0 or vlate or roll or rkO or rvO or rkE or rvE)
        a('L_kloop:')
        kstep('U', 0)
        if kbar: a('s_barrier')
        a(f's_sub_u32 {sr(sCnt)}, {sr(sCnt)}, 1')
        a('s_cbranch_scc0 L_kloop')
    else:
        split = (rkO, rvO) != (rkE, rvE)
        if split:
            a(f's_getreg_b32 {sr(sOdd)}, hwreg(HW_REG_XCC_ID)')
            a(f's_and_b32 {sr(sOdd)}, {sr(sOdd)}, 1')
        def kloop(tag, rk):
            a(f'L_kloop{tag}:')
            kstep('K', rk)
            if kbar: a('s_barrier')
            a(f's_sub_u32 {sr(sCnt)}, {sr(sCnt)}, 1')
            a(f's_cmp_lg_u32 {sr(sCnt)}, 0')
            a(f's_cbranch_scc1 L_kloop{tag}')
        if split and rkO != rkE:
            a(f's_cmp_lg_u32 {sr(sOdd)}, 0'); a('s_cbranch_scc1 L_kloopO')
            kloop('E', rkE); a('s_branch L_kdone')
            kloop('O', rkO); a('L_kdone:')
        else:
            kloop('', rkE if split or rkE else None)
        kstep('V')
        if kbar: a('s_barrier')
    stamp(2)
    a(f'v_subrev_u32 {vr(vSa)}, {NT*256}, {vr(vSa)}')
    a(f'v_mov_b32 {vr(vT+1)}, {vr(vM)}')
    a(f'ds_read_b128 {vr(vS,4)}, {vr(vSa)}')
    a('s_nop 0')
    a(f'v_permlane16_swap_b32 {vr(vM)}, {vr(vT+1)}')
    a(f'v_max_f32 {vr(vM)}, {vr(vM)}, {vr(vT+1)}')
    a(f'v_mov_b32 {vr(vT+1)}, {vr(vM)}')
    a('s_nop 1')
    a(f'v_permlane32_swap_b32 {vr(vM)}, {vr(vT+1)}')
    a(f'v_max_f32 {vr(vM)}, {vr(vM)}, {vr(vT+1)}')
    nv = NT - 1 - (1 if pre0 else 0)
    a(f's_mov_b32 {sr(sCnt)}, {nv}')
    if unify:
        a('L_vloop:')
        vstep('U', 0)
        if vbar: a('s_barrier')
        a(f's_sub_u32 {sr(sCnt)}, {sr(sCnt)}, 1')
        a('s_cbranch_scc0 L_vloop')
    else:
        if pre0: vstep(1, 0, True)
        if vlate: a(f's_mov_b32 {sr(sCnt)}, {nv-vlate}')
        def vloop(tag, rv):
            a(f'L_vloop{tag}:')
            vstep(1, rv)
            if vbar: a('s_barrier')
            a(f's_sub_u32 {sr(sCnt)}, {sr(sCnt)}, 1')
            a(f's_cmp_lg_u32 {sr(sCnt)}, 0')
            a(f's_cbranch_scc1 L_vloop{tag}')
        if split and rvO != rvE:
            a(f's_cmp_lg_u32 {sr(sOdd)}, 0'); a('s_cbranch_scc1 L_vloopO')
            vloop('E', rvE); a('s_branch L_vdone')
            vloop('O', rvO); a('L_vdone:')
        else:
            vloop('', rvE if split or rvE else None)
        if vlate:
            a(f's_mov_b32 {sr(sCnt)}, {vlate}')
            a('L_vloop2:')
            vstep(1, 4)
            if vbar: a('s_barrier')
            a(f's_sub_u32 {sr(sCnt)}, {sr(sCnt)}, 1')
            a(f's_cmp_lg_u32 {sr(sCnt)}, 0')
            a('s_cbranch_scc1 L_vloop2')
        vstep(0)
    stamp(3)
    a(f's_lshl_b32 {sr(sT0)}, {sr(sWave)}, 11')
    a(f's_add_u32 {sr(sT0)}, {sr(sT0)}, {OB}')
    a(f'v_add_u32 {vr(vT)}, {sr(sT0)}, {vr(vKsOff)}')
    a(f'v_lshlrev_b32 {vr(vT+1)}, 2, v0')
    a(f'v_add_u32 {vr(vT+2)}, {OB}, {vr(vT+1)}')
    a('s_mov_b64 exec, 0xffff')
    a('s_nop 1')
    for i in range(8):
        a(f'ds_write_b128 {vr(vT)}, {vr(vAcc+4*i,4)} offset:{i*256}')
    a('s_mov_b64 exec, -1')
    if idmap == 0: a(f's_mul_i32 {sr(sT1)}, s2, {PSTRIDE}')
    else:
        a(f's_lshl_b32 {sr(sT1)}, {sr(sHk)}, 4'); a(f's_add_u32 {sr(sT1)}, {sr(sT1)}, {sr(sJ)}'); a(f's_mul_i32 {sr(sT1)}, {sr(sT1)}, {PSTRIDE}')
    a(f's_add_u32 {sr(srdT)}, {sr(ws_)}, {sr(sT1)}')
    a(f's_addc_u32 {sr(srdT+1)}, {sr(ws_+1)}, 0')
    a(f's_and_b32 {sr(srdT+1)}, {sr(srdT+1)}, 0xffff')
    a(f's_mov_b32 {sr(srdT+2)}, {PSTRIDE}')
    a(f's_mov_b32 {sr(srdT+3)}, 0x20000')
    a('s_waitcnt lgkmcnt(0)')
    a('s_barrier')
    vOw = vR
    vRes = vR + 16
    vPo = vSa
    for ch in range(nch):
        for w in range(nw):
            a(f'ds_read_b32 {vr(vOw+ch*nw+w)}, {vr(vT+2)} offset:{w*2048+ch*nthr*4}')
    for ch in range(nch):
        a(f's_waitcnt lgkmcnt({(nch-1-ch)*nw})')
        a(f'v_fma_f32 {vr(vRes+ch)}, {vr(vF)}, {vr(vOw+ch*nw)}, -{vr(vZs)}')
        for w in range(1, nw):
            a(f'v_fmac_f32 {vr(vRes+ch)}, {vr(vF+w)}, {vr(vOw+ch*nw+w)}')
    stamp(4)
    if nch == 1 or not x2:
        for ch in range(nch):
            a(f'buffer_store_dword {vr(vRes+ch)}, {vr(vT+1)}, {sr(srdT,4)}, 0 offen offset:{ch*nthr*4} sc1')
    else:
        a(f'v_lshlrev_b32 {vr(vPo)}, 3, v0')
        a(f'buffer_store_dwordx2 {vr(vRes,2)}, {vr(vPo)}, {sr(srdT,4)}, 0 offen sc1')
    a('v_cmp_gt_u32 vcc, 4, v0')
    a(f's_and_saveexec_b64 {sr(sEx,2)}, vcc')
    a('s_cbranch_execz L_nost')
    a(f'buffer_store_dword {vr(vMx)}, {vr(vT+1)}, {sr(srdT,4)}, 0 offen offset:2048 sc1')
    a(f'buffer_store_dword {vr(vLs)}, {vr(vT+1)}, {sr(srdT,4)}, 0 offen offset:2064 sc1')
    a('L_nost:')
    a(f's_mov_b64 exec, {sr(sEx,2)}')
    a(f's_mov_b32 {sr(srdKS)}, {sr(dbg_)}')
    a(f's_and_b32 {sr(srdKS+1)}, {sr(dbg_+1)}, 0xffff')
    a(f's_mov_b32 {sr(srdKS+2)}, 256')
    a(f's_lshl_b32 {sr(sOffG)}, {sr(sHk)}, {cshift}')
    if coff: a(f's_add_u32 {sr(sOffG)}, {sr(sOffG)}, {coff}')
    a(f's_mul_i32 {sr(sT1)}, {sr(sHk)}, {P*PSTRIDE}')
    a(f's_add_u32 {sr(srdV)}, {sr(ws_)}, {sr(sT1)}')
    a(f's_addc_u32 {sr(srdV+1)}, {sr(ws_+1)}, 0')
    a(f's_and_b32 {sr(srdV+1)}, {sr(srdV+1)}, 0xffff')
    a(f's_mov_b32 {sr(srdV+2)}, {P*PSTRIDE}')
    a(f's_lshl_b32 {sr(sT1)}, {sr(sHk)}, 10')
    a(f's_add_u32 {sr(srdK)}, {sr(o_)}, {sr(sT1)}')
    a(f's_addc_u32 {sr(srdK+1)}, {sr(o_+1)}, 0')
    a(f's_and_b32 {sr(srdK+1)}, {sr(srdK+1)}, 0xffff')
    a(f's_mov_b32 {sr(srdK+2)}, 1024')
    vML = vT + 2; vBp = vT + 3; vOa = vT + 4
    a(f'v_and_b32 {vr(vBp)}, 3, {vr(vLane)}')
    a(f'v_lshlrev_b32 {vr(vBp)}, 6, {vr(vBp)}')
    a(f'v_and_b32 {vr(vML)}, 15, {vr(vLane)}')
    a(f'v_lshlrev_b32 {vr(vML)}, 12, {vr(vML)}')
    a(f'v_lshrrev_b32 {vr(vT+6)}, 4, {vr(vLane)}')
    a(f'v_lshl_add_u32 {vr(vML)}, {vr(vT+6)}, 2, {vr(vML)}')
    for ch in range(nch):
        e, x, y = vT + 6, vOa + ch, vT + 7
        a(f'v_add_u32 {vr(e)}, {ch*nthr}, v0')
        a(f'v_and_b32 {vr(x)}, 3, {vr(e)}'); a(f'v_lshlrev_b32 {vr(x)}, 7, {vr(x)}')
        a(f'v_lshrrev_b32 {vr(y)}, 8, {vr(e)}'); a(f'v_lshl_add_u32 {vr(x)}, {vr(y)}, 6, {vr(x)}')
        a(f'v_bfe_u32 {vr(y)}, {vr(e)}, 2, 4'); a(f'v_lshl_add_u32 {vr(x)}, {vr(y)}, 2, {vr(x)}')
        a(f'v_bfe_u32 {vr(y)}, {vr(e)}, 6, 2'); a(f'v_add_u32 {vr(x)}, {vr(x)}, {vr(y)}')
        a(f'v_lshlrev_b32 {vr(x)}, 1, {vr(x)}')
    a(f'v_mov_b32 {vr(vT+6)}, {TK}')
    a('s_waitcnt vmcnt(0)')
    stamp(5)
    a('s_barrier')
    a(f's_cmp_lg_u32 {sr(sWave)}, 0')
    a('s_cbranch_scc1 L_noat')
    a('s_mov_b64 exec, 1')
    a(f'v_mov_b32 {vr(vT+7)}, 1')
    a(f'v_mov_b32 {vr(vT)}, 0')
    a(f'buffer_atomic_add {vr(vT+7)}, {vr(vT)}, {sr(srdKS,4)}, {sr(sOffG)} offen sc0')
    a('s_waitcnt vmcnt(0)')
    a(f'ds_write_b32 {vr(vT+6)}, {vr(vT+7)}')
    a('s_mov_b64 exec, -1')
    a('s_waitcnt lgkmcnt(0)')
    a('L_noat:')
    a('s_barrier')
    a(f'ds_read_b32 {vr(vT+7)}, {vr(vT+6)}')
    a('s_waitcnt lgkmcnt(0)')
    a(f'v_readfirstlane_b32 {sr(sT0)}, {vr(vT+7)}')
    a('s_nop 3')
    stamp(6)
    a(f's_cmp_lg_u32 {sr(sT0)}, {P-1}')
    a('s_cbranch_scc1 L_notlast')
    cM, cL, x, y = vQB, vQB + 1, vQB + 2, vQB + 3
    cW = vPK
    cO = vR if nch == 1 else vAcc
    a(f'buffer_load_dword {vr(cM)}, {vr(vML)}, {sr(srdV,4)}, 0 offen offset:2048 sc1')
    a(f'buffer_load_dword {vr(cL)}, {vr(vML)}, {sr(srdV,4)}, 0 offen offset:2064 sc1')
    for w in range(P):
        a(f's_mov_b32 {sr(sT1)}, {w*PSTRIDE}')
        if nch == 1: a(f'buffer_load_dword {vr(cO+w)}, {vr(vT+1)}, {sr(srdV,4)}, {sr(sT1)} offen sc1')
        elif not x2:
            for ch in range(nch): a(f'buffer_load_dword {vr(cO+2*w+ch)}, {vr(vT+1)}, {sr(srdV,4)}, {sr(sT1)} offen offset:{ch*nthr*4} sc1')
        else: a(f'buffer_load_dwordx2 {vr(cO+2*w,2)}, {vr(vPo)}, {sr(srdV,4)}, {sr(sT1)} offen sc1')
    a(f's_waitcnt vmcnt({P if (nch == 1 or x2) else nch*P})')
    def allreduce(reg, op):
        for k in (1, 2, 4, 8):
            a('s_nop 1')
            a(f'{op}_dpp {vr(reg)}, {vr(reg)}, {vr(reg)} row_ror:{k} row_mask:0xf bank_mask:0xf')
    a(f'v_mov_b32 {vr(x)}, {vr(cM)}')
    allreduce(x, 'v_max_f32')
    a(f'v_sub_f32 {vr(cM)}, {vr(cM)}, {vr(x)}')
    a(f'v_exp_f32 {vr(cM)}, {vr(cM)}')
    a('s_nop 0')
    a(f'v_mul_f32 {vr(x)}, {vr(cM)}, {vr(cL)}')
    allreduce(x, 'v_add_f32')
    a(f'v_rcp_f32 {vr(cL)}, {vr(x)}')
    a('s_nop 0')
    a(f'v_mul_f32 {vr(cM)}, {vr(cM)}, {vr(cL)}')
    for w in range(P):
        a(f'ds_bpermute_b32 {vr(cW+w)}, {vr(vBp)}, {vr(cM)} offset:{4*w}')
    a('s_waitcnt vmcnt(0) lgkmcnt(0)')
    for ch in range(nch):
        o = (lambda w: cO + w) if nch == 1 else (lambda w: cO + 2 * w + ch)
        a(f'v_mul_f32 {vr(x)}, {vr(cW)}, {vr(o(0))}')
        for w in range(1, P): a(f'v_fmac_f32 {vr(x)}, {vr(cW+w)}, {vr(o(w))}')
        a(f'v_cvt_pk_bf16_f32 {vr(x)}, {vr(x)}, {vr(x)}')
        a(f'buffer_store_short {vr(x)}, {vr(vOa+ch)}, {sr(srdK,4)}, 0 offen {opol}')
    if dbgprof:
        a('s_waitcnt vmcnt(0)')
        a(f's_cmp_lg_u32 {sr(sWave)}, 0')
        a('s_cbranch_scc1 L_end')
        stamp(7)
        a(f's_memtime {sr(sTm+2,2)}')
        a('s_waitcnt lgkmcnt(0)')
        a('s_mov_b64 exec, 1')
        a(f'v_mov_b32 {vr(vT)}, 0')
        for i in range(1, 8):
            a(f's_sub_u32 {sr(sT0)}, {sr(sSt+2*i)}, {sr(sSt)}')
            a(f'v_mov_b32 {vr(vR+i)}, {sr(sT0)}')
        for i in range(1, 8):
            a(f'buffer_atomic_umax {vr(vR+i)}, {vr(vT)}, {sr(srdKS,4)}, 0 offen offset:{4*i}')
    a('L_notlast:')
    if prof == 2:
        a('s_waitcnt vmcnt(0)')
        stamp(7)
        a(f's_memtime {sr(sTm+2,2)}')
        a('s_waitcnt lgkmcnt(0)')
        a(f's_cmp_lg_u32 {sr(sWave)}, 0')
        a('s_cbranch_scc1 L_end')
        a(f's_add_u32 {sr(srdT)}, {sr(ws_)}, 0x4000000')
        a(f's_addc_u32 {sr(srdT+1)}, {sr(ws_+1)}, 0')
        a(f's_and_b32 {sr(srdT+1)}, {sr(srdT+1)}, 0xffff')
        a(f's_mov_b32 {sr(srdT+2)}, 0x100000')
        a(f's_lshl_b32 {sr(sT1)}, s2, 6')
        for i in range(8): a(f'v_mov_b32 {vr(vR+i)}, {sr(sSt+2*i)}')
        a(f's_getreg_b32 {sr(sT0)}, hwreg(HW_REG_XCC_ID)')
        a(f'v_mov_b32 {vr(vR+8)}, {sr(sT0)}')
        a(f's_getreg_b32 {sr(sT0)}, hwreg(HW_REG_HW_ID)')
        a(f'v_mov_b32 {vr(vR+9)}, {sr(sT0)}')
        a(f's_sub_u32 {sr(sT0)}, {sr(sTm+2)}, {sr(sTm)}')
        a(f'v_mov_b32 {vr(vR+10)}, {sr(sT0)}')
        a(f'v_mov_b32 {vr(vT)}, 0')
        a('s_mov_b64 exec, 1')
        a(f'buffer_store_dwordx4 {vr(vR,4)}, {vr(vT)}, {sr(srdT,4)}, {sr(sT1)} offen')
        a(f'buffer_store_dwordx4 {vr(vR+4,4)}, {vr(vT)}, {sr(srdT,4)}, {sr(sT1)} offen offset:16')
        a(f'buffer_store_dwordx4 {vr(vR+8,4)}, {vr(vT)}, {sr(srdT,4)}, {sr(sT1)} offen offset:32')
    if padto:
        a('s_waitcnt vmcnt(0) lgkmcnt(0)')
        a('L_pad:')
        a(f's_memrealtime {sr(sTm+2,2)}')
        a('s_waitcnt lgkmcnt(0)')
        a(f's_sub_u32 {sr(sT0)}, {sr(sTm+2)}, {sr(sTm)}')
        a(f's_cmp_lt_u32 {sr(sT0)}, {padto}')
        a('s_cbranch_scc1 L_pad')
    a('L_end:')
    a('s_endpgm')
    if unify:
        a('L_k2v_small:')
        first_off()
        offsV(); ld_vs()
        a('s_branch L_k2v_small_back')
        a('L_k2v_big:')
        ld_V()
        a('s_branch L_k2v_big_back')
        a('L_vlast:')
        ld_vs()
        early_publish()
        a('s_branch L_vlast_back')
    main = '\n'.join(out)
    acc = min(256, (nvgpr + 3) // 4 * 4)
    kd = f'''.amdhsa_kernel {KN}
  .amdhsa_next_free_vgpr {nvgpr}
  .amdhsa_next_free_sgpr {S.n}
  .amdhsa_accum_offset {acc}
  .amdhsa_group_segment_fixed_size 0
  .amdhsa_kernarg_size 80
  .amdhsa_user_sgpr_count 2
  .amdhsa_user_sgpr_kernarg_segment_ptr 1
  .amdhsa_system_sgpr_workgroup_id_x 1
  .amdhsa_float_denorm_mode_32 3
.end_amdhsa_kernel
'''
    src = HEADCOMMENT + f'; @launch grid=({nwg},1,1) block=({nthr},1,1) lds={lds_bytes}\n'
    src += '.amdgcn_target "amdgcn-amd-amdhsa--gfx950"\n.text\n'
    src += f'.globl {KN}\n.p2align 8\n.type {KN},@function\n{main}\n'
    src += '.section .rodata,"a"\n.p2align 6\n' + kd
    return src, [(KN, nwg, nthr, lds_bytes)]

if __name__ == '__main__':
    import argparse
    ap = argparse.ArgumentParser()
    ap.add_argument('-o', default='out.s')
    ap.add_argument('kv', nargs='*')
    args = ap.parse_args()
    kw = {}
    for x in args.kv:
        k, v = x.split('=')
        try: v = int(v)
        except ValueError: pass
        kw[k] = v
    src, l = gen(**kw)
    open(args.o, 'w').write(src)
    print(l)
```

```python
import struct
KN = 'standalone__kv_cache_quant_int4_int2_kv_with_per_channel_or_per_token_scales__decode_kernel'

HEADCOMMENT = '''; KIVI-style quantised KV-cache decode attention (B=2, Hq=32, Hkv=8, Skv=32768, Dh=128), one fused launch.
;
;   Workgroups with equal id % 8 share two heads; two of them interleave their 64-token steps inside a 4096-token range,
'''

class Alloc:
    def __init__(self, start, limit):
        self.n = start; self.limit = limit
    def get(self, cnt=1, align=1):
        self.n = (self.n + align - 1) // align * align
        r = self.n; self.n += cnt
        assert self.n <= self.limit, self.n
        return r

def vr(r, n=1): return f'v{r}' if n == 1 else f'v[{r}:{r+n-1}]'
def sr(r, n=1): return f's{r}' if n == 1 else f's[{r}:{r+n-1}]'
def f32hex(x): return '0x%08x' % struct.unpack('<I', struct.pack('<f', x))[0]

PSTRIDE = 4096
QROW = 288
WLDS = 1536
CEXP = 0.08838834764831845 * 1.4426950408889634

def gen(nw=8, bar=1, pol='nt', spol='nt', nB=2, prof=0, dbgprof=0, coff=0, cshift=2, opol='', padto=0,
        wrot=0, perm='tr', minvgpr=176, kbar=None, vbar=None, minlds=0, roll=0, x2=0, vlate=0, rkO=0, rvO=0, rkE=0, rvE=0, pre0=0, unify=0, kfirst=0, idmap=0, tlbw=0, rot=0, dry=0):
    P = 16
    nwg = 16 * P
    NT = 32768 // (P * nw * 16)
    nthr = nw * 64
    nch = 512 // nthr
    if kbar is None: kbar = bar
    if vbar is None: vbar = bar
    out = []
    a = out.append
    V = Alloc(1, 256); S = Alloc(3, 102)
    sWave = S.get()
    sKA = S.get(16, 4); sKB = S.get(4, 4)
    srdK = S.get(4, 4); srdV = S.get(4, 4); srdKS = S.get(4, 4); srdKZ = S.get(4, 4)
    srdVS = S.get(4, 4); srdVZ = S.get(4, 4); srdT = S.get(4, 4)
    sHk = S.get(); sJ = S.get()
    sOffK = S.get(); sOffS = S.get(); sOffG = S.get(); sOffK2 = S.get(); sOff0 = S.get()
    sCnt = S.get(); sT0 = S.get(); sT1 = S.get()
    sWm = S.get(12, 2) if tlbw else None
    sPh = S.get(); sPh0 = S.get()
    sMask = S.get(); sOdd = S.get(); sEx = S.get(2, 2); sQuad = S.get(2, 2)
    stamps = prof == 2 or dbgprof
    sSt = S.get(16, 2) if stamps else None
    sTm = S.get(4, 2) if (dbgprof or padto or prof == 2) else None
    def stamp(i):
        if stamps: a(f's_memrealtime {sr(sSt+2*i,2)}')
    vLane = V.get()
    vKoff = V.get(); vVoff = V.get(); vSoff = V.get(); vKsOff = V.get(); vKzOff = V.get()
    vKoffB = V.get(); vLqRB = V.get(); vLzRB = V.get()
    vLqW = V.get(); vLzW = V.get(); vLqR = V.get(); vLzR = V.get()
    vSa = V.get()
    vM = V.get(); vL = V.get()
    vT = V.get(8, 2)
    vQc = V.get(8, 4)
    vKs = V.get(4, 4); vKz = V.get(); vVs = V.get(2, 2); vVz = V.get(2, 2)
    vQw = V.get(4, 4); vP = V.get(2, 2); vS = V.get(4, 4); vAz = V.get(4, 4)
    vAcc = V.get(32, 4); vQB = V.get(16, 4); vPK = V.get(16, 4)
    vR = V.get(32, 4)
    vRB = V.get(32, 4) if pre0 else None
    vVs0 = V.get(2, 2) if pre0 else None; vVz0 = V.get(2, 2) if pre0 else None
    nvgpr = max(V.n, minvgpr)
    SB = nw * WLDS
    OB = SB + nw * NT * 256
    MB = OB + nw * 2048
    RS = nw * 4
    TK = MB + 12 * RS
    lds_bytes = max(TK + 16, minlds)

    a(f'{KN}:')
    a(f's_cmp_ge_u32 s2, {nwg}')
    a('s_cbranch_scc1 L_end')
    a(f's_load_dwordx16 {sr(sKA,16)}, s[0:1], 0')
    a(f's_load_dwordx4 {sr(sKB,4)}, s[0:1], 64')
    stamp(0)
    if dbgprof or prof == 2: a(f's_memtime {sr(sTm,2)}')
    if padto: a(f's_memrealtime {sr(sTm,2)}')
    a(f'v_lshrrev_b32 {vr(vT)}, 6, v0')
    a(f'v_and_b32 {vr(vLane)}, 63, v0')
    if idmap == 0:
        a(f's_lshr_b32 {sr(sHk)}, s2, 4')
        a(f'v_readfirstlane_b32 {sr(sWave)}, {vr(vT)}')
        a(f's_and_b32 {sr(sJ)}, s2, {P-1}')
    else:
        a(f's_and_b32 {sr(sHk)}, s2, 7')
        a(f'v_readfirstlane_b32 {sr(sWave)}, {vr(vT)}')
        a(f's_lshl_b32 {sr(sHk)}, {sr(sHk)}, 1')
        a(f's_lshr_b32 {sr(sJ)}, s2, 3')
        a(f's_and_b32 {sr(sT0)}, {sr(sJ)}, 1')
        a(f's_add_u32 {sr(sHk)}, {sr(sHk)}, {sr(sT0)}')
        a(f's_lshr_b32 {sr(sJ)}, s2, 4')
    n15, g4 = vT + 1, vT + 2
    def lane_rest():
        a(f'v_lshlrev_b32 {vr(vKsOff)}, 4, {vr(n15)}')
        a(f'v_lshl_add_u32 {vr(vVoff)}, {vr(g4)}, 11, {vr(vKsOff)}')
        a(f'v_lshlrev_b32 {vr(vSoff)}, 3, {vr(g4)}')
        a(f'v_lshlrev_b32 {vr(vKzOff)}, 2, {vr(vLane)}')
    a(f'v_and_b32 {vr(n15)}, 15, {vr(vLane)}')
    a(f'v_lshrrev_b32 {vr(g4)}, 4, {vr(vLane)}')
    a(f'v_lshlrev_b32 {vr(vT+3)}, 9, {vr(n15)}')
    a(f'v_lshl_add_u32 {vr(vKoff)}, {vr(g4)}, 4, {vr(vT+3)}')
    a(f'v_and_b32 {vr(vT+3)}, 7, {vr(vLane)}')
    a(f'v_lshlrev_b32 {vr(vT+3)}, 9, {vr(vT+3)}')
    a(f'v_lshrrev_b32 {vr(vT+4)}, 3, {vr(vLane)}')
    a(f'v_lshl_add_u32 {vr(vKoffB)}, {vr(vT+4)}, 4, {vr(vT+3)}')
    if not kfirst: lane_rest()
    stride = nw * 16 * 512
    G = {'tr': 1, 'seq': P}.get(perm) or int(perm[2:])
    if G == 1: a(f's_lshl_b32 {sr(sOff0)}, {sr(sJ)}, 20')
    else:
        a(f's_lshr_b32 {sr(sT0)}, {sr(sJ)}, {G.bit_length()-1}'); a(f's_mul_i32 {sr(sOff0)}, {sr(sT0)}, {G << 20}')
        a(f's_and_b32 {sr(sT0)}, {sr(sJ)}, {G-1}'); a(f's_mul_i32 {sr(sT0)}, {sr(sT0)}, {stride}')
        a(f's_add_u32 {sr(sOff0)}, {sr(sOff0)}, {sr(sT0)}')
    if wrot == 0: a(f's_lshl_b32 {sr(sT0)}, {sr(sWave)}, 13')
    else:
        if wrot == 3: a(f's_lshr_b32 {sr(sT0)}, s2, 3'); a(f's_and_b32 {sr(sT0)}, {sr(sT0)}, 1'); a(f's_lshl_b32 {sr(sT0)}, {sr(sT0)}, {(nw//2).bit_length()-1}'); a(f's_xor_b32 {sr(sT0)}, {sr(sT0)}, {sr(sWave)}')
        elif wrot == 8: a(f's_lshr_b32 {sr(sT0)}, s2, 3'); a(f's_and_b32 {sr(sT0)}, {sr(sT0)}, 3'); a(f's_lshl_b32 {sr(sT0)}, {sr(sT0)}, 1'); a(f's_xor_b32 {sr(sT0)}, {sr(sT0)}, {sr(sWave)}')
        elif wrot == 6: a(f's_lshr_b32 {sr(sT0)}, s2, 3'); a(f's_xor_b32 {sr(sT0)}, {sr(sT0)}, {sr(sWave)}')
        elif wrot == 13: a(f's_lshr_b32 {sr(sT0)}, s2, 4'); a(f's_and_b32 {sr(sT0)}, {sr(sT0)}, 1'); a(f's_lshl_b32 {sr(sT0)}, {sr(sT0)}, 1'); a(f's_xor_b32 {sr(sT0)}, {sr(sT0)}, {sr(sWave)}')
        elif wrot == 14: a(f's_lshr_b32 {sr(sT0)}, s2, 5'); a(f's_xor_b32 {sr(sT0)}, {sr(sT0)}, {sr(sWave)}')
        elif wrot == 15: a(f's_xor_b32 {sr(sT0)}, s2, {sr(sWave)}')
        elif wrot == 16: a(f's_and_b32 {sr(sT0)}, s2, 1'); a(f's_lshl_b32 {sr(sT0)}, {sr(sT0)}, 1'); a(f's_xor_b32 {sr(sT0)}, {sr(sT0)}, {sr(sWave)}')
        elif wrot == 17: a(f's_lshr_b32 {sr(sT0)}, s2, 3'); a(f's_xor_b32 {sr(sT0)}, {sr(sT0)}, s2'); a(f's_and_b32 {sr(sT0)}, {sr(sT0)}, 1'); a(f's_lshl_b32 {sr(sT0)}, {sr(sT0)}, 1'); a(f's_xor_b32 {sr(sT0)}, {sr(sT0)}, {sr(sWave)}')
        elif wrot == 18: a(f's_lshr_b32 {sr(sT0)}, s2, 5'); a(f's_and_b32 {sr(sT0)}, {sr(sT0)}, 1'); a(f's_lshl_b32 {sr(sT0)}, {sr(sT0)}, 1'); a(f's_xor_b32 {sr(sT0)}, {sr(sT0)}, {sr(sWave)}')
        a(f's_and_b32 {sr(sT0)}, {sr(sT0)}, {nw-1}')
        a(f's_lshl_b32 {sr(sT0)}, {sr(sT0)}, 13')
    a(f's_add_u32 {sr(sOff0)}, {sr(sOff0)}, {sr(sT0)}')
    stride = stride * G
    region = G << 20
    def first_off():
        if rot:
            a(f's_mov_b32 {sr(sPh)}, {sr(sPh0)}')
            a(f's_add_u32 {sr(sOffK)}, {sr(sOff0)}, {sr(sPh)}')
        else:
            a(f's_mov_b32 {sr(sOffK)}, {sr(sOff0)}')
    def next_off():
        if rot:
            a(f's_add_u32 {sr(sPh)}, {sr(sPh)}, {stride}')
            a(f's_and_b32 {sr(sPh)}, {sr(sPh)}, {region-1}')
            a(f's_add_u32 {sr(sOffK)}, {sr(sOff0)}, {sr(sPh)}')
        else:
            a(f's_add_u32 {sr(sOffK)}, {sr(sOffK)}, {stride}')
    if rot:
        nst = region // stride
        if rot == 1: a(f's_lshr_b32 {sr(sPh0)}, s2, 3'); a(f's_and_b32 {sr(sPh0)}, {sr(sPh0)}, 1'); a(f's_mul_i32 {sr(sPh0)}, {sr(sPh0)}, {nst//2}')
        elif rot == 2: a(f's_and_b32 {sr(sPh0)}, s2, 7'); a(f's_mul_i32 {sr(sPh0)}, {sr(sPh0)}, {nst//8}')
        elif rot == 3: a(f's_lshr_b32 {sr(sPh0)}, {sr(sJ)}, 1'); a(f's_mul_i32 {sr(sPh0)}, {sr(sPh0)}, {nst//8}')
        elif rot == 4: a(f's_and_b32 {sr(sPh0)}, s2, 1'); a(f's_mul_i32 {sr(sPh0)}, {sr(sPh0)}, {nst//2}')
        elif rot == 5: a(f's_lshr_b32 {sr(sPh0)}, s2, 3'); a(f's_and_b32 {sr(sPh0)}, {sr(sPh0)}, 1')
        elif rot == 6: a(f's_and_b32 {sr(sPh0)}, s2, 7')
        elif rot == 7: a(f's_lshr_b32 {sr(sPh0)}, {sr(sJ)}, 1'); a(f's_and_b32 {sr(sPh0)}, {sr(sPh0)}, 1'); a(f's_mul_i32 {sr(sPh0)}, {sr(sPh0)}, {nst//2}')
        elif rot == 8: a(f's_lshr_b32 {sr(sPh0)}, s2, 3'); a(f's_xor_b32 {sr(sPh0)}, {sr(sPh0)}, s2'); a(f's_and_b32 {sr(sPh0)}, {sr(sPh0)}, 1'); a(f's_mul_i32 {sr(sPh0)}, {sr(sPh0)}, {nst//2}')
        elif rot == 9: a(f's_and_b32 {sr(sPh0)}, {sr(sHk)}, 3'); a(f's_mul_i32 {sr(sPh0)}, {sr(sPh0)}, {nst//4}')
        elif rot == 10: a(f's_and_b32 {sr(sPh0)}, {sr(sHk)}, 1'); a(f's_mul_i32 {sr(sPh0)}, {sr(sPh0)}, {nst//4}')
        elif rot == 11: a(f's_and_b32 {sr(sPh0)}, {sr(sHk)}, 1'); a(f's_mul_i32 {sr(sPh0)}, {sr(sPh0)}, {nst//2}'); a(f's_and_b32 {sr(sT0)}, s2, 7'); a(f's_add_u32 {sr(sPh0)}, {sr(sPh0)}, {sr(sT0)}')
        elif rot == 12: a(f's_mov_b32 {sr(sPh0)}, {sr(sHk)}')
        elif rot == 13: a(f's_lshr_b32 {sr(sPh0)}, {sr(sHk)}, 1'); a(f's_and_b32 {sr(sPh0)}, {sr(sPh0)}, 1'); a(f's_mul_i32 {sr(sPh0)}, {sr(sPh0)}, {nst//2}')
        elif rot == 14:
            a(f's_and_b32 {sr(sPh0)}, {sr(sHk)}, 1'); a(f's_mul_i32 {sr(sPh0)}, {sr(sPh0)}, {nst//2}'); a(f's_and_b32 {sr(sT0)}, s2, 7'); a(f's_add_u32 {sr(sPh0)}, {sr(sPh0)}, {sr(sT0)}')
            a(f's_lshr_b32 {sr(sT0)}, {sr(sJ)}, 1'); a(f's_and_b32 {sr(sT0)}, {sr(sT0)}, 1'); a(f's_lshl_b32 {sr(sT0)}, {sr(sT0)}, 3'); a(f's_add_u32 {sr(sPh0)}, {sr(sPh0)}, {sr(sT0)}')
        elif rot == 15:
            a(f's_and_b32 {sr(sPh0)}, {sr(sHk)}, 1'); a(f's_mul_i32 {sr(sPh0)}, {sr(sPh0)}, {nst//2}'); a(f's_and_b32 {sr(sT0)}, s2, 7'); a(f's_lshl_b32 {sr(sT0)}, {sr(sT0)}, 1'); a(f's_add_u32 {sr(sPh0)}, {sr(sPh0)}, {sr(sT0)}')
        elif rot == 16:
            a(f's_and_b32 {sr(sPh0)}, {sr(sHk)}, 1'); a(f's_mul_i32 {sr(sPh0)}, {sr(sPh0)}, {nst//4}'); a(f's_and_b32 {sr(sT0)}, s2, 7'); a(f's_add_u32 {sr(sPh0)}, {sr(sPh0)}, {sr(sT0)}')
        elif rot == 17:
            a(f's_lshr_b32 {sr(sT0)}, {sr(sJ)}, 1'); a(f's_add_u32 {sr(sPh0)}, {sr(sHk)}, {sr(sT0)}')
        elif rot == 18:
            a(f's_lshl_b32 {sr(sPh0)}, {sr(sHk)}, 1')
        elif rot == 19:
            a(f's_lshr_b32 {sr(sPh0)}, {sr(sJ)}, 1')
        elif rot == 20:
            a(f's_and_b32 {sr(sPh0)}, {sr(sHk)}, 1'); a(f's_mul_i32 {sr(sPh0)}, {sr(sPh0)}, {nst//2}'); a(f's_and_b32 {sr(sT0)}, s2, 7'); a(f's_add_u32 {sr(sPh0)}, {sr(sPh0)}, {sr(sT0)}')
            a(f's_lshr_b32 {sr(sT0)}, {sr(sJ)}, 1'); a(f's_add_u32 {sr(sPh0)}, {sr(sPh0)}, {sr(sT0)}')
        a(f's_mul_i32 {sr(sPh0)}, {sr(sPh0)}, {stride}')
        a(f's_and_b32 {sr(sPh0)}, {sr(sPh0)}, {region-1}')
    first_off()
    def offsK():
        a(f's_lshr_b32 {sr(sOffG)}, {sr(sOffK)}, 8')
        a(f's_and_b32 {sr(sOffG)}, {sr(sOffG)}, 0xffffff00')
        if nB: a(f's_add_u32 {sr(sOffK2)}, {sr(sOffK)}, 4096')
    def offsV():
        a(f's_lshr_b32 {sr(sOffS)}, {sr(sOffK)}, 8')
    offsK()
    a('s_waitcnt lgkmcnt(0)')
    def srd(dst, ptr, off_s, off_shift, nbytes):
        a(f's_lshl_b32 {sr(sT0)}, {sr(off_s)}, {off_shift}')
        a(f's_add_u32 {sr(dst)}, {sr(ptr)}, {sr(sT0)}')
        a(f's_addc_u32 {sr(dst+1)}, {sr(ptr+1)}, 0')
        a(f's_and_b32 {sr(dst+1)}, {sr(dst+1)}, 0xffff')
        a(f's_mov_b32 {sr(dst+2)}, {nbytes}')
        a(f's_mov_b32 {sr(dst+3)}, 0x20000')
    q_, qk_, qv_, ks_, kz_, vs_, vz_, o_ = [sKA + 2 * i for i in range(8)]
    dbg_, ws_ = sKB, sKB + 2
    def ld_ks():
        a(f'buffer_load_dwordx4 {vr(vKs,4)}, {vr(vKsOff)}, {sr(srdKS,4)}, {sr(sOffG)} offen {spol}')
        a(f'buffer_load_dword {vr(vKz)}, {vr(vKzOff)}, {sr(srdKZ,4)}, {sr(sOffG)} offen {spol}')
    def ld_K1(i):
        s = i // 2
        if s < 4 - nB:
            a(f'buffer_load_dwordx4 {vr(vR+4*i,4)}, {vr(vKoff)}, {sr(srdK,4)}, {sr(sOffK)} offen offset:{i*64} {pol}')
        else:
            a(f'buffer_load_dwordx4 {vr(vR+4*i,4)}, {vr(vKoffB)}, {sr(srdK,4)}, {sr(sOffK if i % 2 == 0 else sOffK2)} offen offset:{s*128} {pol}')
    def ld_K():
        for i in range(8): ld_K1(i)
    def ld_vs(rs=None, rz=None):
        rs = vVs if rs is None else rs; rz = vVz if rz is None else rz
        a(f'buffer_load_dwordx2 {vr(rs,2)}, {vr(vSoff)}, {sr(srdVS,4)}, {sr(sOffS)} offen {spol}')
        a(f'buffer_load_dwordx2 {vr(rz,2)}, {vr(vSoff)}, {sr(srdVZ,4)}, {sr(sOffS)} offen {spol}')
    VSEQ = [(0,0),(1,0),(0,1),(1,1),(2,0),(3,0),(2,1),(3,1)]
    def ld_V1(k, rb=None):
        j, h = VSEQ[k]
        rb = vR if rb is None else rb
        a(f'buffer_load_dwordx4 {vr(rb+4*k,4)}, {vr(vVoff)}, {sr(srdV,4)}, {sr(sOffK)} offen offset:{j*512+h*256} {pol}')
    def ld_V():
        for k in range(8): ld_V1(k)
    if pre0:
        srd(srdVS, vs_, sHk, 16, 1 << 16)
        srd(srdVZ, vz_, sHk, 16, 1 << 16)
        srd(srdV, qv_, sHk, 24, 1 << 24)
        offsV(); ld_vs(vVs0, vVz0)
        for k in range(8): ld_V1(k, vRB)
    if kfirst:
        srd(srdK, qk_, sHk, 24, 1 << 24)
        ld_K()
        lane_rest()
    srd(srdT, q_, sHk, 10, 1024)
    a(f'v_lshl_add_u32 {vr(vT+3)}, {vr(g4)}, 8, {vr(vKsOff)}')
    a(f'buffer_load_dwordx4 {vr(vQw,4)}, {vr(vT+3)}, {sr(srdT,4)}, 0 offen {spol}')
    srd(srdKS, ks_, sHk, 16, 1 << 16)
    srd(srdKZ, kz_, sHk, 16, 1 << 16)
    if kfirst:
        ld_ks()
    else:
        srd(srdK, qk_, sHk, 24, 1 << 24)
        ld_ks(); ld_K()
    if not pre0:
        srd(srdVS, vs_, sHk, 16, 1 << 16)
        srd(srdVZ, vz_, sHk, 16, 1 << 16)
        srd(srdV, qv_, sHk, 24, 1 << 24)
    if tlbw:
        if tlbw & 8:
            a(f's_cmp_lg_u32 {sr(sWave)}, 0'); a('s_cbranch_scc1 L_nowarm')
        slot = [0]
        def touch(lo, hi, off_s):
            b = sWm + 2 * slot[0]; dst = sWm + 10 + (slot[0] & 1); slot[0] += 1
            a(f's_add_u32 {sr(b)}, {sr(lo)}, {sr(off_s)}')
            a(f's_addc_u32 {sr(b+1)}, {sr(hi)}, 0')
            a(f's_load_dword {sr(dst)}, {sr(b,2)}, 0')
        if tlbw & 1:
            a(f's_lshl_b32 {sr(sT0)}, {sr(sHk)}, 24'); a(f's_add_u32 {sr(sT0)}, {sr(sT0)}, {sr(sOff0)}')
            touch(qv_, qv_ + 1, sT0)
        if tlbw & 2:
            a(f's_lshl_b32 {sr(sT0)}, {sr(sHk)}, 16')
            touch(vs_, vs_ + 1, sT0)
            touch(vz_, vz_ + 1, sT0)
        if tlbw & 4:
            a(f's_lshl_b32 {sr(sT0)}, {sr(sHk)}, 16')
            touch(ws_, ws_ + 1, sT0)
            a(f's_lshl_b32 {sr(sT0)}, {sr(sHk)}, 10')
            touch(o_, o_ + 1, sT0)
        if tlbw & 8: a('L_nowarm:')
    a(f's_mul_i32 {sr(sT0)}, {sr(sWave)}, {WLDS}')
    a(f'v_mul_u32_u24 {vr(vT+3)}, {QROW}, {vr(g4)}')
    a(f'v_add3_u32 {vr(vLqW)}, {vr(vT+3)}, {vr(vKsOff)}, {sr(sT0)}')
    a(f'v_add_u32 {vr(vLzW)}, {sr(sT0)}, {vr(vKzOff)}')
    a(f'v_add_u32 {vr(vLzW)}, {4*QROW}, {vr(vLzW)}')
    a(f'v_and_b32 {vr(vT+4)}, 3, {vr(vLane)}')
    a(f'v_mul_u32_u24 {vr(vT+3)}, {QROW}, {vr(vT+4)}')
    a(f'v_add3_u32 {vr(vLqR)}, {vr(vT+3)}, {vr(vSoff)}, {sr(sT0)}')
    a(f'v_add_u32 {vr(vLzR)}, {sr(sT0)}, {vr(vSoff)}')
    a(f'v_add_u32 {vr(vLzR)}, {4*QROW}, {vr(vLzR)}')
    a(f'v_add_u32 {vr(vLqRB)}, {vr(vLqR)}, {vr(vSoff)}')
    a(f'v_add_u32 {vr(vLzRB)}, {vr(vLzR)}, {vr(vSoff)}')
    a(f's_mul_i32 {sr(sT0)}, {sr(sWave)}, {NT*256}')
    a(f's_add_u32 {sr(sT0)}, {sr(sT0)}, {SB}')
    a(f'v_lshlrev_b32 {vr(vT+4)}, 4, {vr(vT+4)}')
    a(f'v_lshl_add_u32 {vr(vSa)}, {vr(g4)}, 6, {vr(vT+4)}')
    a(f'v_add_u32 {vr(vSa)}, {sr(sT0)}, {vr(vSa)}')
    a(f's_mov_b32 {sr(sMask)}, 0xffff0000')
    a(f's_mov_b32 {sr(sQuad)}, 0x000f000f')
    a(f's_mov_b32 {sr(sQuad+1)}, 0x000f000f')
    a(f'v_mov_b32 {vr(vM)}, 0xff800000')
    a(f'v_mov_b32 {vr(vL)}, 0')
    for i in range(4): a(f'v_mov_b32 {vr(vAz+i)}, 0')
    for i in range(32): a(f'v_mov_b32 {vr(vAcc+i)}, 0')
    a(f's_mov_b32 {sr(sT1)}, {f32hex(CEXP)}')
    a(f's_mov_b32 {sr(sCnt)}, {NT-1}')
    a('s_waitcnt vmcnt(0)' if kfirst else 's_waitcnt vmcnt(10)')
    stamp(1)
    for i in range(4):
        a(f'v_lshlrev_b32 {vr(vQc+2*i)}, 16, {vr(vQw+i)}')
        a(f'v_and_b32 {vr(vQc+2*i+1)}, {sr(sMask)}, {vr(vQw+i)}')
    for i in range(8):
        a(f'v_mul_f32 {vr(vQc+i)}, {sr(sT1)}, {vr(vQc+i)}')

    def kstep(nxt, rk=None):
        a('s_waitcnt vmcnt(8)')
        for i in range(4):
            a(f'v_lshlrev_b32 {vr(vT)}, 16, {vr(vKs+i)}')
            a(f'v_and_b32 {vr(vT+1)}, {sr(sMask)}, {vr(vKs+i)}')
            a(f'v_mul_f32 {vr(vT)}, {vr(vT)}, {vr(vQc+2*i)}')
            a(f'v_mul_f32 {vr(vT+1)}, {vr(vT+1)}, {vr(vQc+2*i+1)}')
            a(f'v_cvt_pk_bf16_f32 {vr(vQw+i)}, {vr(vT)}, {vr(vT+1)}')
        a(f'v_xor_b32 {vr(vT+2)}, 0x80008000, {vr(vKz)}')
        a(f'ds_write_b128 {vr(vLqW)}, {vr(vQw,4)}')
        a(f'ds_write_b32 {vr(vLzW)}, {vr(vT+2)}')
        if nxt == 'U':
            a(f's_cmp_eq_u32 {sr(sCnt)}, 0')
            a('s_cbranch_scc1 L_k2v_small')
            next_off()
            offsK(); ld_ks()
            a('L_k2v_small_back:')
        elif nxt == 'K':
            next_off()
            offsK(); ld_ks()
        else:
            if pre0: a(f's_add_u32 {sr(sOffK)}, {sr(sOff0)}, {stride}')
            else: first_off()
            offsV(); ld_vs()
        for s in range(4):
            if s < 4 - nB: a(f'ds_read2_b64 {vr(vQB+4*s,4)}, {vr(vLqR)} offset0:{8*s} offset1:{8*s+4}')
            else: a(f'ds_read_b128 {vr(vQB+4*s,4)}, {vr(vLqRB)} offset:{64*s}')
        for s in range(4):
            if s < 4 - nB: a(f'ds_read2_b64 {vr(vPK+4*s,4)}, {vr(vLzR)} offset0:{8*s} offset1:{8*s+4}')
            else: a(f'ds_read_b128 {vr(vPK+4*s,4)}, {vr(vLzRB)} offset:{64*s}')
        a('s_waitcnt lgkmcnt(0)')
        for s in range(4):
            c = '0' if s == 0 else vr(vS, 4)
            a(f'v_mfma_f32_16x16x32_bf16 {vr(vS,4)}, {vr(vPK+4*s,4)}, {vr(vQB+4*s,4)}, {c}')
        if rk is None: rk = 8 if roll in (1, 2) else 0
        def kcvt(i):
            for c in range(4):
                a(f'v_cvt_f32_i32 {vr(vR+4*i+c)}, {vr(vR+4*i+c)}')
            d = vPK + 4 * (i // 2) + 2 * (i % 2)
            a(f'v_cvt_pk_bf16_f32 {vr(d)}, {vr(vR+4*i)}, {vr(vR+4*i+1)}')
            a(f'v_cvt_pk_bf16_f32 {vr(d+1)}, {vr(vR+4*i+2)}, {vr(vR+4*i+3)}')
        if nxt == 'U':
            a('s_waitcnt vmcnt(2)')
            for i in range(8): kcvt(i)
            a(f's_cmp_eq_u32 {sr(sCnt)}, 0')
            a('s_cbranch_scc1 L_k2v_big')
            ld_K()
            a('L_k2v_big_back:')
        else:
            nld = ld_K1 if nxt == 'K' else ld_V1
            for i in range(rk):
                a('s_waitcnt vmcnt(9)')
                kcvt(i); nld(i)
            if rk < 8:
                a(f's_waitcnt vmcnt({2+rk})')
                for i in range(rk, 8): kcvt(i)
                for i in range(rk, 8): nld(i)
        for s in range(4 - nB, 4):
            a(f'v_mov_b32 {vr(vT)}, {vr(vPK+4*s)}')
            a(f'v_mov_b32 {vr(vT+1)}, {vr(vPK+4*s+1)}')
            a('s_nop 0')
            a(f'v_mov_b32_dpp {vr(vPK+4*s)}, {vr(vPK+4*s+2)} row_ror:8 row_mask:0xf bank_mask:0xc')
            a(f'v_mov_b32_dpp {vr(vPK+4*s+1)}, {vr(vPK+4*s+3)} row_ror:8 row_mask:0xf bank_mask:0xc')
            a(f'v_mov_b32_dpp {vr(vPK+4*s+2)}, {vr(vT)} row_ror:8 row_mask:0xf bank_mask:0x3')
            a(f'v_mov_b32_dpp {vr(vPK+4*s+3)}, {vr(vT+1)} row_ror:8 row_mask:0xf bank_mask:0x3')
        a('s_nop 1')
        for s in range(4):
            a(f'v_mfma_f32_16x16x32_bf16 {vr(vS,4)}, {vr(vPK+4*s,4)}, {vr(vQB+4*s,4)}, {vr(vS,4)}')
        a('s_nop 7')
        a(f's_mov_b64 exec, {sr(sQuad,2)}')
        a(f'ds_write_b128 {vr(vSa)}, {vr(vS,4)}')
        a('s_mov_b64 exec, -1')
        a(f'v_max3_f32 {vr(vM)}, {vr(vS)}, {vr(vS+1)}, {vr(vM)}')
        a(f'v_max3_f32 {vr(vM)}, {vr(vS+2)}, {vr(vS+3)}, {vr(vM)}')
        a(f'v_add_u32 {vr(vSa)}, 256, {vr(vSa)}')

    vF = vQB
    vLw = vQB + 8
    vZw = vQc
    vMx, vLs, vZs = vKs, vKs + 1, vKs + 2
    def early_publish():
        a(f'v_mov_b32 {vr(vT+1)}, {vr(vL)}')
        a('s_nop 1')
        a(f'v_permlane16_swap_b32 {vr(vL)}, {vr(vT+1)}')
        a(f'v_add_f32 {vr(vL)}, {vr(vL)}, {vr(vT+1)}')
        a(f'v_mov_b32 {vr(vT+1)}, {vr(vL)}')
        a('s_nop 1')
        a(f'v_permlane32_swap_b32 {vr(vL)}, {vr(vT+1)}')
        a(f'v_add_f32 {vr(vL)}, {vr(vL)}, {vr(vT+1)}')
        a(f's_lshl_b32 {sr(sT1)}, {sr(sWave)}, 2')
        a(f's_add_u32 {sr(sT1)}, {sr(sT1)}, {MB}')
        a(f'v_mul_u32_u24 {vr(vT+2)}, {RS}, {vr(vLane)}')
        a(f'v_add_u32 {vr(vT+2)}, {sr(sT1)}, {vr(vT+2)}')
        a('s_mov_b64 exec, 0xf')
        a(f'ds_write_b32 {vr(vT+2)}, {vr(vM)}')
        a(f'ds_write_b32 {vr(vT+2)}, {vr(vL)} offset:{4*RS}')
        a('s_mov_b64 exec, 1')
        for r in range(4):
            a(f'ds_write_b32 {vr(vT+2)}, {vr(vAz+r)} offset:{8*RS+r*RS}')
        a('s_mov_b64 exec, -1')
        a(f'v_and_b32 {vr(vT)}, 3, v0')
        a(f'v_mul_u32_u24 {vr(vT)}, {RS}, {vr(vT)}')
        a(f'v_add_u32 {vr(vT)}, {MB}, {vr(vT)}')
        a('s_waitcnt lgkmcnt(0)')
        a('s_barrier')
        for k in range(nw // 4):
            a(f'ds_read_b128 {vr(vF+4*k,4)}, {vr(vT)} offset:{16*k}')
            a(f'ds_read_b128 {vr(vLw+4*k,4)}, {vr(vT)} offset:{4*RS+16*k}')
            a(f'ds_read_b128 {vr(vZw+4*k,4)}, {vr(vT)} offset:{8*RS+16*k}')
        a('s_waitcnt lgkmcnt(0)')
        a(f'v_max3_f32 {vr(vMx)}, {vr(vF)}, {vr(vF+1)}, {vr(vF+2)}')
        for w in range(3, nw): a(f'v_max_f32 {vr(vMx)}, {vr(vMx)}, {vr(vF+w)}')
        for w in range(nw): a(f'v_sub_f32 {vr(vF+w)}, {vr(vF+w)}, {vr(vMx)}')
        for w in range(nw): a(f'v_exp_f32 {vr(vF+w)}, {vr(vF+w)}')
        a('s_nop 0')
        a(f'v_mul_f32 {vr(vLs)}, {vr(vF)}, {vr(vLw)}')
        a(f'v_mul_f32 {vr(vZs)}, {vr(vF)}, {vr(vZw)}')
        for w in range(1, nw):
            a(f'v_fmac_f32 {vr(vLs)}, {vr(vF+w)}, {vr(vLw+w)}')
            a(f'v_fmac_f32 {vr(vZs)}, {vr(vF+w)}, {vr(vZw+w)}')

    def vstep(pf, rv=None, first=False):
        if rv is None: rv = 4 if roll in (1, 3) else 0
        vVs_, vVz_, vR_ = (vVs0, vVz0, vRB) if first else (vVs, vVz, vR)
        f = vT + 4
        a('s_waitcnt lgkmcnt(0)' if first else 's_waitcnt vmcnt(8) lgkmcnt(0)')
        a(f'v_lshlrev_b32 {vr(f)}, 16, {vr(vVs_)}')
        a(f'v_and_b32 {vr(f+1)}, {sr(sMask)}, {vr(vVs_)}')
        a(f'v_lshlrev_b32 {vr(f+2)}, 16, {vr(vVs_+1)}')
        a(f'v_and_b32 {vr(f+3)}, {sr(sMask)}, {vr(vVs_+1)}')
        for r in range(4): a(f'v_sub_f32 {vr(vS+r)}, {vr(vS+r)}, {vr(vM)}')
        for r in range(4): a(f'v_exp_f32 {vr(vS+r)}, {vr(vS+r)}')
        a('s_nop 0')
        a(f'v_add_f32 {vr(vT)}, {vr(vS)}, {vr(vS+1)}')
        a(f'v_add_f32 {vr(vT+1)}, {vr(vS+2)}, {vr(vS+3)}')
        for r in range(4): a(f'v_mul_f32 {vr(vS+r)}, {vr(vS+r)}, {vr(f+r)}')
        a(f'v_add_f32 {vr(vL)}, {vr(vL)}, {vr(vT)}')
        a(f'v_cvt_pk_bf16_f32 {vr(vP)}, {vr(vS)}, {vr(vS+1)}')
        a(f'v_cvt_pk_bf16_f32 {vr(vP+1)}, {vr(vS+2)}, {vr(vS+3)}')
        a(f'v_add_f32 {vr(vL)}, {vr(vL)}, {vr(vT+1)}')
        a('s_nop 0')
        a(f'v_mfma_f32_16x16x16_bf16 {vr(vAz,4)}, {vr(vP,2)}, {vr(vVz_,2)}, {vr(vAz,4)}')
        if pf == 'U':
            a(f's_cmp_eq_u32 {sr(sCnt)}, 0')
            a('s_cbranch_scc1 L_vlast')
            next_off()
            offsV(); ld_vs()
            a(f'v_add_u32 {vr(vSa)}, 256, {vr(vSa)}')
            a(f'ds_read_b128 {vr(vS,4)}, {vr(vSa)}')
            a('L_vlast_back:')
        elif first:
            a(f'v_add_u32 {vr(vSa)}, 256, {vr(vSa)}')
            a(f'ds_read_b128 {vr(vS,4)}, {vr(vSa)}')
        elif pf:
            next_off()
            offsV(); ld_vs()
            a(f'v_add_u32 {vr(vSa)}, 256, {vr(vSa)}')
            a(f'ds_read_b128 {vr(vS,4)}, {vr(vSa)}')
        else:
            early_publish()
        def vpair(p):
            jp, h = p >> 1, p & 1
            for c in range(4):
                r0, r1 = vR_ + 8 * p + c, vR_ + 8 * p + 4 + c
                a(f'v_cvt_f32_i32 {vr(r0)}, {vr(r0)}')
                a(f'v_cvt_f32_i32 {vr(r1)}, {vr(r1)}')
                a(f'v_cvt_pk_bf16_f32 {vr(vPK+2*(4*h+c)+jp)}, {vr(r0)}, {vr(r1)}')
        if pf == 'U':
            a('s_waitcnt vmcnt(6)'); vpair(0); vpair(1)
            a('s_waitcnt vmcnt(2)'); vpair(2); vpair(3)
            a(f's_cmp_eq_u32 {sr(sCnt)}, 0')
            a('s_cbranch_scc1 L_vnoload')
            ld_V()
            a('L_vnoload:')
            a('s_nop 0')
        elif first:
            for p in range(4): vpair(p)
            a('s_nop 1')
        elif not pf:
            for p in range(4):
                a(f's_waitcnt vmcnt({6-2*p})'); vpair(p)
            a('s_nop 1')
        else:
            for p in range(rv):
                a('s_waitcnt vmcnt(8)')
                vpair(p); ld_V1(2*p); ld_V1(2*p+1)
            if rv < 4:
                if rv <= 1:
                    a(f's_waitcnt vmcnt({2+2*rv+4})')
                    for p in range(rv, 2): vpair(p)
                    a(f's_waitcnt vmcnt({2+2*rv})')
                    for p in range(2, 4): vpair(p)
                else:
                    a(f's_waitcnt vmcnt({2+2*rv})')
                    for p in range(rv, 4): vpair(p)
                for k in range(2*rv, 8): ld_V1(k)
        for i in range(8):
            a(f'v_mfma_f32_16x16x16_bf16 {vr(vAcc+4*i,4)}, {vr(vP,2)}, {vr(vPK+2*i,2)}, {vr(vAcc+4*i,4)}')

    if unify:
        assert not (pre0 or vlate or roll or rkO or rvO or rkE or rvE)
        a('L_kloop:')
        kstep('U', 0)
        if kbar: a('s_barrier')
        a(f's_sub_u32 {sr(sCnt)}, {sr(sCnt)}, 1')
        a('s_cbranch_scc0 L_kloop')
    else:
        split = (rkO, rvO) != (rkE, rvE)
        if split:
            a(f's_getreg_b32 {sr(sOdd)}, hwreg(HW_REG_XCC_ID)')
            a(f's_and_b32 {sr(sOdd)}, {sr(sOdd)}, 1')
        def kloop(tag, rk):
            a(f'L_kloop{tag}:')
            kstep('K', rk)
            if kbar: a('s_barrier')
            a(f's_sub_u32 {sr(sCnt)}, {sr(sCnt)}, 1')
            a(f's_cmp_lg_u32 {sr(sCnt)}, 0')
            a(f's_cbranch_scc1 L_kloop{tag}')
        if split and rkO != rkE:
            a(f's_cmp_lg_u32 {sr(sOdd)}, 0'); a('s_cbranch_scc1 L_kloopO')
            kloop('E', rkE); a('s_branch L_kdone')
            kloop('O', rkO); a('L_kdone:')
        else:
            kloop('', rkE if split or rkE else None)
        kstep('V')
        if kbar: a('s_barrier')
    stamp(2)
    a(f'v_subrev_u32 {vr(vSa)}, {NT*256}, {vr(vSa)}')
    a(f'v_mov_b32 {vr(vT+1)}, {vr(vM)}')
    a(f'ds_read_b128 {vr(vS,4)}, {vr(vSa)}')
    a('s_nop 0')
    a(f'v_permlane16_swap_b32 {vr(vM)}, {vr(vT+1)}')
    a(f'v_max_f32 {vr(vM)}, {vr(vM)}, {vr(vT+1)}')
    a(f'v_mov_b32 {vr(vT+1)}, {vr(vM)}')
    a('s_nop 1')
    a(f'v_permlane32_swap_b32 {vr(vM)}, {vr(vT+1)}')
    a(f'v_max_f32 {vr(vM)}, {vr(vM)}, {vr(vT+1)}')
    nv = NT - 1 - (1 if pre0 else 0)
    a(f's_mov_b32 {sr(sCnt)}, {nv}')
    if unify:
        a('L_vloop:')
        vstep('U', 0)
        if vbar: a('s_barrier')
        a(f's_sub_u32 {sr(sCnt)}, {sr(sCnt)}, 1')
        a('s_cbranch_scc0 L_vloop')
    else:
        if pre0: vstep(1, 0, True)
        if vlate: a(f's_mov_b32 {sr(sCnt)}, {nv-vlate}')
        def vloop(tag, rv):
            a(f'L_vloop{tag}:')
            vstep(1, rv)
            if vbar: a('s_barrier')
            a(f's_sub_u32 {sr(sCnt)}, {sr(sCnt)}, 1')
            a(f's_cmp_lg_u32 {sr(sCnt)}, 0')
            a(f's_cbranch_scc1 L_vloop{tag}')
        if split and rvO != rvE:
            a(f's_cmp_lg_u32 {sr(sOdd)}, 0'); a('s_cbranch_scc1 L_vloopO')
            vloop('E', rvE); a('s_branch L_vdone')
            vloop('O', rvO); a('L_vdone:')
        else:
            vloop('', rvE if split or rvE else None)
        if vlate:
            a(f's_mov_b32 {sr(sCnt)}, {vlate}')
            a('L_vloop2:')
            vstep(1, 4)
            if vbar: a('s_barrier')
            a(f's_sub_u32 {sr(sCnt)}, {sr(sCnt)}, 1')
            a(f's_cmp_lg_u32 {sr(sCnt)}, 0')
            a('s_cbranch_scc1 L_vloop2')
        vstep(0)
    stamp(3)
    a(f's_lshl_b32 {sr(sT0)}, {sr(sWave)}, 11')
    a(f's_add_u32 {sr(sT0)}, {sr(sT0)}, {OB}')
    a(f'v_add_u32 {vr(vT)}, {sr(sT0)}, {vr(vKsOff)}')
    a(f'v_lshlrev_b32 {vr(vT+1)}, 2, v0')
    a(f'v_add_u32 {vr(vT+2)}, {OB}, {vr(vT+1)}')
    a('s_mov_b64 exec, 0xffff')
    a('s_nop 1')
    for i in range(8):
        a(f'ds_write_b128 {vr(vT)}, {vr(vAcc+4*i,4)} offset:{i*256}')
    a('s_mov_b64 exec, -1')
    if idmap == 0: a(f's_mul_i32 {sr(sT1)}, s2, {PSTRIDE}')
    else:
        a(f's_lshl_b32 {sr(sT1)}, {sr(sHk)}, 4'); a(f's_add_u32 {sr(sT1)}, {sr(sT1)}, {sr(sJ)}'); a(f's_mul_i32 {sr(sT1)}, {sr(sT1)}, {PSTRIDE}')
    a(f's_add_u32 {sr(srdT)}, {sr(ws_)}, {sr(sT1)}')
    a(f's_addc_u32 {sr(srdT+1)}, {sr(ws_+1)}, 0')
    a(f's_and_b32 {sr(srdT+1)}, {sr(srdT+1)}, 0xffff')
    a(f's_mov_b32 {sr(srdT+2)}, {PSTRIDE}')
    a(f's_mov_b32 {sr(srdT+3)}, 0x20000')
    a('s_waitcnt lgkmcnt(0)')
    a('s_barrier')
    vOw = vR
    vRes = vR + 16
    vPo = vSa
    for ch in range(nch):
        for w in range(nw):
            a(f'ds_read_b32 {vr(vOw+ch*nw+w)}, {vr(vT+2)} offset:{w*2048+ch*nthr*4}')
    for ch in range(nch):
        a(f's_waitcnt lgkmcnt({(nch-1-ch)*nw})')
        a(f'v_fma_f32 {vr(vRes+ch)}, {vr(vF)}, {vr(vOw+ch*nw)}, -{vr(vZs)}')
        for w in range(1, nw):
            a(f'v_fmac_f32 {vr(vRes+ch)}, {vr(vF+w)}, {vr(vOw+ch*nw+w)}')
    stamp(4)
    if nch == 1 or not x2:
        for ch in range(nch):
            a(f'buffer_store_dword {vr(vRes+ch)}, {vr(vT+1)}, {sr(srdT,4)}, 0 offen offset:{ch*nthr*4} sc1')
    else:
        a(f'v_lshlrev_b32 {vr(vPo)}, 3, v0')
        a(f'buffer_store_dwordx2 {vr(vRes,2)}, {vr(vPo)}, {sr(srdT,4)}, 0 offen sc1')
    a('v_cmp_gt_u32 vcc, 4, v0')
    a(f's_and_saveexec_b64 {sr(sEx,2)}, vcc')
    a('s_cbranch_execz L_nost')
    a(f'buffer_store_dword {vr(vMx)}, {vr(vT+1)}, {sr(srdT,4)}, 0 offen offset:2048 sc1')
    a(f'buffer_store_dword {vr(vLs)}, {vr(vT+1)}, {sr(srdT,4)}, 0 offen offset:2064 sc1')
    a('L_nost:')
    a(f's_mov_b64 exec, {sr(sEx,2)}')
    a(f's_mov_b32 {sr(srdKS)}, {sr(dbg_)}')
    a(f's_and_b32 {sr(srdKS+1)}, {sr(dbg_+1)}, 0xffff')
    a(f's_mov_b32 {sr(srdKS+2)}, 256')
    a(f's_lshl_b32 {sr(sOffG)}, {sr(sHk)}, {cshift}')
    if coff: a(f's_add_u32 {sr(sOffG)}, {sr(sOffG)}, {coff}')
    a(f's_mul_i32 {sr(sT1)}, {sr(sHk)}, {P*PSTRIDE}')
    a(f's_add_u32 {sr(srdV)}, {sr(ws_)}, {sr(sT1)}')
    a(f's_addc_u32 {sr(srdV+1)}, {sr(ws_+1)}, 0')
    a(f's_and_b32 {sr(srdV+1)}, {sr(srdV+1)}, 0xffff')
    a(f's_mov_b32 {sr(srdV+2)}, {P*PSTRIDE}')
    a(f's_lshl_b32 {sr(sT1)}, {sr(sHk)}, 10')
    a(f's_add_u32 {sr(srdK)}, {sr(o_)}, {sr(sT1)}')
    a(f's_addc_u32 {sr(srdK+1)}, {sr(o_+1)}, 0')
    a(f's_and_b32 {sr(srdK+1)}, {sr(srdK+1)}, 0xffff')
    a(f's_mov_b32 {sr(srdK+2)}, 1024')
    vML = vT + 2; vBp = vT + 3; vOa = vT + 4
    a(f'v_and_b32 {vr(vBp)}, 3, {vr(vLane)}')
    a(f'v_lshlrev_b32 {vr(vBp)}, 6, {vr(vBp)}')
    a(f'v_and_b32 {vr(vML)}, 15, {vr(vLane)}')
    a(f'v_lshlrev_b32 {vr(vML)}, 12, {vr(vML)}')
    a(f'v_lshrrev_b32 {vr(vT+6)}, 4, {vr(vLane)}')
    a(f'v_lshl_add_u32 {vr(vML)}, {vr(vT+6)}, 2, {vr(vML)}')
    for ch in range(nch):
        e, x, y = vT + 6, vOa + ch, vT + 7
        a(f'v_add_u32 {vr(e)}, {ch*nthr}, v0')
        a(f'v_and_b32 {vr(x)}, 3, {vr(e)}'); a(f'v_lshlrev_b32 {vr(x)}, 7, {vr(x)}')
        a(f'v_lshrrev_b32 {vr(y)}, 8, {vr(e)}'); a(f'v_lshl_add_u32 {vr(x)}, {vr(y)}, 6, {vr(x)}')
        a(f'v_bfe_u32 {vr(y)}, {vr(e)}, 2, 4'); a(f'v_lshl_add_u32 {vr(x)}, {vr(y)}, 2, {vr(x)}')
        a(f'v_bfe_u32 {vr(y)}, {vr(e)}, 6, 2'); a(f'v_add_u32 {vr(x)}, {vr(x)}, {vr(y)}')
        a(f'v_lshlrev_b32 {vr(x)}, 1, {vr(x)}')
    a(f'v_mov_b32 {vr(vT+6)}, {TK}')
    a('s_waitcnt vmcnt(0)')
    stamp(5)
    a('s_barrier')
    a(f's_cmp_lg_u32 {sr(sWave)}, 0')
    a('s_cbranch_scc1 L_noat')
    a('s_mov_b64 exec, 1')
    a(f'v_mov_b32 {vr(vT+7)}, 1')
    a(f'v_mov_b32 {vr(vT)}, 0')
    a(f'buffer_atomic_add {vr(vT+7)}, {vr(vT)}, {sr(srdKS,4)}, {sr(sOffG)} offen sc0')
    a('s_waitcnt vmcnt(0)')
    a(f'ds_write_b32 {vr(vT+6)}, {vr(vT+7)}')
    a('s_mov_b64 exec, -1')
    a('s_waitcnt lgkmcnt(0)')
    a('L_noat:')
    a('s_barrier')
    a(f'ds_read_b32 {vr(vT+7)}, {vr(vT+6)}')
    a('s_waitcnt lgkmcnt(0)')
    a(f'v_readfirstlane_b32 {sr(sT0)}, {vr(vT+7)}')
    a('s_nop 3')
    stamp(6)
    a(f's_cmp_lg_u32 {sr(sT0)}, {P-1}')
    if dry:
        a('s_cbranch_scc0 L_merge')
        a('s_mov_b64 exec, 0')
        a('L_merge:')
    else:
        a('s_cbranch_scc1 L_notlast')
    cM, cL, x, y = vQB, vQB + 1, vQB + 2, vQB + 3
    cW = vPK
    cO = vR if nch == 1 else vAcc
    nsk = [0]
    def skip_begin():
        if dry: a(f's_cbranch_execz L_sk{nsk[0]}')
    def skip_end():
        if dry: a(f'L_sk{nsk[0]}:'); nsk[0] += 1
    skip_begin()
    a(f'buffer_load_dword {vr(cM)}, {vr(vML)}, {sr(srdV,4)}, 0 offen offset:2048 sc1')
    a(f'buffer_load_dword {vr(cL)}, {vr(vML)}, {sr(srdV,4)}, 0 offen offset:2064 sc1')
    for w in range(P):
        if dry and w % 2 == 0 and w > 0:
            skip_end(); skip_begin()
        a(f's_mov_b32 {sr(sT1)}, {w*PSTRIDE}')
        if nch == 1: a(f'buffer_load_dword {vr(cO+w)}, {vr(vT+1)}, {sr(srdV,4)}, {sr(sT1)} offen sc1')
        elif not x2:
            for ch in range(nch): a(f'buffer_load_dword {vr(cO+2*w+ch)}, {vr(vT+1)}, {sr(srdV,4)}, {sr(sT1)} offen offset:{ch*nthr*4} sc1')
        else: a(f'buffer_load_dwordx2 {vr(cO+2*w,2)}, {vr(vPo)}, {sr(srdV,4)}, {sr(sT1)} offen sc1')
    skip_end()
    a(f's_waitcnt vmcnt({P if (nch == 1 or x2) else nch*P})')
    def allreduce(reg, op):
        for k in (1, 2, 4, 8):
            a('s_nop 1')
            a(f'{op}_dpp {vr(reg)}, {vr(reg)}, {vr(reg)} row_ror:{k} row_mask:0xf bank_mask:0xf')
    a(f'v_mov_b32 {vr(x)}, {vr(cM)}')
    allreduce(x, 'v_max_f32')
    a(f'v_sub_f32 {vr(cM)}, {vr(cM)}, {vr(x)}')
    a(f'v_exp_f32 {vr(cM)}, {vr(cM)}')
    a('s_nop 0')
    a(f'v_mul_f32 {vr(x)}, {vr(cM)}, {vr(cL)}')
    allreduce(x, 'v_add_f32')
    a(f'v_rcp_f32 {vr(cL)}, {vr(x)}')
    a('s_nop 0')
    a(f'v_mul_f32 {vr(cM)}, {vr(cM)}, {vr(cL)}')
    for w in range(P):
        a(f'ds_bpermute_b32 {vr(cW+w)}, {vr(vBp)}, {vr(cM)} offset:{4*w}')
    a('s_waitcnt vmcnt(0) lgkmcnt(0)')
    for ch in range(nch):
        o = (lambda w: cO + w) if nch == 1 else (lambda w: cO + 2 * w + ch)
        a(f'v_mul_f32 {vr(x)}, {vr(cW)}, {vr(o(0))}')
        for w in range(1, P): a(f'v_fmac_f32 {vr(x)}, {vr(cW+w)}, {vr(o(w))}')
        a(f'v_cvt_pk_bf16_f32 {vr(x)}, {vr(x)}, {vr(x)}')
        skip_begin()
        a(f'buffer_store_short {vr(x)}, {vr(vOa+ch)}, {sr(srdK,4)}, 0 offen {opol}')
        skip_end()
    if dbgprof:
        a('s_waitcnt vmcnt(0)')
        a(f's_cmp_lg_u32 {sr(sWave)}, 0')
        a('s_cbranch_scc1 L_end')
        stamp(7)
        a(f's_memtime {sr(sTm+2,2)}')
        a('s_waitcnt lgkmcnt(0)')
        a('s_mov_b64 exec, 1')
        a(f'v_mov_b32 {vr(vT)}, 0')
        for i in range(1, 8):
            a(f's_sub_u32 {sr(sT0)}, {sr(sSt+2*i)}, {sr(sSt)}')
            a(f'v_mov_b32 {vr(vR+i)}, {sr(sT0)}')
        for i in range(1, 8):
            a(f'buffer_atomic_umax {vr(vR+i)}, {vr(vT)}, {sr(srdKS,4)}, 0 offen offset:{4*i}')
    a('L_notlast:')
    if dry and prof: a('s_mov_b64 exec, -1')
    if prof == 2:
        a('s_waitcnt vmcnt(0)')
        stamp(7)
        a(f's_memtime {sr(sTm+2,2)}')
        a('s_waitcnt lgkmcnt(0)')
        a(f's_cmp_lg_u32 {sr(sWave)}, 0')
        a('s_cbranch_scc1 L_end')
        a(f's_add_u32 {sr(srdT)}, {sr(ws_)}, 0x4000000')
        a(f's_addc_u32 {sr(srdT+1)}, {sr(ws_+1)}, 0')
        a(f's_and_b32 {sr(srdT+1)}, {sr(srdT+1)}, 0xffff')
        a(f's_mov_b32 {sr(srdT+2)}, 0x100000')
        a(f's_lshl_b32 {sr(sT1)}, s2, 6')
        for i in range(8): a(f'v_mov_b32 {vr(vR+i)}, {sr(sSt+2*i)}')
        a(f's_getreg_b32 {sr(sT0)}, hwreg(HW_REG_XCC_ID)')
        a(f'v_mov_b32 {vr(vR+8)}, {sr(sT0)}')
        a(f's_getreg_b32 {sr(sT0)}, hwreg(HW_REG_HW_ID)')
        a(f'v_mov_b32 {vr(vR+9)}, {sr(sT0)}')
        a(f's_sub_u32 {sr(sT0)}, {sr(sTm+2)}, {sr(sTm)}')
        a(f'v_mov_b32 {vr(vR+10)}, {sr(sT0)}')
        a(f'v_mov_b32 {vr(vT)}, 0')
        a('s_mov_b64 exec, 1')
        a(f'buffer_store_dwordx4 {vr(vR,4)}, {vr(vT)}, {sr(srdT,4)}, {sr(sT1)} offen')
        a(f'buffer_store_dwordx4 {vr(vR+4,4)}, {vr(vT)}, {sr(srdT,4)}, {sr(sT1)} offen offset:16')
        a(f'buffer_store_dwordx4 {vr(vR+8,4)}, {vr(vT)}, {sr(srdT,4)}, {sr(sT1)} offen offset:32')
    if padto:
        a('s_waitcnt vmcnt(0) lgkmcnt(0)')
        a('L_pad:')
        a(f's_memrealtime {sr(sTm+2,2)}')
        a('s_waitcnt lgkmcnt(0)')
        a(f's_sub_u32 {sr(sT0)}, {sr(sTm+2)}, {sr(sTm)}')
        a(f's_cmp_lt_u32 {sr(sT0)}, {padto}')
        a('s_cbranch_scc1 L_pad')
    a('L_end:')
    a('s_endpgm')
    if unify:
        a('L_k2v_small:')
        first_off()
        offsV(); ld_vs()
        a('s_branch L_k2v_small_back')
        a('L_k2v_big:')
        ld_V()
        a('s_branch L_k2v_big_back')
        a('L_vlast:')
        ld_vs()
        early_publish()
        a('s_branch L_vlast_back')
    main = '\n'.join(out)
    acc = min(256, (nvgpr + 3) // 4 * 4)
    kd = f'''.amdhsa_kernel {KN}
  .amdhsa_next_free_vgpr {nvgpr}
  .amdhsa_next_free_sgpr {S.n}
  .amdhsa_accum_offset {acc}
  .amdhsa_group_segment_fixed_size 0
  .amdhsa_kernarg_size 80
  .amdhsa_user_sgpr_count 2
  .amdhsa_user_sgpr_kernarg_segment_ptr 1
  .amdhsa_system_sgpr_workgroup_id_x 1
  .amdhsa_float_denorm_mode_32 3
.end_amdhsa_kernel
'''
    src = HEADCOMMENT + f'; @launch grid=({nwg},1,1) block=({nthr},1,1) lds={lds_bytes}\n'
    src += '.amdgcn_target "amdgcn-amd-amdhsa--gfx950"\n.text\n'
    src += f'.globl {KN}\n.p2align 8\n.type {KN},@function\n{main}\n'
    src += '.section .rodata,"a"\n.p2align 6\n' + kd
    return src, [(KN, nwg, nthr, lds_bytes)]

if __name__ == '__main__':
    import argparse
    ap = argparse.ArgumentParser()
    ap.add_argument('-o', default='out.s')
    ap.add_argument('kv', nargs='*')
    args = ap.parse_args()
    kw = {}
    for x in args.kv:
        k, v = x.split('=')
        try: v = int(v)
        except ValueError: pass
        kw[k] = v
    src, l = gen(**kw)
    open(args.o, 'w').write(src)
    print(l)
```
